```python
import torch

def _softmax(x, axis=-1):
    return torch.softmax(x, dim=axis)
def _gelu(x):
    return torch.nn.functional.gelu(x, approximate="tanh")
def _silu(x):
    return torch.nn.functional.silu(x)
def _sigmoid(x):
    return torch.sigmoid(x)
def _layernorm(x, axis=-1, eps=1e-5):
    m = x.mean(dim=axis, keepdim=True)
    v = x.var(dim=axis, keepdim=True, unbiased=False)
    return (x - m) / torch.sqrt(v + eps)
def _scatter_add(tgt, idx, src, axis=0):
    return tgt.clone().index_add_(axis, idx, src)
def _segment_sum(src, seg, n):
    out = torch.zeros((n,) + src.shape[1:], dtype=src.dtype)
    return out.index_add_(0, seg, src)
def _pad(x, pw):
    flat = tuple(v for pair in reversed(pw) for v in pair)
    return torch.nn.functional.pad(x, flat)

kernel_name = 'parallel_sum__softmax_full_mha__glu_gated_swiglu__prompt'

def setup_inputs():

    _w = (lambda a: (lambda t: t.to(torch.bfloat16) if t.is_floating_point() else t)(torch.as_tensor(a)))
    def _A_setup():
        B, S, D = 1, 2048, 640
        return {
            "x": _w((lambda *s: torch.randn(*s, dtype=torch.bfloat16) * 0.05)(B, S, D)),
            "wqkv": _w((lambda *s: torch.randn(*s, dtype=torch.bfloat16) * 0.05)(D, 3 * D)),
            "wo": _w((lambda *s: torch.randn(*s, dtype=torch.bfloat16) * 0.05)(D, D)),
        }
    _A_in = _A_setup()

    def _B_setup():
        B, S, D, F = 1, 2048, 640, 1536
        return {
            "x": _w((lambda *s: torch.randn(*s, dtype=torch.bfloat16) * 0.05)(B, S, D)),
            "w1": _w((lambda *s: torch.randn(*s, dtype=torch.bfloat16) * 0.4)(D, F) * (2.0 / D) ** 0.5),
            "w3": _w((lambda *s: torch.randn(*s, dtype=torch.bfloat16) * 0.4)(D, F) * (2.0 / D) ** 0.5),
            "w2": _w((lambda *s: torch.randn(*s, dtype=torch.bfloat16) * 0.4)(F, D) * (2.0 / F) ** 0.5),
        }
    _B_in = _B_setup()

    return {
        "A_x": _A_in["x"],
        "A_wqkv": _A_in["wqkv"],
        "A_wo": _A_in["wo"],
        "B_x": _B_in["x"],
        "B_w1": _B_in["w1"],
        "B_w3": _B_in["w3"],
        "B_w2": _B_in["w2"],
    }

def reference(A_x, A_wqkv, A_wo, B_x, B_w1, B_w3, B_w2):
    def _A_ref(x, wqkv, wo):
        B, S, D = x.shape
        H = 32; Dh = D // H
        qkv = (lambda x, *d: x.permute(*d))((x @ wqkv).reshape(B, S, 3, H, Dh), 2, 0, 3, 1, 4)
        q, k, v = qkv[0], qkv[1], qkv[2]
        scale = Dh ** -0.5
        scores = torch.einsum("bhqd,bhkd->bhqk", q, k) * scale
        p = _softmax(scores, axis=-1)
        o = torch.einsum("bhqk,bhkd->bhqd", p, v)
        return (lambda x, *d: x.permute(*d))(o, 0, 2, 1, 3).reshape(B, S, D) @ wo

    def _B_ref(x, w1, w3, w2):
        gate = torch.einsum("bsd,df->bsf", x, w1)
        up = torch.einsum("bsd,df->bsf", x, w3)
        h = _silu(gate) * up
        out = torch.einsum("bsf,fd->bsd", h, w2)
        return out

    x = A_x
    xn = _layernorm(x, axis=-1)
    return x + _A_ref(xn, A_wqkv, A_wo) + _B_ref(xn, B_w1, B_w3, B_w2)
```

```python
class Kern:
    def __init__(self, name, grid, block, lds, vgpr=256, sgpr=100):
        self.name = name; self.grid = grid; self.block = block; self.lds = lds
        self.vgpr = vgpr; self.sgpr = sgpr
        self.L = []
        self._lab = 0
    def __call__(self, s):
        for line in s.split("\n"):
            line = line.strip()
            if line:
                self.L.append("    " + line)
    def label(self, l):
        self.L.append(f"{l}:")
    def newlabel(self, base):
        self._lab += 1
        return f"L_{self.name}_{base}_{self._lab}"
    def comment(self, s):
        self.L.append(f"    ; {s}")
    def srd(self, d, base_lo, base_hi, nbytes, off=0):
        if off:
            self(f"s_add_u32 s{d}, s{base_lo}, {off}")
            self(f"s_addc_u32 s{d+1}, s{base_hi}, 0")
        else:
            self(f"s_mov_b32 s{d}, s{base_lo}")
            self(f"s_mov_b32 s{d+1}, s{base_hi}")
        self(f"s_mov_b32 s{d+2}, {nbytes}")
        self(f"s_mov_b32 s{d+3}, 0x00020000")
    def text(self):
        n = self.name
        return (f".globl {n}\n.p2align 8\n.type {n},@function\n{n}:\n" + "\n".join(self.L) + "\n")
    def desc(self):
        acc = (self.vgpr + 3) // 4 * 4
        return (f".p2align 6\n.amdhsa_kernel {self.name}\n"
                f"  .amdhsa_next_free_vgpr {self.vgpr}\n"
                f"  .amdhsa_next_free_sgpr {self.sgpr}\n"
                f"  .amdhsa_accum_offset {acc}\n"
                f"  .amdhsa_group_segment_fixed_size 0\n"
                f"  .amdhsa_kernarg_size 80\n"
                f"  .amdhsa_user_sgpr_count 2\n"
                f"  .amdhsa_user_sgpr_kernarg_segment_ptr 1\n"
                f"  .amdhsa_system_sgpr_workgroup_id_x 1\n"
                f".end_amdhsa_kernel\n")

def vr(a, n):
    return f"v[{a}:{a+n-1}]" if n > 1 else f"v{a}"
def sr(a, n):
    return f"s[{a}:{a+n-1}]" if n > 1 else f"s{a}"

HEADER = """; Kernarg layout for this problem (80 bytes, ptrs only, base s[0:1]):
"""

def build(kernels, single=False):
    out = HEADER
    if single:
        k = kernels[0]
        out += f"; @launch grid=({k.grid},1,1) block=({k.block},1,1) lds={k.lds}\n"
    else:
        for k in kernels:
            out += f"; @launch kernel={k.name} grid=({k.grid},1,1) block=({k.block},1,1) lds={k.lds}\n"
    out += '.amdgcn_target "amdgcn-amd-amdhsa--gfx950"\n.text\n'
    for k in kernels:
        out += k.text()
    out += '.section .rodata,"a"\n'
    for k in kernels:
        out += k.desc()
    return out
```

```python
import sys, math, struct
from asmlib import *

SZ = 2621440
WS_XF, WS_QP, WS_KP, WS_VI, WS_OF, WS_HF = 0, SZ, 2*SZ, 3*SZ, 4*SZ, 5*SZ
HF_SZ = 2048*1536*2
def f32(x): return "0x%08x" % struct.unpack("<I", struct.pack("<f", x))[0]
LOG2E = math.log2(math.e)
QSCALE = 20 ** -0.5 * LOG2E

def mfma(d, a, b, c=None):
    cs = vr(d, 16) if c is None else c
    return f"v_mfma_f32_32x32x16_bf16 {vr(d,16)}, {vr(a,4)}, {vr(b,4)}, {cs}"

def ln_kernel():
    k = Kern("ln_kernel", 256, 128, 0, vgpr=96, sgpr=40)
    k("s_cmp_ge_u32 s2, 256\ns_cbranch_scc1 L_ln_end")
    k("s_load_dwordx2 s[4:5], s[0:1], 0\ns_load_dwordx2 s[6:7], s[0:1], 72")
    k("""v_lshrrev_b32 v1, 6, v0
    v_lshlrev_b32 v1, 2, v1
    v_and_b32 v2, 3, v0
    v_add_u32 v1, v1, v2
    s_lshl_b32 s3, s2, 3
    v_add_u32 v1, s3, v1
    v_bfe_u32 v2, v0, 2, 4
    v_mul_u32_u24 v3, 1280, v1
    v_lshl_add_u32 v3, v2, 4, v3
    v_lshrrev_b32 v4, 5, v1
    v_mul_u32_u24 v4, 40960, v4
    v_lshl_add_u32 v4, v2, 9, v4
    v_and_b32 v5, 31, v1
    v_lshl_add_u32 v4, v5, 4, v4
    s_waitcnt lgkmcnt(0)""")
    k.srd(8, 4, 5, SZ)
    k.srd(12, 6, 7, SZ, WS_XF)
    for i in range(5):
        k(f"buffer_load_dwordx4 {vr(8+4*i,4)}, v3, s[8:11], 0 offen offset:{i*256}")
    X = 32
    for i in range(5):
        k(f"s_waitcnt vmcnt({4-i})")
        for j in range(4):
            k(f"v_lshlrev_b32 v{X+8*i+2*j}, 16, v{8+4*i+j}")
            k(f"v_and_b32 v{X+8*i+2*j+1}, 0xffff0000, v{8+4*i+j}")
    def reduce(v, t):
        k(f"s_nop 1\nv_add_f32_dpp v{v}, v{v}, v{v} row_ror:4 row_mask:0xf bank_mask:0xf")
        k(f"s_nop 1\nv_add_f32_dpp v{v}, v{v}, v{v} row_ror:8 row_mask:0xf bank_mask:0xf")
        k(f"v_mov_b32 v{t}, v{v}\ns_nop 1\nv_permlane16_swap_b32 v{v}, v{t}\ns_nop 1\nv_add_f32 v{v}, v{v}, v{t}")
        k(f"v_mov_b32 v{t}, v{v}\ns_nop 1\nv_permlane32_swap_b32 v{v}, v{t}\ns_nop 1\nv_add_f32 v{v}, v{v}, v{t}")
    for a in range(4):
        k(f"v_add_f32 v{72+a}, v{X+a}, v{X+4+a}")
    for i in range(8, 40):
        k(f"v_add_f32 v{72+i%4}, v{72+i%4}, v{X+i}")
    k("v_add_f32 v72, v72, v73\nv_add_f32 v74, v74, v75\nv_add_f32 v72, v72, v74")
    reduce(72, 73)
    k(f"v_mul_f32 v72, {f32(1/640)}, v72")
    for i in range(40):
        k(f"v_sub_f32 v80, v{X+i}, v72" if i % 2 == 0 else f"v_sub_f32 v81, v{X+i}, v72")
        t = 80 + i % 2
        if i < 4: k(f"v_mul_f32 v{76+i}, v{t}, v{t}")
        else: k(f"v_fmac_f32 v{76+i%4}, v{t}, v{t}")
    k("v_add_f32 v76, v76, v77\nv_add_f32 v78, v78, v79\nv_add_f32 v76, v76, v78")
    reduce(76, 77)
    k(f"v_mul_f32 v76, {f32(1/640)}, v76")
    def rb(v): k(f"v_cvt_pk_bf16_f32 v{v}, v{v}, v{v}\nv_lshlrev_b32 v{v}, 16, v{v}")
    rb(72); rb(76)
    k(f"v_add_f32 v76, {f32(1e-5)}, v76"); rb(76)
    k("v_sqrt_f32 v76, v76\ns_nop 0"); rb(76)
    k("v_rcp_f32 v76, v76\ns_nop 0")
    for i in range(20):
        a, b = X+2*i, X+2*i+1
        k(f"v_sub_f32 v{a}, v{a}, v72\nv_sub_f32 v{b}, v{b}, v72")
        k(f"v_cvt_pk_bf16_f32 v{b}, v{a}, v{b}")
        k(f"v_lshlrev_b32 v{a}, 16, v{b}\nv_and_b32 v{b}, 0xffff0000, v{b}")
        k(f"v_mul_f32 v{a}, v{a}, v76\nv_mul_f32 v{b}, v{b}, v76")
        k(f"v_cvt_pk_bf16_f32 v{8+i}, v{a}, v{b}")
    for i in range(5):
        k(f"s_mov_b32 s16, {i*8192}")
        k(f"buffer_store_dwordx4 {vr(8+4*i,4)}, v4, s[12:15], s16 offen")
    k.label("L_ln_end")
    k("s_endpgm")
    return k

def gemm_loop(k, nst, ksteps, NB, acc, wbuf, abuf, R, swap, issue_group, wread, skip_prologue_issue=False):
    groups = [issue_group(s) for s in range(nst)]
    G = len(groups[0])
    assert all(len(g) == G for g in groups)
    assert G <= NB * ksteps
    if not skip_prologue_issue:
        for s in range(min(R-1, nst)):
            for u in groups[s]:
                k(u)
    k(f"s_waitcnt vmcnt({(min(R-1, nst)-1)*G})")
    k("s_barrier")
    steps = [(s, ks) for s in range(nst) for ks in range(ksteps)]
    wb = lambda n, nb: wbuf + ((n & 1) * NB + nb) * 4
    for nb in range(NB):
        for i in wread(0, 0, nb, wb(0, nb)): k(i)
    pending = []
    for n, (s, ks) in enumerate(steps):
        if ks == ksteps-1 and s+1 < nst:
            assert not pending
            k(f"s_waitcnt vmcnt({(min(nst-1, s+R-2) - (s+1))*G})")
            k("s_barrier")
            if s+R-1 < nst:
                pending = list(groups[s+R-1])
        last = (n == len(steps)-1)
        for nb in range(NB):
            k(f"s_waitcnt lgkmcnt({2*(NB-1-nb) if last else 2*(NB-1)})")
            a, b = wb(n, nb), abuf(s, ks)
            if swap: a, b = b, a
            k(mfma(acc+16*nb, a, b, "0" if n == 0 else None))
            if not last:
                s2, ks2 = steps[n+1]
                for i in wread(s2, ks2, nb, wb(n+1, nb)): k(i)
            if pending:
                k(pending.pop(0))
    assert not pending

def wave_lane(k, sw, vl):
    k(f"v_lshrrev_b32 v{vl}, 6, v0\ns_nop 0\nv_readfirstlane_b32 s{sw}, v{vl}\nv_and_b32 v{vl}, 63, v0")

def mod_small(k, s, m, t, maxval):
    q = 1
    while q * m * 2 <= maxval: q *= 2
    while q >= 1:
        k(f"s_cmp_ge_u32 s{s}, {q*m}\ns_cselect_b32 s{t}, {q*m}, 0\ns_sub_u32 s{s}, s{s}, s{t}")
        q //= 2

def qkv_kernel():
    R = 4
    k = Kern("qkv_kernel", 256, 256, R*16384, vgpr=192, sgpr=64)
    k("s_cmp_ge_u32 s2, 256\ns_cbranch_scc1 L_qkv_end")
    k("s_load_dwordx2 s[4:5], s[0:1], 8\ns_load_dwordx2 s[6:7], s[0:1], 72")
    k("""s_and_b32 s32, s2, 7
    s_lshr_b32 s33, s2, 3
    s_and_b32 s34, s32, 1
    s_lshl_b32 s34, s34, 3
    s_and_b32 s35, s33, 7
    s_add_u32 s30, s34, s35
    s_lshr_b32 s34, s32, 1
    s_lshl_b32 s34, s34, 2
    s_lshr_b32 s35, s33, 3
    s_add_u32 s31, s34, s35
    s_cmp_ge_u32 s31, 15
    s_cbranch_scc1 L_qkv_end""")
    wave_lane(k, 36, 1)
    k("v_lshlrev_b32 v2, 4, v1")
    k("""v_lshrrev_b32 v3, 4, v1
    v_lshlrev_b32 v8, 2, v3
    v_and_b32 v9, 15, v1
    v_xor_b32 v9, v9, v8
    v_lshlrev_b32 v9, 4, v9
    s_lshl_b32 s37, s36, 4
    v_add_u32 v3, s37, v3
    v_mul_u32_u24 v3, 3840, v3
    v_add_u32 v3, v3, v9
    s_lshl_b32 s37, s31, 8
    v_add_u32 v4, s37, v3""")
    for i in range(1, 4):
        k(f"v_add_u32 v{4+i}, {i*4*3840}, v4")
    k("""v_lshrrev_b32 v12, 5, v1
    v_bfe_u32 v13, v1, 2, 2
    v_lshl_add_u32 v14, v12, 3, v13
    v_lshlrev_b32 v14, 8, v14
    v_bfe_u32 v15, v1, 4, 1
    v_lshl_add_u32 v14, v15, 5, v14
    v_and_b32 v15, 3, v1
    v_lshl_add_u32 v14, v15, 3, v14
    v_lshl_add_u32 v8, v13, 6, v14""")
    for q in range(1, 4):
        k(f"v_xor_b32 v{8+q}, {q*64}, v8")
    k("s_add_u32 s40, s30, s31")
    mod_small(k, 40, 10, 43, 30)
    k("""s_lshl_b32 s41, s30, 2
    s_add_u32 s41, s41, s36
    s_mov_b32 s46, s41
    s_mul_i32 s41, s41, 40960
    s_lshl_b32 s42, s36, 12
    s_waitcnt lgkmcnt(0)""")
    k.srd(8, 4, 5, 640*3840)
    k.srd(12, 6, 7, SZ, WS_XF)
    ACC, WB, AB = 16, 80, 112
    def group(s):
        slot = s % R
        u = []
        for i in range(4):
            pre = f"s_mul_i32 s44, s40, {64*3840}\ns_lshl_b32 s45, s40, 12\ns_add_u32 s45, s45, s41\n" if i == 0 else ""
            u.append(pre + f"s_add_u32 m0, s42, {slot*16384 + i*1024}\ns_nop 0\nbuffer_load_dwordx4 v{4+i}, s[8:11], s44 offen lds")
        for i in range(4):
            post = "\ns_add_u32 s40, s40, 1\ns_cmp_eq_u32 s40, 10\ns_cselect_b32 s40, 0, s40" if i == 3 else ""
            u.append(f"buffer_load_dwordx4 {vr(AB+slot*16+4*i,4)}, v2, s[12:15], s45 offen offset:{i*1024}" + post)
        return u
    def wread(s, ks, nb, dst):
        o = (s % R)*16384 + ks*4096
        return [f"ds_read_b64_tr_b16 {vr(dst,2)}, v{8+nb} offset:{o}",
                f"ds_read_b64_tr_b16 {vr(dst+2,2)}, v{8+nb} offset:{o+1024}"]
    abuf = lambda s, ks: AB + (s % R)*16 + 4*ks
    for s in range(R-1):
        for u in group(s): k(u)
    k("s_cmp_ge_u32 s31, 10\ns_cbranch_scc1 L_qkv_v")
    gemm_loop(k, 10, 4, 4, ACC, WB, abuf, R, False, group, wread, True)
    k.srd(16, 6, 7, 2*SZ, WS_QP)
    k(f"""s_cmp_lt_u32 s31, 5
    s_cselect_b32 s47, {f32(QSCALE)}, 1.0
    v_and_b32 v3, 31, v1
    s_lshl_b32 s48, s46, 5
    v_add_u32 v3, s48, v3
    v_lshlrev_b32 v3, 3, v3
    v_lshl_add_u32 v3, v12, 14, v3
    s_lshl_b32 s48, s31, 19
    s_nop 7""")
    for q in range(4):
        for j in range(4):
            a = ACC + 16*q + 4*j
            d = WB + 2*((4*q+j) % 8)
            for e in range(4):
                k(f"v_mul_f32 v{a+e}, s47, v{a+e}")
            k(f"v_cvt_pk_bf16_f32 v{d}, v{a}, v{a+1}\nv_cvt_pk_bf16_f32 v{d+1}, v{a+2}, v{a+3}")
            k(f"s_add_u32 s49, s48, {(8*q+2*j)*16384}")
            k(f"buffer_store_dwordx2 {vr(d,2)}, v3, s[16:19], s49 offen")
    k("s_endpgm")
    k.label("L_qkv_v")
    gemm_loop(k, 10, 4, 4, ACC, WB, abuf, R, True, group, wread, True)
    k.srd(16, 6, 7, SZ, WS_VI)
    k(f"""s_sub_u32 s48, s31, 10
    s_lshl_b32 s48, s48, 7
    v_and_b32 v3, 31, v1
    v_add_u32 v3, s48, v3
    s_mul_i32 s49, s46, 1280
    v_mul_u32_u24 v13, 320, v12
    s_mov_b32 s50, {81920-320}""")
    for q in range(4):
        k(f"""v_add_u32 v14, {32*q}, v3
        v_mul_u32_u24 v15, 3277, v14
        v_lshrrev_b32 v15, 16, v15
        v_mul_lo_u32 v15, v15, s50
        v_lshl_add_u32 v15, v14, 4, v15
        v_add_u32 v{4+q}, v15, v13""")
    for q in range(4):
        for g in range(2):
            a = ACC + 16*q + 8*g
            d = WB + 4*((2*q+g) % 8)
            for e in range(4):
                k(f"v_cvt_pk_bf16_f32 v{d+e}, v{a+2*e}, v{a+2*e+1}")
            k(f"buffer_store_dwordx4 {vr(d,4)}, v{4+q}, s[16:19], s49 offen offset:{g*640}")
    k.label("L_qkv_end")
    k("s_endpgm")
    return k

def ffn1_kernel():
    R = 3
    SLOT = 24576 + 64
    UOFF = 12288 + 32
    k = Kern("ffn1_kernel", 256, 256, R*SLOT, vgpr=224, sgpr=64)
    k("s_cmp_ge_u32 s2, 256\ns_cbranch_scc1 L_ffn1_end")
    k("s_load_dwordx4 s[4:7], s[0:1], 32\ns_load_dwordx2 s[20:21], s[0:1], 72")
    k("""s_and_b32 s32, s2, 7
    s_lshr_b32 s33, s2, 3
    s_and_b32 s34, s32, 1
    s_lshl_b32 s34, s34, 3
    s_and_b32 s35, s33, 7
    s_add_u32 s30, s34, s35
    s_lshr_b32 s34, s32, 1
    s_lshl_b32 s34, s34, 2
    s_lshr_b32 s35, s33, 3
    s_add_u32 s31, s34, s35""")
    wave_lane(k, 36, 1)
    k("v_lshlrev_b32 v2, 4, v1")
    k("s_lshl_b32 s37, s36, 4\ns_mul_i32 s38, s31, 192")
    for i in range(3):
        k(f"""v_add_u32 v3, {64*i}, v1
        v_mul_u32_u24 v8, 5462, v3
        v_lshrrev_b32 v8, 16, v8
        v_mul_u32_u24 v9, 12, v8
        v_sub_u32 v9, v3, v9
        v_add_u32 v8, s37, v8
        v_mul_u32_u24 v8, 3072, v8
        v_lshl_add_u32 v8, v9, 4, v8
        v_add_u32 v{4+i}, s38, v8""")
    k(f"""v_lshrrev_b32 v12, 5, v1
    v_bfe_u32 v13, v1, 2, 2
    v_lshl_add_u32 v14, v12, 3, v13
    v_mul_u32_u24 v14, 192, v14
    v_bfe_u32 v15, v1, 4, 1
    v_mul_u32_u24 v15, {UOFF}, v15
    v_add_u32 v14, v14, v15
    v_and_b32 v15, 3, v1
    v_lshl_add_u32 v8, v15, 3, v14
    v_add_u32 v9, {2*SLOT}, v8""")
    k("s_add_u32 s40, s30, s31")
    mod_small(k, 40, 10, 43, 30)
    k("""s_lshl_b32 s41, s30, 2
    s_add_u32 s41, s41, s36
    s_mov_b32 s46, s41
    s_mul_i32 s41, s41, 40960
    s_mul_i32 s42, s36, 3072
    s_waitcnt lgkmcnt(0)""")
    k.srd(8, 4, 5, 640*3072)
    k.srd(16, 6, 7, 640*3072)
    k.srd(12, 20, 21, SZ, WS_XF)
    k.srd(24, 20, 21, HF_SZ, WS_HF)
    ACC, WB, AB = 16, 112, 160
    def group(s):
        slot = s % R
        u = []
        for m in range(2):
            for i in range(3):
                pre = f"s_mul_i32 s44, s40, {64*3072}\ns_lshl_b32 s45, s40, 12\ns_add_u32 s45, s45, s41\n" if (i == 0 and m == 0) else ""
                u.append(pre + f"s_add_u32 m0, s42, {slot*SLOT + m*UOFF + i*1024}\ns_nop 0\nbuffer_load_dwordx4 v{4+i}, {sr(8+8*m,4)}, s44 offen lds")
        for i in range(4):
            post = "\ns_add_u32 s40, s40, 1\ns_cmp_eq_u32 s40, 10\ns_cselect_b32 s40, 0, s40" if i == 3 else ""
            u.append(f"buffer_load_dwordx4 {vr(AB+slot*16+4*i,4)}, v2, s[12:15], s45 offen offset:{i*1024}" + post)
        return u
    def wread(s, ks, nb, dst):
        slot = s % R
        va = 9 if slot == 2 else 8
        o = (slot % 2)*SLOT*(slot != 2) + ks*16*192 + nb*32
        return [f"ds_read_b64_tr_b16 {vr(dst,2)}, v{va} offset:{o}",
                f"ds_read_b64_tr_b16 {vr(dst+2,2)}, v{va} offset:{o+4*192}"]
    abuf = lambda s, ks: AB + (s % R)*16 + 4*ks
    gemm_loop(k, 10, 4, 6, ACC, WB, abuf, R, False, group, wread)
    k(f"""s_mul_i32 s48, s46, 96
    s_mul_i32 s49, s31, 6
    s_add_u32 s48, s48, s49
    s_lshl_b32 s48, s48, 10
    s_mov_b32 s50, {f32(-LOG2E)}
    s_nop 7""")
    T = WB
    for nb in range(6):
        a = ACC + 16*nb
        t = T + 8*(nb % 2)
        d = T + 16 + 4*(nb % 4)
        for e in range(8): k(f"v_mul_f32 v{t+e}, s50, v{a+e}")
        for e in range(8): k(f"v_exp_f32 v{t+e}, v{t+e}")
        for e in range(8): k(f"v_mul_f32 v{a+e}, v{a+e}, v{a+8+e}")
        for e in range(8): k(f"v_add_f32 v{t+e}, 1.0, v{t+e}")
        for e in range(8): k(f"v_rcp_f32 v{t+e}, v{t+e}")
        k("s_nop 0")
        for e in range(8): k(f"v_mul_f32 v{a+e}, v{a+e}, v{t+e}")
        for e in range(4): k(f"v_cvt_pk_bf16_f32 v{d+e}, v{a+2*e}, v{a+2*e+1}")
        if nb == 4: k("s_add_u32 s48, s48, 4096")
        k(f"buffer_store_dwordx4 {vr(d,4)}, v2, s[24:27], s48 offen offset:{(nb%4)*1024}")
    k.label("L_ffn1_end")
    k("s_endpgm")
    return k

def out_kernel():
    R = 3
    SLOT = 20480
    k = Kern("out_kernel", 256, 256, R*SLOT + 256, vgpr=160, sgpr=64)
    k("s_cmp_ge_u32 s2, 256\ns_cbranch_scc1 L_out_end")
    k("""s_load_dwordx2 s[4:5], s[0:1], 48
    s_load_dwordx2 s[6:7], s[0:1], 16
    s_load_dwordx2 s[20:21], s[0:1], 72
    s_load_dwordx2 s[22:23], s[0:1], 0
    s_load_dwordx2 s[52:53], s[0:1], 56""")
    k("""s_and_b32 s32, s2, 7
    s_lshr_b32 s33, s2, 3
    s_lshl_b32 s34, s32, 2
    s_and_b32 s35, s33, 3
    s_add_u32 s30, s34, s35
    s_lshr_b32 s31, s33, 2""")
    wave_lane(k, 36, 1)
    k("v_lshlrev_b32 v2, 4, v1")
    k("s_and_b32 s37, s36, 1\ns_lshr_b32 s38, s36, 1\ns_lshl_b32 s39, s36, 5\ns_mul_i32 s43, s31, 160")
    for i in range(5):
        k(f"""v_add_u32 v3, {64*i}, v1
        v_mul_u32_u24 v20, 6554, v3
        v_lshrrev_b32 v20, 16, v20
        v_mul_u32_u24 v21, 10, v20
        v_sub_u32 v21, v3, v21
        v_lshlrev_b32 v21, 4, v21
        v_add_u32 v21, s43, v21
        v_add_u32 v20, s39, v20
        v_mul_u32_u24 v22, 1280, v20
        v_add_u32 v{4+i}, v22, v21
        v_lshrrev_b32 v22, 4, v20
        v_lshl_add_u32 v22, v22, 2, v20
        v_mul_u32_u24 v22, 1280, v22
        v_add_u32 v{9+i}, v22, v21
        v_lshrrev_b32 v22, 2, v20
        v_lshl_add_u32 v22, v22, 4, v20
        v_add_u32 v22, 16, v22
        v_mul_u32_u24 v22, 1280, v22
        v_add_u32 v{14+i}, v22, v21""")
    k(f"""v_lshrrev_b32 v23, 5, v1
    v_bfe_u32 v20, v1, 2, 2
    v_lshl_add_u32 v20, v23, 2, v20
    s_lshl_b32 s44, s38, 6
    v_add_u32 v20, s44, v20
    v_mul_u32_u24 v20, 160, v20
    v_bfe_u32 v21, v1, 4, 1
    v_lshl_add_u32 v20, v21, 5, v20
    v_and_b32 v21, 3, v1
    v_lshl_add_u32 v19, v21, 3, v20""")
    k("s_mov_b32 s40, s30")
    mod_small(k, 40, 12, 44, 31)
    k("""s_lshl_b32 s46, s30, 1
    s_add_u32 s46, s46, s37
    s_mul_i32 s41, s46, 98304
    s_lshl_b32 s44, s38, 12
    s_add_u32 s41, s41, s44
    s_mul_i32 s47, s46, 40960
    s_add_u32 s47, s47, s44
    s_mul_i32 s42, s36, 5120
    s_waitcnt lgkmcnt(0)""")
    k.srd(8, 4, 5, 1536*1280)
    k.srd(16, 6, 7, 640*1280)
    k.srd(12, 20, 21, HF_SZ, WS_HF)
    k.srd(24, 20, 21, SZ, WS_OF)
    ACC, WB, AB = 32, 80, 104
    def group(s):
        slot = s % R
        u = []
        for i in range(5):
            if s < 12:
                pre = f"s_mul_i32 s44, s40, {128*1280}\ns_lshl_b32 s45, s40, 13\ns_add_u32 s45, s45, s41\n" if i == 0 else ""
                ld = f"buffer_load_dwordx4 v{4+i}, s[8:11], s44 offen lds"
            elif s < 16:
                pre = f"s_mov_b32 s44, {(s-12)*160*1280}\ns_add_u32 s45, s47, {(s-12)*8192}\n" if i == 0 else ""
                ld = f"buffer_load_dwordx4 v{9+i}, s[16:19], s44 offen lds"
            else:
                pre = f"s_add_u32 s45, s47, {(s-12)*8192}\n" if i == 0 else ""
                ld = f"buffer_load_dwordx4 v{14+i}, s[16:19], 0 offen lds"
            u.append(pre + f"s_add_u32 m0, s42, {slot*SLOT + i*1024}\ns_nop 0\n" + ld)
        for i in range(4):
            post = "\ns_add_u32 s40, s40, 1\ns_cmp_eq_u32 s40, 12\ns_cselect_b32 s40, 0, s40" if (i == 3 and s < 12) else ""
            srd = "s[12:15]" if s < 12 else "s[24:27]"
            u.append(f"buffer_load_dwordx4 {vr(AB+slot*16+4*i,4)}, v2, {srd}, s45 offen offset:{i*1024}" + post)
        return u
    def wread(s, ks, nb, dst):
        o = (s % R)*SLOT + ks*2560 + nb*64
        return [f"ds_read_b64_tr_b16 {vr(dst,2)}, v19 offset:{o}",
                f"ds_read_b64_tr_b16 {vr(dst+2,2)}, v19 offset:{o+1280}"]
    abuf = lambda s, ks: AB + (s % R)*16 + 4*ks
    gemm_loop(k, 17, 4, 3, ACC, WB, abuf, R, False, group, wread)
    k.srd(8, 22, 23, SZ)
    k.srd(16, 52, 53, SZ)
    ES = 336
    k("s_lshl_b32 s44, s30, 6")
    for i in range(3):
        k(f"""v_add_u32 v3, {256*i}, v0
        v_mul_u32_u24 v20, 6554, v3
        v_lshrrev_b32 v20, 16, v20
        v_mul_u32_u24 v21, 10, v20
        v_sub_u32 v21, v3, v21
        v_mul_u32_u24 v22, {ES}, v20
        v_lshl_add_u32 v{7+i}, v21, 5, v22
        v_add_u32 v20, s44, v20
        v_mul_u32_u24 v20, 1280, v20
        v_lshl_add_u32 v20, v21, 4, v20
        v_add_u32 v{4+i}, s43, v20""")
    for i in range(3):
        k(f"buffer_load_dwordx4 {vr(AB+4*i,4)}, v{4+i}, s[8:11], 0 offen")
    k(f"""s_lshl_b32 s44, s38, 1
    s_add_u32 s44, s44, s37
    s_lshl_b32 s44, s44, 5
    v_and_b32 v20, 31, v1
    v_add_u32 v20, s44, v20
    v_mul_u32_u24 v20, {ES}, v20
    v_lshl_add_u32 v20, v23, 4, v20
    s_barrier""")
    for nb in range(3):
        for j in range(4):
            if nb*32 + 8*j >= 80: continue
            k(f"ds_write_b128 v20, {vr(ACC+16*nb+4*j,4)} offset:{(nb*32+8*j)*4}")
    k("s_waitcnt lgkmcnt(0)\ns_barrier")
    for i in range(3):
        if i == 2:
            k("s_cmp_ge_u32 s36, 2\ns_cbranch_scc1 L_out_end")
        b = ACC + 16*i
        k(f"ds_read_b128 {vr(b,4)}, v{7+i}\nds_read_b128 {vr(b+4,4)}, v{7+i} offset:16")
        k(f"ds_read_b128 {vr(b+8,4)}, v{7+i} offset:{64*ES}\nds_read_b128 {vr(b+12,4)}, v{7+i} offset:{64*ES+16}")
        k(f"s_waitcnt vmcnt({2 if i == 0 else 2}) lgkmcnt(0)")
        for e in range(8): k(f"v_add_f32 v{b+e}, v{b+e}, v{b+8+e}")
        x = AB + 4*i
        for e in range(4):
            k(f"v_lshlrev_b32 v{b+8+2*e}, 16, v{x+e}\nv_and_b32 v{b+9+2*e}, 0xffff0000, v{x+e}")
        for e in range(8): k(f"v_add_f32 v{b+e}, v{b+e}, v{b+8+e}")
        for e in range(4): k(f"v_cvt_pk_bf16_f32 v{b+8+e}, v{b+2*e}, v{b+2*e+1}")
        k(f"buffer_store_dwordx4 {vr(b+8,4)}, v{4+i}, s[16:19], 0 offen")
    k.label("L_out_end")
    k("s_endpgm")
    return k
```

```python
from asmlib import *
from gen1 import *

def mfma8(d, a, b, c=None):
    cs = vr(d, 16) if c is None else c
    return f"v_mfma_f32_32x32x8_bf16 {vr(d,16)}, {vr(a,2)}, {vr(b,2)}, {cs}"

def attn_kernel(force_fallback=False):
    SLOT = 26624
    VOFF = 10240
    k = Kern("attn_kernel", 256, 256, 3*SLOT, vgpr=192, sgpr=72)
    k("s_cmp_ge_u32 s2, 256\ns_cbranch_scc1 L_attn_end")
    k("s_load_dwordx2 s[6:7], s[0:1], 72")
    k("""s_and_b32 s32, s2, 7
    s_lshr_b32 s33, s2, 3
    s_lshl_b32 s30, s32, 2
    s_lshr_b32 s34, s33, 3
    s_add_u32 s30, s30, s34
    s_and_b32 s31, s33, 7""")
    wave_lane(k, 36, 1)
    QA1, QA2, QB1, QB2 = 16, 20, 24, 28
    CA, CB, SA, SB, OA, OB = 32, 48, 64, 80, 96, 112
    PA, PB = 128, 136
    KB = [144, 152]
    VB = [160, 168]
    T = 176
    k("""v_lshlrev_b32 v2, 4, v1
    v_and_b32 v3, 31, v1
    v_lshrrev_b32 v4, 5, v1""")
    k("v_mul_u32_u24 v5, 320, v4\nv_lshl_add_u32 v5, v3, 4, v5")
    k(f"""v_lshlrev_b32 v6, 12, v4
    v_lshl_add_u32 v6, v3, 3, v6
    v_add_u32 v7, 256, v6
    v_add_u32 v8, {SLOT}, v6
    v_add_u32 v9, {SLOT}, v7
    v_add_u32 v10, {VOFF}, v2""")
    k("""s_lshl_b32 s37, s31, 2
    s_add_u32 s37, s37, s36
    s_lshl_b32 s38, s37, 6
    v_add_u32 v11, s38, v3
    v_lshlrev_b32 v11, 3, v11
    v_mov_b32 v12, v11
    v_lshl_add_u32 v11, v4, 15, v11
    s_mul_i32 s39, s30, 81920
    s_mov_b32 s60, 0x000fffff
    s_mov_b32 s61, 0x000fffff
    s_mov_b32 s62, -1
    s_mov_b32 s63, 0
    s_waitcnt lgkmcnt(0)""")
    k.srd(8, 6, 7, SZ, WS_QP)
    k.srd(12, 6, 7, SZ, WS_KP)
    k.srd(16, 6, 7, SZ, WS_VI)
    k.srd(20, 6, 7, SZ, WS_OF)
    k(f"""s_lshl_b32 s40, s36, 14
    s_add_u32 s40, s40, s39
    s_lshl_b32 s45, s36, 9
    s_add_u32 s41, s45, s39
    s_add_u32 s41, s41, 65536
    s_add_u32 s45, s45, 8192
    s_mul_i32 s42, s36, 2560
    s_add_u32 s42, s42, s39
    s_mov_b32 s43, 0
    s_lshl_b32 s44, s36, 11
    s_lshl_b32 s46, s36, 12
    s_add_u32 s46, s46, {VOFF}""")
    def dma_units():
        u = []
        u.append("s_add_u32 m0, s43, s44\ns_nop 0\nbuffer_load_dwordx4 v2, s[12:15], s40 offen lds")
        u.append("buffer_load_dwordx4 v2, s[12:15], s40 offen offset:1024 lds\ns_add_u32 s40, s40, 2048")
        u.append("s_add_u32 m0, s43, s45\ns_mov_b64 exec, s[62:63]\nbuffer_load_dwordx4 v2, s[12:15], s41 offen lds\ns_mov_b64 exec, -1\ns_add_u32 s41, s41, 2048")
        for i in range(4):
            pre = "s_add_u32 s47, s43, s46\n" if i == 0 else ""
            u.append(pre + f"s_add_u32 m0, s47, {i*1024}\ns_mov_b64 exec, s[60:61]\nbuffer_load_dwordx4 v5, s[16:19], s42 offen lds\ns_mov_b64 exec, -1\n"
                     + (f"s_add_u32 s42, s42, 640" if i < 3 else
                        f"s_add_u32 s42, s42, {10240-3*640}\ns_add_u32 s43, s43, {SLOT}\ns_cmp_eq_u32 s43, {3*SLOT}\ns_cselect_b32 s43, 0, s43"))
        return u
    for u in dma_units(): k(u)
    for (q1, q2, off) in ((QA1, QA2, 0), (QB1, QB2, 256)):
        k(f"v_mov_b32 v{q2}, 0\nv_mov_b32 v{q2+1}, 0")
    k("s_add_u32 s48, s39, 16384\ns_add_u32 s49, s39, 65536")
    for (q1, q2, off) in ((QA1, QA2, 0), (QB1, QB2, 256)):
        k(f"buffer_load_dwordx2 {vr(q1,2)}, v11, s[8:11], s39 offen offset:{off}")
        k(f"buffer_load_dwordx2 {vr(q1+2,2)}, v11, s[8:11], s48 offen offset:{off}")
        k("s_mov_b64 exec, s[62:63]")
        k(f"buffer_load_dwordx2 {vr(q2,2)}, v12, s[8:11], s49 offen offset:{off}")
        k("s_mov_b64 exec, -1")
    for u in dma_units(): k(u)
    for e in range(4): k(f"v_mov_b32 v{T+e}, 0x3f803f80")
    k("v_add_u32 v13, s46, v2")
    k("s_not_b64 exec, s[60:61]")
    for slot in range(3):
        if slot == 2: pass
        for i in range(4):
            o = slot*SLOT + i*1024
            k(f"ds_write_b128 v13, {vr(T,4)} offset:{o}")
    k("s_mov_b64 exec, -1")
    for r in list(range(OA, OA+32)) + list(range(PB, PB+8)) + list(range(VB[1], VB[1]+8)):
        k(f"v_mov_b32 v{r}, 0")
    k("s_waitcnt vmcnt(7) lgkmcnt(0)\ns_barrier")
    def kread(t, dst):
        nxt = t >= 8
        tt = t % 8
        va = (8 if nxt else 6) + (tt & 1)
        a = tt >> 1
        return [f"ds_read2st64_b64 {vr(dst,4)}, v{va} offset0:{a} offset1:{a+4}",
                f"ds_read_b64 {vr(dst+4,2)}, v{va} offset:{8192 + a*512}"]
    def vread(t, dst):
        return [f"ds_read_b128 {vr(dst,4)}, v10 offset:{t*2048}",
                f"ds_read_b128 {vr(dst+4,4)}, v10 offset:{t*2048+1024}"]
    for i in kread(0, KB[0]) + kread(1, KB[1]): k(i)
    k("s_waitcnt lgkmcnt(2)")
    k(mfma(SA, KB[0], QA1, "0")); k(mfma(SB, KB[0], QB1, "0"))
    k(mfma8(SA, KB[0]+4, QA2)); k(mfma8(SB, KB[0]+4, QB2))
    k("s_nop 15\ns_nop 3")
    for (S, C) in ((SA, CA), (SB, CB)):
        k(f"v_max3_f32 v{T}, v{S}, v{S+1}, v{S+2}")
        for e in range(3, 15, 2):
            k(f"v_max3_f32 v{T}, v{T}, v{S+e}, v{S+e+1}")
        k(f"v_max_f32 v{T}, v{T}, v{S+15}")
        k(f"v_mov_b32 v{T+1}, v{T}\ns_nop 1\nv_permlane32_swap_b32 v{T}, v{T+1}\ns_nop 1\nv_max_f32 v{T}, v{T}, v{T+1}")
        for e in range(16): k(f"v_sub_f32 v{C+e}, 0, v{T}")
    for e in range(16): k(f"v_add_f32 v{SA+e}, v{SA+e}, v{CA+e}")
    k(f"s_mov_b32 s50, 0\ns_mov_b32 s64, {SLOT}\ns_mov_b32 s65, {(-2*SLOT) & 0xffffffff}")
    k(".p2align 6")
    k.label("L_attn_loop")
    def phase(S, P, ms, after):
        for i in range(4):
            k(ms[i])
            for x in after[i]: k(x)
            for e in range(4): k(f"v_exp_f32 v{S+4*i+e}, v{S+4*i+e}")
            k(f"v_cvt_pk_bf16_f32 v{P+2*i}, v{S+4*i}, v{S+4*i+1}")
            k(f"v_cvt_pk_bf16_f32 v{P+2*i+1}, v{S+4*i+2}, v{S+4*i+3}")
    for t in range(8):
        kc, kn = KB[t & 1], KB[(t+1) & 1]
        vc, vp = VB[t & 1], VB[(t+1) & 1]
        after = [vread(t, vc), [], [], ["s_waitcnt lgkmcnt(0)"]]
        phase(SA, PA, [mfma(SB, kc, QB1, vr(CB, 16)), mfma8(SB, kc+4, QB2), mfma(OB, vp, PB), mfma(OB, vp+4, PB+4)], after)
        after = [kread(t+2, kc), [], [], []]
        if t == 6:
            after[0] = ["s_waitcnt vmcnt(0)", "s_barrier"] + after[0]
        if t == 7:
            lab = k.newlabel("nodma")
            after[2] = ["s_cmp_ge_u32 s50, 6", f"s_cbranch_scc1 {lab}"] + dma_units() + [f"{lab}:"]
        phase(SB, PB, [mfma(SA, kn, QA1, vr(CA, 16)), mfma8(SA, kn+4, QA2), mfma(OA, vc, PA), mfma(OA, vc+4, PA+4)], after)
    k(f"""s_add_u32 s50, s50, 1
    s_cmp_eq_u32 s50, 2
    s_cselect_b32 s51, s65, s64
    s_cmp_eq_u32 s50, 5
    s_cselect_b32 s51, s65, s51
    s_cmp_eq_u32 s50, 3
    s_cselect_b32 s52, s65, s64
    s_cmp_eq_u32 s50, 6
    s_cselect_b32 s52, s65, s52
    v_mov_b32 v6, v8
    v_mov_b32 v7, v9
    v_add_u32 v8, s51, v8
    v_add_u32 v9, s51, v9
    v_add_u32 v10, s52, v10
    s_cmp_lt_u32 s50, 8
    s_cbranch_scc1 L_attn_loop""")
    k(mfma(OB, VB[1], PB)); k(mfma(OB, VB[1]+4, PB+4))
    k("s_waitcnt lgkmcnt(0)\ns_nop 15\ns_nop 3")
    k(f"""s_mov_b32 s53, {f32(2.0**60) if not force_fallback else f32(0.0)}
    v_cmp_ngt_f32 vcc, s53, v{OA+12}
    v_cmp_ngt_f32 s[54:55], s53, v{OB+12}
    s_nop 1
    s_or_b64 vcc, vcc, s[54:55]
    s_cbranch_vccnz L_attn_slow""")
    k.label("L_attn_fin")
    k(f"""s_lshl_b32 s53, s37, 1
    s_mul_i32 s53, s53, 40960
    s_lshl_b32 s54, s30, 10
    s_add_u32 s54, s54, s53
    s_lshr_b32 s55, s30, 2
    s_add_u32 s55, s55, 32
    s_lshl_b32 s55, s55, 10
    s_add_u32 s55, s55, s53
    s_and_b32 s56, s30, 1
    s_lshl_b32 s56, s56, 9
    s_add_u32 s55, s55, s56
    s_and_b32 s56, s30, 2
    s_lshl_b32 s56, s56, 2
    s_add_u32 s55, s55, s56""")
    for (O, P) in ((OA, PA), (OB, PB)):
        k(f"v_rcp_f32 v{T}, v{O+12}\ns_nop 0")
        for e in range(12): k(f"v_mul_f32 v{O+e}, v{O+e}, v{T}")
        for e in range(6): k(f"v_cvt_pk_bf16_f32 v{P+e}, v{O+2*e}, v{O+2*e+1}")
        k(f"buffer_store_dwordx4 {vr(P,4)}, v2, s[20:23], s54 offen")
        k("s_mov_b64 exec, s[62:63]")
        k(f"buffer_store_dwordx2 {vr(P+4,2)}, v2, s[20:23], s55 offen")
        k("s_mov_b64 exec, -1")
        k("s_add_u32 s54, s54, 40960\ns_add_u32 s55, s55, 40960")
    k.label("L_attn_end")
    k("s_endpgm")
    k.label("L_attn_slow")
    MA, MB = CA, CB
    k(f"""v_lshlrev_b32 v7, 3, v3
    v_lshl_add_u32 v6, v4, 15, v7
    v_mov_b32 v{MA}, {f32(-3.0e38)}
    v_mov_b32 v{MB}, {f32(-3.0e38)}
    s_mov_b32 s40, s39
    s_mov_b32 s42, s39
    s_mov_b32 s50, 0""")
    for r in range(OA, OA+32): k(f"v_mov_b32 v{r}, 0")
    for r in range(VB[0], VB[0]+8): k(f"v_mov_b32 v{r}, 0x3f803f80")
    k.label("L_attn_slow_loop")
    K0, V0 = KB[0], VB[0]
    k(f"""s_add_u32 s41, s40, 16384
    s_add_u32 s43, s40, 65536
    buffer_load_dwordx2 {vr(K0,2)}, v6, s[12:15], s40 offen
    buffer_load_dwordx2 {vr(K0+2,2)}, v6, s[12:15], s41 offen
    buffer_load_dwordx2 {vr(K0+4,2)}, v7, s[12:15], s43 offen
    s_mov_b64 exec, s[60:61]
    buffer_load_dwordx4 {vr(V0,4)}, v5, s[16:19], s42 offen
    buffer_load_dwordx4 {vr(V0+4,4)}, v5, s[16:19], s42 offen offset:640
    s_mov_b64 exec, -1
    s_waitcnt vmcnt(0)""")
    k(mfma(SA, K0, QA1, "0")); k(mfma(SB, K0, QB1, "0"))
    k(mfma8(SA, K0+4, QA2)); k(mfma8(SB, K0+4, QB2))
    k("s_nop 15\ns_nop 3")
    for (S, M, O, P) in ((SA, MA, OA, PA), (SB, MB, OB, PB)):
        k(f"v_max3_f32 v{T}, v{S}, v{S+1}, v{M}")
        for e in range(2, 16, 2):
            k(f"v_max3_f32 v{T}, v{T}, v{S+e}, v{S+e+1}")
        k(f"v_mov_b32 v{T+1}, v{T}\ns_nop 1\nv_permlane32_swap_b32 v{T}, v{T+1}\ns_nop 1\nv_max_f32 v{T}, v{T}, v{T+1}")
        k(f"v_sub_f32 v{T+1}, v{M}, v{T}\nv_exp_f32 v{T+1}, v{T+1}\nv_mov_b32 v{M}, v{T}")
        for e in range(16): k(f"v_mul_f32 v{O+e}, v{O+e}, v{T+1}")
        for e in range(16): k(f"v_sub_f32 v{S+e}, v{S+e}, v{T}")
        for e in range(16): k(f"v_exp_f32 v{S+e}, v{S+e}")
        k("s_nop 0")
        for e in range(8): k(f"v_cvt_pk_bf16_f32 v{P+e}, v{S+2*e}, v{S+2*e+1}")
        k("s_nop 1")
        k(mfma(O, V0, P)); k(mfma(O, V0+4, P+4))
    k(f"""s_nop 15
    s_nop 3
    s_add_u32 s40, s40, 256
    s_add_u32 s42, s42, 1280
    s_add_u32 s50, s50, 1
    s_cmp_lt_u32 s50, 64
    s_cbranch_scc1 L_attn_slow_loop
    s_branch L_attn_fin""")
    return k

if __name__ == "__main__":
    import sys
    ff = "--fallback" in sys.argv
    ks = [ln_kernel(), qkv_kernel(), ffn1_kernel(), attn_kernel(ff), out_kernel()]
    out = sys.argv[1]
    open(out, "w").write(build(ks))
```

```python
STAMP = [False]
class Kern:
    def __init__(self, name, grid, block, lds, vgpr=256, sgpr=100):
        self.name = name; self.grid = grid; self.block = block; self.lds = lds
        self.vgpr = vgpr; self.sgpr = sgpr
        self.L = []
        self._lab = 0
    def __call__(self, s):
        for line in s.split("\n"):
            line = line.strip()
            if line:
                self.L.append("    " + line)
    def label(self, l):
        self.L.append(f"{l}:")
    def newlabel(self, base):
        self._lab += 1
        return f"L_{self.name}_{base}_{self._lab}"
    def comment(self, s):
        self.L.append(f"    ; {s}")
    def srd(self, d, base_lo, base_hi, nbytes, off=0):
        if off:
            self(f"s_add_u32 s{d}, s{base_lo}, {off}")
            self(f"s_addc_u32 s{d+1}, s{base_hi}, 0")
        else:
            self(f"s_mov_b32 s{d}, s{base_lo}")
            self(f"s_mov_b32 s{d+1}, s{base_hi}")
        self(f"s_mov_b32 s{d+2}, {nbytes}")
        self(f"s_mov_b32 s{d+3}, 0x00020000")
    def stamp(self, i):
        if not STAMP[0]: return
        self(f"s_memrealtime s[{80+4*i}:{81+4*i}]\ns_memtime s[{82+4*i}:{83+4*i}]")
    def stamp_flush(self, kidx):
        if not STAMP[0]: return
        self.sgpr = 100
        lab = self.newlabel("st")
        self(f"""s_load_dwordx2 s[96:97], s[0:1], 72
        s_waitcnt vmcnt(0) lgkmcnt(0)
        s_add_u32 s96, s96, {(48<<20) + kidx*65536*4}
        s_addc_u32 s97, s97, 0
        s_mov_b32 s98, {65536*4}
        s_mov_b32 s99, 0x00020000
        s_mov_b64 exec, -1
        v_lshrrev_b32 v1, 6, v0
        v_lshlrev_b32 v1, 5, v1
        s_lshl_b32 s3, s2, 8
        v_add_u32 v1, s3, v1
        v_mov_b32 v4, s80
        v_mov_b32 v5, s82
        v_mov_b32 v6, s84
        v_mov_b32 v7, s86
        v_mov_b32 v8, s88
        v_mov_b32 v9, s90
        v_mov_b32 v10, s92
        v_mov_b32 v11, s94
        s_mov_b64 exec, 1
        buffer_store_dwordx4 v[4:7], v1, s[96:99], 0 offen
        buffer_store_dwordx4 v[8:11], v1, s[96:99], 0 offen offset:16
        s_waitcnt vmcnt(0)""")
    def text(self):
        n = self.name
        return (f".globl {n}\n.p2align 8\n.type {n},@function\n{n}:\n" + "\n".join(self.L) + "\n")
    def desc(self):
        acc = (self.vgpr + 3) // 4 * 4
        return (f".p2align 6\n.amdhsa_kernel {self.name}\n"
                f"  .amdhsa_next_free_vgpr {self.vgpr}\n"
                f"  .amdhsa_next_free_sgpr {self.sgpr}\n"
                f"  .amdhsa_accum_offset {acc}\n"
                f"  .amdhsa_group_segment_fixed_size 0\n"
                f"  .amdhsa_kernarg_size 80\n"
                f"  .amdhsa_user_sgpr_count 2\n"
                f"  .amdhsa_user_sgpr_kernarg_segment_ptr 1\n"
                f"  .amdhsa_system_sgpr_workgroup_id_x 1\n"
                f".end_amdhsa_kernel\n")

def vr(a, n):
    return f"v[{a}:{a+n-1}]" if n > 1 else f"v{a}"
def sr(a, n):
    return f"s[{a}:{a+n-1}]" if n > 1 else f"s{a}"

HEADER = """; Kernarg layout for this problem (80 bytes, ptrs only, base s[0:1]):
"""

def build(kernels, single=False):
    out = HEADER
    if single:
        k = kernels[0]
        out += f"; @launch grid=({k.grid},1,1) block=({k.block},1,1) lds={k.lds}\n"
    else:
        for k in kernels:
            out += f"; @launch kernel={k.name} grid=({k.grid},1,1) block=({k.block},1,1) lds={k.lds}\n"
    out += '.amdgcn_target "amdgcn-amd-amdhsa--gfx950"\n.text\n'
    for k in kernels:
        out += k.text()
    out += '.section .rodata,"a"\n'
    for k in kernels:
        out += k.desc()
    return out
```

```python
import struct, math
from asmlib import HEADER, vr, sr
STAMP = [False]
def f32(x): return "0x%08x" % struct.unpack("<I", struct.pack("<f", x))[0]

class Kern:
    def __init__(self, name, grid, block, lds, vgpr=128, sgpr=100):
        self.name = name; self.grid = grid; self.block = block; self.lds = lds
        self.vgpr = vgpr; self.sgpr = sgpr
        self.L = []
        self._lab = 0
    def __call__(self, s):
        for line in s.split("\n"):
            line = line.strip()
            if line:
                self.L.append(line if line.endswith(":") else "    " + line)
    def label(self, l): self.L.append(f"{l}:")
    def newlabel(self, base):
        self._lab += 1
        return f"L_{base}_{self._lab}_{self.name[:4]}"
    def srd(self, d, lo, nbytes, off=0):
        if off:
            self(f"s_add_u32 s{d}, s{lo}, {off}\ns_addc_u32 s{d+1}, s{lo+1}, 0")
        else:
            self(f"s_mov_b32 s{d}, s{lo}\ns_mov_b32 s{d+1}, s{lo+1}")
        self(f"s_mov_b32 s{d+2}, {nbytes}\ns_mov_b32 s{d+3}, 0x00020000")
    def stamp(self, i, wait=True):
        if not STAMP[0]: return
        self(f"s_memrealtime s[{80+2*i}:{81+2*i}]")
        if wait: self("s_waitcnt lgkmcnt(0)")
    def stamp_init(self):
        if not STAMP[0]: return
        for i in range(8): self(f"s_mov_b32 s{80+2*i}, 0")
    def stamp_flush(self, kidx, wgreg="s2"):
        if not STAMP[0]: return
        self(f"""s_waitcnt vmcnt(0) lgkmcnt(0)
        s_add_u32 s96, s66, {(48<<20) + kidx*65536*4}
        s_addc_u32 s97, s67, 0
        s_mov_b32 s98, {65536*4}
        s_mov_b32 s99, 0x00020000
        s_mov_b64 exec, -1
        v_lshrrev_b32 v1, 6, v0
        v_lshlrev_b32 v1, 5, v1
        s_lshl_b32 s3, {wgreg}, 8
        v_add_u32 v1, s3, v1""")
        for i in range(8): self(f"v_mov_b32 v{4+i}, s{80+2*i}")
        self("""s_mov_b64 exec, 1
        buffer_store_dwordx4 v[4:7], v1, s[96:99], 0 offen
        buffer_store_dwordx4 v[8:11], v1, s[96:99], 0 offen offset:16
        s_waitcnt vmcnt(0)""")
    def text(self):
        n = self.name
        return (f".globl {n}\n.p2align 8\n.type {n},@function\n{n}:\n" + "\n".join(self.L) + "\n")
    def desc(self):
        acc = (self.vgpr + 3) // 4 * 4
        return (f".p2align 6\n.amdhsa_kernel {self.name}\n"
                f"  .amdhsa_next_free_vgpr {self.vgpr}\n"
                f"  .amdhsa_next_free_sgpr {self.sgpr}\n"
                f"  .amdhsa_accum_offset {acc}\n"
                f"  .amdhsa_group_segment_fixed_size 0\n"
                f"  .amdhsa_kernarg_size 80\n"
                f"  .amdhsa_user_sgpr_count 2\n"
                f"  .amdhsa_user_sgpr_kernarg_segment_ptr 1\n"
                f"  .amdhsa_system_sgpr_workgroup_id_x 1\n"
                f".end_amdhsa_kernel\n")

class VM:
    def __init__(self, k):
        self.k = k; self.n = 0; self.tags = {}; self.done = 0
    def op(self, instr, tag=None):
        self.k(instr); self.n += 1
        if tag is not None: self.tags[tag] = self.n
    def wait(self, tag):
        t = self.tags[tag]
        if t <= self.done: return
        c = self.n - t
        assert c <= 63, c
        self.k(f"s_waitcnt vmcnt({c})")
        self.done = t
    def drain(self):
        self.k("s_waitcnt vmcnt(0)"); self.done = self.n
    def drained(self):
        self.done = self.n

def build(kernels, single=False):
    out = HEADER
    if single:
        k = kernels[0]
        out += f"; @launch grid=({k.grid},1,1) block=({k.block},1,1) lds={k.lds}\n"
    else:
        for k in kernels:
            out += f"; @launch kernel={k.name} grid=({k.grid},1,1) block=({k.block},1,1) lds={k.lds}\n"
    out += '.amdgcn_target "amdgcn-amd-amdhsa--gfx950"\n.text\n'
    for k in kernels: out += k.text()
    out += '.section .rodata,"a"\n'
    for k in kernels: out += k.desc()
    return out

def mfma(d, a, b, c=None):
    cs = vr(d, 16) if c is None else c
    return f"v_mfma_f32_32x32x16_bf16 {vr(d,16)}, {vr(a,4)}, {vr(b,4)}, {cs}"
def mfma8(d, a, b, c=None):
    cs = vr(d, 16) if c is None else c
    return f"v_mfma_f32_32x32x8_bf16 {vr(d,16)}, {vr(a,2)}, {vr(b,2)}, {cs}"
```

```python
import sys, math
from asmlib2 import *

SZ = 2621440
WS_XF, WS_QP, WS_KP, WS_VI, WS_OF, WS_HF = 0, SZ, 2*SZ, 3*SZ, 4*SZ, 5*SZ
HF_SZ = 2048*1536*2
WS_ST = WS_HF + HF_SZ
WS_FL = WS_ST + 16384
FL_LN, FL_QKV, FL_H, FL_O = 0, 1024, 2048, 3072
LOG2E = math.log2(math.e)
QSCALE = 20 ** -0.5 * LOG2E
P_X, P_WQKV, P_WO, P_W1, P_W3, P_W2, P_OUT, P_DBG, P_WS = 48, 50, 52, 56, 58, 60, 62, 64, 66
SPIN_MAX = 200000
CFG = dict(sync=True)
def SC(): return " sc1" if CFG["sync"] else ""

def common_prologue(k, maxid, endlab):
    k(f"s_cmp_ge_u32 s2, {maxid}\ns_cbranch_scc1 {endlab}")
    k("s_load_dwordx16 s[48:63], s[0:1], 0\ns_load_dwordx4 s[64:67], s[0:1], 64")
    k.stamp_init()
    k.stamp(0, wait=False)
    k("""v_lshrrev_b32 v1, 6, v0
    s_and_b32 s5, s2, 255
    v_readfirstlane_b32 s4, v1
    v_and_b32 v1, 63, v0
    v_lshlrev_b32 v2, 4, v1
    s_waitcnt lgkmcnt(0)""")
    k.srd(28, P_WS, 4096, WS_FL)

def mod_small(k, s, m, t, maxval):
    q = 1
    while q * m * 2 <= maxval: q *= 2
    while q >= 1:
        k(f"s_cmp_ge_u32 s{s}, {q*m}\ns_cselect_b32 s{t}, {q*m}, 0\ns_sub_u32 s{s}, s{s}, s{t}")
        q //= 2

def spin(k, load, check, sleep=2):
    top = k.newlabel("spin"); done = k.newlabel("spun")
    k(f"s_mov_b32 s79, {SPIN_MAX}")
    k.label(top)
    k(load)
    k("s_waitcnt vmcnt(0)")
    k(check)
    k(f"""s_nop 1
    s_cbranch_vccz {done}
    s_sleep {sleep}
    s_sub_u32 s79, s79, 1
    s_cmp_lg_u32 s79, 0
    s_cbranch_scc1 {top}""")
    k.label(done)

def wait_init(k, vt):
    k.srd(72, P_DBG, 256)
    k(f"v_mov_b32 v{vt+1}, 0")
    spin(k, f"buffer_load_dword v{vt}, v{vt+1}, s[72:75], 0 offen sc1", f"v_cmp_eq_u32 vcc, 0, v{vt}")

def set_flag(k, soff_expr, vt):
    k(soff_expr)
    k(f"""v_mov_b32 v{vt}, 1
    v_mov_b32 v{vt+1}, 0
    s_mov_b64 exec, 1
    buffer_store_dword v{vt}, v{vt+1}, s[28:31], s78 offen sc1
    s_mov_b64 exec, -1""")

def poll32(k, soff_expr, vt):
    k(soff_expr)
    k(f"v_and_b32 v{vt+1}, 31, v1\nv_lshlrev_b32 v{vt+1}, 2, v{vt+1}")
    spin(k, f"buffer_load_dword v{vt}, v{vt+1}, s[28:31], s78 offen sc1", f"v_cmp_eq_u32 vcc, 0, v{vt}")

def phase_f0(k):
    RS = 1312; LB = 2*24704
    k.srd(8, P_X, SZ)
    k.srd(12, P_WS, SZ, WS_XF)
    k.srd(16, P_WS, 16384, WS_ST)
    k("""s_lshl_b32 s32, s5, 3
    s_add_u32 s32, s32, s4
    s_mul_i32 s33, s32, 1280
    v_lshlrev_b32 v3, 2, v1""")
    for i in range(5):
        k(f"buffer_load_dword v{8+i}, v3, s[8:11], s33 offen offset:{i*256}")
    k(f"""s_mul_i32 s34, s4, {RS}
    s_add_u32 s34, s34, {LB}
    v_add_u32 v4, s34, v3
    v_and_b32 v5, 7, v0
    v_lshrrev_b32 v6, 3, v0
    v_mul_u32_u24 v7, {RS}, v5
    v_lshl_add_u32 v7, v6, 4, v7
    v_add_u32 v7, {LB}, v7
    v_lshlrev_b32 v6, 9, v6
    v_lshl_add_u32 v6, v5, 4, v6
    s_lshr_b32 s35, s5, 2
    s_mul_i32 s35, s35, 40960
    s_and_b32 s36, s5, 3
    s_lshl_b32 s36, s36, 7
    s_add_u32 s35, s35, s36
    s_add_u32 s36, s35, 32768
    s_lshl_b32 s37, s32, 3""")
    X = 16
    for i in range(5):
        k(f"s_waitcnt vmcnt({4-i})")
        k(f"v_lshlrev_b32 v{X+2*i}, 16, v{8+i}\nv_and_b32 v{X+2*i+1}, 0xffff0000, v{8+i}")
    def reduce(v, t):
        for r in (8, 4, 2, 1):
            k(f"s_nop 1\nv_add_f32_dpp v{v}, v{v}, v{v} row_ror:{r} row_mask:0xf bank_mask:0xf")
        k(f"v_mov_b32 v{t}, v{v}\ns_nop 1\nv_permlane16_swap_b32 v{v}, v{t}\ns_nop 1\nv_add_f32 v{v}, v{v}, v{t}")
        k(f"v_mov_b32 v{t}, v{v}\ns_nop 1\nv_permlane32_swap_b32 v{v}, v{t}\ns_nop 1\nv_add_f32 v{v}, v{v}, v{t}")
    M, V, T = 28, 29, 30
    k(f"v_add_f32 v{M}, v{X}, v{X+1}\nv_add_f32 v{T}, v{X+2}, v{X+3}")
    for i in range(4, 10, 2):
        k(f"v_add_f32 v{M}, v{M}, v{X+i}\nv_add_f32 v{T}, v{T}, v{X+i+1}")
    k(f"v_add_f32 v{M}, v{M}, v{T}")
    reduce(M, T)
    k(f"v_mul_f32 v{M}, {f32(1/640)}, v{M}")
    for i in range(10):
        k(f"v_sub_f32 v{32+i}, v{X+i}, v{M}")
    k(f"v_mul_f32 v{V}, v32, v32\nv_mul_f32 v{T}, v33, v33")
    for i in range(2, 10, 2):
        k(f"v_fmac_f32 v{V}, v{32+i}, v{32+i}\nv_fmac_f32 v{T}, v{33+i}, v{33+i}")
    k(f"v_add_f32 v{V}, v{V}, v{T}")
    reduce(V, T)
    k(f"v_mul_f32 v{V}, {f32(1/640)}, v{V}")
    def rb(v): k(f"v_cvt_pk_bf16_f32 v{v}, v{v}, v{v}\nv_lshlrev_b32 v{v}, 16, v{v}")
    rb(M); rb(V)
    k(f"v_add_f32 v{V}, {f32(1e-5)}, v{V}"); rb(V)
    k(f"v_sqrt_f32 v{V}, v{V}\ns_nop 0"); rb(V)
    k(f"v_rcp_f32 v{V}, v{V}\nv_mov_b32 v{T}, 0")
    k(f"s_mov_b64 exec, 1\nbuffer_store_dwordx2 {vr(M,2)}, v{T}, s[16:19], s37 offen{SC()}\ns_mov_b64 exec, -1")
    for i in range(5):
        a, b = X+2*i, X+2*i+1
        k(f"v_sub_f32 v{a}, v{a}, v{M}\nv_sub_f32 v{b}, v{b}, v{M}")
        k(f"v_cvt_pk_bf16_f32 v{b}, v{a}, v{b}")
        k(f"v_lshlrev_b32 v{a}, 16, v{b}\nv_and_b32 v{b}, 0xffff0000, v{b}")
        k(f"v_mul_f32 v{a}, v{a}, v{V}\nv_mul_f32 v{b}, v{b}, v{V}")
        k(f"v_cvt_pk_bf16_f32 v{8+i}, v{a}, v{b}")
        k(f"ds_write_b32 v4, v{8+i} offset:{i*256}")
    k("s_waitcnt lgkmcnt(0)\ns_barrier")
    lab = k.newlabel("f0w")
    k(f"""ds_read_b128 v[8:11], v7
    s_cmp_ge_u32 s4, 2
    s_cbranch_scc1 {lab}
    ds_read_b128 v[12:15], v7 offset:1024
    s_waitcnt lgkmcnt(0)
    buffer_store_dwordx4 v[12:15], v6, s[12:15], s36 offen{SC()}
    {lab}:
    s_waitcnt lgkmcnt(0)
    buffer_store_dwordx4 v[8:11], v6, s[12:15], s35 offen{SC()}""")
    if CFG["sync"]:
        lab = k.newlabel("f0p")
        k(f"s_waitcnt vmcnt(0)\ns_barrier\ns_cmp_lg_u32 s4, 0\ns_cbranch_scc1 {lab}")
        wait_init(k, 8)
        set_flag(k, f"s_lshl_b32 s78, s5, 2\ns_add_u32 s78, s78, {FL_LN}", 8)
        k.label(lab)

def gemm2(k, vm, stages, ksteps, NB, acc, wbuf, R, wgroup, wread, aload, areg, AW, nst_total, zero_first,
          act_from=0, act_to=None):
    steps = [(s, ks) for s in stages for ks in range(ksteps)]
    wb = lambda n, nb: wbuf + ((n & 1) * NB + nb) * 4
    vm.wait(("W", stages[0]))
    k("s_barrier")
    for nb in range(NB):
        for i in wread(stages[0], 0, nb, wb(0, nb)): k(i)
    pending = []
    for n, (s, ks) in enumerate(steps):
        last = (n == len(steps)-1)
        if ks == ksteps-1 and not last:
            assert not pending
            vm.wait(("W", s+1))
            k("s_barrier")
            if s+R-1 < nst_total and ("W", s+R-1) not in vm.tags:
                pending = [(u, i) for i, u in enumerate(wgroup(s+R-1))]
                plast = len(pending)-1; ps = s+R-1
        vm.wait(("A", s, ks))
        for nb in range(NB):
            k(f"s_waitcnt lgkmcnt({2*(NB-1-nb) if last else 2*(NB-1)})")
            k(mfma(acc+16*nb, wb(n, nb), areg(n), "0" if (n == 0 and zero_first) else None))
            if not last:
                s2, ks2 = steps[n+1]
                for i in wread(s2, ks2, nb, wb(n+1, nb)): k(i)
            if pending and nb != NB-1:
                u, i = pending.pop(0)
                vm.op(u, ("W", ps) if i == plast else None)
        if n + AW < len(steps):
            s2, ks2 = steps[n+AW]
            vm.op(aload(s2, ks2, areg(n+AW)), ("A", s2, ks2))
    assert not pending

def phase_f1(k):
    R = 3; UOFF = 12288 + 128; SLOT = 24704
    vm = VM(k)
    k("""s_and_b32 s34, s5, 7
    s_lshr_b32 s35, s5, 3
    s_and_b32 s36, s34, 1
    s_lshl_b32 s36, s36, 2
    s_and_b32 s37, s35, 3
    s_add_u32 s32, s36, s37
    s_lshr_b32 s36, s34, 1
    s_lshl_b32 s36, s36, 3
    s_lshr_b32 s37, s35, 2
    s_add_u32 s33, s36, s37""")
    k(f"""s_cmp_lt_u32 s4, 4
    s_cselect_b32 s8, s{P_W1}, s{P_W3}
    s_cselect_b32 s9, s{P_W1+1}, s{P_W3+1}
    s_cselect_b32 s42, 0, {UOFF}
    s_mov_b32 s10, {640*3072}
    s_mov_b32 s11, 0x00020000
    s_and_b32 s36, s4, 3
    s_mul_i32 s37, s36, 3072
    s_add_u32 s42, s42, s37
    s_lshl_b32 s36, s36, 5
    s_mul_i32 s37, s33, 96""")
    k.srd(12, P_WS, SZ, WS_XF)
    k.srd(16, P_WS, HF_SZ, WS_HF)
    for i in range(3):
        k(f"""v_add_u32 v3, {64*i}, v1
        v_mul_u32_u24 v8, 10923, v3
        v_lshrrev_b32 v8, 16, v8
        v_mul_u32_u24 v9, 6, v8
        v_sub_u32 v9, v3, v9
        v_add_u32 v8, s36, v8
        v_mul_u32_u24 v8, 3072, v8
        v_lshl_add_u32 v8, v9, 4, v8
        v_add_u32 v{4+i}, s37, v8""")
    k(f"""v_lshrrev_b32 v12, 5, v1
    v_bfe_u32 v13, v1, 2, 2
    v_lshl_add_u32 v14, v12, 3, v13
    v_mul_u32_u24 v14, 96, v14
    v_bfe_u32 v15, v1, 4, 1
    v_mul_u32_u24 v15, {UOFF}, v15
    v_add_u32 v14, v14, v15
    v_and_b32 v15, 3, v1
    v_lshl_add_u32 v8, v15, 3, v14
    v_add_u32 v3, 4096, v2""")
    k("s_add_u32 s40, s32, s33")
    mod_small(k, 40, 5, 43, 38)
    k(f"""s_lshl_b32 s46, s32, 3
    s_add_u32 s46, s46, s4
    s_mul_i32 s41, s46, 40960
    s_mul_i32 s44, s40, {128*3072}
    s_lshl_b32 s45, s40, 13
    s_add_u32 s45, s45, s41
    s_add_u32 s47, s41, 40960""")
    ACC, WB, AB = 16, 64, 88
    def wgroup(s):
        u = []
        for i in range(3):
            post = f"\ns_add_u32 s44, s44, {128*3072}\ns_cmp_eq_u32 s44, {640*3072}\ns_cselect_b32 s44, 0, s44" if i == 2 else ""
            u.append(f"s_add_u32 m0, s42, {(s % R)*SLOT + i*1024}\ns_nop 0\nbuffer_load_dwordx4 v{4+i}, s[8:11], s44 offen lds" + post)
        return u
    def wread(s, ks, nb, dst):
        o = (s % R)*SLOT + ks*16*96 + nb*32
        return [f"ds_read_b64_tr_b16 {vr(dst,2)}, v8 offset:{o}", f"ds_read_b64_tr_b16 {vr(dst+2,2)}, v8 offset:{o+4*96}"]
    def aload(s, ks, dst):
        post = "\ns_add_u32 s45, s45, 8192\ns_cmp_eq_u32 s45, s47\ns_cselect_b32 s45, s41, s45" if ks == 7 else ""
        return f"buffer_load_dwordx4 {vr(dst,4)}, v{3 if ks >= 4 else 2}, s[12:15], s45 offen offset:{(ks%4)*1024}{SC()}" + post
    areg = lambda n: AB + 4*(n % 8)
    for s in range(R-1):
        g = wgroup(s)
        for i, u in enumerate(g): vm.op(u, ("W", s) if i == len(g)-1 else None)
    if CFG["sync"]:
        lab = k.newlabel("f1p")
        k(f"s_cmp_lg_u32 s4, 0\ns_cbranch_scc1 {lab}")
        poll32(k, f"s_lshl_b32 s78, s32, 7\ns_add_u32 s78, s78, {FL_LN}", 10)
        k.label(lab)
        k("s_barrier")
    k.stamp(2)
    for ks in range(8): vm.op(aload(0, ks, areg(ks)), ("A", 0, ks))
    gemm2(k, vm, list(range(5)), 8, 3, ACC, WB, R, wgroup, wread, aload, areg, 8, 5, True)
    k.stamp(3)
    k(f"""s_mul_i32 s36, s46, 96
    s_mul_i32 s37, s33, 3
    s_add_u32 s36, s36, s37
    s_lshl_b32 s36, s36, 10
    s_mov_b32 s38, {f32(-LOG2E)}
    s_setprio {CFG.get('prio_f1e', 0)}
    s_nop 7""")
    for nb in range(3):
        a = ACC + 16*nb; t = WB + 8*(nb % 2); d = AB + 4*nb
        for e in range(8): k(f"v_mul_f32 v{t+e}, s38, v{a+e}")
        for e in range(8): k(f"v_exp_f32 v{t+e}, v{t+e}")
        for e in range(8): k(f"v_mul_f32 v{a+e}, v{a+e}, v{a+8+e}")
        for e in range(8): k(f"v_add_f32 v{t+e}, 1.0, v{t+e}")
        for e in range(8): k(f"v_rcp_f32 v{t+e}, v{t+e}")
        k("s_nop 0")
        for e in range(8): k(f"v_mul_f32 v{a+e}, v{a+e}, v{t+e}")
        for e in range(4): k(f"v_cvt_pk_bf16_f32 v{d+e}, v{a+2*e}, v{a+2*e+1}")
        k(f"buffer_store_dwordx4 {vr(d,4)}, v2, s[16:19], s36 offen offset:{nb*1024}{SC()}")
    k(f"s_setprio {CFG.get('prio_f', 0)}")
    if CFG["sync"]:
        lab = k.newlabel("f1f")
        k(f"s_waitcnt vmcnt(0)\ns_barrier\ns_cmp_lg_u32 s4, 0\ns_cbranch_scc1 {lab}")
        set_flag(k, f"s_lshl_b32 s78, s32, 5\ns_add_u32 s78, s78, s33\ns_lshl_b32 s78, s78, 2\ns_add_u32 s78, s78, {FL_H}", 10)
        k.label(lab)

def phase_f2(k, endlab):
    R = 4; SLOT = 20480
    vm = VM(k)
    k("""s_and_b32 s34, s5, 7
    s_lshr_b32 s35, s5, 3
    s_lshl_b32 s36, s34, 2
    s_and_b32 s37, s35, 3
    s_add_u32 s32, s36, s37
    s_lshr_b32 s33, s35, 2
    s_and_b32 s37, s4, 1
    s_lshr_b32 s38, s4, 1
    s_lshl_b32 s39, s4, 5
    s_mul_i32 s43, s33, 160""")
    k.srd(8, P_W2, 1536*1280)
    k.srd(16, P_WO, 640*1280)
    k.srd(12, P_WS, HF_SZ, WS_HF)
    k.srd(24, P_WS, SZ, WS_OF)
    k.srd(20, P_X, SZ)
    ACC, WB, AB = 16, 64, 88
    def dma_addr(mode):
        out = []
        for i in range(5):
            c = f"""v_add_u32 v3, {64*i}, v1
            v_mul_u32_u24 v13, 6554, v3
            v_lshrrev_b32 v13, 16, v13
            v_mul_u32_u24 v14, 10, v13
            v_sub_u32 v14, v3, v14
            v_lshlrev_b32 v14, 4, v14
            v_add_u32 v14, s43, v14
            v_add_u32 v13, s39, v13
            """
            if mode == 1: c += "v_lshrrev_b32 v3, 4, v13\nv_lshl_add_u32 v13, v3, 2, v13\n"
            if mode == 2: c += "v_lshrrev_b32 v3, 2, v13\nv_lshl_add_u32 v13, v3, 4, v13\nv_add_u32 v13, 16, v13\n"
            c += f"v_mul_u32_u24 v13, 1280, v13\nv_add_u32 v{4+i}, v13, v14"
            out.append(c)
        return out
    for c in dma_addr(0): k(c)
    k(f"""v_lshrrev_b32 v15, 5, v1
    v_bfe_u32 v13, v1, 2, 2
    v_lshl_add_u32 v13, v15, 2, v13
    s_lshl_b32 s44, s38, 6
    v_add_u32 v13, s44, v13
    v_mul_u32_u24 v13, 160, v13
    v_and_b32 v14, 3, v1
    v_lshl_add_u32 v10, v14, 3, v13
    v_bfe_u32 v14, v1, 4, 1
    v_lshl_add_u32 v9, v14, 5, v10
    v_add_u32 v11, {3*SLOT}, v9
    v_add_u32 v12, {3*SLOT}, v10""")
    k("s_add_u32 s40, s32, s33")
    mod_small(k, 40, 12, 44, 38)
    k(f"""s_lshl_b32 s46, s32, 1
    s_add_u32 s46, s46, s37
    s_mul_i32 s41, s46, 98304
    s_lshl_b32 s44, s38, 12
    s_add_u32 s41, s41, s44
    s_mul_i32 s47, s46, 40960
    s_add_u32 s47, s47, s44
    s_mul_i32 s42, s4, 5120
    s_mul_i32 s44, s40, {128*1280}
    s_lshl_b32 s45, s40, 13
    s_add_u32 s45, s45, s41
    s_add_u32 s68, s41, 98304""")
    def wgroup(s):
        u = []
        for i in range(5):
            pre = post = ""
            if s < 12:
                ld = f"buffer_load_dwordx4 v{4+i}, s[8:11], s44 offen lds"
                if i == 4: post = f"\ns_add_u32 s44, s44, {128*1280}\ns_cmp_eq_u32 s44, {1536*1280}\ns_cselect_b32 s44, 0, s44"
            elif s < 16:
                if s == 12: pre = dma_addr(1)[i] + "\n"
                if i == 0: pre += f"s_mov_b32 s44, {(s-12)*160*1280}\n"
                ld = f"buffer_load_dwordx4 v{4+i}, s[16:19], s44 offen lds"
            else:
                ld = f"buffer_load_dwordx4 v{4+i}, s[16:19], 0 offen lds"
            u.append(pre + f"s_add_u32 m0, s42, {(s % R)*SLOT + i*1024}\ns_nop 0\n" + ld + post)
        return u
    def wread(s, ks, nb, dst):
        slot = s % R
        va = (11 if slot == 3 else 9) + (1 if nb == 2 else 0)
        o = (slot % 3)*SLOT*(slot != 3) + ks*2560 + nb*64
        return [f"ds_read_b64_tr_b16 {vr(dst,2)}, v{va} offset:{o}", f"ds_read_b64_tr_b16 {vr(dst+2,2)}, v{va} offset:{o+1280}"]
    def aload(s, ks, dst):
        if s < 12:
            post = "\ns_add_u32 s45, s45, 8192\ns_cmp_eq_u32 s45, s68\ns_cselect_b32 s45, s41, s45" if ks == 3 else ""
            return f"buffer_load_dwordx4 {vr(dst,4)}, v2, s[12:15], s45 offen offset:{ks*1024}{SC()}" + post
        post = "\ns_add_u32 s47, s47, 8192" if ks == 3 else ""
        return f"buffer_load_dwordx4 {vr(dst,4)}, v2, s[24:27], s47 offen offset:{ks*1024}{SC()}" + post
    AW = 10
    areg = lambda n: AB + 4*(n % AW)
    def issue_w(s):
        g = wgroup(s)
        for i, u in enumerate(g): vm.op(u, ("W", s) if i == len(g)-1 else None)
    for s in range(R-1): issue_w(s)
    if CFG["sync"]:
        lab = k.newlabel("f2p")
        k(f"s_cmp_lg_u32 s4, 0\ns_cbranch_scc1 {lab}")
        poll32(k, f"s_lshr_b32 s78, s32, 2\ns_lshl_b32 s78, s78, 7\ns_add_u32 s78, s78, {FL_H}", 13)
        k.label(lab)
        k("s_barrier")
    k.stamp(4)
    for n in range(AW): vm.op(aload(n//4, n % 4, areg(n)), ("A", n//4, n % 4))
    gemm2(k, vm, list(range(12)), 4, 3, ACC, WB, R, wgroup, wread, aload, areg, AW, 17, True)
    k("s_barrier")
    issue_w(14); issue_w(15)
    for c in dma_addr(2): k(c)
    lab = k.newlabel("f2x")
    k(f"""s_cmp_lg_u32 s38, 0
    s_cbranch_scc1 {lab}
    v_and_b32 v13, 31, v1
    s_lshl_b32 s44, s46, 5
    v_add_u32 v13, s44, v13
    v_mul_u32_u24 v13, 1280, v13
    v_lshl_add_u32 v13, v15, 3, v13""")
    for q in range(10):
        k(f"buffer_load_dwordx2 {vr(AB+2*q,2)}, v13, s[20:23], s43 offen offset:{q*16}")
    for q in range(10):
        k(f"s_waitcnt vmcnt({9-q})")
        a = ACC + 4*q
        for e in range(2):
            k(f"v_lshlrev_b32 v14, 16, v{AB+2*q+e}\nv_and_b32 v3, 0xffff0000, v{AB+2*q+e}")
            k(f"v_add_f32 v{a+2*e}, v{a+2*e}, v14\nv_add_f32 v{a+2*e+1}, v{a+2*e+1}, v3")
    k.label(lab)
    k.stamp(5)
    if CFG["sync"]:
        lab = k.newlabel("f2q")
        k(f"s_cmp_lg_u32 s4, 0\ns_cbranch_scc1 {lab}")
        poll32(k, f"s_lshr_b32 s78, s32, 2\ns_lshl_b32 s78, s78, 7\ns_add_u32 s78, s78, {FL_O}", 13)
        k.label(lab)
        k("s_barrier")
    k(f"s_setprio {CFG.get('prio_tail', 3)}")
    k.stamp(6)
    for n in range(AW): vm.op(aload(12 + n//4, n % 4, areg(n)), ("A", 12 + n//4, n % 4))
    gemm2(k, vm, list(range(12, 17)), 4, 3, ACC, WB, R, wgroup, wread, aload, areg, AW, 17, False)
    k.srd(16, P_OUT, SZ)
    ES = 336
    k("s_lshl_b32 s44, s32, 6")
    for i in range(3):
        k(f"""v_add_u32 v3, {256*i}, v0
        v_mul_u32_u24 v13, 6554, v3
        v_lshrrev_b32 v13, 16, v13
        v_mul_u32_u24 v14, 10, v13
        v_sub_u32 v14, v3, v14
        v_mul_u32_u24 v3, {ES}, v13
        v_lshl_add_u32 v{7+i}, v14, 5, v3
        v_add_u32 v13, s44, v13
        v_mul_u32_u24 v13, 1280, v13
        v_lshl_add_u32 v13, v14, 4, v13
        v_add_u32 v{4+i}, s43, v13""")
    k(f"""s_lshl_b32 s44, s38, 1
    s_add_u32 s44, s44, s37
    s_lshl_b32 s44, s44, 5
    v_and_b32 v13, 31, v1
    v_add_u32 v13, s44, v13
    v_mul_u32_u24 v13, {ES}, v13
    v_lshl_add_u32 v13, v15, 4, v13
    s_barrier""")
    for q in range(10):
        k(f"ds_write_b128 v13, {vr(ACC+4*q,4)} offset:{q*32}")
    k("s_waitcnt lgkmcnt(0)\ns_barrier")
    lab = k.newlabel("f2e")
    def rd(i):
        b = WB + 16*i
        k(f"ds_read_b128 {vr(b,4)}, v{7+i}\nds_read_b128 {vr(b+4,4)}, v{7+i} offset:16")
        k(f"ds_read_b128 {vr(b+8,4)}, v{7+i} offset:{64*ES}\nds_read_b128 {vr(b+12,4)}, v{7+i} offset:{64*ES+16}")
    def fin(i):
        b = WB + 16*i
        for e in range(8): k(f"v_add_f32 v{b+e}, v{b+e}, v{b+8+e}")
        for e in range(4): k(f"v_cvt_pk_bf16_f32 v{b+8+e}, v{b+2*e}, v{b+2*e+1}")
        k(f"buffer_store_dwordx4 {vr(b+8,4)}, v{4+i}, s[16:19], 0 offen")
    rd(0); rd(1); rd(2)
    k("s_waitcnt lgkmcnt(8)"); fin(0)
    k("s_waitcnt lgkmcnt(4)"); fin(1)
    k(f"s_cmp_ge_u32 s4, 2\ns_cbranch_scc1 {lab}\ns_waitcnt lgkmcnt(0)"); fin(2)
    k.label(lab)
```

```python
from gen3 import *

def phase_a1(k, skiplab):
    WBASE = 49152
    CSO = 16384; STO = 16384 + 1024
    k(f"""s_and_b32 s34, s5, 7
    s_lshr_b32 s35, s5, 3
    s_and_b32 s36, s34, 1
    s_lshl_b32 s36, s36, 3
    s_and_b32 s37, s35, 7
    s_add_u32 s32, s36, s37
    s_lshr_b32 s36, s34, 1
    s_lshl_b32 s36, s36, 2
    s_lshr_b32 s37, s35, 3
    s_add_u32 s33, s36, s37
    s_cmp_ge_u32 s33, 15
    s_cbranch_scc1 {skiplab}""")
    Lc = k.newlabel("a1c"); Lv = k.newlabel("a1v"); Lj = k.newlabel("a1j")
    k(f"s_cmp_lt_u32 s4, 4\ns_cbranch_scc1 {Lc}")
    vm = VM(k)
    k.srd(8, P_WQKV, 640*3840)
    k.srd(12, P_X, SZ)
    k("s_and_b32 s36, s4, 3")
    k("""s_lshr_b32 s37, s36, 1
    s_lshl_b32 s37, s37, 6
    s_and_b32 s38, s36, 1
    s_add_u32 s37, s37, s38
    s_lshl_b32 s38, s36, 5
    s_cmp_lt_u32 s33, 10
    s_cselect_b32 s37, s37, s38
    s_cselect_b32 s38, 2560, 1280
    s_lshl_b32 s39, s32, 7
    s_add_u32 s37, s37, s39
    s_mul_i32 s37, s37, 1280
    v_lshrrev_b32 v3, 3, v1
    v_lshrrev_b32 v10, 4, v1
    v_and_b32 v11, 7, v1""".replace("s_cselect_b32 s38, 2560, 1280", "s_mov_b32 s38, 1280\ns_cselect_b32 s38, 2560, s38"))
    for i in range(4):
        k(f"""v_add_u32 v12, {8*i}, v3
        v_mul_lo_u32 v12, v12, s38
        v_add_u32 v13, {4*(i&1)}, v10
        v_xor_b32 v13, v13, v11
        v_lshl_add_u32 v12, v13, 4, v12
        v_add_u32 v{4+i}, s37, v12""")
    k("""v_lshlrev_b32 v12, 2, v10
    v_and_b32 v13, 15, v1
    v_xor_b32 v13, v13, v12
    v_lshlrev_b32 v13, 4, v13
    s_lshl_b32 s39, s36, 3
    v_add_u32 v12, s39, v10
    v_mul_u32_u24 v14, 3840, v12
    v_add_u32 v14, v14, v13
    s_lshl_b32 s39, s33, 8
    v_add_u32 v8, s39, v14
    v_add_u32 v9, 15360, v8""")
    k(f"v_lshl_add_u32 v3, v12, 8, v13\nv_add_u32 v3, {WBASE}, v3")
    k("s_add_u32 s40, s32, s33")
    mod_small(k, 40, 10, 43, 30)
    k(f"""s_mul_i32 s44, s40, {64*3840}
    s_lshl_b32 s45, s40, 7
    s_lshl_b32 s42, s36, 12
    s_lshl_b32 s43, s36, 11
    s_add_u32 s43, s43, {WBASE}""")
    def iss_a(s):
        for i in range(4):
            vm.op(f"s_add_u32 m0, s42, {(s % 3)*16384 + i*1024}\ns_nop 0\nbuffer_load_dwordx4 v{4+i}, s[12:15], s45 offen lds", ("A", s) if i == 3 else None)
        k("s_add_u32 s45, s45, 128\ns_cmp_eq_u32 s45, 1280\ns_cselect_b32 s45, 0, s45")
    def iss_w(j):
        for i in range(2):
            vm.op(f"s_add_u32 m0, s43, {(j % 4)*8192 + i*1024}\ns_nop 0\nbuffer_load_dwordx4 v{8+i}, s[8:11], s44 offen lds", ("W", j) if i == 1 else None)
        k(f"s_add_u32 s44, s44, {32*3840}\ns_cmp_eq_u32 s44, {640*3840}\ns_cselect_b32 s44, 0, s44")
    iss_a(0); iss_w(0); iss_w(1); iss_a(1); iss_w(2); iss_w(3); iss_a(2)
    if CFG["sync"]:
        lab = k.newlabel("a1z")
        k(f"s_cmp_lg_u32 s2, 0\ns_cbranch_scc1 {lab}\ns_cmp_lg_u32 s4, 7\ns_cbranch_scc1 {lab}")
        for e in range(4): k(f"v_mov_b32 v{16+e}, 0")
        for i in range(4): k(f"buffer_store_dwordx4 v[16:19], v2, s[28:31], 0 offen offset:{i*1024} sc1")
        k.srd(72, P_DBG, 256)
        k("""v_mov_b32 v20, 1
        s_waitcnt vmcnt(0)
        s_mov_b64 exec, 1
        buffer_store_dword v20, v16, s[72:75], 0 offen sc1
        s_mov_b64 exec, -1
        s_waitcnt vmcnt(0)""")
        k.label(lab)
        k.srd(72, P_DBG, 256)
    k.srd(16, P_WS, 16384, WS_ST)
    CA = 16
    for e in range(8): k(f"v_mov_b32 v{CA+e}, 0")
    k("v_mov_b32 v40, 0\nv_and_b32 v41, 15, v1\nv_lshlrev_b32 v41, 2, v41")
    k(f"s_lshl_b32 s78, s32, 6\ns_add_u32 s78, s78, {FL_LN}\ns_lshl_b32 s46, s32, 10")
    for j in range(20):
        vm.wait(("A", j >> 1)); vm.wait(("W", j))
        k("s_barrier")
        k(f"ds_read_b128 v[24:27], v3 offset:{(j % 4)*8192}\nds_read_b128 v[28:31], v3 offset:{(j % 4)*8192 + 1024}")
        if j >= 1 and j+3 < 20: iss_w(j+3)
        if j >= 2 and j % 2 == 0 and j//2+2 < 10: iss_a(j//2+2)
        if CFG["sync"]:
            if j == 8: vm.op("buffer_load_dword v42, v40, s[72:75], 0 offen sc1", "dbg")
            if j == 12:
                vm.wait("dbg")
                lab = k.newlabel("a1i")
                k(f"v_cmp_eq_u32 vcc, 0, v42\ns_nop 1\ns_cbranch_vccz {lab}")
                spin(k, "buffer_load_dword v42, v40, s[72:75], 0 offen sc1", "v_cmp_eq_u32 vcc, 0, v42")
                k.label(lab)
                vm.op("buffer_load_dword v42, v41, s[28:31], s78 offen sc1", "fl")
            if j == 16:
                vm.wait("fl")
                lab = k.newlabel("a1l")
                k(f"v_cmp_eq_u32 vcc, 0, v42\ns_nop 1\ns_cbranch_vccz {lab}")
                spin(k, "buffer_load_dword v42, v41, s[28:31], s78 offen sc1", "v_cmp_eq_u32 vcc, 0, v42")
                k.label(lab)
        if j == 16:
            vm.op(f"s_mov_b32 m0, {STO}\ns_nop 0\nbuffer_load_dwordx4 v2, s[16:19], s46 offen{SC()} lds", "st")
            k(f"v_lshlrev_b32 v43, 3, v1\nv_mov_b32 v44, 0\nv_mov_b32 v45, 0\nds_write_b64 v43, v[44:45] offset:{CSO}")
        for h in range(2):
            k(f"s_waitcnt lgkmcnt({(1-h) + (1 if j == 16 else 0)})")
            for e in range(4):
                r = 24 + 4*h + e
                k(f"v_lshlrev_b32 v{32+2*e}, 16, v{r}\nv_and_b32 v{33+2*e}, 0xffff0000, v{r}")
            for e in range(8): k(f"v_add_f32 v{CA+e}, v{CA+e}, v{32+e}")
        if j == 16: k("s_waitcnt lgkmcnt(0)")
    for e in range(8): k(f"v_mov_b32 v{32+e}, v{CA+e}")
    k("s_nop 1")
    for e in range(8): k(f"v_permlane16_swap_b32 v{CA+e}, v{32+e}")
    k("s_nop 1")
    for e in range(8): k(f"v_add_f32 v{CA+e}, v{CA+e}, v{32+e}")
    for e in range(8): k(f"v_mov_b32 v{32+e}, v{CA+e}")
    k("s_nop 1")
    for e in range(8): k(f"v_permlane32_swap_b32 v{CA+e}, v{32+e}")
    k("s_nop 1")
    for e in range(8): k(f"v_add_f32 v{CA+e}, v{CA+e}, v{32+e}")
    k("v_lshlrev_b32 v43, 5, v1\ns_mov_b64 exec, 0xffff")
    for e in range(8): k(f"ds_add_f32 v43, v{CA+e} offset:{CSO + 4*e}")
    k("s_mov_b64 exec, -1")
    vm.wait("st")
    k("s_waitcnt lgkmcnt(0)\ns_barrier")
    k("s_barrier")
    if CFG["sync"]:
        k(f"s_cmp_lg_u32 s4, 4\ns_cbranch_scc1 {Lj}")
        set_flag(k, f"s_lshl_b32 s78, s33, 4\ns_add_u32 s78, s78, s32\ns_lshl_b32 s78, s78, 2\ns_add_u32 s78, s78, {FL_QKV}", 40)
    k(f"s_branch {Lj}")
    k.label(Lc)
    k(f"s_setprio {CFG.get('prio_a1', 3)}")
    k("s_and_b32 s36, s4, 1\ns_lshr_b32 s37, s4, 1")
    k(f"""v_and_b32 v3, 31, v1
    v_lshrrev_b32 v10, 5, v1
    s_lshl_b32 s38, s36, 6
    v_add_u32 v11, s38, v3
    v_lshlrev_b32 v11, 7, v11
    v_bfe_u32 v12, v1, 1, 3
    v_xor_b32 v12, v12, v10
    v_lshl_add_u32 v4, v12, 4, v11
    v_xor_b32 v5, 32, v4
    v_xor_b32 v6, 64, v4
    v_xor_b32 v7, 96, v4
    v_bfe_u32 v13, v1, 2, 2
    v_lshl_add_u32 v14, v10, 3, v13
    v_lshlrev_b32 v14, 8, v14
    v_bfe_u32 v15, v1, 4, 1
    v_lshl_add_u32 v14, v15, 5, v14
    v_and_b32 v15, 3, v1
    v_lshl_add_u32 v14, v15, 3, v14
    v_lshl_add_u32 v14, v13, 6, v14
    s_lshl_b32 s38, s37, 7
    v_xor_b32 v14, s38, v14
    v_add_u32 v8, {WBASE}, v14
    v_xor_b32 v9, 64, v8""")
    ACC = 16; FR = 80
    def reads(n):
        s, ks, j = n >> 2, n & 3, n >> 1
        f = FR + (n & 1)*16
        ao = (s % 3)*16384; wo = (j % 4)*8192 + (n & 1)*4096
        return [f"ds_read_b64_tr_b16 {vr(f+8,2)}, v8 offset:{wo}", f"ds_read_b64_tr_b16 {vr(f+10,2)}, v8 offset:{wo+1024}",
                f"ds_read_b128 {vr(f,4)}, v{4+ks} offset:{ao}", f"ds_read_b128 {vr(f+4,4)}, v{4+ks} offset:{ao+4096}",
                f"ds_read_b64_tr_b16 {vr(f+12,2)}, v9 offset:{wo}", f"ds_read_b64_tr_b16 {vr(f+14,2)}, v9 offset:{wo+1024}"]
    def loop(swap):
        k("s_barrier")
        k.stamp(1)
        for i in reads(0): k(i)
        for n in range(40):
            f = FR + (n & 1)*16
            rd = reads(n+1) if n < 39 else []
            k("s_waitcnt lgkmcnt(0)")
            for m, (q, b) in enumerate(((0, 0), (0, 1), (1, 1), (1, 0))):
                a_, b_ = f+8+4*q, f+4*b
                if swap: a_, b_ = b_, a_
                k(mfma(ACC + (2*q+b)*16, a_, b_, "0" if n == 0 else None))
                if m == 0 and (n & 1) and n < 39: k("s_barrier")
                if m < 2:
                    for i in rd[3*m:3*m+3]: k(i)
        k.stamp(2)
    k(f"s_cmp_ge_u32 s33, 10\ns_cbranch_scc1 {Lv}")
    loop(False)
    k.srd(16, P_WS, 2*SZ, WS_QP)
    k(f"""s_cmp_lt_u32 s33, 5
    s_cselect_b32 s47, {f32(QSCALE)}, 1.0
    s_lshl_b32 s38, s36, 6
    v_lshl_add_u32 v11, v3, 1, s38
    v_lshlrev_b32 v12, 3, v11
    s_lshl_b32 s39, s32, 10
    v_add_u32 v11, s39, v12
    v_lshl_add_u32 v11, v10, 14, v11
    s_lshl_b32 s38, s37, 8
    v_lshl_add_u32 v13, v10, 4, s38
    s_lshl_b32 s40, s33, 19
    s_lshl_b32 s41, s37, 18
    s_add_u32 s40, s40, s41
    s_barrier
    ds_read_b128 v[4:7], v12 offset:{STO}""")
    for q in range(2):
        for j in range(4):
            k(f"ds_read_b128 {vr(FR+16*q+4*j,4)}, v13 offset:{CSO + q*128 + j*32}")
    k("s_waitcnt lgkmcnt(8)\nv_mul_f32 v5, s47, v5\nv_mul_f32 v7, s47, v7")
    for q in range(2):
        for j in range(4):
            k(f"s_waitcnt lgkmcnt({7 - (4*q+j)})")
            c = FR+16*q+4*j; d = 112 + 4*((4*q+j) % 4)
            for b in range(2):
                a = ACC + (2*q+b)*16 + 4*j
                for e in range(4): k(f"v_fma_f32 v{a+e}, -v{4+2*b}, v{c+e}, v{a+e}")
                for e in range(4): k(f"v_mul_f32 v{a+e}, v{a+e}, v{5+2*b}")
                k(f"v_cvt_pk_bf16_f32 v{d+2*b}, v{a}, v{a+1}\nv_cvt_pk_bf16_f32 v{d+2*b+1}, v{a+2}, v{a+3}")
            k(f"s_add_u32 s41, s40, {(8*q+2*j)*16384}")
            k(f"buffer_store_dwordx4 {vr(d,4)}, v11, s[16:19], s41 offen{SC()}")
    k(f"s_waitcnt vmcnt(0)\ns_barrier\ns_branch {Lj}")
    k.label(Lv)
    loop(True)
    k.srd(16, P_WS, SZ, WS_VI)
    k(f"""s_sub_u32 s38, s33, 10
    s_lshl_b32 s38, s38, 7
    s_lshl_b32 s39, s37, 6
    s_add_u32 s38, s38, s39
    v_mul_u32_u24 v13, 320, v10
    s_mov_b32 s41, {81920-320}""")
    for q in range(2):
        k(f"""v_add_u32 v14, s38, v3
        v_add_u32 v14, {32*q}, v14
        v_mul_u32_u24 v15, 3277, v14
        v_lshrrev_b32 v15, 16, v15
        v_mul_lo_u32 v15, v15, s41
        v_lshl_add_u32 v15, v14, 4, v15
        v_add_u32 v{4+q}, v15, v13""")
    k(f"""v_add_u32 v12, s39, v3
    v_lshlrev_b32 v12, 2, v12
    s_lshl_b32 s39, s36, 9
    v_lshl_add_u32 v13, v10, 5, s39
    s_lshl_b32 s40, s32, 1
    s_add_u32 s40, s40, s36
    s_mul_i32 s40, s40, 2560
    s_barrier
    ds_read_b32 v6, v12 offset:{CSO}
    ds_read_b32 v7, v12 offset:{CSO+128}""")
    for b in range(2):
        for j in range(4):
            k(f"ds_read_b128 {vr(FR+8*j,4)}, v13 offset:{STO + b*256 + j*64}")
            k(f"ds_read_b128 {vr(FR+8*j+4,4)}, v13 offset:{STO + b*256 + j*64 + 16}")
        k("s_waitcnt lgkmcnt(0)")
        for q in range(2):
            a = ACC + (2*q+b)*16
            for g in range(2):
                d = 112 + 4*(2*q+g)
                for r in range(8*g, 8*g+8): k(f"v_fma_f32 v{a+r}, -v{FR+2*r}, v{6+q}, v{a+r}")
                for r in range(8*g, 8*g+8): k(f"v_mul_f32 v{a+r}, v{a+r}, v{FR+2*r+1}")
                for e in range(4): k(f"v_cvt_pk_bf16_f32 v{d+e}, v{a+8*g+2*e}, v{a+8*g+2*e+1}")
                k(f"buffer_store_dwordx4 {vr(d,4)}, v{4+q}, s[16:19], s40 offen offset:{b*1280 + g*640}{SC()}")
    k("s_waitcnt vmcnt(0)\ns_barrier")
    k.label(Lj)

def phase_a2(k, force_fallback=False):
    SLOT = 26624; VOFF = 10240
    Lloop = k.newlabel("atl"); Lfin = k.newlabel("atf"); Lslow = k.newlabel("ats"); Lsl = k.newlabel("atsl"); Lend = k.newlabel("ate")
    k(f"s_setprio {CFG.get('prio_a2', 1)}")
    k("""s_and_b32 s34, s5, 7
    s_lshr_b32 s35, s5, 3
    s_lshl_b32 s32, s34, 2
    s_lshr_b32 s34, s35, 3
    s_add_u32 s32, s32, s34
    s_and_b32 s33, s35, 7""")
    Q1, Q2 = 16, 20
    K1, K2 = 24, 22
    V0, V1 = 28, 32
    P = 36; T = 44
    C, O = 48, 64
    S = [80, 96]
    k("v_and_b32 v3, 31, v1\nv_lshrrev_b32 v4, 5, v1")
    k("v_mul_u32_u24 v5, 320, v4\nv_lshl_add_u32 v5, v3, 4, v5")
    k(f"""v_lshlrev_b32 v6, 12, v4
    v_lshl_add_u32 v6, v3, 3, v6
    v_add_u32 v7, 256, v6
    v_add_u32 v8, {SLOT}, v6
    v_add_u32 v9, {SLOT}, v7
    v_add_u32 v10, {VOFF}, v2
    v_add_u32 v14, {VOFF+SLOT}, v2""")
    k("""s_lshl_b32 s37, s33, 3
    s_add_u32 s37, s37, s4
    s_lshl_b32 s38, s37, 5
    v_add_u32 v11, s38, v3
    v_lshlrev_b32 v11, 3, v11
    v_mov_b32 v12, v11
    v_lshl_add_u32 v11, v4, 15, v11
    s_mul_i32 s39, s32, 81920
    s_mov_b32 s68, 0x000fffff
    s_mov_b32 s69, 0x000fffff
    s_mov_b32 s70, -1
    s_mov_b32 s71, 0""")
    k.srd(8, P_WS, SZ, WS_QP)
    k.srd(12, P_WS, SZ, WS_KP)
    k.srd(16, P_WS, SZ, WS_VI)
    k.srd(20, P_WS, SZ, WS_OF)
    k(f"""s_lshr_b32 s40, s4, 1
    s_lshl_b32 s40, s40, 14
    s_and_b32 s44, s4, 1
    s_lshl_b32 s44, s44, 10
    s_add_u32 s40, s40, s44
    s_add_u32 s40, s40, s39
    s_lshl_b32 s45, s4, 8
    s_add_u32 s41, s45, s39
    s_add_u32 s41, s41, 65536
    s_add_u32 s45, s45, 8192
    s_mul_i32 s42, s4, 1280
    s_add_u32 s42, s42, s39
    s_mov_b32 s43, 0
    s_lshl_b32 s44, s4, 10
    s_lshl_b32 s46, s4, 11
    s_add_u32 s46, s46, {VOFF}""")
    def dma_units():
        sc = SC()
        return [f"s_add_u32 m0, s43, s44\ns_nop 0\nbuffer_load_dwordx4 v2, s[12:15], s40 offen{sc} lds\ns_add_u32 s40, s40, 2048",
                f"s_add_u32 m0, s43, s45\ns_mov_b64 exec, 0xffff\nbuffer_load_dwordx4 v2, s[12:15], s41 offen{sc} lds\ns_add_u32 s41, s41, 2048",
                f"s_add_u32 m0, s43, s46\ns_mov_b64 exec, s[68:69]\nbuffer_load_dwordx4 v5, s[16:19], s42 offen{sc} lds\ns_add_u32 m0, m0, 384\ns_nop 0",
                f"buffer_load_dwordx4 v5, s[16:19], s42 offen offset:640{sc} lds\ns_mov_b64 exec, -1\ns_add_u32 s42, s42, 10240\ns_add_u32 s43, s43, {SLOT}\ns_cmp_eq_u32 s43, {3*SLOT}\ns_cselect_b32 s43, 0, s43"]
    k(f"""v_cmp_eq_u32 vcc, 20, v3
    v_cmp_eq_u32 s[34:35], 24, v3
    v_mov_b32 v13, 0x3f803f80
    s_or_b64 vcc, vcc, s[34:35]
    s_nop 1
    v_cndmask_b32 v{T}, 0, v13, vcc""")
    for e in range(1, 4): k(f"v_mov_b32 v{T+e}, v{T}")
    k("v_add_u32 v13, s46, v2")
    k("s_not_b64 exec, s[68:69]")
    for slot in range(3):
        for i in range(2):
            k(f"ds_write_b128 v13, {vr(T,4)} offset:{slot*SLOT + i*1024}")
    k("s_mov_b64 exec, -1")
    for r in list(range(O, O+16)) + list(range(P, P+8)) + list(range(V1, V1+4)) + [Q2, Q2+1]:
        k(f"v_mov_b32 v{r}, 0")
    k("s_add_u32 s34, s39, 16384\ns_add_u32 s35, s39, 65536")
    k.stamp(3)
    if CFG["sync"]:
        lab = k.newlabel("a2p")
        k(f"s_cmp_lg_u32 s4, 0\ns_cbranch_scc1 {lab}")
        wait_init(k, S[0])
        k(f"""s_mul_i32 s76, s32, 20
        s_add_u32 s77, s76, 19
        s_lshr_b32 s76, s76, 7
        s_lshr_b32 s77, s77, 7
        s_lshl_b32 s76, s76, 2
        s_lshl_b32 s77, s77, 2
        s_mov_b32 s72, 0x00f0000f
        s_mov_b32 s73, 0x00000f00
        s_lshl_b64 s[74:75], s[72:73], s76
        s_lshl_b64 s[72:73], s[72:73], s77
        s_or_b64 exec, s[72:73], s[74:75]""")
        s0 = S[0]
        spin(k, f"buffer_load_dwordx4 {vr(s0,4)}, v2, s[28:31], 0 offen offset:{FL_QKV} sc1",
             f"v_min_u32 v{s0}, v{s0}, v{s0+1}\nv_min3_u32 v{s0}, v{s0}, v{s0+2}, v{s0+3}\nv_cmp_eq_u32 vcc, 0, v{s0}", sleep=1)
        k("s_mov_b64 exec, -1")
        k.label(lab)
        k("s_barrier")
    k.stamp(4)
    for u in dma_units(): k(u)
    k(f"buffer_load_dwordx2 {vr(Q1,2)}, v11, s[8:11], s39 offen{SC()}")
    k(f"buffer_load_dwordx2 {vr(Q1+2,2)}, v11, s[8:11], s34 offen{SC()}")
    k("s_mov_b64 exec, s[70:71]")
    k(f"buffer_load_dwordx2 {vr(Q2,2)}, v12, s[8:11], s35 offen{SC()}")
    k("s_mov_b64 exec, -1")
    for u in dma_units(): k(u)
    k("s_waitcnt vmcnt(4) lgkmcnt(0)\ns_barrier")
    def k1read(t):
        tt = t % 8; va = (8 if t >= 8 else 6) + (tt & 1); a = tt >> 1
        return f"ds_read2st64_b64 {vr(K1,4)}, v{va} offset0:{a} offset1:{a+4}"
    def k2read(t):
        tt = t % 8; va = (8 if t >= 8 else 6) + (tt & 1); a = tt >> 1
        return f"ds_read_b64 {vr(K2,2)}, v{va} offset:{8192 + a*512}"
    def vread(t, g):
        va = 14 if t >= 8 else 10
        return f"ds_read_b128 {vr(V1 if g else V0,4)}, v{va} offset:{(t%8)*2048 + g*1024}"
    k(k1read(0)); k(k2read(0))
    k("s_waitcnt lgkmcnt(0)")
    k(mfma(S[0], K1, Q1, "0")); k(mfma8(S[0], K2, Q2))
    k(k1read(1)); k(k2read(1)); k(vread(0, 0))
    k("s_nop 15")
    s0 = S[0]
    k(f"v_max3_f32 v{T}, v{s0}, v{s0+1}, v{s0+2}")
    for e in range(3, 15, 2):
        k(f"v_max3_f32 v{T}, v{T}, v{s0+e}, v{s0+e+1}")
    k(f"v_max_f32 v{T}, v{T}, v{s0+15}")
    k(f"v_mov_b32 v{T+1}, v{T}\ns_nop 1\nv_permlane32_swap_b32 v{T}, v{T+1}\ns_nop 1\nv_max_f32 v{T}, v{T}, v{T+1}")
    for e in range(16): k(f"v_sub_f32 v{C+e}, 0, v{T}")
    for e in range(16): k(f"v_sub_f32 v{s0+e}, v{s0+e}, v{T}")
    k(f"s_mov_b32 s47, 0\ns_mov_b32 s76, {SLOT}\ns_mov_b32 s77, {(-2*SLOT) & 0xffffffff}\ns_waitcnt lgkmcnt(0)")
    k.stamp(5)
    k(".p2align 6")
    k.label(Lloop)
    for t in range(8):
        sc, sn = S[t & 1], S[(t+1) & 1]
        ms = [mfma(sn, K1, Q1, vr(C, 16)), mfma(O, V1, P+4), mfma8(sn, K2, Q2), mfma(O, V0, P)]
        before = [["s_waitcnt lgkmcnt(2)"], [], ["s_waitcnt lgkmcnt(2)"], []]
        after = [[k1read(t+2)], [vread(t, 1)], [k2read(t+2)], [vread(t+1, 0)]]
        if t == 6:
            after[0] = ["s_waitcnt vmcnt(0)", "s_barrier"] + after[0]
        if t == 7:
            lab = k.newlabel("nodma")
            after[1] = after[1] + ["s_cmp_ge_u32 s47, 6", f"s_cbranch_scc1 {lab}"] + dma_units() + [f"{lab}:"]
        for i in range(4):
            for x in before[i]: k(x)
            k(ms[i])
            for x in after[i]: k(x)
            for e in range(4): k(f"v_exp_f32 v{sc+4*i+e}, v{sc+4*i+e}")
            k(f"v_cvt_pk_bf16_f32 v{P+2*i}, v{sc+4*i}, v{sc+4*i+1}")
            k(f"v_cvt_pk_bf16_f32 v{P+2*i+1}, v{sc+4*i+2}, v{sc+4*i+3}")
    k(f"""s_add_u32 s47, s47, 1
    s_cmp_eq_u32 s47, 2
    s_cselect_b32 s36, s77, s76
    s_cmp_eq_u32 s47, 5
    s_cselect_b32 s36, s77, s36
    v_mov_b32 v6, v8
    v_mov_b32 v7, v9
    v_mov_b32 v10, v14
    v_add_u32 v8, s36, v8
    v_add_u32 v9, s36, v9
    v_add_u32 v14, s36, v14
    s_cmp_lt_u32 s47, 8
    s_cbranch_scc1 {Lloop}""")
    k.stamp(6)
    k("s_waitcnt lgkmcnt(0)")
    k(mfma(O, V1, P+4))
    k(f"""s_mul_i32 s72, s37, 40960
    s_lshl_b32 s73, s32, 10
    s_add_u32 s73, s73, s72
    s_lshr_b32 s74, s32, 2
    s_add_u32 s74, s74, 32
    s_lshl_b32 s74, s74, 10
    s_add_u32 s74, s74, s72
    s_and_b32 s75, s32, 1
    s_lshl_b32 s75, s75, 9
    s_add_u32 s74, s74, s75
    s_and_b32 s75, s32, 2
    s_lshl_b32 s75, s75, 2
    s_add_u32 s74, s74, s75
    s_nop 3
    s_mov_b64 exec, s[70:71]
    v_mov_b32 v{T+2}, v{O+12}
    s_not_b64 exec, s[70:71]
    v_mov_b32 v{T+2}, v{O+8}
    s_mov_b64 exec, -1
    s_mov_b32 s72, {f32(2.0**60) if not force_fallback else f32(0.0)}
    v_cmp_ngt_f32 vcc, s72, v{T+2}
    s_nop 1
    s_cbranch_vccnz {Lslow}""")
    k.label(Lfin)
    k(f"v_rcp_f32 v{T}, v{T+2}\ns_nop 0")
    for e in range(12): k(f"v_mul_f32 v{O+e}, v{O+e}, v{T}")
    for e in range(6): k(f"v_cvt_pk_bf16_f32 v{P+e}, v{O+2*e}, v{O+2*e+1}")
    k(f"buffer_store_dwordx4 {vr(P,4)}, v2, s[20:23], s73 offen{SC()}")
    k("s_mov_b64 exec, s[70:71]")
    k(f"buffer_store_dwordx2 {vr(P+4,2)}, v2, s[20:23], s74 offen{SC()}")
    k("s_mov_b64 exec, -1")
    if CFG["sync"]:
        k(f"s_waitcnt vmcnt(0)\ns_barrier\ns_cmp_lg_u32 s4, 0\ns_cbranch_scc1 {Lend}")
        set_flag(k, f"s_lshl_b32 s78, s33, 5\ns_add_u32 s78, s78, s32\ns_lshl_b32 s78, s78, 2\ns_add_u32 s78, s78, {FL_O}", T)
    k.label(Lend)
    k.stamp(7); k.stamp_flush(0)
    k("s_endpgm")
    k.label(Lslow)
    M = C
    k(f"""v_lshlrev_b32 v7, 3, v3
    v_lshl_add_u32 v6, v4, 15, v7
    v_mov_b32 v{M}, {f32(-3.0e38)}
    s_mov_b32 s40, s39
    s_mov_b32 s42, s39
    s_mov_b32 s47, 0""")
    for r in range(O, O+16): k(f"v_mov_b32 v{r}, 0")
    for r in range(V0, V0+8): k(f"v_mov_b32 v{r}, 0x3f803f80")
    k.label(Lsl)
    sc = SC()
    k(f"""s_add_u32 s41, s40, 16384
    s_add_u32 s43, s40, 65536
    buffer_load_dwordx2 {vr(K1,2)}, v6, s[12:15], s40 offen{sc}
    buffer_load_dwordx2 {vr(K1+2,2)}, v6, s[12:15], s41 offen{sc}
    buffer_load_dwordx2 {vr(K2,2)}, v7, s[12:15], s43 offen{sc}
    s_mov_b64 exec, s[68:69]
    buffer_load_dwordx4 {vr(V0,4)}, v5, s[16:19], s42 offen{sc}
    buffer_load_dwordx4 {vr(V1,4)}, v5, s[16:19], s42 offen offset:640{sc}
    s_mov_b64 exec, -1
    s_waitcnt vmcnt(0)""")
    k(mfma(s0, K1, Q1, "0")); k(mfma8(s0, K2, Q2))
    k("s_nop 15\ns_nop 3")
    k(f"v_max3_f32 v{T}, v{s0}, v{s0+1}, v{M}")
    for e in range(2, 16, 2):
        k(f"v_max3_f32 v{T}, v{T}, v{s0+e}, v{s0+e+1}")
    k(f"v_mov_b32 v{T+1}, v{T}\ns_nop 1\nv_permlane32_swap_b32 v{T}, v{T+1}\ns_nop 1\nv_max_f32 v{T}, v{T}, v{T+1}")
    k(f"v_sub_f32 v{T+1}, v{M}, v{T}\nv_exp_f32 v{T+1}, v{T+1}\nv_mov_b32 v{M}, v{T}")
    for e in range(16): k(f"v_mul_f32 v{O+e}, v{O+e}, v{T+1}")
    for e in range(16): k(f"v_sub_f32 v{s0+e}, v{s0+e}, v{T}")
    for e in range(16): k(f"v_exp_f32 v{s0+e}, v{s0+e}")
    k("s_nop 0")
    for e in range(8): k(f"v_cvt_pk_bf16_f32 v{P+e}, v{s0+2*e}, v{s0+2*e+1}")
    k("s_nop 1")
    k(mfma(O, V0, P)); k(mfma(O, V1, P+4))
    k(f"""s_nop 15
    s_nop 3
    s_add_u32 s40, s40, 256
    s_add_u32 s42, s42, 1280
    s_add_u32 s47, s47, 1
    s_cmp_lt_u32 s47, 64
    s_cbranch_scc1 {Lsl}
    v_mov_b32 v{T+2}, v{O+12}
    s_branch {Lfin}""")

NAME = "parallel_sum__softmax_full_mha__glu_gated_swiglu__prompt_kernel"
def multi():
    CFG["sync"] = False
    ks = []
    for nm, idx in (("f0", 1), ("a1", 2), ("f1", 3), ("a2", 0), ("f2", 4)):
        k = Kern(nm + "_kernel", 256, 512, 81920)
        end = f"L_end_{nm}"
        common_prologue(k, 256, end)
        if nm == "f0": phase_f0(k)
        if nm == "a1": phase_a1(k, end)
        if nm == "f1": phase_f1(k)
        if nm == "f2":
            k(f"s_cmp_ge_u32 s4, 4\ns_cbranch_scc1 {end}")
            phase_f2(k, end)
        if nm == "a2": phase_a2(k, CFG.get("ff", False))
        else:
            if STAMP[0]: k("s_waitcnt vmcnt(0)")
            k.stamp(7); k.stamp_flush(idx)
        k.label(end); k("s_endpgm")
        ks.append(k)
    return build(ks)

def fused():
    CFG["sync"] = True
    k = Kern(NAME, 512, 512, 81920)
    common_prologue(k, 512, "L_end")
    k("s_cmp_lt_u32 s2, 256\ns_cbranch_scc1 L_roleA")
    k(f"s_setprio {CFG.get('prio_f0', 0)}")
    phase_f0(k)
    k(f"s_setprio {CFG.get('prio_f', 0)}")
    k.stamp(1)
    phase_f1(k)
    k("s_cmp_ge_u32 s4, 4\ns_cbranch_scc1 L_end")
    phase_f2(k, "L_end")
    if STAMP[0]: k("s_waitcnt vmcnt(0)")
    k.stamp(7); k.stamp_flush(1, "s5")
    k.label("L_end"); k("s_endpgm")
    k.label("L_roleA")
    phase_a1(k, "L_a2")
    k.label("L_a2")
    phase_a2(k, CFG.get("ff", False))
    return build([k], single=True)

if __name__ == "__main__":
    STAMP[0] = "--stamp" in sys.argv
    for a in sys.argv[2:]:
        if "=" in a:
            n, v = a.split("="); CFG[n] = int(v)
    CFG["ff"] = "--fallback" in sys.argv
    open(sys.argv[1], "w").write(multi() if "--multi" in sys.argv else fused())
```

```python
import sys, math
from asmlib2 import *

SZ = 2621440
WS_XF, WS_QP, WS_KP, WS_VI, WS_OF, WS_HF = 0, SZ, 2*SZ, 3*SZ, 4*SZ, 5*SZ
HF_SZ = 2048*1536*2
WS_ST = WS_HF + HF_SZ
ST_SZ = 32768
WS_CS = WS_ST + ST_SZ
CS_SZ = 15*16*1024
WS_FL = WS_CS + 262144
FL_LN, FL_QKV, FL_GO, FL_H, FL_O, FL_N = 0, 256, 512, 768, 1024, 1280
LOG2E = math.log2(math.e)
QSCALE = 20 ** -0.5 * LOG2E
P_X, P_WQKV, P_WO, P_W1, P_W3, P_W2, P_OUT, P_DBG, P_WS = 48, 50, 52, 56, 58, 60, 62, 64, 66
SPIN_MAX = 100000
CFG = {}
def C(n, d=0): return CFG.get(n, d)

def mod_small(k, s, m, t, maxval):
    q = 1
    while q * m * 2 <= maxval: q *= 2
    while q >= 1:
        k(f"s_cmp_ge_u32 s{s}, {q*m}\ns_cselect_b32 s{t}, {q*m}, 0\ns_sub_u32 s{s}, s{s}, s{t}")
        q //= 2

def tag_load(vt): return f"buffer_load_dwordx2 {vr(vt,2)}, v{vt+2}, s[72:75], 0 offen sc1"
def tag_setup(k, vt):
    k.srd(72, P_DBG, 256)
    k(f"v_mov_b32 v{vt+2}, 0")
def tag_take(k, vt, loaded):
    top = k.newlabel("tg"); mid = k.newlabel("tgm"); done = k.newlabel("tgd")
    k(f"s_mov_b32 s79, {SPIN_MAX}")
    if loaded: k(f"s_branch {mid}")
    k(f"{top}:\n{tag_load(vt)}\ns_waitcnt vmcnt(0)\n{mid}:")
    k(f"""v_readfirstlane_b32 s6, v{vt}
    v_readfirstlane_b32 s7, v{vt+1}
    s_nop 1
    s_cmp_lg_u32 s6, 0
    s_cbranch_scc1 {done}
    s_sleep 2
    s_sub_u32 s79, s79, 1
    s_cmp_lg_u32 s79, 0
    s_cbranch_scc1 {top}
    {done}:""")
def get_tag(k, vt):
    lab = k.newlabel("gt")
    k(f"s_cmp_lg_u32 s6, 0\ns_cbranch_scc1 {lab}")
    tag_setup(k, vt); tag_take(k, vt, False)
    k.label(lab)
def set_flag(k, idx_expr, vt):
    k(idx_expr)
    k(f"""s_lshl_b32 s78, s78, 7
    v_mov_b32 v{vt}, s6
    v_mov_b32 v{vt+1}, s7
    v_mov_b32 v{vt+2}, 0
    s_mov_b64 exec, 1
    buffer_store_dwordx2 {vr(vt,2)}, v{vt+2}, s[28:31], s78 offen sc1
    s_mov_b64 exec, -1""")
def poll(k, voff, soff, vt, sleep=2, loaded=False):
    top = k.newlabel("poll"); done = k.newlabel("polled"); mid = k.newlabel("pmid")
    k(f"s_mov_b32 s79, {SPIN_MAX}")
    if loaded: k(f"s_branch {mid}")
    k(f"{top}:\nbuffer_load_dwordx2 {vr(vt,2)}, v{voff}, s[28:31], {soff} offen sc1\ns_waitcnt vmcnt(0)\n{mid}:")
    k(f"""v_cmp_ne_u64 vcc, s[6:7], {vr(vt,2)}
    s_nop 1
    s_and_b64 exec, exec, vcc
    s_cbranch_scc0 {done}
    s_sleep {sleep}
    s_sub_u32 s79, s79, 1
    s_cmp_lg_u32 s79, 0
    s_cbranch_scc1 {top}
    {done}:
    s_mov_b64 exec, -1""")
def polln(k, idx_expr, n, vt, sleep=2):
    k(idx_expr)
    k(f"s_lshl_b32 s78, s78, 7\nv_lshlrev_b32 v{vt+2}, 7, v1\ns_mov_b32 exec_lo, {hex((1 << n) - 1)}\ns_mov_b32 exec_hi, 0")
    poll(k, vt+2, "s78", vt, sleep)
A1_TILE = """s_and_b32 s34, s5, 7
    s_lshr_b32 s35, s5, 3
    s_and_b32 s36, s34, 1
    s_lshl_b32 s36, s36, 3
    s_and_b32 s37, s35, 7
    s_add_u32 {rb}, s36, s37
    s_lshr_b32 s36, s34, 1
    s_lshl_b32 s36, s36, 2
    s_lshr_b32 s37, s35, 3
    s_add_u32 {cb}, s36, s37"""
def after_kernarg(k):
    k("s_waitcnt lgkmcnt(0)")
def flags_srd(k): k.srd(28, P_WS, FL_N*128, WS_FL)

WBASE = 49152; CSO = 16384; STO = 16384 + 1024

def a1_loader(k, Lj):
    vm = VM(k)
    k("""s_and_b32 s36, s4, 3
    s_lshr_b32 s37, s36, 1
    s_lshl_b32 s37, s37, 6
    s_and_b32 s38, s36, 1
    s_add_u32 s37, s37, s38
    s_lshl_b32 s38, s36, 5
    s_cmp_lt_u32 s33, 10
    s_cselect_b32 s37, s37, s38
    s_mov_b32 s38, 1280
    s_cselect_b32 s38, 2560, s38
    s_lshl_b32 s39, s32, 7
    s_add_u32 s37, s37, s39
    s_mul_i32 s37, s37, 1280
    v_lshrrev_b32 v3, 3, v1
    v_lshrrev_b32 v10, 4, v1
    v_and_b32 v11, 7, v1
    v_mul_u32_u24 v12, s38, v3
    v_xor_b32 v13, v10, v11
    v_lshl_add_u32 v12, v13, 4, v12
    v_add_u32 v4, s37, v12
    s_lshl_b32 s39, s38, 3
    v_xor_b32 v5, 64, v4
    v_add_u32 v5, s39, v5
    s_lshl_b32 s39, s38, 4
    v_add_u32 v6, s39, v4
    v_add_u32 v7, s39, v5
    v_lshlrev_b32 v12, 2, v10
    v_and_b32 v13, 15, v1
    v_xor_b32 v13, v13, v12
    s_lshl_b32 s39, s36, 3
    v_add_u32 v12, s39, v10
    v_mul_u32_u24 v14, 3840, v12
    v_lshl_add_u32 v14, v13, 4, v14
    s_lshl_b32 s39, s33, 8
    v_add_u32 v8, s39, v14
    v_add_u32 v9, 15360, v8
    s_add_u32 s40, s32, s33""")
    mod_small(k, 40, 10, 43, 30)
    k(f"""s_mul_i32 s44, s40, {64*3840}
    s_lshl_b32 s45, s40, 7
    s_lshl_b32 s42, s36, 12
    s_lshl_b32 s43, s36, 11
    s_add_u32 s43, s43, {WBASE}""")
    after_kernarg(k)
    k.srd(12, P_X, SZ)
    k.srd(8, P_WQKV, 640*3840)
    def iss_a(s, half):
        for i in (2*half, 2*half+1):
            vm.op(f"s_add_u32 m0, s42, {(s % 3)*16384 + i*1024}\ns_nop 0\nbuffer_load_dwordx4 v{4+i}, s[12:15], s45 offen lds", ("A", s) if i == 3 else None)
        if half: k("s_add_u32 s45, s45, 128\ns_cmp_eq_u32 s45, 1280\ns_cselect_b32 s45, 0, s45")
    def iss_w(j):
        for i in range(2):
            vm.op(f"s_add_u32 m0, s43, {(j % 4)*8192 + i*1024}\ns_nop 0\nbuffer_load_dwordx4 v{8+i}, s[8:11], s44 offen lds", ("W", j) if i == 1 else None)
        k(f"s_add_u32 s44, s44, {32*3840}\ns_cmp_eq_u32 s44, {640*3840}\ns_cselect_b32 s44, 0, s44")
    iss_a(0, 0); iss_a(0, 1); iss_w(0); iss_w(1); iss_a(1, 0); iss_a(1, 1); iss_w(2); iss_w(3); iss_a(2, 0); iss_a(2, 1)
    flags_srd(k)
    k.srd(16, P_WS, ST_SZ + CS_SZ, WS_ST)
    tag_setup(k, 42)
    k(f"""v_and_b32 v41, 31, v1
    v_lshlrev_b32 v40, 4, v41
    s_lshl_b32 s46, s36, 5
    v_add_lshl_u32 v41, v41, s46, 2
    s_lshl_b32 s46, s32, 2
    s_add_u32 s46, s46, s36
    s_lshl_b32 s46, s46, 9
    s_lshl_b32 s47, s33, 2
    s_add_u32 s47, s47, s36
    s_lshl_b32 s47, s47, 12
    s_add_u32 s47, s47, {ST_SZ}
    v_mov_b32 v46, 0
    v_mov_b32 v47, 0
    v_lshlrev_b32 v45, 3, v1""")
    gl = ["buffer_load_dwordx4 v[16:19], v40, s[16:19], s46 offen sc1"] + \
         [f"buffer_load_dwordx4 {vr(20+4*i,4)}, v2, s[16:19], s47 offen offset:{i*1024} sc1" for i in range(4)]
    JF = C("a1_jf", 11)
    for j in range(20):
        vm.wait(("A", j >> 1)); vm.wait(("W", j))
        k("s_barrier")
        if j >= 1 and j+3 < 20: iss_w(j+3)
        if j >= 2 and j//2+2 < 10: iss_a(j//2+2, j & 1)
        if j == 2: vm.op(tag_load(42), "tag")
        if j == 6:
            vm.wait("tag"); tag_take(k, 42, True)
        if j == JF:
            for g in gl: vm.op(g, "gr")
        if j == C("go_j", 14) and not C("go_a2"):
            lab = k.newlabel("a1g")
            k(f"s_cmp_lg_u32 s4, 5\ns_cbranch_scc1 {lab}")
            set_flag(k, f"s_lshl_b32 s78, s33, 4\ns_add_u32 s78, s78, s32\ns_add_u32 s78, s78, {FL_GO}", 48)
            k.label(lab)
        if j == 16:
            k(f"ds_write_b64 v45, v[46:47] offset:{CSO}\ns_waitcnt lgkmcnt(0)")
        if j == 17:
            vm.wait("gr")
            top = k.newlabel("gr"); done = k.newlabel("grd")
            k(f"s_mov_b32 s79, {SPIN_MAX}\n{top}:")
            k("v_cmp_ne_u64 s[68:69], s[6:7], v[18:19]")
            for i in range(4):
                k(f"v_cmp_ne_u64 vcc, s[6:7], {vr(22+4*i,2)}\ns_nop 0\ns_or_b64 s[68:69], s[68:69], vcc")
            k(f"s_cbranch_scc0 {done}\ns_sleep 2")
            for g in gl: k(g)
            k(f"s_waitcnt vmcnt(0)\ns_sub_u32 s79, s79, 1\ns_cmp_lg_u32 s79, 0\ns_cbranch_scc1 {top}\n{done}:")
            k(f"""v_add_f32 v20, v20, v24
            v_add_f32 v21, v21, v25
            v_add_f32 v28, v28, v32
            v_add_f32 v29, v29, v33
            ds_write_b32 v41, v16 offset:{STO}
            ds_write_b32 v41, v17 offset:{STO+512}
            v_add_f32 v20, v20, v28
            v_add_f32 v21, v21, v29
            ds_add_f32 v45, v20 offset:{CSO}
            ds_add_f32 v45, v21 offset:{CSO+4}""")
        if j == 18: k("s_waitcnt lgkmcnt(0)")
    k("s_barrier")
    k(f"s_cmp_lg_u32 s4, 4\ns_cbranch_scc1 {Lj}")
    set_flag(k, f"s_lshl_b32 s78, s33, 4\ns_add_u32 s78, s78, s32\ns_add_u32 s78, s78, {FL_QKV}", 40)
    k(f"s_branch {Lj}")

def a1_compute(k, Lj):
    Lv = k.newlabel("a1v")
    k(f"""s_and_b32 s36, s4, 1
    s_lshr_b32 s37, s4, 1
    v_and_b32 v3, 31, v1
    v_lshrrev_b32 v10, 5, v1
    s_lshl_b32 s38, s36, 6
    v_add_u32 v11, s38, v3
    v_lshlrev_b32 v11, 7, v11
    v_bfe_u32 v12, v1, 1, 3
    v_xor_b32 v12, v12, v10
    v_lshl_add_u32 v4, v12, 4, v11
    v_xor_b32 v5, 32, v4
    v_xor_b32 v6, 64, v4
    v_xor_b32 v7, 96, v4
    v_bfe_u32 v13, v1, 2, 2
    v_lshl_add_u32 v14, v10, 3, v13
    v_lshlrev_b32 v14, 8, v14
    v_bfe_u32 v15, v1, 4, 1
    v_lshl_add_u32 v14, v15, 5, v14
    v_and_b32 v15, 3, v1
    v_lshl_add_u32 v14, v15, 3, v14
    v_lshl_add_u32 v14, v13, 6, v14
    s_lshl_b32 s38, s37, 7
    v_xor_b32 v14, s38, v14
    v_add_u32 v8, {WBASE}, v14
    v_xor_b32 v9, 64, v8""")
    after_kernarg(k)
    flags_srd(k)
    ACC = 16; FR = 80
    def reads(n):
        s, ks, j = n >> 2, n & 3, n >> 1
        f = FR + (n & 1)*16
        ao = (s % 3)*16384; wo = (j % 4)*8192 + (n & 1)*4096
        return [f"ds_read_b64_tr_b16 {vr(f+8,2)}, v8 offset:{wo}", f"ds_read_b64_tr_b16 {vr(f+10,2)}, v8 offset:{wo+1024}",
                f"ds_read_b128 {vr(f,4)}, v{4+ks} offset:{ao}", f"ds_read_b128 {vr(f+4,4)}, v{4+ks} offset:{ao+4096}",
                f"ds_read_b64_tr_b16 {vr(f+12,2)}, v9 offset:{wo}", f"ds_read_b64_tr_b16 {vr(f+14,2)}, v9 offset:{wo+1024}"]
    def loop(swap):
        k("s_barrier")
        k.stamp(1)
        for i in reads(0): k(i)
        for n in range(40):
            f = FR + (n & 1)*16
            rd = reads(n+1) if n < 39 else []
            k("s_waitcnt lgkmcnt(0)")
            for m, (q, b) in enumerate(((0, 0), (0, 1), (1, 1), (1, 0))):
                a_, b_ = f+8+4*q, f+4*b
                if swap: a_, b_ = b_, a_
                k(mfma(ACC + (2*q+b)*16, a_, b_, "0" if n == 0 else None))
                if m == 0 and (n & 1) and n < 39: k("s_barrier")
                if m < 2:
                    for i in rd[3*m:3*m+3]: k(i)
        k.stamp(2)
    k(f"s_cmp_ge_u32 s33, 10\ns_cbranch_scc1 {Lv}")
    k.srd(16, P_WS, 2*SZ, WS_QP)
    k(f"""s_cmp_lt_u32 s33, 5
    s_cselect_b32 s47, {f32(QSCALE)}, 1.0
    s_lshl_b32 s38, s36, 6
    v_lshl_add_u32 v11, v3, 1, s38
    v_lshlrev_b32 v12, 2, v11
    s_lshl_b32 s38, s37, 8
    v_lshl_add_u32 v13, v10, 4, s38
    v_lshlrev_b32 v11, 3, v11
    s_lshl_b32 s39, s32, 10
    v_add_u32 v11, s39, v11
    v_lshl_add_u32 v11, v10, 14, v11
    s_lshl_b32 s40, s33, 19
    s_lshl_b32 s41, s37, 18
    s_add_u32 s40, s40, s41""")
    loop(False)
    k(f"ds_read_b64 v[4:5], v12 offset:{STO}\nds_read_b64 v[6:7], v12 offset:{STO+512}")
    for q in range(2):
        for j in range(4):
            k(f"ds_read_b128 {vr(FR+16*q+4*j,4)}, v13 offset:{CSO + q*128 + j*32}")
    k("s_waitcnt lgkmcnt(8)\nv_mul_f32 v6, s47, v6\nv_mul_f32 v7, s47, v7")
    for q in range(2):
        for j in range(4):
            k(f"s_waitcnt lgkmcnt({7 - (4*q+j)})")
            c = FR+16*q+4*j; d = 112 + 4*((4*q+j) % 4)
            for b in range(2):
                a = ACC + (2*q+b)*16 + 4*j
                for e in (0, 2): k(f"v_pk_fma_f32 {vr(a+e,2)}, v[4:5], {vr(c+e,2)}, {vr(a+e,2)} op_sel:[{b},0,0] op_sel_hi:[{b},1,1] neg_lo:[1,0,0] neg_hi:[1,0,0]")
            for b in range(2):
                a = ACC + (2*q+b)*16 + 4*j
                for e in (0, 2): k(f"v_pk_mul_f32 {vr(a+e,2)}, {vr(a+e,2)}, v[6:7] op_sel:[0,{b}] op_sel_hi:[1,{b}]")
            for b in range(2):
                a = ACC + (2*q+b)*16 + 4*j
                k(f"v_cvt_pk_bf16_f32 v{d+2*b}, v{a}, v{a+1}\nv_cvt_pk_bf16_f32 v{d+2*b+1}, v{a+2}, v{a+3}")
            k(f"s_add_u32 s41, s40, {(8*q+2*j)*16384}")
            k(f"buffer_store_dwordx4 {vr(d,4)}, v11, s[16:19], s41 offen sc1")
    k(f"s_waitcnt vmcnt(0)\ns_barrier\ns_branch {Lj}")
    k.label(Lv)
    k.srd(16, P_WS, SZ, WS_VI)
    k(f"""s_lshl_b32 s39, s37, 6
    v_add_u32 v12, s39, v3
    v_lshlrev_b32 v12, 2, v12
    s_lshl_b32 s40, s36, 8
    v_lshl_add_u32 v11, v10, 4, s40
    s_sub_u32 s38, s33, 10
    s_lshl_b32 s38, s38, 7
    s_add_u32 s38, s38, s39
    s_mov_b32 s41, {81920-320}""")
    for q in range(2):
        k(f"""v_add_u32 v112, s38, v3
        v_add_u32 v112, {32*q}, v112
        v_mul_u32_u24 v15, 3277, v112
        v_lshrrev_b32 v15, 16, v15
        v_mul_lo_u32 v15, v15, s41
        v_lshl_add_u32 v15, v112, 4, v15
        v_mul_u32_u24 v112, 320, v10
        v_add_u32 v{13+q}, v15, v112""")
    k("s_lshl_b32 s40, s32, 1\ns_add_u32 s40, s40, s36\ns_mul_i32 s40, s40, 2560")
    loop(True)
    k(f"ds_read_b32 v6, v12 offset:{CSO}\nds_read_b32 v7, v12 offset:{CSO+128}")
    for b in range(2):
        for j in range(4):
            k(f"ds_read_b128 {vr(FR+4*j,4)}, v11 offset:{STO + b*128 + j*32}")
            k(f"ds_read_b128 {vr(FR+16+4*j,4)}, v11 offset:{STO + 512 + b*128 + j*32}")
        k("s_waitcnt lgkmcnt(0)")
        if b == 0: k("s_nop 1")
        for q in range(2):
            a = ACC + (2*q+b)*16
            for g in range(2):
                d = 112 + 4*(2*q+g)
                for r in range(8*g, 8*g+8, 2): k(f"v_pk_fma_f32 {vr(a+r,2)}, {vr(FR+r,2)}, v[6:7], {vr(a+r,2)} op_sel:[0,{q},0] op_sel_hi:[1,{q},1] neg_lo:[1,0,0] neg_hi:[1,0,0]")
                for r in range(8*g, 8*g+8, 2): k(f"v_pk_mul_f32 {vr(a+r,2)}, {vr(a+r,2)}, {vr(FR+16+r,2)}")
                for e in range(4): k(f"v_cvt_pk_bf16_f32 v{d+e}, v{a+8*g+2*e}, v{a+8*g+2*e+1}")
                k(f"buffer_store_dwordx4 {vr(d,4)}, v{13+q}, s[16:19], s40 offen offset:{b*1280 + g*640} sc1")
    k("s_waitcnt vmcnt(0)\ns_barrier")

def phase_f0(k):
    RS = 1312; LB = 2*24704; LC = LB + 8*RS
    k(f"""s_lshl_b32 s32, s5, 3
    s_add_u32 s32, s32, s4
    s_mul_i32 s33, s32, 1280
    v_lshlrev_b32 v3, 2, v1
    s_and_b32 s38, s5, 15
    s_mul_i32 s38, s38, 40
    s_mul_i32 s39, s4, 5
    s_add_u32 s38, s38, s39
    s_mul_i32 s38, s38, 3840
    s_lshr_b32 s39, s5, 4
    s_min_u32 s39, s39, 14
    s_lshl_b32 s39, s39, 8
    s_add_u32 s38, s38, s39""")
    after_kernarg(k)
    k.srd(8, P_X, SZ)
    for i in range(5):
        k(f"buffer_load_dword v{8+i}, v3, s[8:11], s33 offen offset:{i*256}")
    k.srd(20, P_WQKV, 640*3840)
    for i in range(5):
        k(f"buffer_load_dword v{48+i}, v3, s[20:23], s38 offen" + ("\ns_add_u32 s38, s38, 3840" if i < 4 else ""))
    tag_setup(k, 44)
    lab = k.newlabel("tag")
    k(f"""s_or_b32 s7, s5, s4
    s_cmp_lg_u32 s7, 0
    s_cbranch_scc1 {lab}
    s_memrealtime s[76:77]
    s_waitcnt lgkmcnt(0)
    s_or_b32 s76, s76, 1
    v_mov_b32 v18, s76
    v_mov_b32 v19, s77
    s_mov_b64 exec, 1
    buffer_store_dwordx2 v[18:19], v46, s[72:75], 0 offen sc1
    s_mov_b64 exec, -1
    {lab}:""")
    flags_srd(k)
    k.srd(12, P_WS, SZ, WS_XF)
    k.srd(16, P_WS, ST_SZ + CS_SZ, WS_ST)
    k(f"""s_mul_i32 s34, s4, {RS}
    s_add_u32 s34, s34, {LB}
    v_add_u32 v4, s34, v3
    v_and_b32 v5, 7, v0
    v_lshrrev_b32 v6, 3, v0
    v_mul_u32_u24 v7, {RS}, v5
    v_lshl_add_u32 v7, v6, 4, v7
    v_add_u32 v7, {LB}, v7
    v_lshlrev_b32 v6, 9, v6
    v_lshl_add_u32 v6, v5, 4, v6
    s_lshr_b32 s35, s5, 2
    s_mul_i32 s35, s35, 40960
    s_and_b32 s36, s5, 3
    s_lshl_b32 s36, s36, 7
    s_add_u32 s35, s35, s36
    s_add_u32 s36, s35, 32768
    s_lshl_b32 s37, s32, 4
    v_lshlrev_b32 v47, 3, v0
    v_lshlrev_b32 v43, 3, v1
    s_lshl_b32 s38, s5, 10
    s_add_u32 s38, s38, {ST_SZ}""")
    X = 16
    for i in range(5):
        k(f"s_waitcnt vmcnt({9-i})")
        if i == 4: k(tag_load(44))
        k(f"v_lshlrev_b32 v{X+2*i}, 16, v{8+i}\nv_and_b32 v{X+2*i+1}, 0xffff0000, v{8+i}")
    def reduce(v, t):
        for r in (8, 4, 2, 1):
            k(f"s_nop 1\nv_add_f32_dpp v{v}, v{v}, v{v} row_ror:{r} row_mask:0xf bank_mask:0xf")
        k(f"v_mov_b32 v{t}, v{v}\ns_nop 1\nv_permlane16_swap_b32 v{v}, v{t}\ns_nop 1\nv_add_f32 v{v}, v{v}, v{t}")
        k(f"v_mov_b32 v{t}, v{v}\ns_nop 1\nv_permlane32_swap_b32 v{v}, v{t}\ns_nop 1\nv_add_f32 v{v}, v{v}, v{t}")
    M, V, T = 28, 29, 30
    k(f"v_add_f32 v{M}, v{X}, v{X+1}\nv_add_f32 v{T}, v{X+2}, v{X+3}")
    for i in range(4, 10, 2):
        k(f"v_add_f32 v{M}, v{M}, v{X+i}\nv_add_f32 v{T}, v{T}, v{X+i+1}")
    k(f"v_add_f32 v{M}, v{M}, v{T}")
    reduce(M, T)
    k(f"v_mul_f32 v{M}, {f32(1/640)}, v{M}")
    for i in range(10): k(f"v_sub_f32 v{32+i}, v{X+i}, v{M}")
    k(f"v_mul_f32 v{V}, v32, v32\nv_mul_f32 v{T}, v33, v33")
    for i in range(2, 10, 2):
        k(f"v_fmac_f32 v{V}, v{32+i}, v{32+i}\nv_fmac_f32 v{T}, v{33+i}, v{33+i}")
    k(f"v_add_f32 v{V}, v{V}, v{T}")
    reduce(V, T)
    k(f"v_mul_f32 v{V}, {f32(1/640)}, v{V}")
    def rb(v): k(f"v_cvt_pk_bf16_f32 v{v}, v{v}, v{v}\nv_lshlrev_b32 v{v}, 16, v{v}")
    rb(M); rb(V)
    k(f"v_add_f32 v{V}, {f32(1e-5)}, v{V}"); rb(V)
    k(f"v_sqrt_f32 v{V}, v{V}\ns_nop 0"); rb(V)
    k(f"v_rcp_f32 v{V}, v{V}\ns_waitcnt vmcnt(0)")
    tag_take(k, 44, True)
    k(f"v_mov_b32 v{T}, s6\nv_mov_b32 v{T+1}, s7")
    k(f"s_mov_b64 exec, 1\nbuffer_store_dwordx4 {vr(M,4)}, v46, s[16:19], s37 offen sc1\ns_mov_b64 exec, -1")
    k("v_lshlrev_b32 v32, 16, v48\nv_and_b32 v33, 0xffff0000, v48")
    for i in range(1, 5):
        k(f"v_lshlrev_b32 v34, 16, v{48+i}\nv_and_b32 v35, 0xffff0000, v{48+i}\nv_add_f32 v32, v32, v34\nv_add_f32 v33, v33, v35")
    k(f"ds_write_b64 v47, v[32:33] offset:{LC}")
    for i in range(5):
        a, b = X+2*i, X+2*i+1
        k(f"v_sub_f32 v{a}, v{a}, v{M}\nv_sub_f32 v{b}, v{b}, v{M}")
        k(f"v_cvt_pk_bf16_f32 v{b}, v{a}, v{b}")
        k(f"v_lshlrev_b32 v{a}, 16, v{b}\nv_and_b32 v{b}, 0xffff0000, v{b}")
        k(f"v_mul_f32 v{a}, v{a}, v{V}\nv_mul_f32 v{b}, v{b}, v{V}")
        k(f"v_cvt_pk_bf16_f32 v{8+i}, v{a}, v{b}")
        k(f"ds_write_b32 v4, v{8+i} offset:{i*256}")
    k("s_waitcnt lgkmcnt(0)\ns_barrier")
    l1 = k.newlabel("f0w"); l2 = k.newlabel("f0c")
    k(f"ds_read_b128 v[8:11], v7\ns_cmp_lg_u32 s4, 2\ns_cbranch_scc1 {l2}")
    for i in range(8): k(f"ds_read_b64 {vr(48+2*i,2)}, v43 offset:{LC + i*512}")
    k("s_waitcnt lgkmcnt(0)")
    for st in (8, 4, 2):
        for e in range(st): k(f"v_add_f32 v{48+e}, v{48+e}, v{48+st+e}")
    k(f"v_mov_b32 v50, s6\nv_mov_b32 v51, s7\nbuffer_store_dwordx4 v[48:51], v2, s[16:19], s38 offen sc1\n{l2}:")
    k(f"""s_cmp_ge_u32 s4, 2
    s_cbranch_scc1 {l1}
    ds_read_b128 v[12:15], v7 offset:1024
    s_waitcnt lgkmcnt(0)
    buffer_store_dwordx4 v[12:15], v6, s[12:15], s36 offen sc1
    {l1}:
    s_waitcnt lgkmcnt(0)
    buffer_store_dwordx4 v[8:11], v6, s[12:15], s35 offen sc1""")
    lab = k.newlabel("f0p")
    k(f"s_waitcnt vmcnt(0)\ns_barrier\ns_cmp_lg_u32 s4, 0\ns_cbranch_scc1 {lab}")
    set_flag(k, f"s_add_u32 s78, s5, {FL_LN}", 8)
    k.label(lab)

def gemm2(k, vm, stages, ksteps, NB, acc, wbuf, R, wgroup, wread, aload, areg, AW, nst_total, zero_first,
          act_from=0, act_to=None):
    steps = [(s, ks) for s in stages for ks in range(ksteps)]
    wb = lambda n, nb: wbuf + ((n & 1) * NB + nb) * 4
    vm.wait(("W", stages[0]))
    k("s_barrier")
    for nb in range(NB):
        for i in wread(stages[0], 0, nb, wb(0, nb)): k(i)
    pending = []
    for n, (s, ks) in enumerate(steps):
        last = (n == len(steps)-1)
        if ks == ksteps-1 and not last:
            assert not pending
            vm.wait(("W", s+1))
            k("s_barrier")
            if s+R-1 < nst_total and ("W", s+R-1) not in vm.tags:
                pending = [(u, i) for i, u in enumerate(wgroup(s+R-1))]
                plast = len(pending)-1; ps = s+R-1
        vm.wait(("A", s, ks))
        for nb in range(NB):
            k(f"s_waitcnt lgkmcnt({2*(NB-1-nb) if last else 2*(NB-1)})")
            k(mfma(acc+16*nb, wb(n, nb), areg(n), "0" if (n == 0 and zero_first) else None))
            if not last:
                s2, ks2 = steps[n+1]
                for i in wread(s2, ks2, nb, wb(n+1, nb)): k(i)
            if pending and nb != NB-1:
                u, i = pending.pop(0)
                vm.op(u, ("W", ps) if i == plast else None)
        if n + AW < len(steps):
            s2, ks2 = steps[n+AW]
            vm.op(aload(s2, ks2, areg(n+AW)), ("A", s2, ks2))
    assert not pending

def phase_f1(k):
    R = 3; UOFF = 12288 + 128; SLOT = 24704
    vm = VM(k)
    k("""s_and_b32 s34, s5, 7
    s_lshr_b32 s35, s5, 3
    s_and_b32 s36, s34, 1
    s_lshl_b32 s36, s36, 2
    s_and_b32 s37, s35, 3
    s_add_u32 s32, s36, s37
    s_lshr_b32 s36, s34, 1
    s_lshl_b32 s36, s36, 3
    s_lshr_b32 s37, s35, 2
    s_add_u32 s33, s36, s37""")
    k(f"""s_cmp_lt_u32 s4, 4
    s_cselect_b32 s8, s{P_W1}, s{P_W3}
    s_cselect_b32 s9, s{P_W1+1}, s{P_W3+1}
    s_cselect_b32 s42, 0, {UOFF}
    s_mov_b32 s10, {640*3072}
    s_mov_b32 s11, 0x00020000
    s_and_b32 s36, s4, 3
    s_mul_i32 s37, s36, 3072
    s_add_u32 s42, s42, s37
    s_lshl_b32 s36, s36, 5
    s_mul_i32 s37, s33, 96""")
    k.srd(12, P_WS, SZ, WS_XF)
    k.srd(16, P_WS, HF_SZ, WS_HF)
    for i in range(3):
        k(f"""v_add_u32 v3, {64*i}, v1
        v_mul_u32_u24 v8, 10923, v3
        v_lshrrev_b32 v8, 16, v8
        v_mul_u32_u24 v9, 6, v8
        v_sub_u32 v9, v3, v9
        v_add_u32 v8, s36, v8
        v_mul_u32_u24 v8, 3072, v8
        v_lshl_add_u32 v8, v9, 4, v8
        v_add_u32 v{4+i}, s37, v8""")
    k(f"""v_lshrrev_b32 v12, 5, v1
    v_bfe_u32 v13, v1, 2, 2
    v_lshl_add_u32 v14, v12, 3, v13
    v_mul_u32_u24 v14, 96, v14
    v_bfe_u32 v15, v1, 4, 1
    v_mul_u32_u24 v15, {UOFF}, v15
    v_add_u32 v14, v14, v15
    v_and_b32 v15, 3, v1
    v_lshl_add_u32 v8, v15, 3, v14
    v_add_u32 v3, 4096, v2""")
    k("s_add_u32 s40, s32, s33")
    mod_small(k, 40, 5, 43, 38)
    k(f"""s_lshl_b32 s46, s32, 3
    s_add_u32 s46, s46, s4
    s_mul_i32 s41, s46, 40960
    s_mul_i32 s44, s40, {128*3072}
    s_lshl_b32 s45, s40, 13
    s_add_u32 s45, s45, s41
    s_add_u32 s47, s41, 40960""")
    ACC, WB, AB = 16, 64, 88
    def wgroup(s):
        u = []
        for i in range(3):
            post = f"\ns_add_u32 s44, s44, {128*3072}\ns_cmp_eq_u32 s44, {640*3072}\ns_cselect_b32 s44, 0, s44" if i == 2 else ""
            u.append(f"s_add_u32 m0, s42, {(s % R)*SLOT + i*1024}\ns_nop 0\nbuffer_load_dwordx4 v{4+i}, s[8:11], s44 offen lds" + post)
        return u
    def wread(s, ks, nb, dst):
        o = (s % R)*SLOT + ks*16*96 + nb*32
        return [f"ds_read_b64_tr_b16 {vr(dst,2)}, v8 offset:{o}", f"ds_read_b64_tr_b16 {vr(dst+2,2)}, v8 offset:{o+4*96}"]
    def aload(s, ks, dst):
        post = "\ns_add_u32 s45, s45, 8192\ns_cmp_eq_u32 s45, s47\ns_cselect_b32 s45, s41, s45" if ks == 7 else ""
        return f"buffer_load_dwordx4 {vr(dst,4)}, v{3 if ks >= 4 else 2}, s[12:15], s45 offen offset:{(ks%4)*1024} sc1" + post
    AW = C("f1_aw", 8)
    areg = lambda n: AB + 4*(n % AW)
    def wpro():
        for s in range(R-1):
            g = wgroup(s)
            for i, u in enumerate(g): vm.op(u, ("W", s) if i == len(g)-1 else None)
    def apro():
        for ks in range(AW): vm.op(aload(0, ks, areg(ks)), ("A", 0, ks))
    def go_poll():
        polln(k, f"s_add_u32 s78, s5, {FL_GO}" if C("go_a2") else f"""s_and_b32 s68, s34, 1
        s_lshl_b32 s68, s68, 3
        s_and_b32 s69, s35, 7
        s_add_u32 s68, s68, s69
        s_lshr_b32 s69, s34, 1
        s_lshl_b32 s69, s69, 2
        s_lshr_b32 s70, s35, 3
        s_add_u32 s69, s69, s70
        s_min_u32 s69, s69, 14
        s_lshl_b32 s78, s69, 4
        s_add_u32 s78, s78, s68
        s_add_u32 s78, s78, {FL_GO}""", 1, 10, sleep=4)
    early = C("f1_early", 0)
    if early >= 1: wpro()
    lab = k.newlabel("f1p")
    k(f"s_cmp_lg_u32 s4, 0\ns_cbranch_scc1 {lab}")
    polln(k, f"s_lshl_b32 s78, s32, 5\ns_add_u32 s78, s78, {FL_LN}", 32, 10, sleep=4)
    if early < 2 and C("f1_hold", 1): go_poll()
    k(f"{lab}:\ns_barrier")
    if early < 1: wpro()
    apro()
    if early >= 2 and C("f1_hold", 1):
        lab = k.newlabel("f1g")
        k(f"s_cmp_lg_u32 s4, 0\ns_cbranch_scc1 {lab}")
        go_poll()
        k.label(lab)
    k.stamp(2)
    gemm2(k, vm, list(range(5)), 8, 3, ACC, WB, R, wgroup, wread, aload, areg, AW, 5, True)
    k.stamp(3)
    k(f"""s_mul_i32 s36, s46, 96
    s_mul_i32 s37, s33, 3
    s_add_u32 s36, s36, s37
    s_lshl_b32 s36, s36, 10
    s_mov_b32 s38, {f32(-LOG2E)}
    s_setprio {C('prio_f1e', 3)}
    s_nop 7""")
    for nb in range(3):
        a = ACC + 16*nb; t = WB + 8*(nb % 2); d = AB + 4*nb
        for e in range(8): k(f"v_mul_f32 v{t+e}, s38, v{a+e}")
        for e in range(8): k(f"v_exp_f32 v{t+e}, v{t+e}")
        for e in range(8): k(f"v_mul_f32 v{a+e}, v{a+e}, v{a+8+e}")
        for e in range(8): k(f"v_add_f32 v{t+e}, 1.0, v{t+e}")
        for e in range(8): k(f"v_rcp_f32 v{t+e}, v{t+e}")
        k("s_nop 0")
        for e in range(8): k(f"v_mul_f32 v{a+e}, v{a+e}, v{t+e}")
        for e in range(4): k(f"v_cvt_pk_bf16_f32 v{d+e}, v{a+2*e}, v{a+2*e+1}")
        k(f"buffer_store_dwordx4 {vr(d,4)}, v2, s[16:19], s36 offen offset:{nb*1024} sc1")
    k(f"s_setprio {C('prio_f2', 2)}")
    if True:
        lab = k.newlabel("f1f")
        k(f"s_waitcnt vmcnt(0)\ns_barrier\ns_cmp_lg_u32 s4, 0\ns_cbranch_scc1 {lab}")
        set_flag(k, f"s_lshl_b32 s78, s32, 5\ns_add_u32 s78, s78, s33\ns_add_u32 s78, s78, {FL_H}", 10)
        k.label(lab)

def phase_f2(k, endlab):
    R = 4; SLOT = 20480
    vm = VM(k)
    k("""s_and_b32 s34, s5, 7
    s_lshr_b32 s35, s5, 3
    s_lshl_b32 s36, s34, 2
    s_and_b32 s37, s35, 3
    s_add_u32 s32, s36, s37
    s_lshr_b32 s33, s35, 2
    s_and_b32 s37, s4, 1
    s_lshr_b32 s38, s4, 1
    s_lshl_b32 s39, s4, 5
    s_mul_i32 s43, s33, 160""")
    k.srd(8, P_W2, 1536*1280)
    k.srd(16, P_WO, 640*1280)
    k.srd(12, P_WS, HF_SZ, WS_HF)
    k.srd(24, P_WS, SZ, WS_OF)
    k.srd(20, P_X, SZ)
    ACC, WB, AB = 16, 64, 88
    def dma_addr(mode):
        out = []
        for i in range(5):
            c = f"""v_add_u32 v3, {64*i}, v1
            v_mul_u32_u24 v13, 6554, v3
            v_lshrrev_b32 v13, 16, v13
            v_mul_u32_u24 v14, 10, v13
            v_sub_u32 v14, v3, v14
            v_lshlrev_b32 v14, 4, v14
            v_add_u32 v14, s43, v14
            v_add_u32 v13, s39, v13
            """
            if mode == 1: c += "v_lshrrev_b32 v3, 4, v13\nv_lshl_add_u32 v13, v3, 2, v13\n"
            if mode == 2: c += "v_lshrrev_b32 v3, 2, v13\nv_lshl_add_u32 v13, v3, 4, v13\nv_add_u32 v13, 16, v13\n"
            c += f"v_mul_u32_u24 v13, 1280, v13\nv_add_u32 v{4+i}, v13, v14"
            out.append(c)
        return out
    for c in dma_addr(0): k(c)
    k(f"""v_lshrrev_b32 v15, 5, v1
    v_bfe_u32 v13, v1, 2, 2
    v_lshl_add_u32 v13, v15, 2, v13
    s_lshl_b32 s44, s38, 6
    v_add_u32 v13, s44, v13
    v_mul_u32_u24 v13, 160, v13
    v_and_b32 v14, 3, v1
    v_lshl_add_u32 v10, v14, 3, v13
    v_bfe_u32 v14, v1, 4, 1
    v_lshl_add_u32 v9, v14, 5, v10
    v_add_u32 v11, {3*SLOT}, v9
    v_add_u32 v12, {3*SLOT}, v10""")
    k("s_add_u32 s40, s32, s33")
    mod_small(k, 40, 12, 44, 38)
    k(f"""s_lshl_b32 s46, s32, 1
    s_add_u32 s46, s46, s37
    s_mul_i32 s41, s46, 98304
    s_lshl_b32 s44, s38, 12
    s_add_u32 s41, s41, s44
    s_mul_i32 s47, s46, 40960
    s_add_u32 s47, s47, s44
    s_mul_i32 s42, s4, 5120
    s_mul_i32 s44, s40, {128*1280}
    s_lshl_b32 s45, s40, 13
    s_add_u32 s45, s45, s41
    s_add_u32 s68, s41, 98304""")
    def wgroup(s):
        u = []
        for i in range(5):
            pre = post = ""
            if s < 12:
                ld = f"buffer_load_dwordx4 v{4+i}, s[8:11], s44 offen lds"
                if i == 4: post = f"\ns_add_u32 s44, s44, {128*1280}\ns_cmp_eq_u32 s44, {1536*1280}\ns_cselect_b32 s44, 0, s44"
            elif s < 16:
                if s == 12: pre = dma_addr(1)[i] + "\n"
                if i == 0: pre += f"s_mov_b32 s44, {(s-12)*160*1280}\n"
                ld = f"buffer_load_dwordx4 v{4+i}, s[16:19], s44 offen lds"
            else:
                ld = f"buffer_load_dwordx4 v{4+i}, s[16:19], 0 offen lds"
            u.append(pre + f"s_add_u32 m0, s42, {(s % R)*SLOT + i*1024}\ns_nop 0\n" + ld + post)
        return u
    def wread(s, ks, nb, dst):
        slot = s % R
        va = (11 if slot == 3 else 9) + (1 if nb == 2 else 0)
        o = (slot % 3)*SLOT*(slot != 3) + ks*2560 + nb*64
        return [f"ds_read_b64_tr_b16 {vr(dst,2)}, v{va} offset:{o}", f"ds_read_b64_tr_b16 {vr(dst+2,2)}, v{va} offset:{o+1280}"]
    def aload(s, ks, dst):
        if s < 12:
            post = "\ns_add_u32 s45, s45, 8192\ns_cmp_eq_u32 s45, s68\ns_cselect_b32 s45, s41, s45" if ks == 3 else ""
            return f"buffer_load_dwordx4 {vr(dst,4)}, v2, s[12:15], s45 offen offset:{ks*1024} sc1" + post
        post = "\ns_add_u32 s47, s47, 8192" if ks == 3 else ""
        return f"buffer_load_dwordx4 {vr(dst,4)}, v2, s[24:27], s47 offen offset:{ks*1024} sc1" + post
    AW = 10
    areg = lambda n: AB + 4*(n % AW)
    def issue_w(s):
        g = wgroup(s)
        for i, u in enumerate(g): vm.op(u, ("W", s) if i == len(g)-1 else None)
    for s in range(R-1): issue_w(s)
    if True:
        lab = k.newlabel("f2p")
        k(f"s_cmp_lg_u32 s4, 0\ns_cbranch_scc1 {lab}")
        polln(k, f"s_lshr_b32 s78, s32, 2\ns_lshl_b32 s78, s78, 5\ns_add_u32 s78, s78, {FL_H}", 32, AB, sleep=4)
        k.label(lab)
        k("s_barrier")
    k.stamp(4)
    for n in range(AW): vm.op(aload(n//4, n % 4, areg(n)), ("A", n//4, n % 4))
    gemm2(k, vm, list(range(12)), 4, 3, ACC, WB, R, wgroup, wread, aload, areg, AW, 17, True)
    k("s_barrier")
    issue_w(14); issue_w(15)
    for c in dma_addr(2): k(c)
    lab = k.newlabel("f2x")
    k(f"""s_cmp_lg_u32 s38, 0
    s_cbranch_scc1 {lab}
    v_and_b32 v13, 31, v1
    s_lshl_b32 s44, s46, 5
    v_add_u32 v13, s44, v13
    v_mul_u32_u24 v13, 1280, v13
    v_lshl_add_u32 v13, v15, 3, v13""")
    for q in range(10):
        k(f"buffer_load_dwordx2 {vr(AB+2*q,2)}, v13, s[20:23], s43 offen offset:{q*16}")
    for q in range(10):
        k(f"s_waitcnt vmcnt({9-q})")
        a = ACC + 4*q
        for e in range(2):
            k(f"v_lshlrev_b32 v14, 16, v{AB+2*q+e}\nv_and_b32 v3, 0xffff0000, v{AB+2*q+e}")
            k(f"v_add_f32 v{a+2*e}, v{a+2*e}, v14\nv_add_f32 v{a+2*e+1}, v{a+2*e+1}, v3")
    k.label(lab)
    k.stamp(5)
    if True:
        lab = k.newlabel("f2q")
        k(f"s_cmp_lg_u32 s4, 0\ns_cbranch_scc1 {lab}")
        polln(k, f"s_lshr_b32 s78, s32, 2\ns_lshl_b32 s78, s78, 5\ns_add_u32 s78, s78, {FL_O}", 32, AB, sleep=2)
        k.label(lab)
        k("s_barrier")
    k(f"s_setprio {C('prio_tail', 3)}")
    k.stamp(6)
    for n in range(AW): vm.op(aload(12 + n//4, n % 4, areg(n)), ("A", 12 + n//4, n % 4))
    gemm2(k, vm, list(range(12, 17)), 4, 3, ACC, WB, R, wgroup, wread, aload, areg, AW, 17, False)
    k.srd(16, P_OUT, SZ)
    ES = 336
    k("s_lshl_b32 s44, s32, 6")
    for i in range(3):
        k(f"""v_add_u32 v3, {256*i}, v0
        v_mul_u32_u24 v13, 6554, v3
        v_lshrrev_b32 v13, 16, v13
        v_mul_u32_u24 v14, 10, v13
        v_sub_u32 v14, v3, v14
        v_mul_u32_u24 v3, {ES}, v13
        v_lshl_add_u32 v{7+i}, v14, 5, v3
        v_add_u32 v13, s44, v13
        v_mul_u32_u24 v13, 1280, v13
        v_lshl_add_u32 v13, v14, 4, v13
        v_add_u32 v{4+i}, s43, v13""")
    k(f"""s_lshl_b32 s44, s38, 1
    s_add_u32 s44, s44, s37
    s_lshl_b32 s44, s44, 5
    v_and_b32 v13, 31, v1
    v_add_u32 v13, s44, v13
    v_mul_u32_u24 v13, {ES}, v13
    v_lshl_add_u32 v13, v15, 4, v13
    s_barrier""")
    for q in range(10):
        k(f"ds_write_b128 v13, {vr(ACC+4*q,4)} offset:{q*32}")
    k("s_waitcnt lgkmcnt(0)\ns_barrier")
    lab = k.newlabel("f2e")
    def rd(i):
        b = WB + 16*i
        k(f"ds_read_b128 {vr(b,4)}, v{7+i}\nds_read_b128 {vr(b+4,4)}, v{7+i} offset:16")
        k(f"ds_read_b128 {vr(b+8,4)}, v{7+i} offset:{64*ES}\nds_read_b128 {vr(b+12,4)}, v{7+i} offset:{64*ES+16}")
    def fin(i):
        b = WB + 16*i
        for e in range(8): k(f"v_add_f32 v{b+e}, v{b+e}, v{b+8+e}")
        for e in range(4): k(f"v_cvt_pk_bf16_f32 v{b+8+e}, v{b+2*e}, v{b+2*e+1}")
        k(f"buffer_store_dwordx4 {vr(b+8,4)}, v{4+i}, s[16:19], 0 offen")
    rd(0); rd(1); rd(2)
    k("s_waitcnt lgkmcnt(8)"); fin(0)
    k("s_waitcnt lgkmcnt(4)"); fin(1)
    k(f"s_cmp_ge_u32 s4, 2\ns_cbranch_scc1 {lab}\ns_waitcnt lgkmcnt(0)"); fin(2)
    k.label(lab)

def phase_a2(k, force_fallback=False):
    SLOT = 26624; VOFF = 10240
    Lchk, Lchkr, Lloop, Lfin, Lslow, Lsl, Lend = [k.newlabel(x) for x in ("atc", "atcr", "atl", "atf", "ats", "atsl", "ate")]
    k("""s_and_b32 s34, s5, 7
    s_lshr_b32 s35, s5, 3
    s_lshl_b32 s32, s34, 2
    s_lshr_b32 s34, s35, 3
    s_add_u32 s32, s32, s34
    s_and_b32 s33, s35, 7""")
    Q1, Q2 = 16, 20
    K1, K2 = 24, 22
    V0, V1 = 28, 32
    P = 36; T = 44
    CC, O = 48, 64
    S = 80; U = 96
    k("v_and_b32 v3, 31, v1\nv_lshrrev_b32 v4, 5, v1\nv_mov_b32 v15, 0\nv_mov_b32 v100, 0\ns_mov_b32 s3, 0")
    lab = k.newlabel("a2p"); lab2 = k.newlabel("a2q")
    k(f"s_cmp_lg_u32 s4, 4\ns_cbranch_scc1 {lab}")
    get_tag(k, U)
    k(f"""s_mov_b32 s3, 1
    s_mul_i32 s76, s32, 20
    s_add_u32 s77, s76, 19
    s_lshr_b32 s76, s76, 7
    s_lshr_b32 s77, s77, 7
    s_sub_u32 s77, s77, s76
    s_lshl_b32 s78, s33, 1
    v_bfe_u32 v{U+4}, v1, 4, 1
    v_mul_u32_u24 v{U+4}, s77, v{U+4}
    v_add_u32 v{U+4}, s76, v{U+4}
    v_lshlrev_b32 v{U+4}, 4, v{U+4}
    v_add_u32 v{U}, s78, v1
    v_and_b32 v{U+1}, 15, v{U}
    v_mul_u32_u24 v15, 80, v4
    v_add3_u32 v15, v15, v{U+4}, v{U+1}
    v_add_u32 v15, {FL_QKV + 80}, v15
    v_lshlrev_b32 v15, 7, v15
    v_add_u32 v{U}, 12, v{U}
    v_and_b32 v{U}, 15, v{U}
    v_add_u32 v{U}, v{U}, v{U+4}
    v_add_u32 v{U}, {FL_QKV}, v{U}
    v_mov_b32 v{U+4}, v15
    s_mov_b64 exec, 0x00300030
    v_lshlrev_b32 v{U+4}, 7, v{U}
    s_mov_b64 exec, -1
    {lab}:""")
    k("v_mul_u32_u24 v5, 320, v4\nv_lshl_add_u32 v5, v3, 4, v5")
    k(f"""v_lshlrev_b32 v6, 12, v4
    v_lshl_add_u32 v6, v3, 3, v6
    v_add_u32 v7, 256, v6
    v_add_u32 v8, {SLOT}, v6
    v_add_u32 v9, {SLOT}, v7
    v_add_u32 v10, {VOFF}, v2
    v_add_u32 v14, {VOFF+SLOT}, v2
    s_lshl_b32 s37, s33, 3
    s_add_u32 s37, s37, s4
    s_lshl_b32 s38, s37, 5
    v_add_u32 v11, s38, v3
    v_lshlrev_b32 v11, 3, v11
    v_mov_b32 v12, v11
    v_lshl_add_u32 v11, v4, 15, v11
    s_mul_i32 s39, s32, 81920
    s_mov_b32 s68, 0x000fffff
    s_mov_b32 s69, 0x000fffff
    s_mov_b32 s70, -1
    s_mov_b32 s71, 0""")
    k.srd(8, P_WS, SZ, WS_QP)
    k.srd(12, P_WS, SZ, WS_KP)
    k.srd(16, P_WS, SZ, WS_VI)
    k.srd(20, P_WS, SZ, WS_OF)
    k(f"""s_lshr_b32 s40, s4, 1
    s_lshl_b32 s40, s40, 14
    s_and_b32 s44, s4, 1
    s_lshl_b32 s44, s44, 10
    s_add_u32 s40, s40, s44
    s_add_u32 s40, s40, s39
    s_lshl_b32 s45, s4, 8
    s_add_u32 s41, s45, s39
    s_add_u32 s41, s41, 65536
    s_add_u32 s45, s45, 8192
    s_mul_i32 s42, s4, 1280
    s_add_u32 s42, s42, s39
    s_lshl_b32 s44, s4, 10
    s_lshl_b32 s46, s4, 11
    s_add_u32 s46, s46, {VOFF}
    s_mov_b32 s24, s33
    s_mov_b32 s43, 0""")
    NEXT = "s_lshl_b32 s26, s24, 11\ns_add_u32 s25, s26, s40\ns_add_u32 s26, s26, s41\ns_mul_i32 s27, s24, 10240\ns_add_u32 s27, s27, s42\ns_add_u32 s24, s24, 1\ns_and_b32 s24, s24, 7"
    ADV = f"s_add_u32 s43, s43, {SLOT}\ns_cmp_eq_u32 s43, {3*SLOT}\ns_cselect_b32 s43, 0, s43"
    du = ["s_add_u32 m0, s43, s44\ns_nop 0\nbuffer_load_dwordx4 v2, s[12:15], s25 offen sc1 lds",
          "s_add_u32 m0, s43, s45\ns_mov_b64 exec, 0xffff\nbuffer_load_dwordx4 v2, s[12:15], s26 offen sc1 lds\ns_mov_b64 exec, -1",
          "s_add_u32 m0, s43, s46\ns_mov_b64 exec, s[68:69]\nbuffer_load_dwordx4 v5, s[16:19], s27 offen sc1 lds\ns_mov_b64 exec, -1",
          "s_add_u32 m0, m0, 384\ns_mov_b64 exec, s[68:69]\nbuffer_load_dwordx4 v5, s[16:19], s27 offen offset:640 sc1 lds\ns_mov_b64 exec, -1"]
    k(NEXT)
    k(f"""v_cmp_eq_u32 vcc, 20, v3
    v_cmp_eq_u32 s[34:35], 24, v3
    v_mov_b32 v13, 0x3f803f80
    s_or_b64 vcc, vcc, s[34:35]
    s_nop 1
    v_cndmask_b32 v{T}, 0, v13, vcc""")
    for e in range(1, 4): k(f"v_mov_b32 v{T+e}, v{T}")
    k("v_add_u32 v13, s46, v2\ns_not_b64 exec, s[68:69]")
    for slot in range(3):
        for i in range(2):
            k(f"ds_write_b128 v13, {vr(T,4)} offset:{slot*SLOT + i*1024}")
    k("s_mov_b64 exec, -1")
    for r in list(range(O, O+16)) + [Q2, Q2+1]: k(f"v_mov_b32 v{r}, 0")
    k("s_add_u32 s34, s39, 16384\ns_add_u32 s35, s39, 65536")
    k.stamp(3)
    k(f"s_cmp_lg_u32 s4, 4\ns_cbranch_scc1 {lab2}\ns_mov_b32 exec_lo, 0x003f003f\ns_mov_b32 exec_hi, 0x000f000f")
    poll(k, U+4, "0", U, sleep=1)
    k(f"{lab2}:\ns_barrier")
    k.stamp(4)
    k(f"buffer_load_dwordx2 {vr(Q1,2)}, v11, s[8:11], s39 offen sc1")
    k(f"buffer_load_dwordx2 {vr(Q1+2,2)}, v11, s[8:11], s34 offen sc1")
    k(f"s_mov_b64 exec, s[70:71]\nbuffer_load_dwordx2 {vr(Q2,2)}, v12, s[8:11], s35 offen sc1\ns_mov_b64 exec, -1")
    for u in du: k(u)
    k(NEXT); k(ADV)
    for u in du: k(u)
    k(NEXT); k(ADV)
    if C("go_a2"):
        lab = k.newlabel("a2g")
        k(f"s_cmp_lg_u32 s4, 4\ns_cbranch_scc1 {lab}")
        set_flag(k, f"s_add_u32 s78, s5, {FL_GO}", U+6)
        k.label(lab)
    k("s_waitcnt vmcnt(4) lgkmcnt(0)\ns_barrier")
    def k1read(t):
        tt = t % 8; va = (8 if t >= 8 else 6) + (tt & 1); a = tt >> 1
        return f"ds_read2st64_b64 {vr(K1,4)}, v{va} offset0:{a} offset1:{a+4}"
    def k2read(t):
        tt = t % 8; va = (8 if t >= 8 else 6) + (tt & 1); a = tt >> 1
        return f"ds_read_b64 {vr(K2,2)}, v{va} offset:{8192 + a*512}"
    def vread(t, g):
        va = 14 if t >= 8 else 10
        return f"ds_read_b128 {vr(V1 if g else V0,4)}, v{va} offset:{(t%8)*2048 + g*1024}"
    k(k1read(0)); k(k2read(0))
    k("s_waitcnt lgkmcnt(0)")
    k(mfma(S, K1, Q1, "0")); k(mfma8(S, K2, Q2))
    k(k1read(1)); k(k2read(1)); k(vread(0, 0)); k(vread(0, 1))
    k(f"s_mov_b32 s47, 0\ns_mov_b32 s76, {SLOT}\ns_mov_b32 s77, {(-2*SLOT) & 0xffffffff}\ns_nop 7")
    k(f"v_max3_f32 v{T}, v{S}, v{S+1}, v{S+2}\nv_max3_f32 v{T+1}, v{S+3}, v{S+4}, v{S+5}")
    k(f"v_max3_f32 v{T}, v{T}, v{S+6}, v{S+7}\nv_max3_f32 v{T+1}, v{T+1}, v{S+8}, v{S+9}")
    k(f"v_max3_f32 v{T}, v{T}, v{S+10}, v{S+11}\nv_max3_f32 v{T+1}, v{T+1}, v{S+12}, v{S+13}")
    k(f"v_max3_f32 v{T}, v{T}, v{S+14}, v{S+15}\nv_max_f32 v{T}, v{T}, v{T+1}")
    k(f"v_mov_b32 v{T+1}, v{T}\ns_nop 1\nv_permlane32_swap_b32 v{T}, v{T+1}\ns_nop 1\nv_max_f32 v{T}, v{T}, v{T+1}")
    for e in range(16): k(f"v_sub_f32 v{CC+e}, 0, v{T}")
    for e in range(16): k(f"v_sub_f32 v{S+e}, v{S+e}, v{T}")
    lab = k.newlabel("a2r")
    k(f"s_cmp_lg_u32 s4, 4\ns_cbranch_scc1 {lab}\nbuffer_load_dwordx2 {vr(U,2)}, v15, s[28:31], 0 offen sc1\n{lab}:")
    plo, pmid, phi = C("pp_lo", 0), C("pp_mid", 1), C("pp_hi", 3)
    k(f"s_setprio {plo}")
    k.stamp(5)
    if C("cyc") and STAMP[0]: k("s_memtime s[82:83]\ns_waitcnt lgkmcnt(0)")
    k(".p2align 6")
    k.label(Lloop)
    TB = C("a2_tb", 4)
    for t in range(8):
        for i in range(4):
            for e in range(4):
                k(f"v_exp_f32 v{S+4*i+e}, v{S+4*i+e}")
                if i == 0 and e == 0: k(f"s_setprio {pmid}")
            k(f"v_cvt_pk_bf16_f32 v{P+2*i}, v{S+4*i}, v{S+4*i+1}")
            k(f"v_cvt_pk_bf16_f32 v{P+2*i+1}, v{S+4*i+2}, v{S+4*i+3}")
        k(f"s_setprio {phi}")
        if t == TB:
            lab = k.newlabel("bY")
            k(f"s_cmp_lt_u32 s4, 4\ns_cbranch_scc1 {lab}\ns_waitcnt vmcnt(0)\ns_cmp_lg_u32 s3, 0\ns_cbranch_scc1 {Lchk}\n{Lchkr}:\ns_barrier\n{lab}:")
        k("s_waitcnt lgkmcnt(0)")
        k(mfma(S, K1, Q1, vr(CC, 16))); k(k1read(t+2))
        if t > TB: k("s_cmp_ge_u32 s47, 6")
        k(mfma8(S, K2, Q2)); k(k2read(t+2))
        if t == TB+1:
            lab = k.newlabel("nd"); k(f"s_cbranch_scc1 {lab}\n{du[0]}\n{lab}:\ns_cmp_ge_u32 s47, 6")
        k(mfma(O, V0, P)); k(vread(t+1, 0))
        if t > TB:
            lab = k.newlabel("nd"); k(f"s_cbranch_scc1 {lab}\n{du[t-TB]}\n{lab}:")
        if t == 7:
            k(f"""s_add_u32 s47, s47, 1
            s_cmp_eq_u32 s47, 2
            s_cselect_b32 s36, s77, s76
            s_cmp_eq_u32 s47, 5
            s_cselect_b32 s36, s77, s36""")
        k(mfma(O, V1, P+4)); k(vread(t+1, 1))
        if t == TB:
            lab = k.newlabel("bX")
            k(f"s_cmp_ge_u32 s4, 4\ns_cbranch_scc1 {lab}\ns_waitcnt vmcnt(0)\ns_barrier\n{lab}:")
        if t == 7:
            k(f"""v_mov_b32 v6, v8
            v_mov_b32 v7, v9
            v_mov_b32 v10, v14
            v_add_u32 v8, s36, v8
            v_add_u32 v9, s36, v9
            v_add_u32 v14, s36, v14""")
            k(NEXT); k(ADV)
            k("s_cmp_lt_u32 s47, 8")
        k(f"s_setprio {plo}")
    k(f"s_cbranch_scc1 {Lloop}")
    k.stamp(6)
    if C("cyc") and STAMP[0]: k("s_memtime s[84:85]\ns_waitcnt lgkmcnt(0)\ns_sub_u32 s84, s84, s82\ns_mul_i32 s84, s84, 100\ns_lshr_b32 s84, s84, 10\ns_add_u32 s84, s84, s80\ns_mov_b32 s82, s80")
    k(f"""s_setprio 3
    s_mul_i32 s72, s37, 40960
    s_lshl_b32 s73, s32, 10
    s_add_u32 s73, s73, s72
    s_lshr_b32 s74, s32, 2
    s_add_u32 s74, s74, 32
    s_lshl_b32 s74, s74, 10
    s_add_u32 s74, s74, s72
    s_and_b32 s75, s32, 1
    s_lshl_b32 s75, s75, 9
    s_add_u32 s74, s74, s75
    s_and_b32 s75, s32, 2
    s_lshl_b32 s75, s75, 2
    s_add_u32 s74, s74, s75
    s_waitcnt lgkmcnt(0)
    s_mov_b64 exec, s[70:71]
    v_mov_b32 v{T+2}, v{O+12}
    s_not_b64 exec, s[70:71]
    v_mov_b32 v{T+2}, v{O+8}
    s_mov_b64 exec, -1
    s_mov_b32 s72, {f32(2.0**60) if not force_fallback else f32(0.0)}
    v_cmp_ngt_f32 vcc, s72, v{T+2}
    s_nop 1
    s_cbranch_vccnz {Lslow}""")
    k.label(Lfin)
    k(f"v_rcp_f32 v{T}, v{T+2}\ns_nop 0")
    for e in range(12): k(f"v_mul_f32 v{O+e}, v{O+e}, v{T}")
    for e in range(6): k(f"v_cvt_pk_bf16_f32 v{P+e}, v{O+2*e}, v{O+2*e+1}")
    k(f"buffer_store_dwordx4 {vr(P,4)}, v2, s[20:23], s73 offen sc1")
    k(f"s_mov_b64 exec, s[70:71]\nbuffer_store_dwordx2 {vr(P+4,2)}, v2, s[20:23], s74 offen sc1\ns_mov_b64 exec, -1")
    k(f"s_waitcnt vmcnt(0)\ns_barrier\ns_cmp_lg_u32 s4, 4\ns_cbranch_scc1 {Lend}")
    set_flag(k, f"s_lshl_b32 s78, s33, 5\ns_add_u32 s78, s78, s32\ns_add_u32 s78, s78, {FL_O}", T)
    k.label(Lend)
    k.stamp(7); k.stamp_flush(0, "s5")
    k("s_endpgm")
    k.label(Lchk)
    k("s_mov_b32 s3, 0")
    poll(k, 15, "0", U, sleep=1, loaded=True)
    k(f"s_branch {Lchkr}")
    k.label(Lslow)
    M = CC
    k(f"""v_lshlrev_b32 v7, 3, v3
    v_lshl_add_u32 v6, v4, 15, v7
    v_mov_b32 v{M}, {f32(-3.0e38)}
    s_mov_b32 s40, s39
    s_mov_b32 s42, s39
    s_mov_b32 s47, 0""")
    for r in range(O, O+16): k(f"v_mov_b32 v{r}, 0")
    for r in range(V0, V0+8): k(f"v_mov_b32 v{r}, 0x3f803f80")
    k.label(Lsl)
    k(f"""s_add_u32 s41, s40, 16384
    s_add_u32 s43, s40, 65536
    buffer_load_dwordx2 {vr(K1,2)}, v6, s[12:15], s40 offen sc1
    buffer_load_dwordx2 {vr(K1+2,2)}, v6, s[12:15], s41 offen sc1
    buffer_load_dwordx2 {vr(K2,2)}, v7, s[12:15], s43 offen sc1
    s_mov_b64 exec, s[68:69]
    buffer_load_dwordx4 {vr(V0,4)}, v5, s[16:19], s42 offen sc1
    buffer_load_dwordx4 {vr(V1,4)}, v5, s[16:19], s42 offen offset:640 sc1
    s_mov_b64 exec, -1
    s_waitcnt vmcnt(0)""")
    k(mfma(S, K1, Q1, "0")); k(mfma8(S, K2, Q2))
    k("s_nop 15\ns_nop 3")
    k(f"v_max3_f32 v{T}, v{S}, v{S+1}, v{M}")
    for e in range(2, 16, 2): k(f"v_max3_f32 v{T}, v{T}, v{S+e}, v{S+e+1}")
    k(f"v_mov_b32 v{T+1}, v{T}\ns_nop 1\nv_permlane32_swap_b32 v{T}, v{T+1}\ns_nop 1\nv_max_f32 v{T}, v{T}, v{T+1}")
    k(f"v_sub_f32 v{T+1}, v{M}, v{T}\nv_exp_f32 v{T+1}, v{T+1}\nv_mov_b32 v{M}, v{T}")
    for e in range(16): k(f"v_mul_f32 v{O+e}, v{O+e}, v{T+1}")
    for e in range(16): k(f"v_sub_f32 v{S+e}, v{S+e}, v{T}")
    for e in range(16): k(f"v_exp_f32 v{S+e}, v{S+e}")
    k("s_nop 0")
    for e in range(8): k(f"v_cvt_pk_bf16_f32 v{P+e}, v{S+2*e}, v{S+2*e+1}")
    k("s_nop 1")
    k(mfma(O, V0, P)); k(mfma(O, V1, P+4))
    k(f"""s_nop 15
    s_nop 3
    s_add_u32 s40, s40, 256
    s_add_u32 s42, s42, 1280
    s_add_u32 s47, s47, 1
    s_cmp_lt_u32 s47, 64
    s_cbranch_scc1 {Lsl}
    v_mov_b32 v{T+2}, v{O+12}
    s_branch {Lfin}""")

NAME = "parallel_sum__softmax_full_mha__glu_gated_swiglu__prompt_kernel"
def fused():
    k = Kern(NAME, 512, 512, 81920)
    k("s_load_dwordx16 s[48:63], s[0:1], 0\ns_load_dwordx4 s[64:67], s[0:1], 64")
    k.stamp_init(); k.stamp(0, wait=False)
    k(f"""v_lshrrev_b32 v1, 6, v0
    s_and_b32 s5, s2, 255
    v_readfirstlane_b32 s4, v1
    v_and_b32 v1, 63, v0
    v_lshlrev_b32 v2, 4, v1
    s_mov_b32 s6, 0
    s_setprio 3
    s_cmp_ge_u32 s2, 512
    s_cbranch_scc1 L_end
    {"s_cmp_lt_u32 s2, 256" if C("ffirst", 1) else "s_cmp_ge_u32 s2, 256"}
    s_cbranch_scc1 L_roleF""")
    k(A1_TILE.format(rb="s32", cb="s33"))
    k("s_cmp_ge_u32 s33, 15\ns_cbranch_scc1 L_skipA1\ns_cmp_lt_u32 s4, 4\ns_cbranch_scc1 L_a1c")
    a1_loader(k, "L_a2")
    k.label("L_roleF")
    phase_f0(k)
    k(f"s_setprio {C('prio_f', 0)}")
    k.stamp(1)
    if C("nof1"): k("s_branch L_end")
    phase_f1(k)
    if C("nof2"): k("s_branch L_end")
    k("s_cmp_ge_u32 s4, 4\ns_cbranch_scc1 L_end")
    phase_f2(k, "L_end")
    if STAMP[0]: k("s_waitcnt vmcnt(0)")
    k.stamp(7); k.stamp_flush(1, "s5")
    k.label("L_end"); k("s_endpgm")
    k.label("L_skipA1")
    after_kernarg(k); flags_srd(k)
    k("s_branch L_a2")
    k.label("L_a1c")
    a1_compute(k, "L_a2")
    k.label("L_a2")
    phase_a2(k, C("ff"))
    return build([k], single=True)

if __name__ == "__main__":
    STAMP[0] = "--stamp" in sys.argv
    for a in sys.argv[2:]:
        if "=" in a:
            n, v = a.split("="); CFG[n] = int(v)
    open(sys.argv[1], "w").write(fused())
```

```python
import struct, math
from asmlib import HEADER, vr, sr
STAMP = [False]
HWID = [False]
def f32(x): return "0x%08x" % struct.unpack("<I", struct.pack("<f", x))[0]

class Kern:
    def __init__(self, name, grid, block, lds, vgpr=128, sgpr=100):
        self.name = name; self.grid = grid; self.block = block; self.lds = lds
        self.vgpr = vgpr; self.sgpr = sgpr
        self.L = []
        self._lab = 0
    def __call__(self, s):
        for line in s.split("\n"):
            line = line.strip()
            if line:
                self.L.append(line if line.endswith(":") else "    " + line)
    def label(self, l): self.L.append(f"{l}:")
    def newlabel(self, base):
        self._lab += 1
        return f"L_{base}_{self._lab}_{self.name[:4]}"
    def srd(self, d, lo, nbytes, off=0):
        if off:
            self(f"s_add_u32 s{d}, s{lo}, {off}\ns_addc_u32 s{d+1}, s{lo+1}, 0")
        else:
            self(f"s_mov_b32 s{d}, s{lo}\ns_mov_b32 s{d+1}, s{lo+1}")
        self(f"s_mov_b32 s{d+2}, {nbytes}\ns_mov_b32 s{d+3}, 0x00020000")
    def stamp(self, i, wait=True):
        if not STAMP[0]: return
        if getattr(self, "mute", False) and wait: return
        self(f"s_memrealtime s[{80+2*i}:{81+2*i}]")
        if wait: self("s_waitcnt lgkmcnt(0)")
    def stamp_init(self):
        if not STAMP[0]: return
        for i in range(8): self(f"s_mov_b32 s{80+2*i}, 0")
    def stamp_flush(self, kidx, wgreg="s2"):
        if not STAMP[0]: return
        if STAMP[0] == 2:
            lab = self.newlabel("sf")
            self(f"""s_waitcnt vmcnt(0) lgkmcnt(0)
            s_cmp_eq_u32 s6, 0
            s_cbranch_scc1 {lab}
            s_mov_b32 s96, s64
            s_mov_b32 s97, s65
            s_mov_b32 s98, 256
            s_mov_b32 s99, 0x00020000
            v_mov_b32 v1, 0
            s_mov_b64 exec, 1""")
            for i in range(1, 8):
                self(f"s_sub_u32 s3, s{80+2*i}, s6\ns_cmp_eq_u32 s{80+2*i}, 0\ns_cselect_b32 s3, 0, s3\nv_mov_b32 v4, s3\nbuffer_atomic_smax v4, v1, s[96:99], 0 offen offset:{(2 + 7*kidx + i-1)*4} sc1\ns_waitcnt vmcnt(0)")
            self(f"{lab}:")
            return
        if HWID[0]:
            self("s_waitcnt lgkmcnt(0)\ns_getreg_b32 s88, hwreg(HW_REG_HW_ID)\ns_getreg_b32 s89, hwreg(HW_REG_XCC_ID)\ns_and_b32 s88, s88, 0xffff\ns_and_b32 s89, s89, 15\ns_lshl_b32 s89, s89, 16\ns_or_b32 s88, s88, s89\ns_or_b32 s88, s88, 0x1000000")
        self(f"""s_waitcnt vmcnt(0) lgkmcnt(0)
        s_add_u32 s96, s66, {(48<<20) + kidx*65536*4}
        s_addc_u32 s97, s67, 0
        s_mov_b32 s98, {65536*4}
        s_mov_b32 s99, 0x00020000
        s_mov_b64 exec, -1
        v_lshrrev_b32 v1, 6, v0
        v_lshlrev_b32 v1, 5, v1
        s_lshl_b32 s3, {wgreg}, 8
        v_add_u32 v1, s3, v1""")
        for i in range(8): self(f"v_mov_b32 v{4+i}, s{80+2*i}")
        self("""s_mov_b64 exec, 1
        buffer_store_dwordx4 v[4:7], v1, s[96:99], 0 offen
        buffer_store_dwordx4 v[8:11], v1, s[96:99], 0 offen offset:16
        s_waitcnt vmcnt(0)""")
    def text(self):
        n = self.name
        return (f".globl {n}\n.p2align 8\n.type {n},@function\n{n}:\n" + "\n".join(self.L) + "\n")
    def desc(self):
        acc = (self.vgpr + 3) // 4 * 4
        return (f".p2align 6\n.amdhsa_kernel {self.name}\n"
                f"  .amdhsa_next_free_vgpr {self.vgpr}\n"
                f"  .amdhsa_next_free_sgpr {self.sgpr}\n"
                f"  .amdhsa_accum_offset {acc}\n"
                f"  .amdhsa_group_segment_fixed_size 0\n"
                f"  .amdhsa_kernarg_size 80\n"
                f"  .amdhsa_user_sgpr_count 2\n"
                f"  .amdhsa_user_sgpr_kernarg_segment_ptr 1\n"
                f"  .amdhsa_system_sgpr_workgroup_id_x 1\n"
                f".end_amdhsa_kernel\n")

class VM:
    def __init__(self, k):
        self.k = k; self.n = 0; self.tags = {}; self.done = 0
    def op(self, instr, tag=None):
        self.k(instr); self.n += 1
        if tag is not None: self.tags[tag] = self.n
    def wait(self, tag):
        t = self.tags[tag]
        if t <= self.done: return
        c = self.n - t
        assert c <= 63, c
        self.k(f"s_waitcnt vmcnt({c})")
        self.done = t
    def drain(self):
        self.k("s_waitcnt vmcnt(0)"); self.done = self.n
    def drained(self):
        self.done = self.n

def build(kernels, single=False):
    out = HEADER
    if single:
        k = kernels[0]
        out += f"; @launch grid=({k.grid},1,1) block=({k.block},1,1) lds={k.lds}\n"
    else:
        for k in kernels:
            out += f"; @launch kernel={k.name} grid=({k.grid},1,1) block=({k.block},1,1) lds={k.lds}\n"
    out += '.amdgcn_target "amdgcn-amd-amdhsa--gfx950"\n.text\n'
    for k in kernels: out += k.text()
    out += '.section .rodata,"a"\n'
    for k in kernels: out += k.desc()
    return out

def mfma(d, a, b, c=None):
    cs = vr(d, 16) if c is None else c
    return f"v_mfma_f32_32x32x16_bf16 {vr(d,16)}, {vr(a,4)}, {vr(b,4)}, {cs}"
def mfma8(d, a, b, c=None):
    cs = vr(d, 16) if c is None else c
    return f"v_mfma_f32_32x32x8_bf16 {vr(d,16)}, {vr(a,2)}, {vr(b,2)}, {cs}"
```

```python
import sys, math
from asmlib2 import *

SZ = 2621440
WS_XF, WS_QP, WS_KP, WS_VI, WS_OF, WS_HF = 0, SZ, 2*SZ, 3*SZ, 4*SZ, 5*SZ
HF_SZ = 2048*1536*2
WS_ST = WS_HF + HF_SZ
ST_SZ = 32768
WS_CS = WS_ST + ST_SZ
CS_SZ = 15*16*1024
WS_FL = WS_CS + 262144
FL_LN, FL_QKV, FL_GO, FL_H, FL_O, FL_N = 0, 256, 512, 768, 1024, 1280
LOG2E = math.log2(math.e)
QSCALE = 20 ** -0.5 * LOG2E
P_X, P_WQKV, P_WO, P_W1, P_W3, P_W2, P_OUT, P_DBG, P_WS = 48, 50, 52, 56, 58, 60, 62, 64, 66
SPIN_MAX = 100000
CFG = {}
def C(n, d=0): return CFG.get(n, d)

def mod_small(k, s, m, t, maxval):
    q = 1
    while q * m * 2 <= maxval: q *= 2
    while q >= 1:
        k(f"s_cmp_ge_u32 s{s}, {q*m}\ns_cselect_b32 s{t}, {q*m}, 0\ns_sub_u32 s{s}, s{s}, s{t}")
        q //= 2

def tag_load(vt): return f"buffer_load_dwordx2 {vr(vt,2)}, v{vt+2}, s[72:75], 0 offen sc1"
def tag_setup(k, vt):
    k.srd(72, P_DBG, 256)
    k(f"v_mov_b32 v{vt+2}, 0")
def tag_take(k, vt, loaded):
    top = k.newlabel("tg"); mid = k.newlabel("tgm"); done = k.newlabel("tgd")
    k(f"s_mov_b32 s79, {SPIN_MAX}")
    if loaded: k(f"s_branch {mid}")
    k(f"{top}:\n{tag_load(vt)}\ns_waitcnt vmcnt(0)\n{mid}:")
    k(f"""v_readfirstlane_b32 s6, v{vt}
    v_readfirstlane_b32 s7, v{vt+1}
    s_nop 1
    s_cmp_lg_u32 s6, 0
    s_cbranch_scc1 {done}
    s_sleep 2
    s_sub_u32 s79, s79, 1
    s_cmp_lg_u32 s79, 0
    s_cbranch_scc1 {top}
    {done}:""")
def get_tag(k, vt):
    lab = k.newlabel("gt")
    k(f"s_cmp_lg_u32 s6, 0\ns_cbranch_scc1 {lab}")
    tag_setup(k, vt); tag_take(k, vt, False)
    k.label(lab)
def set_flag(k, idx_expr, vt):
    k(idx_expr)
    k(f"""s_lshl_b32 s78, s78, 7
    v_mov_b32 v{vt}, s6
    v_mov_b32 v{vt+1}, s7
    v_mov_b32 v{vt+2}, 0
    s_mov_b64 exec, 1
    buffer_store_dwordx2 {vr(vt,2)}, v{vt+2}, s[28:31], s78 offen sc1
    s_mov_b64 exec, -1""")
def poll(k, voff, soff, vt, sleep=2, loaded=False):
    top = k.newlabel("poll"); done = k.newlabel("polled"); mid = k.newlabel("pmid")
    k(f"s_mov_b32 s79, {SPIN_MAX}")
    if loaded: k(f"s_branch {mid}")
    k(f"{top}:\nbuffer_load_dwordx2 {vr(vt,2)}, v{voff}, s[28:31], {soff} offen sc1\ns_waitcnt vmcnt(0)\n{mid}:")
    k(f"""v_cmp_ne_u64 vcc, s[6:7], {vr(vt,2)}
    s_nop 1
    s_and_b64 exec, exec, vcc
    s_cbranch_scc0 {done}
    s_sleep {sleep}
    s_sub_u32 s79, s79, 1
    s_cmp_lg_u32 s79, 0
    s_cbranch_scc1 {top}
    {done}:
    s_mov_b64 exec, -1""")
def polln(k, idx_expr, n, vt, sleep=2):
    k(idx_expr)
    k(f"s_lshl_b32 s78, s78, 7\nv_lshlrev_b32 v{vt+2}, 7, v1\ns_mov_b32 exec_lo, {hex((1 << n) - 1)}\ns_mov_b32 exec_hi, 0")
    poll(k, vt+2, "s78", vt, sleep)
A1_TILE = """s_and_b32 s34, s5, 7
    s_lshr_b32 s35, s5, 3
    s_and_b32 s36, s34, 1
    s_lshl_b32 s36, s36, 3
    s_and_b32 s37, s35, 7
    s_add_u32 {rb}, s36, s37
    s_lshr_b32 s36, s34, 1
    s_lshl_b32 s36, s36, 2
    s_lshr_b32 s37, s35, 3
    s_add_u32 {cb}, s36, s37"""
def after_kernarg(k):
    k("s_waitcnt lgkmcnt(0)")
def flags_srd(k): k.srd(28, P_WS, FL_N*128, WS_FL)

WBASE = 49152; CSO = 16384; STO = 16384 + 1024

def a1_loader(k, Lj):
    vm = VM(k)
    k("""s_and_b32 s36, s4, 3
    s_lshr_b32 s37, s36, 1
    s_lshl_b32 s37, s37, 6
    s_and_b32 s38, s36, 1
    s_add_u32 s37, s37, s38
    s_lshl_b32 s38, s36, 5
    s_cmp_lt_u32 s33, 10
    s_cselect_b32 s37, s37, s38
    s_mov_b32 s38, 1280
    s_cselect_b32 s38, 2560, s38
    s_lshl_b32 s39, s32, 7
    s_add_u32 s37, s37, s39
    s_mul_i32 s37, s37, 1280
    v_lshrrev_b32 v3, 3, v1
    v_lshrrev_b32 v10, 4, v1
    v_and_b32 v11, 7, v1
    v_mul_u32_u24 v12, s38, v3
    v_xor_b32 v13, v10, v11
    v_lshl_add_u32 v12, v13, 4, v12
    v_add_u32 v4, s37, v12
    s_lshl_b32 s39, s38, 3
    v_xor_b32 v5, 64, v4
    v_add_u32 v5, s39, v5
    s_lshl_b32 s39, s38, 4
    v_add_u32 v6, s39, v4
    v_add_u32 v7, s39, v5
    v_lshlrev_b32 v12, 2, v10
    v_and_b32 v13, 15, v1
    v_xor_b32 v13, v13, v12
    s_lshl_b32 s39, s36, 3
    v_add_u32 v12, s39, v10
    v_mul_u32_u24 v14, 3840, v12
    v_lshl_add_u32 v14, v13, 4, v14
    s_lshl_b32 s39, s33, 8
    v_add_u32 v8, s39, v14
    v_add_u32 v9, 15360, v8
    s_add_u32 s40, s32, s33""")
    mod_small(k, 40, 10, 43, 30)
    k(f"""s_mul_i32 s44, s40, {64*3840}
    s_lshl_b32 s45, s40, 7
    s_lshl_b32 s42, s36, 12
    s_lshl_b32 s43, s36, 11
    s_add_u32 s43, s43, {WBASE}""")
    after_kernarg(k)
    k.srd(12, P_X, SZ)
    k.srd(8, P_WQKV, 640*3840)
    def iss_a(s, half):
        for i in (2*half, 2*half+1):
            vm.op(f"s_add_u32 m0, s42, {(s % 3)*16384 + i*1024}\ns_nop 0\nbuffer_load_dwordx4 v{4+i}, s[12:15], s45 offen lds", ("A", s) if i == 3 else None)
        if half: k("s_add_u32 s45, s45, 128\ns_cmp_eq_u32 s45, 1280\ns_cselect_b32 s45, 0, s45")
    def iss_w(j):
        for i in range(2):
            vm.op(f"s_add_u32 m0, s43, {(j % 4)*8192 + i*1024}\ns_nop 0\nbuffer_load_dwordx4 v{8+i}, s[8:11], s44 offen lds", ("W", j) if i == 1 else None)
        k(f"s_add_u32 s44, s44, {32*3840}\ns_cmp_eq_u32 s44, {640*3840}\ns_cselect_b32 s44, 0, s44")
    iss_a(0, 0); iss_a(0, 1); iss_w(0); iss_w(1); iss_a(1, 0); iss_a(1, 1); iss_w(2); iss_w(3); iss_a(2, 0); iss_a(2, 1)
    flags_srd(k)
    k.srd(16, P_WS, ST_SZ + CS_SZ, WS_ST)
    tag_setup(k, 42)
    k(f"""v_and_b32 v41, 31, v1
    v_lshlrev_b32 v40, 4, v41
    s_lshl_b32 s46, s36, 5
    v_add_lshl_u32 v41, v41, s46, 2
    s_lshl_b32 s46, s32, 2
    s_add_u32 s46, s46, s36
    s_lshl_b32 s46, s46, 9
    s_lshl_b32 s47, s33, 2
    s_add_u32 s47, s47, s36
    s_lshl_b32 s47, s47, 12
    s_add_u32 s47, s47, {ST_SZ}
    v_mov_b32 v46, 0
    v_mov_b32 v47, 0
    v_lshlrev_b32 v45, 3, v1""")
    gl = ["buffer_load_dwordx4 v[16:19], v40, s[16:19], s46 offen sc1"] + \
         [f"buffer_load_dwordx4 {vr(20+4*i,4)}, v2, s[16:19], s47 offen offset:{i*1024} sc1" for i in range(4)]
    JF = C("a1_jf", 11)
    for j in range(20):
        vm.wait(("A", j >> 1)); vm.wait(("W", j))
        k("s_barrier")
        if j >= 1 and j+3 < 20: iss_w(j+3)
        if j >= 2 and j//2+2 < 10: iss_a(j//2+2, j & 1)
        if j == 2: vm.op(tag_load(42), "tag")
        if j == 6:
            vm.wait("tag"); tag_take(k, 42, True)
        if j == JF:
            for g in gl: vm.op(g, "gr")
        if j == C("go_j", 14) and not C("go_a2") and not C("go_q"):
            lab = k.newlabel("a1g")
            k(f"s_cmp_lg_u32 s4, 5\ns_cbranch_scc1 {lab}")
            set_flag(k, f"s_lshl_b32 s78, s33, 4\ns_add_u32 s78, s78, s32\ns_add_u32 s78, s78, {FL_GO}", 48)
            k.label(lab)
        if j == 16:
            k(f"ds_write_b64 v45, v[46:47] offset:{CSO}\ns_waitcnt lgkmcnt(0)")
        if j == 17:
            vm.wait("gr")
            top = k.newlabel("gr"); done = k.newlabel("grd")
            k(f"s_mov_b32 s79, {SPIN_MAX}\n{top}:")
            k("v_cmp_ne_u64 s[68:69], s[6:7], v[18:19]")
            for i in range(4):
                k(f"v_cmp_ne_u64 vcc, s[6:7], {vr(22+4*i,2)}\ns_nop 0\ns_or_b64 s[68:69], s[68:69], vcc")
            k(f"s_cbranch_scc0 {done}\ns_sleep 2")
            for g in gl: k(g)
            k(f"s_waitcnt vmcnt(0)\ns_sub_u32 s79, s79, 1\ns_cmp_lg_u32 s79, 0\ns_cbranch_scc1 {top}\n{done}:")
            k(f"""v_add_f32 v20, v20, v24
            v_add_f32 v21, v21, v25
            v_add_f32 v28, v28, v32
            v_add_f32 v29, v29, v33
            ds_write_b32 v41, v16 offset:{STO}
            ds_write_b32 v41, v17 offset:{STO+512}
            v_add_f32 v20, v20, v28
            v_add_f32 v21, v21, v29
            ds_add_f32 v45, v20 offset:{CSO}
            ds_add_f32 v45, v21 offset:{CSO+4}""")
        if j == 18: k("s_waitcnt lgkmcnt(0)")
    k("s_barrier")
    k(f"s_cmp_lg_u32 s4, 4\ns_cbranch_scc1 {Lj}")
    set_flag(k, f"s_lshl_b32 s78, s33, 4\ns_add_u32 s78, s78, s32\ns_add_u32 s78, s78, {FL_QKV}", 40)
    k(f"s_branch {Lj}")

def a1_compute(k, Lj):
    Lv = k.newlabel("a1v")
    k(f"""s_and_b32 s36, s4, 1
    s_lshr_b32 s37, s4, 1
    v_and_b32 v3, 31, v1
    v_lshrrev_b32 v10, 5, v1
    s_lshl_b32 s38, s36, 6
    v_add_u32 v11, s38, v3
    v_lshlrev_b32 v11, 7, v11
    v_bfe_u32 v12, v1, 1, 3
    v_xor_b32 v12, v12, v10
    v_lshl_add_u32 v4, v12, 4, v11
    v_xor_b32 v5, 32, v4
    v_xor_b32 v6, 64, v4
    v_xor_b32 v7, 96, v4
    v_bfe_u32 v13, v1, 2, 2
    v_lshl_add_u32 v14, v10, 3, v13
    v_lshlrev_b32 v14, 8, v14
    v_bfe_u32 v15, v1, 4, 1
    v_lshl_add_u32 v14, v15, 5, v14
    v_and_b32 v15, 3, v1
    v_lshl_add_u32 v14, v15, 3, v14
    v_lshl_add_u32 v14, v13, 6, v14
    s_lshl_b32 s38, s37, 7
    v_xor_b32 v14, s38, v14
    v_add_u32 v8, {WBASE}, v14
    v_xor_b32 v9, 64, v8""")
    after_kernarg(k)
    flags_srd(k)
    ACC = 16; FR = 80
    def reads(n):
        s, ks, j = n >> 2, n & 3, n >> 1
        f = FR + (n & 1)*16
        ao = (s % 3)*16384; wo = (j % 4)*8192 + (n & 1)*4096
        return [f"ds_read_b64_tr_b16 {vr(f+8,2)}, v8 offset:{wo}", f"ds_read_b64_tr_b16 {vr(f+10,2)}, v8 offset:{wo+1024}",
                f"ds_read_b128 {vr(f,4)}, v{4+ks} offset:{ao}", f"ds_read_b128 {vr(f+4,4)}, v{4+ks} offset:{ao+4096}",
                f"ds_read_b64_tr_b16 {vr(f+12,2)}, v9 offset:{wo}", f"ds_read_b64_tr_b16 {vr(f+14,2)}, v9 offset:{wo+1024}"]
    def loop(swap):
        k("s_barrier")
        k.stamp(1)
        for i in reads(0): k(i)
        for n in range(40):
            f = FR + (n & 1)*16
            rd = reads(n+1) if n < 39 else []
            k("s_waitcnt lgkmcnt(0)")
            for m, (q, b) in enumerate(((0, 0), (0, 1), (1, 1), (1, 0))):
                a_, b_ = f+8+4*q, f+4*b
                if swap: a_, b_ = b_, a_
                k(mfma(ACC + (2*q+b)*16, a_, b_, "0" if n == 0 else None))
                if m == 0 and (n & 1) and n < 39: k("s_barrier")
                if m < 2:
                    for i in rd[3*m:3*m+3]: k(i)
        k.stamp(2)
    k(f"s_cmp_ge_u32 s33, 10\ns_cbranch_scc1 {Lv}")
    k.srd(16, P_WS, 2*SZ, WS_QP)
    k(f"""s_cmp_lt_u32 s33, 5
    s_cselect_b32 s47, {f32(QSCALE)}, 1.0
    s_lshl_b32 s38, s36, 6
    v_lshl_add_u32 v11, v3, 1, s38
    v_lshlrev_b32 v12, 2, v11
    s_lshl_b32 s38, s37, 8
    v_lshl_add_u32 v13, v10, 4, s38
    v_lshlrev_b32 v11, 3, v11
    s_lshl_b32 s39, s32, 10
    v_add_u32 v11, s39, v11
    v_lshl_add_u32 v11, v10, 14, v11
    s_lshl_b32 s40, s33, 19
    s_lshl_b32 s41, s37, 18
    s_add_u32 s40, s40, s41""")
    loop(False)
    k(f"ds_read_b64 v[4:5], v12 offset:{STO}\nds_read_b64 v[6:7], v12 offset:{STO+512}")
    for q in range(2):
        for j in range(4):
            k(f"ds_read_b128 {vr(FR+16*q+4*j,4)}, v13 offset:{CSO + q*128 + j*32}")
    k("s_waitcnt lgkmcnt(8)\nv_mul_f32 v6, s47, v6\nv_mul_f32 v7, s47, v7")
    for q in range(2):
        for j in range(4):
            k(f"s_waitcnt lgkmcnt({7 - (4*q+j)})")
            c = FR+16*q+4*j; d = 112 + 4*((4*q+j) % 4)
            for b in range(2):
                a = ACC + (2*q+b)*16 + 4*j
                for e in (0, 2): k(f"v_pk_fma_f32 {vr(a+e,2)}, v[4:5], {vr(c+e,2)}, {vr(a+e,2)} op_sel:[{b},0,0] op_sel_hi:[{b},1,1] neg_lo:[1,0,0] neg_hi:[1,0,0]")
            for b in range(2):
                a = ACC + (2*q+b)*16 + 4*j
                for e in (0, 2): k(f"v_pk_mul_f32 {vr(a+e,2)}, {vr(a+e,2)}, v[6:7] op_sel:[0,{b}] op_sel_hi:[1,{b}]")
            for b in range(2):
                a = ACC + (2*q+b)*16 + 4*j
                k(f"v_cvt_pk_bf16_f32 v{d+2*b}, v{a}, v{a+1}\nv_cvt_pk_bf16_f32 v{d+2*b+1}, v{a+2}, v{a+3}")
            k(f"s_add_u32 s41, s40, {(8*q+2*j)*16384}")
            k(f"buffer_store_dwordx4 {vr(d,4)}, v11, s[16:19], s41 offen sc1")
    k(f"s_waitcnt vmcnt(0)\ns_barrier\ns_branch {Lj}")
    k.label(Lv)
    k.srd(16, P_WS, SZ, WS_VI)
    k(f"""s_lshl_b32 s39, s37, 6
    v_add_u32 v12, s39, v3
    v_lshlrev_b32 v12, 2, v12
    s_lshl_b32 s40, s36, 8
    v_lshl_add_u32 v11, v10, 4, s40
    s_sub_u32 s38, s33, 10
    s_lshl_b32 s38, s38, 7
    s_add_u32 s38, s38, s39
    s_mov_b32 s41, {81920-320}""")
    for q in range(2):
        k(f"""v_add_u32 v112, s38, v3
        v_add_u32 v112, {32*q}, v112
        v_mul_u32_u24 v15, 3277, v112
        v_lshrrev_b32 v15, 16, v15
        v_mul_lo_u32 v15, v15, s41
        v_lshl_add_u32 v15, v112, 4, v15
        v_mul_u32_u24 v112, 320, v10
        v_add_u32 v{13+q}, v15, v112""")
    k("s_lshl_b32 s40, s32, 1\ns_add_u32 s40, s40, s36\ns_mul_i32 s40, s40, 2560")
    loop(True)
    k(f"ds_read_b32 v6, v12 offset:{CSO}\nds_read_b32 v7, v12 offset:{CSO+128}")
    for b in range(2):
        for j in range(4):
            k(f"ds_read_b128 {vr(FR+4*j,4)}, v11 offset:{STO + b*128 + j*32}")
            k(f"ds_read_b128 {vr(FR+16+4*j,4)}, v11 offset:{STO + 512 + b*128 + j*32}")
        k("s_waitcnt lgkmcnt(0)")
        if b == 0: k("s_nop 1")
        for q in range(2):
            a = ACC + (2*q+b)*16
            for g in range(2):
                d = 112 + 4*(2*q+g)
                for r in range(8*g, 8*g+8, 2): k(f"v_pk_fma_f32 {vr(a+r,2)}, {vr(FR+r,2)}, v[6:7], {vr(a+r,2)} op_sel:[0,{q},0] op_sel_hi:[1,{q},1] neg_lo:[1,0,0] neg_hi:[1,0,0]")
                for r in range(8*g, 8*g+8, 2): k(f"v_pk_mul_f32 {vr(a+r,2)}, {vr(a+r,2)}, {vr(FR+16+r,2)}")
                for e in range(4): k(f"v_cvt_pk_bf16_f32 v{d+e}, v{a+8*g+2*e}, v{a+8*g+2*e+1}")
                k(f"buffer_store_dwordx4 {vr(d,4)}, v{13+q}, s[16:19], s40 offen offset:{b*1280 + g*640} sc1")
    k("s_waitcnt vmcnt(0)\ns_barrier")

def phase_f0(k):
    RS = 1312; LB = 2*24704; LC = LB + 8*RS
    k(f"""s_lshl_b32 s32, s5, 3
    s_add_u32 s32, s32, s4
    s_mul_i32 s33, s32, 1280
    v_lshlrev_b32 v3, 2, v1
    s_and_b32 s38, s5, 15
    s_mul_i32 s38, s38, 40
    s_mul_i32 s39, s4, 5
    s_add_u32 s38, s38, s39
    s_mul_i32 s38, s38, 3840
    s_lshr_b32 s39, s5, 4
    s_min_u32 s39, s39, 14
    s_lshl_b32 s39, s39, 8
    s_add_u32 s38, s38, s39""")
    after_kernarg(k)
    k.srd(8, P_X, SZ)
    for i in range(5):
        k(f"buffer_load_dword v{8+i}, v3, s[8:11], s33 offen offset:{i*256}")
    k.srd(20, P_WQKV, 640*3840)
    for i in range(5):
        k(f"buffer_load_dword v{48+i}, v3, s[20:23], s38 offen" + ("\ns_add_u32 s38, s38, 3840" if i < 4 else ""))
    tag_setup(k, 44)
    lab = k.newlabel("tag")
    k(f"""s_or_b32 s7, s5, s4
    s_cmp_lg_u32 s7, 0
    s_cbranch_scc1 {lab}
    s_memrealtime s[76:77]
    s_waitcnt lgkmcnt(0)
    s_or_b32 s76, s76, 1
    v_mov_b32 v18, s76
    v_mov_b32 v19, s77
    s_mov_b64 exec, 1
    buffer_store_dwordx2 v[18:19], v46, s[72:75], 0 offen sc1
    s_mov_b64 exec, -1
    {lab}:""")
    flags_srd(k)
    k.srd(12, P_WS, SZ, WS_XF)
    k.srd(16, P_WS, ST_SZ + CS_SZ, WS_ST)
    k(f"""s_mul_i32 s34, s4, {RS}
    s_add_u32 s34, s34, {LB}
    v_add_u32 v4, s34, v3
    v_and_b32 v5, 7, v0
    v_lshrrev_b32 v6, 3, v0
    v_mul_u32_u24 v7, {RS}, v5
    v_lshl_add_u32 v7, v6, 4, v7
    v_add_u32 v7, {LB}, v7
    v_lshlrev_b32 v6, 9, v6
    v_lshl_add_u32 v6, v5, 4, v6
    s_lshr_b32 s35, s5, 2
    s_mul_i32 s35, s35, 40960
    s_and_b32 s36, s5, 3
    s_lshl_b32 s36, s36, 7
    s_add_u32 s35, s35, s36
    s_add_u32 s36, s35, 32768
    s_lshl_b32 s37, s32, 4
    v_lshlrev_b32 v47, 3, v0
    v_lshlrev_b32 v43, 3, v1
    s_lshl_b32 s38, s5, 10
    s_add_u32 s38, s38, {ST_SZ}""")
    X = 16
    for i in range(5):
        k(f"s_waitcnt vmcnt({9-i})")
        if i == 4: k(tag_load(44))
        k(f"v_lshlrev_b32 v{X+2*i}, 16, v{8+i}\nv_and_b32 v{X+2*i+1}, 0xffff0000, v{8+i}")
    def reduce(v, t):
        for r in (8, 4, 2, 1):
            k(f"s_nop 1\nv_add_f32_dpp v{v}, v{v}, v{v} row_ror:{r} row_mask:0xf bank_mask:0xf")
        k(f"v_mov_b32 v{t}, v{v}\ns_nop 1\nv_permlane16_swap_b32 v{v}, v{t}\ns_nop 1\nv_add_f32 v{v}, v{v}, v{t}")
        k(f"v_mov_b32 v{t}, v{v}\ns_nop 1\nv_permlane32_swap_b32 v{v}, v{t}\ns_nop 1\nv_add_f32 v{v}, v{v}, v{t}")
    M, V, T = 28, 29, 30
    k(f"v_add_f32 v{M}, v{X}, v{X+1}\nv_add_f32 v{T}, v{X+2}, v{X+3}")
    for i in range(4, 10, 2):
        k(f"v_add_f32 v{M}, v{M}, v{X+i}\nv_add_f32 v{T}, v{T}, v{X+i+1}")
    k(f"v_add_f32 v{M}, v{M}, v{T}")
    reduce(M, T)
    k(f"v_mul_f32 v{M}, {f32(1/640)}, v{M}")
    for i in range(10): k(f"v_sub_f32 v{32+i}, v{X+i}, v{M}")
    k(f"v_mul_f32 v{V}, v32, v32\nv_mul_f32 v{T}, v33, v33")
    for i in range(2, 10, 2):
        k(f"v_fmac_f32 v{V}, v{32+i}, v{32+i}\nv_fmac_f32 v{T}, v{33+i}, v{33+i}")
    k(f"v_add_f32 v{V}, v{V}, v{T}")
    reduce(V, T)
    k(f"v_mul_f32 v{V}, {f32(1/640)}, v{V}")
    def rb(v): k(f"v_cvt_pk_bf16_f32 v{v}, v{v}, v{v}\nv_lshlrev_b32 v{v}, 16, v{v}")
    rb(M); rb(V)
    k(f"v_add_f32 v{V}, {f32(1e-5)}, v{V}"); rb(V)
    k(f"v_sqrt_f32 v{V}, v{V}\ns_nop 0"); rb(V)
    k(f"v_rcp_f32 v{V}, v{V}\ns_waitcnt vmcnt(0)")
    tag_take(k, 44, True)
    k(f"v_mov_b32 v{T}, s6\nv_mov_b32 v{T+1}, s7")
    k(f"s_mov_b64 exec, 1\nbuffer_store_dwordx4 {vr(M,4)}, v46, s[16:19], s37 offen sc1\ns_mov_b64 exec, -1")
    k("v_lshlrev_b32 v32, 16, v48\nv_and_b32 v33, 0xffff0000, v48")
    for i in range(1, 5):
        k(f"v_lshlrev_b32 v34, 16, v{48+i}\nv_and_b32 v35, 0xffff0000, v{48+i}\nv_add_f32 v32, v32, v34\nv_add_f32 v33, v33, v35")
    k(f"ds_write_b64 v47, v[32:33] offset:{LC}")
    for i in range(5):
        a, b = X+2*i, X+2*i+1
        k(f"v_sub_f32 v{a}, v{a}, v{M}\nv_sub_f32 v{b}, v{b}, v{M}")
        k(f"v_cvt_pk_bf16_f32 v{b}, v{a}, v{b}")
        k(f"v_lshlrev_b32 v{a}, 16, v{b}\nv_and_b32 v{b}, 0xffff0000, v{b}")
        k(f"v_mul_f32 v{a}, v{a}, v{V}\nv_mul_f32 v{b}, v{b}, v{V}")
        k(f"v_cvt_pk_bf16_f32 v{8+i}, v{a}, v{b}")
        k(f"ds_write_b32 v4, v{8+i} offset:{i*256}")
    k("s_waitcnt lgkmcnt(0)\ns_barrier")
    l1 = k.newlabel("f0w"); l2 = k.newlabel("f0c")
    k(f"ds_read_b128 v[8:11], v7\ns_cmp_lg_u32 s4, 2\ns_cbranch_scc1 {l2}")
    for i in range(8): k(f"ds_read_b64 {vr(48+2*i,2)}, v43 offset:{LC + i*512}")
    k("s_waitcnt lgkmcnt(0)")
    for st in (8, 4, 2):
        for e in range(st): k(f"v_add_f32 v{48+e}, v{48+e}, v{48+st+e}")
    k(f"v_mov_b32 v50, s6\nv_mov_b32 v51, s7\nbuffer_store_dwordx4 v[48:51], v2, s[16:19], s38 offen sc1\n{l2}:")
    k(f"""s_cmp_ge_u32 s4, 2
    s_cbranch_scc1 {l1}
    ds_read_b128 v[12:15], v7 offset:1024
    s_waitcnt lgkmcnt(0)
    buffer_store_dwordx4 v[12:15], v6, s[12:15], s36 offen sc1
    {l1}:
    s_waitcnt lgkmcnt(0)
    buffer_store_dwordx4 v[8:11], v6, s[12:15], s35 offen sc1""")
    lab = k.newlabel("f0p")
    k(f"s_waitcnt vmcnt(0)\ns_barrier\ns_cmp_lg_u32 s4, 0\ns_cbranch_scc1 {lab}")
    set_flag(k, f"s_add_u32 s78, s5, {FL_LN}", 8)
    k.label(lab)

def gemm2(k, vm, stages, ksteps, NB, acc, wbuf, R, wgroup, wread, aload, areg, AW, nst_total, zero_first,
          hook=None):
    steps = [(s, ks) for s in stages for ks in range(ksteps)]
    wb = lambda n, nb: wbuf + ((n & 1) * NB + nb) * 4
    vm.wait(("W", stages[0]))
    k("s_barrier")
    for nb in range(NB):
        for i in wread(stages[0], 0, nb, wb(0, nb)): k(i)
    pending = []
    for n, (s, ks) in enumerate(steps):
        last = (n == len(steps)-1)
        if hook: hook(n)
        if ks == ksteps-1 and not last:
            assert not pending
            vm.wait(("W", s+1))
            k("s_barrier")
            if s+R-1 < nst_total and ("W", s+R-1) not in vm.tags:
                pending = [(u, i) for i, u in enumerate(wgroup(s+R-1))]
                plast = len(pending)-1; ps = s+R-1
        vm.wait(("A", s, ks))
        for nb in range(NB):
            k(f"s_waitcnt lgkmcnt({2*(NB-1-nb) if last else 2*(NB-1)})")
            k(mfma(acc+16*nb, wb(n, nb), areg(n), "0" if (n == 0 and zero_first) else None))
            if not last:
                s2, ks2 = steps[n+1]
                for i in wread(s2, ks2, nb, wb(n+1, nb)): k(i)
            if pending and nb != NB-1:
                u, i = pending.pop(0)
                vm.op(u, ("W", ps) if i == plast else None)
        if n + AW < len(steps):
            s2, ks2 = steps[n+AW]
            vm.op(aload(s2, ks2, areg(n+AW)), ("A", s2, ks2))
    assert not pending

def phase_f1(k):
    R = 3; UOFF = 12288 + 128; SLOT = 24704
    vm = VM(k)
    k("""s_and_b32 s34, s5, 7
    s_lshr_b32 s35, s5, 3
    s_and_b32 s36, s34, 1
    s_lshl_b32 s36, s36, 2
    s_and_b32 s37, s35, 3
    s_add_u32 s32, s36, s37
    s_lshr_b32 s36, s34, 1
    s_lshl_b32 s36, s36, 3
    s_lshr_b32 s37, s35, 2
    s_add_u32 s33, s36, s37""")
    k(f"""s_cmp_lt_u32 s4, 4
    s_cselect_b32 s8, s{P_W1}, s{P_W3}
    s_cselect_b32 s9, s{P_W1+1}, s{P_W3+1}
    s_cselect_b32 s42, 0, {UOFF}
    s_mov_b32 s10, {640*3072}
    s_mov_b32 s11, 0x00020000
    s_and_b32 s36, s4, 3
    s_mul_i32 s37, s36, 3072
    s_add_u32 s42, s42, s37
    s_lshl_b32 s36, s36, 5
    s_mul_i32 s37, s33, 96""")
    k.srd(12, P_WS, SZ, WS_XF)
    k.srd(16, P_WS, HF_SZ, WS_HF)
    for i in range(3):
        k(f"""v_add_u32 v3, {64*i}, v1
        v_mul_u32_u24 v8, 10923, v3
        v_lshrrev_b32 v8, 16, v8
        v_mul_u32_u24 v9, 6, v8
        v_sub_u32 v9, v3, v9
        v_add_u32 v8, s36, v8
        v_mul_u32_u24 v8, 3072, v8
        v_lshl_add_u32 v8, v9, 4, v8
        v_add_u32 v{4+i}, s37, v8""")
    k(f"""v_lshrrev_b32 v12, 5, v1
    v_bfe_u32 v13, v1, 2, 2
    v_lshl_add_u32 v14, v12, 3, v13
    v_mul_u32_u24 v14, 96, v14
    v_bfe_u32 v15, v1, 4, 1
    v_mul_u32_u24 v15, {UOFF}, v15
    v_add_u32 v14, v14, v15
    v_and_b32 v15, 3, v1
    v_lshl_add_u32 v8, v15, 3, v14
    v_add_u32 v3, 4096, v2""")
    k("s_add_u32 s40, s32, s33")
    mod_small(k, 40, 5, 43, 38)
    k(f"""s_lshl_b32 s46, s32, 3
    s_add_u32 s46, s46, s4
    s_mul_i32 s41, s46, 40960
    s_mul_i32 s44, s40, {128*3072}
    s_lshl_b32 s45, s40, 13
    s_add_u32 s45, s45, s41
    s_add_u32 s47, s41, 40960""")
    ACC, WB, AB = 16, 64, 88
    def wgroup(s):
        u = []
        for i in range(3):
            post = f"\ns_add_u32 s44, s44, {128*3072}\ns_cmp_eq_u32 s44, {640*3072}\ns_cselect_b32 s44, 0, s44" if i == 2 else ""
            u.append(f"s_add_u32 m0, s42, {(s % R)*SLOT + i*1024}\ns_nop 0\nbuffer_load_dwordx4 v{4+i}, s[8:11], s44 offen lds" + post)
        return u
    def wread(s, ks, nb, dst):
        o = (s % R)*SLOT + ks*16*96 + nb*32
        return [f"ds_read_b64_tr_b16 {vr(dst,2)}, v8 offset:{o}", f"ds_read_b64_tr_b16 {vr(dst+2,2)}, v8 offset:{o+4*96}"]
    def aload(s, ks, dst):
        post = "\ns_add_u32 s45, s45, 8192\ns_cmp_eq_u32 s45, s47\ns_cselect_b32 s45, s41, s45" if ks == 7 else ""
        return f"buffer_load_dwordx4 {vr(dst,4)}, v{3 if ks >= 4 else 2}, s[12:15], s45 offen offset:{(ks%4)*1024} sc1" + post
    AW = C("f1_aw", 8)
    areg = lambda n: AB + 4*(n % AW)
    def wpro():
        for s in range(R-1):
            g = wgroup(s)
            for i, u in enumerate(g): vm.op(u, ("W", s) if i == len(g)-1 else None)
    def apro():
        for ks in range(AW): vm.op(aload(0, ks, areg(ks)), ("A", 0, ks))
    def go_poll():
        polln(k, f"s_add_u32 s78, s5, {FL_GO}" if C("go_a2") else f"""s_and_b32 s68, s34, 1
        s_lshl_b32 s68, s68, 3
        s_and_b32 s69, s35, 7
        s_add_u32 s68, s68, s69
        s_lshr_b32 s69, s34, 1
        s_lshl_b32 s69, s69, 2
        s_lshr_b32 s70, s35, 3
        s_add_u32 s69, s69, s70
        s_min_u32 s69, s69, 14
        s_lshl_b32 s78, s69, 4
        s_add_u32 s78, s78, s68
        s_add_u32 s78, s78, {FL_QKV if C("go_q") else FL_GO}""", 1, 10, sleep=C("go_sleep", 4))
    early = C("f1_early", 0)
    if early >= 1: wpro()
    lab = k.newlabel("f1p")
    k(f"s_cmp_lg_u32 s4, 0\ns_cbranch_scc1 {lab}")
    polln(k, f"s_lshl_b32 s78, s32, 5\ns_add_u32 s78, s78, {FL_LN}", 32, 10, sleep=4)
    if early < 2 and C("f1_hold", 1): go_poll()
    k(f"{lab}:\ns_barrier")
    if early < 1: wpro()
    apro()
    if early >= 2 and C("f1_hold", 1):
        lab = k.newlabel("f1g")
        k(f"s_cmp_lg_u32 s4, 0\ns_cbranch_scc1 {lab}")
        go_poll()
        k.label(lab)
    k.stamp(2)
    def hook(n):
        if n == C("f1_sw", 99): k(f"s_setprio {C('prio_f1b', 1)}")
    gemm2(k, vm, list(range(5)), 8, 3, ACC, WB, R, wgroup, wread, aload, areg, AW, 5, True, hook)
    k.stamp(3)
    k(f"""s_mul_i32 s36, s46, 96
    s_mul_i32 s37, s33, 3
    s_add_u32 s36, s36, s37
    s_lshl_b32 s36, s36, 10
    s_mov_b32 s38, {f32(-LOG2E)}
    s_setprio {C('prio_f1e', 3)}
    s_nop 7""")
    for nb in range(3):
        a = ACC + 16*nb; t = WB + 8*(nb % 2); d = AB + 4*nb
        for e in range(8): k(f"v_mul_f32 v{t+e}, s38, v{a+e}")
        for e in range(8): k(f"v_exp_f32 v{t+e}, v{t+e}")
        for e in range(8): k(f"v_mul_f32 v{a+e}, v{a+e}, v{a+8+e}")
        for e in range(8): k(f"v_add_f32 v{t+e}, 1.0, v{t+e}")
        for e in range(8): k(f"v_rcp_f32 v{t+e}, v{t+e}")
        k("s_nop 0")
        for e in range(8): k(f"v_mul_f32 v{a+e}, v{a+e}, v{t+e}")
        for e in range(4): k(f"v_cvt_pk_bf16_f32 v{d+e}, v{a+2*e}, v{a+2*e+1}")
        k(f"buffer_store_dwordx4 {vr(d,4)}, v2, s[16:19], s36 offen offset:{nb*1024} sc1")
    k(f"s_setprio {C('prio_f2', 2)}")
    if True:
        lab = k.newlabel("f1f")
        k(f"s_waitcnt vmcnt(0)\ns_barrier\ns_cmp_lg_u32 s4, 0\ns_cbranch_scc1 {lab}")
        set_flag(k, f"s_lshl_b32 s78, s32, 5\ns_add_u32 s78, s78, s33\ns_add_u32 s78, s78, {FL_H}", 10)
        k.label(lab)

def mfma16(d, a, b, c=None):
    cs = vr(d, 4) if c is None else c
    return f"v_mfma_f32_16x16x32_bf16 {vr(d,4)}, {vr(a,4)}, {vr(b,4)}, {cs}"

def phase_f2(k, endlab):
    R = 4; SLOT = 20480; NST = 17
    vm = VM(k)
    k("""s_and_b32 s34, s5, 7
    s_lshr_b32 s35, s5, 3
    s_lshl_b32 s36, s34, 2
    s_and_b32 s37, s35, 3
    s_add_u32 s32, s36, s37
    s_lshr_b32 s33, s35, 2
    s_and_b32 s37, s4, 1
    s_lshr_b32 s38, s4, 1
    s_mul_i32 s39, s4, 160
    s_mul_i32 s43, s33, 160""")
    k.srd(8, P_W2, 1536*1280)
    k.srd(16, P_WO, 640*1280)
    k.srd(12, P_WS, HF_SZ, WS_HF)
    k.srd(24, P_WS, SZ, WS_OF)
    k.srd(20, P_X, SZ)
    ACC, WB, AB, XR = 16, 56, 76, 116
    for i in range(3):
        k(f"""v_add_u32 v3, s39, v1
        v_add_u32 v3, {64*i}, v3
        v_mul_u32_u24 v{7+i}, 6554, v3
        v_lshrrev_b32 v{7+i}, 16, v{7+i}
        v_mul_u32_u24 v13, 10, v{7+i}
        v_sub_u32 v13, v3, v13
        v_lshl_add_u32 v{10+i}, v13, 4, s43
        s_movk_i32 s36, 1280
        v_mad_u32_u24 v{4+i}, v{7+i}, s36, v{10+i}""")
    def dma_addr(mode, i):
        if mode == 1: c = f"v_lshrrev_b32 v3, 4, v{7+i}\nv_lshl_add_u32 v3, v3, 2, v{7+i}\n"
        else: c = f"v_lshrrev_b32 v3, 2, v{7+i}\nv_lshl_add_u32 v3, v3, 4, v{7+i}\nv_add_u32 v3, 16, v3\n"
        return c + f"v_mad_u32_u24 v{4+i}, v3, s36, v{10+i}"
    k(f"""v_lshrrev_b32 v3, 5, v1
    v_lshlrev_b32 v13, 4, v3
    v_bfe_u32 v14, v1, 2, 3
    v_add_u32 v13, v13, v14
    s_lshl_b32 s44, s38, 5
    v_add_u32 v13, s44, v13
    v_mul_u32_u24 v13, 160, v13
    v_and_b32 v14, 3, v1
    v_lshl_add_u32 v13, v14, 3, v13
    v_add_u32 v14, {3*SLOT}, v13
    v_lshrrev_b32 v3, 4, v1
    v_lshlrev_b32 v3, 9, v3
    v_and_b32 v15, 15, v1
    v_lshl_add_u32 v15, v15, 4, v3""")
    k("s_add_u32 s40, s32, s33")
    mod_small(k, 40, 12, 44, 38)
    k(f"""s_lshl_b32 s46, s32, 1
    s_add_u32 s46, s46, s37
    s_mul_i32 s41, s46, 98304
    s_lshl_b32 s44, s38, 11
    s_add_u32 s41, s41, s44
    s_mul_i32 s47, s46, 40960
    s_add_u32 s47, s47, s44
    s_mul_i32 s42, s4, 2560
    s_mul_i32 s44, s40, {128*1280}
    s_lshl_b32 s45, s40, 13
    s_add_u32 s45, s45, s41
    s_add_u32 s68, s41, 98304""")
    def wgroup(s):
        u = []
        for i in range(3):
            pre = post = ""
            if s < 12:
                ld = f"buffer_load_dwordx4 v{4+i}, s[8:11], s44 offen lds"
                if i == 2: post = f"\ns_add_u32 s44, s44, {128*1280}\ns_cmp_eq_u32 s44, {1536*1280}\ns_cselect_b32 s44, 0, s44"
            elif s < 16:
                if s == 12: pre = dma_addr(1, i) + "\n"
                if i == 0: pre += f"s_mov_b32 s44, {(s-12)*160*1280}\n"
                ld = f"buffer_load_dwordx4 v{4+i}, s[16:19], s44 offen lds"
            else:
                ld = f"buffer_load_dwordx4 v{4+i}, s[16:19], 0 offen lds"
            if i == 2: ld = "s_mov_b32 exec_hi, 0\n" + ld + "\ns_mov_b32 exec_hi, -1"
            else: ld = "s_nop 0\n" + ld
            u.append(pre + f"s_add_u32 m0, s42, {(s % R)*SLOT + i*1024}\n" + ld + post)
        return u
    def wread(s, j):
        slot = s % R
        va = 14 if slot == 3 else 13
        o = (slot % 3)*SLOT*(slot != 3) + j*32
        return [f"ds_read_b64_tr_b16 {vr(WB+4*j,2)}, v{va} offset:{o}", f"ds_read_b64_tr_b16 {vr(WB+4*j+2,2)}, v{va} offset:{o+1280}"]
    AW = 5
    areg = lambda s, b: AB + 8*(s % AW) + 4*b
    def issue_a(s):
        for b in range(2):
            if s < 12:
                post = "\ns_add_u32 s45, s45, 8192\ns_cmp_eq_u32 s45, s68\ns_cselect_b32 s45, s41, s45" if b else ""
                vm.op(f"buffer_load_dwordx4 {vr(areg(s,b),4)}, v15, s[12:15], s45 offen offset:{b*256} sc1" + post, ("A", s))
            else:
                post = "\ns_add_u32 s47, s47, 8192" if b else ""
                vm.op(f"buffer_load_dwordx4 {vr(areg(s,b),4)}, v15, s[24:27], s47 offen offset:{b*256} sc1" + post, ("A", s))
    def issue_w(s):
        for u in wgroup(s): vm.op(u, ("W", s))
    def run(stages, zero_first, pre_read):
        if pre_read:
            vm.wait(("W", stages[0])); k("s_barrier")
            for j in range(5):
                for i in wread(stages[0], j): k(i)
        for n, s in enumerate(stages):
            more = s+1 < NST
            pending = []
            if more:
                vm.wait(("W", s+1)); k("s_barrier")
                if s+R-1 < NST and ("W", s+R-1) not in vm.tags: pending = wgroup(s+R-1)
            vm.wait(("A", s))
            for j in range(5):
                k(f"s_waitcnt lgkmcnt({8 if more else 8-2*j})")
                for b in range(2):
                    k(mfma16(ACC + (5*b+j)*4, WB+4*j, areg(s, b), "0" if (zero_first and n == 0) else None))
                if more:
                    for i in wread(s+1, j): k(i)
                if pending: vm.op(pending.pop(0), ("W", s+R-1))
            if s+AW <= stages[-1]: issue_a(s+AW)
    for s in range(R-1): issue_w(s)
    k("s_lshl_b32 s69, s32, 6")
    for i in range(2):
        k(f"""v_add_u32 v3, {512*i}, v0
        v_mul_u32_u24 v{124+i}, 6554, v3
        v_lshrrev_b32 v{124+i}, 16, v{124+i}
        v_mul_u32_u24 v{126+i}, 10, v{124+i}
        v_sub_u32 v{126+i}, v3, v{126+i}
        v_add_u32 v3, s69, v{124+i}
        v_mul_u32_u24 v3, 1280, v3
        v_lshl_add_u32 v3, v{126+i}, 4, v3""")
        vm.op(f"buffer_load_dwordx4 {vr(XR+4*i,4)}, v3, s[20:23], s43 offen", "x")
    lab = k.newlabel("f2p")
    k(f"s_cmp_lg_u32 s4, 0\ns_cbranch_scc1 {lab}")
    polln(k, f"s_lshr_b32 s78, s32, 2\ns_lshl_b32 s78, s78, 5\ns_add_u32 s78, s78, {FL_H}", 32, AB, sleep=4)
    k(f"{lab}:\ns_barrier")
    k.stamp(4)
    for s in range(AW): issue_a(s)
    run(list(range(12)), True, True)
    k("s_waitcnt lgkmcnt(0)\ns_barrier")
    issue_w(15)
    for i in range(3): k(dma_addr(2, i))
    issue_w(16)
    k(f"""s_mul_i32 s44, s4, 10240
    v_and_b32 v3, 48, v1
    v_lshrrev_b32 v9, 5, v1
    v_add_u32 v9, v9, v1""")
    for j in range(5):
        k(f"""v_add_u32 v{4+j}, {2*j}, v9
        v_and_or_b32 v{4+j}, v{4+j}, 15, v3
        v_lshl_add_u32 v{4+j}, v{4+j}, 4, s44""")
    for i in range(2):
        k(f"""v_lshrrev_b32 v3, 4, v{124+i}
        v_mul_u32_u24 v3, 5120, v3
        v_lshl_add_u32 v3, v{126+i}, 9, v3
        v_add_u32 v{9+i}, v{124+i}, v{126+i}
        v_and_b32 v{9+i}, 15, v{9+i}
        v_lshl_add_u32 v{9+i}, v{9+i}, 4, v3
        v_add_u32 v3, s69, v{124+i}
        v_mul_u32_u24 v3, 1280, v3
        v_lshl_add_u32 v{11+i}, v{126+i}, 4, v3""")
    k.srd(8, P_OUT, SZ)
    k.stamp(5)
    lab = k.newlabel("f2q")
    k(f"s_cmp_lg_u32 s4, 0\ns_cbranch_scc1 {lab}")
    polln(k, f"s_lshr_b32 s78, s32, 2\ns_lshl_b32 s78, s78, 5\ns_add_u32 s78, s78, {FL_O}", 32, AB, sleep=2)
    k(f"{lab}:\ns_waitcnt vmcnt(0)\ns_barrier\ns_setprio {C('prio_tail', 3)}")
    vm.drained()
    k.stamp(6)
    for s in range(12, 17): issue_a(s)
    for s in range(12, 17):
        more = s < 16
        vm.wait(("A", s))
        for j in range(5):
            k(f"s_waitcnt lgkmcnt({8 if more else 8-2*j})")
            for b in range(2): k(mfma16(ACC + (5*b+j)*4, WB+4*j, areg(s, b)))
            if more:
                for i in wread(s+1, j): k(i)
    k("s_barrier\ns_nop 4")
    for j in range(5):
        for b in range(2):
            k(f"ds_write_b128 v{4+j}, {vr(ACC+(5*b+j)*4,4)} offset:{(5*b+j)*1024}")
    k("s_waitcnt lgkmcnt(0)\ns_barrier")
    lab = k.newlabel("f2e"); lab2 = k.newlabel("f2f")
    RB = 16
    def rd(i):
        for q in range(4):
            for h in range(2):
                if i == 1 and q == 3: k("s_waitcnt lgkmcnt(13)")
                k(f"ds_read_b128 {vr(RB + 32*i + 8*q + 4*h, 4)}, v{9+i} offset:{q*20480 + h*256}")
    def fin(i):
        b = RB + 32*i; x = XR + 4*i; t = 80 + 8*i
        for e in range(4): k(f"v_lshlrev_b32 v{t+2*e}, 16, v{x+e}\nv_and_b32 v{t+2*e+1}, 0xffff0000, v{x+e}")
        k("s_waitcnt lgkmcnt(0)")
        for e in range(0, 8, 2): k(f"v_pk_add_f32 {vr(b+e,2)}, {vr(b+e,2)}, {vr(b+8+e,2)}\nv_pk_add_f32 {vr(b+16+e,2)}, {vr(b+16+e,2)}, {vr(b+24+e,2)}")
        for e in range(0, 8, 2): k(f"v_pk_add_f32 {vr(b+e,2)}, {vr(b+e,2)}, {vr(t+e,2)}")
        for e in range(0, 8, 2): k(f"v_pk_add_f32 {vr(b+e,2)}, {vr(b+e,2)}, {vr(b+16+e,2)}")
        for e in range(4): k(f"v_cvt_pk_bf16_f32 v{b+8+e}, v{b+2*e}, v{b+2*e+1}")
        k(f"buffer_store_dwordx4 {vr(b+8,4)}, v{11+i}, s[8:11], s43 offen{' sc1' if C('out_sc1') else ''}")
    rd(0)
    k(f"s_cmp_ge_u32 s4, 2\ns_cbranch_scc1 {lab}")
    rd(1); fin(1)
    k.label(lab)
    fin(0)

def phase_a2(k, force_fallback=False):
    SLOT = 26624; VOFF = 10240
    Lchk, Lchkr, Lloop, Lfin, Lslow, Lsl, Lend = [k.newlabel(x) for x in ("atc", "atcr", "atl", "atf", "ats", "atsl", "ate")]
    k("""s_and_b32 s34, s5, 7
    s_lshr_b32 s35, s5, 3
    s_lshl_b32 s32, s34, 2
    s_lshr_b32 s34, s35, 3
    s_add_u32 s32, s32, s34
    s_and_b32 s33, s35, 7""")
    Q1, Q2 = 16, 20
    K1, K2 = 24, 22
    V0, V1 = 28, 32
    P = 36; T = 44
    CC, O = 48, 64
    S = 80; U = 96
    k("v_and_b32 v3, 31, v1\nv_lshrrev_b32 v4, 5, v1\nv_mov_b32 v15, 0\nv_mov_b32 v100, 0\ns_mov_b32 s3, 0")
    lab = k.newlabel("a2p"); lab2 = k.newlabel("a2q")
    k(f"s_cmp_lg_u32 s4, 4\ns_cbranch_scc1 {lab}")
    get_tag(k, U)
    k(f"""s_mov_b32 s3, 1
    s_mul_i32 s76, s32, 20
    s_add_u32 s77, s76, 19
    s_lshr_b32 s76, s76, 7
    s_lshr_b32 s77, s77, 7
    s_sub_u32 s77, s77, s76
    s_lshl_b32 s78, s33, 1
    v_bfe_u32 v{U+4}, v1, 4, 1
    v_mul_u32_u24 v{U+4}, s77, v{U+4}
    v_add_u32 v{U+4}, s76, v{U+4}
    v_lshlrev_b32 v{U+4}, 4, v{U+4}
    v_add_u32 v{U}, s78, v1
    v_and_b32 v{U+1}, 15, v{U}
    v_mul_u32_u24 v15, 80, v4
    v_add3_u32 v15, v15, v{U+4}, v{U+1}
    v_add_u32 v15, {FL_QKV + 80}, v15
    v_lshlrev_b32 v15, 7, v15
    v_add_u32 v{U}, 12, v{U}
    v_and_b32 v{U}, 15, v{U}
    v_add_u32 v{U}, v{U}, v{U+4}
    v_add_u32 v{U}, {FL_QKV}, v{U}
    v_mov_b32 v{U+4}, v15
    s_mov_b64 exec, 0x00300030
    v_lshlrev_b32 v{U+4}, 7, v{U}
    s_mov_b64 exec, -1
    {lab}:""")
    k("v_mul_u32_u24 v5, 320, v4\nv_lshl_add_u32 v5, v3, 4, v5")
    k(f"""v_lshlrev_b32 v6, 12, v4
    v_lshl_add_u32 v6, v3, 3, v6
    v_add_u32 v7, 256, v6
    v_add_u32 v8, {SLOT}, v6
    v_add_u32 v9, {SLOT}, v7
    v_add_u32 v10, {VOFF}, v2
    v_add_u32 v14, {VOFF+SLOT}, v2
    s_lshl_b32 s37, s33, 3
    s_add_u32 s37, s37, s4
    s_lshl_b32 s38, s37, 5
    v_add_u32 v11, s38, v3
    v_lshlrev_b32 v11, 3, v11
    v_mov_b32 v12, v11
    v_lshl_add_u32 v11, v4, 15, v11
    s_mul_i32 s39, s32, 81920
    s_mov_b32 s68, 0x000fffff
    s_mov_b32 s69, 0x000fffff
    s_mov_b32 s70, -1
    s_mov_b32 s71, 0""")
    k.srd(8, P_WS, SZ, WS_QP)
    k.srd(12, P_WS, SZ, WS_KP)
    k.srd(16, P_WS, SZ, WS_VI)
    k.srd(20, P_WS, SZ, WS_OF)
    k(f"""s_lshr_b32 s40, s4, 1
    s_lshl_b32 s40, s40, 14
    s_and_b32 s44, s4, 1
    s_lshl_b32 s44, s44, 10
    s_add_u32 s40, s40, s44
    s_add_u32 s40, s40, s39
    s_lshl_b32 s45, s4, 8
    s_add_u32 s41, s45, s39
    s_add_u32 s41, s41, 65536
    s_add_u32 s45, s45, 8192
    s_mul_i32 s42, s4, 1280
    s_add_u32 s42, s42, s39
    s_lshl_b32 s44, s4, 10
    s_lshl_b32 s46, s4, 11
    s_add_u32 s46, s46, {VOFF}
    s_mov_b32 s24, s33
    s_mov_b32 s43, 0""")
    NEXT = "s_lshl_b32 s26, s24, 11\ns_add_u32 s25, s26, s40\ns_add_u32 s26, s26, s41\ns_mul_i32 s27, s24, 10240\ns_add_u32 s27, s27, s42\ns_add_u32 s24, s24, 1\ns_and_b32 s24, s24, 7"
    ADV = f"s_add_u32 s43, s43, {SLOT}\ns_cmp_eq_u32 s43, {3*SLOT}\ns_cselect_b32 s43, 0, s43"
    du = ["s_add_u32 m0, s43, s44\ns_nop 0\nbuffer_load_dwordx4 v2, s[12:15], s25 offen sc1 lds",
          "s_add_u32 m0, s43, s45\ns_mov_b64 exec, 0xffff\nbuffer_load_dwordx4 v2, s[12:15], s26 offen sc1 lds\ns_mov_b64 exec, -1",
          "s_add_u32 m0, s43, s46\ns_mov_b64 exec, s[68:69]\nbuffer_load_dwordx4 v5, s[16:19], s27 offen sc1 lds\ns_mov_b64 exec, -1",
          "s_add_u32 m0, m0, 384\ns_mov_b64 exec, s[68:69]\nbuffer_load_dwordx4 v5, s[16:19], s27 offen offset:640 sc1 lds\ns_mov_b64 exec, -1"]
    k(NEXT)
    k(f"""v_cmp_eq_u32 vcc, 20, v3
    v_cmp_eq_u32 s[34:35], 24, v3
    v_mov_b32 v13, 0x3f803f80
    s_or_b64 vcc, vcc, s[34:35]
    s_nop 1
    v_cndmask_b32 v{T}, 0, v13, vcc""")
    for e in range(1, 4): k(f"v_mov_b32 v{T+e}, v{T}")
    k("v_add_u32 v13, s46, v2\ns_not_b64 exec, s[68:69]")
    for slot in range(3):
        for i in range(2):
            k(f"ds_write_b128 v13, {vr(T,4)} offset:{slot*SLOT + i*1024}")
    k("s_mov_b64 exec, -1")
    for r in list(range(O, O+16)) + [Q2, Q2+1]: k(f"v_mov_b32 v{r}, 0")
    k("s_add_u32 s34, s39, 16384\ns_add_u32 s35, s39, 65536")
    k.stamp(3)
    k(f"s_cmp_lg_u32 s4, 4\ns_cbranch_scc1 {lab2}\ns_mov_b32 exec_lo, 0x003f003f\ns_mov_b32 exec_hi, 0x000f000f")
    poll(k, U+4, "0", U, sleep=1)
    k(f"{lab2}:\ns_barrier")
    k.stamp(4)
    k(f"buffer_load_dwordx2 {vr(Q1,2)}, v11, s[8:11], s39 offen sc1")
    k(f"buffer_load_dwordx2 {vr(Q1+2,2)}, v11, s[8:11], s34 offen sc1")
    k(f"s_mov_b64 exec, s[70:71]\nbuffer_load_dwordx2 {vr(Q2,2)}, v12, s[8:11], s35 offen sc1\ns_mov_b64 exec, -1")
    for u in du: k(u)
    k(NEXT); k(ADV)
    for u in du: k(u)
    k(NEXT); k(ADV)
    if C("go_a2"):
        lab = k.newlabel("a2g")
        k(f"s_cmp_lg_u32 s4, 4\ns_cbranch_scc1 {lab}")
        set_flag(k, f"s_add_u32 s78, s5, {FL_GO}", U+6)
        k.label(lab)
    k("s_waitcnt vmcnt(4) lgkmcnt(0)\ns_barrier")
    def k1read(t):
        tt = t % 8; va = (8 if t >= 8 else 6) + (tt & 1); a = tt >> 1
        return f"ds_read2st64_b64 {vr(K1,4)}, v{va} offset0:{a} offset1:{a+4}"
    def k2read(t):
        tt = t % 8; va = (8 if t >= 8 else 6) + (tt & 1); a = tt >> 1
        return f"ds_read_b64 {vr(K2,2)}, v{va} offset:{8192 + a*512}"
    def vread(t, g):
        va = 14 if t >= 8 else 10
        return f"ds_read_b128 {vr(V1 if g else V0,4)}, v{va} offset:{(t%8)*2048 + g*1024}"
    k(k1read(0)); k(k2read(0))
    k("s_waitcnt lgkmcnt(0)")
    k(mfma(S, K1, Q1, "0")); k(mfma8(S, K2, Q2))
    k(k1read(1)); k(k2read(1)); k(vread(0, 0)); k(vread(0, 1))
    k(f"s_mov_b32 s47, 0\ns_mov_b32 s76, {SLOT}\ns_mov_b32 s77, {(-2*SLOT) & 0xffffffff}\ns_nop 7")
    k(f"v_max3_f32 v{T}, v{S}, v{S+1}, v{S+2}\nv_max3_f32 v{T+1}, v{S+3}, v{S+4}, v{S+5}")
    k(f"v_max3_f32 v{T}, v{T}, v{S+6}, v{S+7}\nv_max3_f32 v{T+1}, v{T+1}, v{S+8}, v{S+9}")
    k(f"v_max3_f32 v{T}, v{T}, v{S+10}, v{S+11}\nv_max3_f32 v{T+1}, v{T+1}, v{S+12}, v{S+13}")
    k(f"v_max3_f32 v{T}, v{T}, v{S+14}, v{S+15}\nv_max_f32 v{T}, v{T}, v{T+1}")
    k(f"v_mov_b32 v{T+1}, v{T}\ns_nop 1\nv_permlane32_swap_b32 v{T}, v{T+1}\ns_nop 1\nv_max_f32 v{T}, v{T}, v{T+1}")
    for e in range(16): k(f"v_sub_f32 v{CC+e}, 0, v{T}")
    for e in range(16): k(f"v_sub_f32 v{S+e}, v{S+e}, v{T}")
    lab = k.newlabel("a2r")
    k(f"s_cmp_lg_u32 s4, 4\ns_cbranch_scc1 {lab}\nbuffer_load_dwordx2 {vr(U,2)}, v15, s[28:31], 0 offen sc1\n{lab}:")
    plo, pmid, phi = C("pp_lo", 0), C("pp_mid", 1), C("pp_hi", 3)
    k(f"s_setprio {plo}")
    k.stamp(5)
    if C("cyc") and STAMP[0]: k("s_memtime s[82:83]\ns_waitcnt lgkmcnt(0)\ns_mov_b32 s98, 0\ns_mov_b32 s99, 0")
    k(".p2align 6")
    k.label(Lloop)
    TB = C("a2_tb", 4)
    for t in range(8):
        for i in range(4):
            for e in range(4):
                k(f"v_exp_f32 v{S+4*i+e}, v{S+4*i+e}")
                if i == 0 and e == 0: k(f"s_setprio {pmid}")
            k(f"v_cvt_pk_bf16_f32 v{P+2*i}, v{S+4*i}, v{S+4*i+1}")
            k(f"v_cvt_pk_bf16_f32 v{P+2*i+1}, v{S+4*i+2}, v{S+4*i+3}")
        k(f"s_setprio {phi}")
        if t == TB:
            lab = k.newlabel("bY")
            d0 = d1 = d2 = ""
            if C("cyc") == 2 and STAMP[0]:
                d0 = "s_memtime s[72:73]\n"
                d1 = "s_memtime s[74:75]\ns_waitcnt lgkmcnt(0)\ns_sub_u32 s72, s74, s72\ns_add_u32 s98, s98, s72\n"
                d2 = "s_memtime s[72:73]\ns_waitcnt lgkmcnt(0)\ns_sub_u32 s72, s72, s74\ns_add_u32 s99, s99, s72\n"
            k(f"s_cmp_lt_u32 s4, 4\ns_cbranch_scc1 {lab}\n{d0}s_waitcnt vmcnt(0)\n{d1}s_cmp_lg_u32 s3, 0\ns_cbranch_scc1 {Lchk}\n{Lchkr}:\ns_barrier\n{d2}{lab}:")
        k("s_waitcnt lgkmcnt(0)")
        k(mfma(S, K1, Q1, vr(CC, 16))); k(k1read(t+2))
        if t > TB: k("s_cmp_ge_u32 s47, 6")
        k(mfma8(S, K2, Q2)); k(k2read(t+2))
        if t == TB+1:
            lab = k.newlabel("nd"); k(f"s_cbranch_scc1 {lab}\n{du[0]}\n{lab}:\ns_cmp_ge_u32 s47, 6")
        k(mfma(O, V0, P)); k(vread(t+1, 0))
        if t > TB:
            lab = k.newlabel("nd"); k(f"s_cbranch_scc1 {lab}\n{du[t-TB]}\n{lab}:")
        if t == 7:
            k(f"""s_add_u32 s47, s47, 1
            s_cmp_eq_u32 s47, 2
            s_cselect_b32 s36, s77, s76
            s_cmp_eq_u32 s47, 5
            s_cselect_b32 s36, s77, s36""")
        k(mfma(O, V1, P+4)); k(vread(t+1, 1))
        if t == TB:
            lab = k.newlabel("bX")
            k(f"s_cmp_ge_u32 s4, 4\ns_cbranch_scc1 {lab}\ns_waitcnt vmcnt(0)\ns_barrier\n{lab}:")
        if t == 7:
            k(f"""v_mov_b32 v6, v8
            v_mov_b32 v7, v9
            v_mov_b32 v10, v14
            v_add_u32 v8, s36, v8
            v_add_u32 v9, s36, v9
            v_add_u32 v14, s36, v14""")
            k(NEXT); k(ADV)
            k("s_cmp_lt_u32 s47, 8")
        k(f"s_setprio {plo}")
    k(f"s_cbranch_scc1 {Lloop}")
    k.stamp(6)
    if C("cyc") and STAMP[0]: k("s_memtime s[84:85]\ns_waitcnt lgkmcnt(0)\ns_sub_u32 s84, s84, s82\ns_mul_i32 s84, s84, 100\ns_lshr_b32 s84, s84, 10\ns_add_u32 s84, s84, s80\ns_mov_b32 s82, s80")
    if C("cyc") == 2 and STAMP[0]: k("s_mul_i32 s98, s98, 100\ns_lshr_b32 s98, s98, 10\ns_add_u32 s86, s98, s80\ns_mul_i32 s99, s99, 100\ns_lshr_b32 s99, s99, 10\ns_add_u32 s88, s99, s80")
    k(f"""s_setprio 3
    s_mul_i32 s72, s37, 40960
    s_lshl_b32 s73, s32, 10
    s_add_u32 s73, s73, s72
    s_lshr_b32 s74, s32, 2
    s_add_u32 s74, s74, 32
    s_lshl_b32 s74, s74, 10
    s_add_u32 s74, s74, s72
    s_and_b32 s75, s32, 1
    s_lshl_b32 s75, s75, 9
    s_add_u32 s74, s74, s75
    s_and_b32 s75, s32, 2
    s_lshl_b32 s75, s75, 2
    s_add_u32 s74, s74, s75
    s_waitcnt lgkmcnt(0)
    s_mov_b64 exec, s[70:71]
    v_mov_b32 v{T+2}, v{O+12}
    s_not_b64 exec, s[70:71]
    v_mov_b32 v{T+2}, v{O+8}
    s_mov_b64 exec, -1
    s_mov_b32 s72, {f32(2.0**60) if not force_fallback else f32(0.0)}
    v_cmp_ngt_f32 vcc, s72, v{T+2}
    s_nop 1
    s_cbranch_vccnz {Lslow}""")
    k.label(Lfin)
    k(f"v_rcp_f32 v{T}, v{T+2}\ns_nop 0")
    for e in range(12): k(f"v_mul_f32 v{O+e}, v{O+e}, v{T}")
    for e in range(6): k(f"v_cvt_pk_bf16_f32 v{P+e}, v{O+2*e}, v{O+2*e+1}")
    k(f"buffer_store_dwordx4 {vr(P,4)}, v2, s[20:23], s73 offen sc1")
    k(f"s_mov_b64 exec, s[70:71]\nbuffer_store_dwordx2 {vr(P+4,2)}, v2, s[20:23], s74 offen sc1\ns_mov_b64 exec, -1")
    k(f"s_waitcnt vmcnt(0)\ns_barrier\ns_cmp_lg_u32 s4, 4\ns_cbranch_scc1 {Lend}")
    set_flag(k, f"s_lshl_b32 s78, s33, 5\ns_add_u32 s78, s78, s32\ns_add_u32 s78, s78, {FL_O}", T)
    k.label(Lend)
    k.stamp(7); k.stamp_flush(0, "s5")
    k("s_endpgm")
    k.label(Lchk)
    k("s_mov_b32 s3, 0")
    poll(k, 15, "0", U, sleep=1, loaded=True)
    k(f"s_branch {Lchkr}")
    k.label(Lslow)
    M = CC
    k(f"""v_lshlrev_b32 v7, 3, v3
    v_lshl_add_u32 v6, v4, 15, v7
    v_mov_b32 v{M}, {f32(-3.0e38)}
    s_mov_b32 s40, s39
    s_mov_b32 s42, s39
    s_mov_b32 s47, 0""")
    for r in range(O, O+16): k(f"v_mov_b32 v{r}, 0")
    for r in range(V0, V0+8): k(f"v_mov_b32 v{r}, 0x3f803f80")
    k.label(Lsl)
    k(f"""s_add_u32 s41, s40, 16384
    s_add_u32 s43, s40, 65536
    buffer_load_dwordx2 {vr(K1,2)}, v6, s[12:15], s40 offen sc1
    buffer_load_dwordx2 {vr(K1+2,2)}, v6, s[12:15], s41 offen sc1
    buffer_load_dwordx2 {vr(K2,2)}, v7, s[12:15], s43 offen sc1
    s_mov_b64 exec, s[68:69]
    buffer_load_dwordx4 {vr(V0,4)}, v5, s[16:19], s42 offen sc1
    buffer_load_dwordx4 {vr(V1,4)}, v5, s[16:19], s42 offen offset:640 sc1
    s_mov_b64 exec, -1
    s_waitcnt vmcnt(0)""")
    k(mfma(S, K1, Q1, "0")); k(mfma8(S, K2, Q2))
    k("s_nop 15\ns_nop 3")
    k(f"v_max3_f32 v{T}, v{S}, v{S+1}, v{M}")
    for e in range(2, 16, 2): k(f"v_max3_f32 v{T}, v{T}, v{S+e}, v{S+e+1}")
    k(f"v_mov_b32 v{T+1}, v{T}\ns_nop 1\nv_permlane32_swap_b32 v{T}, v{T+1}\ns_nop 1\nv_max_f32 v{T}, v{T}, v{T+1}")
    k(f"v_sub_f32 v{T+1}, v{M}, v{T}\nv_exp_f32 v{T+1}, v{T+1}\nv_mov_b32 v{M}, v{T}")
    for e in range(16): k(f"v_mul_f32 v{O+e}, v{O+e}, v{T+1}")
    for e in range(16): k(f"v_sub_f32 v{S+e}, v{S+e}, v{T}")
    for e in range(16): k(f"v_exp_f32 v{S+e}, v{S+e}")
    k("s_nop 0")
    for e in range(8): k(f"v_cvt_pk_bf16_f32 v{P+e}, v{S+2*e}, v{S+2*e+1}")
    k("s_nop 1")
    k(mfma(O, V0, P)); k(mfma(O, V1, P+4))
    k(f"""s_nop 15
    s_nop 3
    s_add_u32 s40, s40, 256
    s_add_u32 s42, s42, 1280
    s_add_u32 s47, s47, 1
    s_cmp_lt_u32 s47, 64
    s_cbranch_scc1 {Lsl}
    v_mov_b32 v{T+2}, v{O+12}
    s_branch {Lfin}""")

NAME = "parallel_sum__softmax_full_mha__glu_gated_swiglu__prompt_kernel"
def fused():
    k = Kern(NAME, 512, 512, 81920)
    k("s_load_dwordx16 s[48:63], s[0:1], 0\ns_load_dwordx4 s[64:67], s[0:1], 64")
    k.stamp_init(); k.stamp(0, wait=False)
    k(f"""v_lshrrev_b32 v1, 6, v0
    s_and_b32 s5, s2, 255
    v_readfirstlane_b32 s4, v1
    v_and_b32 v1, 63, v0
    v_lshlrev_b32 v2, 4, v1
    s_mov_b32 s6, 0
    s_setprio 3
    s_cmp_ge_u32 s2, 512
    s_cbranch_scc1 L_end
    {"s_cmp_lt_u32 s2, 256" if C("ffirst", 1) else "s_cmp_ge_u32 s2, 256"}
    s_cbranch_scc1 L_roleF""")
    k(A1_TILE.format(rb="s32", cb="s33"))
    k("s_cmp_ge_u32 s33, 15\ns_cbranch_scc1 L_skipA1\ns_cmp_lt_u32 s4, 4\ns_cbranch_scc1 L_a1c")
    a1_loader(k, "L_a2")
    k.label("L_roleF")
    phase_f0(k)
    k(f"s_setprio {C('prio_f', 0)}")
    k.stamp(1)
    if C("nof1"): k("s_branch L_end")
    phase_f1(k)
    if C("nof2"): k("s_branch L_end")
    phase_f2(k, "L_end")
    if STAMP[0]: k("s_waitcnt vmcnt(0)")
    k.stamp(7); k.stamp_flush(1, "s5")
    k.label("L_end"); k("s_endpgm")
    k.label("L_skipA1")
    after_kernarg(k); flags_srd(k)
    k("s_branch L_a2")
    k.label("L_a1c")
    a1_compute(k, "L_a2")
    k.label("L_a2")
    phase_a2(k, C("ff"))
    return build([k], single=True)

if __name__ == "__main__":
    STAMP[0] = 2 if "--dstamp" in sys.argv else ("--stamp" in sys.argv)
    for a in sys.argv[2:]:
        if "=" in a:
            n, v = a.split("="); CFG[n] = int(v)
    open(sys.argv[1], "w").write(fused())
```

```python
import sys, math
from asmlib2 import *

SZ = 2621440
WS_XF, WS_QP, WS_KP, WS_VI, WS_OF, WS_HF = 0, SZ, 2*SZ, 3*SZ, 4*SZ, 5*SZ
HF_SZ = 2048*1536*2
WS_ST = WS_HF + HF_SZ
ST_SZ = 32768
WS_CS = WS_ST + ST_SZ
CS_SZ = 15*16*1024
WS_FL = WS_CS + 262144
FL_LN, FL_QKV, FL_GO, FL_H, FL_O, FL_N = 0, 256, 512, 768, 1024, 1280
LOG2E = math.log2(math.e)
QSCALE = 20 ** -0.5 * LOG2E
P_X, P_WQKV, P_WO, P_W1, P_W3, P_W2, P_OUT, P_DBG, P_WS = 48, 50, 52, 56, 58, 60, 62, 64, 66
SPIN_MAX = 100000
CFG = {}
def C(n, d=0): return CFG.get(n, d)

def mod_small(k, s, m, t, maxval):
    q = 1
    while q * m * 2 <= maxval: q *= 2
    while q >= 1:
        k(f"s_cmp_ge_u32 s{s}, {q*m}\ns_cselect_b32 s{t}, {q*m}, 0\ns_sub_u32 s{s}, s{s}, s{t}")
        q //= 2

def tag_load(vt): return f"buffer_load_dwordx2 {vr(vt,2)}, v{vt+2}, s[72:75], 0 offen sc1"
def tag_setup(k, vt):
    k.srd(72, P_DBG, 256)
    k(f"v_mov_b32 v{vt+2}, 0")
def tag_take(k, vt, loaded):
    top = k.newlabel("tg"); mid = k.newlabel("tgm"); done = k.newlabel("tgd")
    k(f"s_mov_b32 s79, {SPIN_MAX}")
    if loaded: k(f"s_branch {mid}")
    k(f"{top}:\n{tag_load(vt)}\ns_waitcnt vmcnt(0)\n{mid}:")
    k(f"""v_readfirstlane_b32 s6, v{vt}
    v_readfirstlane_b32 s7, v{vt+1}
    s_nop 1
    s_cmp_lg_u32 s6, 0
    s_cbranch_scc1 {done}
    s_sleep 2
    s_sub_u32 s79, s79, 1
    s_cmp_lg_u32 s79, 0
    s_cbranch_scc1 {top}
    {done}:""")
def get_tag(k, vt):
    lab = k.newlabel("gt")
    k(f"s_cmp_lg_u32 s6, 0\ns_cbranch_scc1 {lab}")
    tag_setup(k, vt); tag_take(k, vt, False)
    k.label(lab)
def set_flag(k, idx_expr, vt):
    k(idx_expr)
    k(f"""s_lshl_b32 s78, s78, 7
    v_mov_b32 v{vt}, s6
    v_mov_b32 v{vt+1}, s7
    v_mov_b32 v{vt+2}, 0
    s_mov_b64 exec, 1
    buffer_store_dwordx2 {vr(vt,2)}, v{vt+2}, s[28:31], s78 offen sc1
    s_mov_b64 exec, -1""")
def poll(k, voff, soff, vt, sleep=2, loaded=False):
    top = k.newlabel("poll"); done = k.newlabel("polled"); mid = k.newlabel("pmid")
    k(f"s_mov_b32 s79, {SPIN_MAX}")
    if loaded: k(f"s_branch {mid}")
    k(f"{top}:\nbuffer_load_dwordx2 {vr(vt,2)}, v{voff}, s[28:31], {soff} offen sc1\ns_waitcnt vmcnt(0)\n{mid}:")
    k(f"""v_cmp_ne_u64 vcc, s[6:7], {vr(vt,2)}
    s_nop 1
    s_and_b64 exec, exec, vcc
    s_cbranch_scc0 {done}
    s_sleep {sleep}
    s_sub_u32 s79, s79, 1
    s_cmp_lg_u32 s79, 0
    s_cbranch_scc1 {top}
    {done}:
    s_mov_b64 exec, -1""")
def polln(k, idx_expr, n, vt, sleep=2):
    k(idx_expr)
    k(f"s_lshl_b32 s78, s78, 7\nv_lshlrev_b32 v{vt+2}, 7, v1\ns_mov_b32 exec_lo, {hex((1 << n) - 1)}\ns_mov_b32 exec_hi, 0")
    poll(k, vt+2, "s78", vt, sleep)
A1_TILE = """s_and_b32 s34, s5, 7
    s_lshr_b32 s35, s5, 3
    s_and_b32 s36, s34, 1
    s_lshl_b32 s36, s36, 3
    s_and_b32 s37, s35, 7
    s_add_u32 {rb}, s36, s37
    s_lshr_b32 s36, s34, 1
    s_lshl_b32 s36, s36, 2
    s_lshr_b32 s37, s35, 3
    s_add_u32 {cb}, s36, s37"""
def after_kernarg(k):
    k("s_waitcnt lgkmcnt(0)")
def flags_srd(k): k.srd(28, P_WS, FL_N*128, WS_FL)

WBASE = 49152; CSO = 16384; STO = 16384 + 1024

def a1_loader(k, Lj):
    vm = VM(k)
    k("""s_and_b32 s36, s4, 3
    s_lshr_b32 s37, s36, 1
    s_lshl_b32 s37, s37, 6
    s_and_b32 s38, s36, 1
    s_add_u32 s37, s37, s38
    s_lshl_b32 s38, s36, 5
    s_cmp_lt_u32 s33, 10
    s_cselect_b32 s37, s37, s38
    s_mov_b32 s38, 1280
    s_cselect_b32 s38, 2560, s38
    s_lshl_b32 s39, s32, 7
    s_add_u32 s37, s37, s39
    s_mul_i32 s37, s37, 1280
    v_lshrrev_b32 v3, 3, v1
    v_lshrrev_b32 v10, 4, v1
    v_and_b32 v11, 7, v1
    v_mul_u32_u24 v12, s38, v3
    v_xor_b32 v13, v10, v11
    v_lshl_add_u32 v12, v13, 4, v12
    v_add_u32 v4, s37, v12
    s_lshl_b32 s39, s38, 3
    v_xor_b32 v5, 64, v4
    v_add_u32 v5, s39, v5
    s_lshl_b32 s39, s38, 4
    v_add_u32 v6, s39, v4
    v_add_u32 v7, s39, v5
    v_lshlrev_b32 v12, 2, v10
    v_and_b32 v13, 15, v1
    v_xor_b32 v13, v13, v12
    s_lshl_b32 s39, s36, 3
    v_add_u32 v12, s39, v10
    v_mul_u32_u24 v14, 3840, v12
    v_lshl_add_u32 v14, v13, 4, v14
    s_lshl_b32 s39, s33, 8
    v_add_u32 v8, s39, v14
    v_add_u32 v9, 15360, v8
    s_mul_i32 s40, s33, 3
    s_add_u32 s40, s40, s32""")
    mod_small(k, 40, 10, 43, 58)
    k(f"""s_mul_i32 s44, s40, {64*3840}
    s_lshl_b32 s45, s40, 7
    s_lshl_b32 s42, s36, 12
    s_lshl_b32 s43, s36, 11
    s_add_u32 s43, s43, {WBASE}""")
    after_kernarg(k)
    k.srd(12, P_X, SZ)
    k.srd(8, P_WQKV, 640*3840)
    def iss_a(s, half):
        for i in (2*half, 2*half+1):
            vm.op(f"s_add_u32 m0, s42, {(s % 3)*16384 + i*1024}\ns_nop 0\nbuffer_load_dwordx4 v{4+i}, s[12:15], s45 offen lds", ("A", s) if i == 3 else None)
        if half: k("s_add_u32 s45, s45, 128\ns_cmp_eq_u32 s45, 1280\ns_cselect_b32 s45, 0, s45")
    def iss_w(j):
        for i in range(2):
            vm.op(f"s_add_u32 m0, s43, {(j % 4)*8192 + i*1024}\ns_nop 0\nbuffer_load_dwordx4 v{8+i}, s[8:11], s44 offen lds", ("W", j) if i == 1 else None)
        k(f"s_add_u32 s44, s44, {32*3840}\ns_cmp_eq_u32 s44, {640*3840}\ns_cselect_b32 s44, 0, s44")
    iss_a(0, 0); iss_a(0, 1); iss_w(0); iss_w(1); iss_a(1, 0); iss_a(1, 1); iss_w(2); iss_w(3); iss_a(2, 0); iss_a(2, 1)
    flags_srd(k)
    k.srd(16, P_WS, ST_SZ + CS_SZ, WS_ST)
    tag_setup(k, 42)
    k(f"""v_and_b32 v41, 31, v1
    v_lshlrev_b32 v40, 4, v41
    s_lshl_b32 s46, s36, 5
    v_add_lshl_u32 v41, v41, s46, 2
    s_lshl_b32 s46, s32, 2
    s_add_u32 s46, s46, s36
    s_lshl_b32 s46, s46, 9
    s_lshl_b32 s47, s33, 14
    s_lshl_b32 s68, s36, 8
    s_add_u32 s47, s47, s68
    s_add_u32 s47, s47, {ST_SZ}
    v_and_b32 v45, 15, v1
    v_lshlrev_b32 v46, 4, v45
    v_lshl_add_u32 v46, v10, 12, v46
    s_lshl_b32 s68, s36, 7
    v_lshl_add_u32 v45, v45, 3, s68""")
    gl = ["buffer_load_dwordx4 v[16:19], v40, s[16:19], s46 offen sc1"] + \
         [f"buffer_load_dwordx4 {vr(20+4*i,4)}, v46, s[16:19], s47 offen offset:{i*1024} sc1" for i in range(4)]
    JF = C("a1_jf", 10)
    for j in range(20):
        vm.wait(("A", j >> 1)); vm.wait(("W", j))
        k("s_barrier")
        if C("cyc") == 4 and j in (4, 8, 12, 16, 18): k.stamp({4: 3, 8: 4, 12: 5, 16: 6, 18: 7}[j], wait=False)
        if j >= 1 and j+3 < 20: iss_w(j+3)
        if j >= 2 and j//2+2 < 10: iss_a(j//2+2, j & 1)
        if j == 2: vm.op(tag_load(42), "tag")
        if j == 6:
            vm.wait("tag"); tag_take(k, 42, True)
        if j == JF:
            for g in gl: vm.op(g, "gr")
        if j == C("go_j", 14) and not C("go_a2") and not C("go_q"):
            lab = k.newlabel("a1g")
            k(f"s_cmp_lg_u32 s4, 5\ns_cbranch_scc1 {lab}")
            set_flag(k, f"s_lshl_b32 s78, s33, 4\ns_add_u32 s78, s78, s32\ns_add_u32 s78, s78, {FL_GO}", 48)
            k.label(lab)
        if j == C("a1_jc", 14):
            vm.wait("gr")
            top = k.newlabel("gr"); done = k.newlabel("grd")
            k(f"s_mov_b32 s79, {SPIN_MAX}\n{top}:")
            k("v_cmp_ne_u64 s[68:69], s[6:7], v[18:19]")
            for i in range(4):
                k(f"v_cmp_ne_u64 vcc, s[6:7], {vr(22+4*i,2)}\ns_nop 0\ns_or_b64 s[68:69], s[68:69], vcc")
            k(f"s_cbranch_scc0 {done}\ns_sleep 2")
            for g in gl: k(g)
            k(f"s_waitcnt vmcnt(0)\ns_sub_u32 s79, s79, 1\ns_cmp_lg_u32 s79, 0\ns_cbranch_scc1 {top}\n{done}:")
        if j == C("a1_jc", 14) + 1:
            k("""v_add_f32 v20, v20, v24
            v_add_f32 v21, v21, v25
            v_add_f32 v28, v28, v32
            v_add_f32 v29, v29, v33
            v_add_f32 v20, v20, v28
            v_add_f32 v21, v21, v29""")
            for sw in ("v_permlane16_swap_b32", "v_permlane32_swap_b32"):
                k(f"v_mov_b32 v22, v20\nv_mov_b32 v23, v21\ns_nop 1\n{sw} v20, v22\n{sw} v21, v23\ns_nop 1\nv_add_f32 v20, v20, v22\nv_add_f32 v21, v21, v23")
        if j == 16:
            k(f"ds_write_b32 v41, v16 offset:{STO}\nds_write_b32 v41, v17 offset:{STO+512}\nds_write_b64 v45, v[20:21] offset:{CSO}")
        if j == 17: k("s_waitcnt lgkmcnt(0)")
    k("s_barrier")
    k(f"s_cmp_lg_u32 s4, 4\ns_cbranch_scc1 {Lj}")
    set_flag(k, f"s_lshl_b32 s78, s33, 4\ns_add_u32 s78, s78, s32\ns_add_u32 s78, s78, {FL_QKV}", 40)
    k(f"s_branch {Lj}")

def a1_compute(k, Lj):
    Lv = k.newlabel("a1v")
    k(f"""s_and_b32 s36, s4, 1
    s_lshr_b32 s37, s4, 1
    v_and_b32 v3, 31, v1
    v_lshrrev_b32 v10, 5, v1
    s_lshl_b32 s38, s36, 6
    v_add_u32 v11, s38, v3
    v_lshlrev_b32 v11, 7, v11
    v_bfe_u32 v12, v1, 1, 3
    v_xor_b32 v12, v12, v10
    v_lshl_add_u32 v4, v12, 4, v11
    v_xor_b32 v5, 32, v4
    v_xor_b32 v6, 64, v4
    v_xor_b32 v7, 96, v4
    v_bfe_u32 v13, v1, 2, 2
    v_lshl_add_u32 v14, v10, 3, v13
    v_lshlrev_b32 v14, 8, v14
    v_bfe_u32 v15, v1, 4, 1
    v_lshl_add_u32 v14, v15, 5, v14
    v_and_b32 v15, 3, v1
    v_lshl_add_u32 v14, v15, 3, v14
    v_lshl_add_u32 v14, v13, 6, v14
    s_lshl_b32 s38, s37, 7
    v_xor_b32 v14, s38, v14
    v_add_u32 v8, {WBASE}, v14
    v_xor_b32 v9, 64, v8""")
    after_kernarg(k)
    flags_srd(k)
    ACC = 16; FR = 80
    def reads(n):
        if n >= 40: return []
        s, ks, j = n >> 2, n & 3, n >> 1
        f = FR + (n % 3)*16
        ao = (s % 3)*16384; wo = (j % 4)*8192 + (n & 1)*4096
        return [f"ds_read_b64_tr_b16 {vr(f+8,2)}, v8 offset:{wo}", f"ds_read_b64_tr_b16 {vr(f+10,2)}, v8 offset:{wo+1024}",
                f"ds_read_b128 {vr(f,4)}, v{4+ks} offset:{ao}", f"ds_read_b128 {vr(f+4,4)}, v{4+ks} offset:{ao+4096}",
                f"ds_read_b64_tr_b16 {vr(f+12,2)}, v9 offset:{wo}", f"ds_read_b64_tr_b16 {vr(f+14,2)}, v9 offset:{wo+1024}"]
    def loop(swap):
        k("s_barrier")
        k.stamp(1)
        if C("cyc") == 3 and STAMP[0]: k("s_memtime s[96:97]\ns_mov_b32 s98, 0\ns_waitcnt lgkmcnt(0)")
        for i in reads(0) + reads(1): k(i)
        for n in range(40):
            f = FR + (n % 3)*16
            rd = reads(n+2)
            if n % 2 == 0: k("s_waitcnt lgkmcnt(6)")
            for m, (q, b) in enumerate(((0, 0), (0, 1), (1, 1), (1, 0))):
                a_, b_ = f+8+4*q, f+4*b
                if swap: a_, b_ = b_, a_
                k(mfma(ACC + (2*q+b)*16, a_, b_, "0" if n == 0 else None))
                if n % 2 == 0:
                    if m == 2:
                        k("s_waitcnt lgkmcnt(0)")
                        if n < 38: k("s_barrier")
                    if m >= 2:
                        for i in rd[3*(m-2):3*(m-2)+3]: k(i)
                elif m < 2:
                    for i in rd[3*m:3*m+3]: k(i)
        k.stamp(2)
        if C("cyc") == 3 and STAMP[0]: k("s_memtime s[72:73]\ns_waitcnt lgkmcnt(0)\ns_sub_u32 s96, s72, s96")
    k(f"s_cmp_ge_u32 s33, 10\ns_cbranch_scc1 {Lv}")
    k.srd(16, P_WS, 2*SZ, WS_QP)
    k(f"""s_cmp_lt_u32 s33, 5
    s_cselect_b32 s47, {f32(QSCALE)}, 1.0
    s_lshl_b32 s38, s36, 6
    v_lshl_add_u32 v11, v3, 1, s38
    v_lshlrev_b32 v12, 2, v11
    s_lshl_b32 s38, s37, 8
    v_lshl_add_u32 v13, v10, 4, s38
    v_lshlrev_b32 v11, 3, v11
    s_lshl_b32 s39, s32, 10
    v_add_u32 v11, s39, v11
    v_lshl_add_u32 v11, v10, 14, v11
    s_lshl_b32 s40, s33, 19
    s_lshl_b32 s41, s37, 18
    s_add_u32 s40, s40, s41""")
    loop(False)
    k(f"ds_read_b64 v[4:5], v12 offset:{STO}\nds_read_b64 v[6:7], v12 offset:{STO+512}")
    for q in range(2):
        for j in range(4):
            k(f"ds_read_b128 {vr(FR+16*q+4*j,4)}, v13 offset:{CSO + q*128 + j*32}")
    k("s_waitcnt lgkmcnt(8)\nv_mul_f32 v6, s47, v6\nv_mul_f32 v7, s47, v7")
    for q in range(2):
        for j in range(4):
            k(f"s_waitcnt lgkmcnt({7 - (4*q+j)})")
            c = FR+16*q+4*j; d = 112 + 4*((4*q+j) % 4)
            for b in range(2):
                a = ACC + (2*q+b)*16 + 4*j
                if C("pk"):
                    for e in (0, 2): k(f"v_pk_fma_f32 {vr(a+e,2)}, v[4:5], {vr(c+e,2)}, {vr(a+e,2)} op_sel:[{b},0,0] op_sel_hi:[{b},1,1] neg_lo:[1,0,0] neg_hi:[1,0,0]")
                else:
                    for e in range(4): k(f"v_fma_f32 v{a+e}, -v{4+b}, v{c+e}, v{a+e}")
            for b in range(2):
                a = ACC + (2*q+b)*16 + 4*j
                if C("pk"):
                    for e in (0, 2): k(f"v_pk_mul_f32 {vr(a+e,2)}, {vr(a+e,2)}, v[6:7] op_sel:[0,{b}] op_sel_hi:[1,{b}]")
                else:
                    for e in range(4): k(f"v_mul_f32 v{a+e}, v{a+e}, v{6+b}")
            for b in range(2):
                a = ACC + (2*q+b)*16 + 4*j
                k(f"v_cvt_pk_bf16_f32 v{d+2*b}, v{a}, v{a+1}\nv_cvt_pk_bf16_f32 v{d+2*b+1}, v{a+2}, v{a+3}")
            k(f"s_add_u32 s41, s40, {(8*q+2*j)*16384}")
            k(f"buffer_store_dwordx4 {vr(d,4)}, v11, s[16:19], s41 offen sc1")
    k(f"s_waitcnt vmcnt(0)\ns_barrier\ns_branch {Lj}")
    k.label(Lv)
    k.srd(16, P_WS, SZ, WS_VI)
    k(f"""s_lshl_b32 s39, s37, 6
    v_add_u32 v12, s39, v3
    v_lshlrev_b32 v12, 2, v12
    s_lshl_b32 s40, s36, 8
    v_lshl_add_u32 v11, v10, 4, s40
    s_sub_u32 s38, s33, 10
    s_lshl_b32 s38, s38, 7
    s_add_u32 s38, s38, s39
    s_mov_b32 s41, {81920-320}""")
    for q in range(2):
        k(f"""v_add_u32 v112, s38, v3
        v_add_u32 v112, {32*q}, v112
        v_mul_u32_u24 v15, 3277, v112
        v_lshrrev_b32 v15, 16, v15
        v_mul_lo_u32 v15, v15, s41
        v_lshl_add_u32 v15, v112, 4, v15
        v_mul_u32_u24 v112, 320, v10
        v_add_u32 v{13+q}, v15, v112""")
    k("s_lshl_b32 s40, s32, 1\ns_add_u32 s40, s40, s36\ns_mul_i32 s40, s40, 2560")
    loop(True)
    k(f"ds_read_b32 v6, v12 offset:{CSO}\nds_read_b32 v7, v12 offset:{CSO+128}")
    for b in range(2):
        for j in range(4):
            k(f"ds_read_b128 {vr(FR+4*j,4)}, v11 offset:{STO + b*128 + j*32}")
            k(f"ds_read_b128 {vr(FR+16+4*j,4)}, v11 offset:{STO + 512 + b*128 + j*32}")
        k("s_waitcnt lgkmcnt(0)")
        if b == 0: k("s_nop 1")
        for q in range(2):
            a = ACC + (2*q+b)*16
            for g in range(2):
                d = 112 + 4*(2*q+g)
                if C("pk"):
                    for r in range(8*g, 8*g+8, 2): k(f"v_pk_fma_f32 {vr(a+r,2)}, {vr(FR+r,2)}, v[6:7], {vr(a+r,2)} op_sel:[0,{q},0] op_sel_hi:[1,{q},1] neg_lo:[1,0,0] neg_hi:[1,0,0]")
                    for r in range(8*g, 8*g+8, 2): k(f"v_pk_mul_f32 {vr(a+r,2)}, {vr(a+r,2)}, {vr(FR+16+r,2)}")
                else:
                    for r in range(8*g, 8*g+8): k(f"v_fma_f32 v{a+r}, -v{FR+r}, v{6+q}, v{a+r}")
                    for r in range(8*g, 8*g+8): k(f"v_mul_f32 v{a+r}, v{a+r}, v{FR+16+r}")
                for e in range(4): k(f"v_cvt_pk_bf16_f32 v{d+e}, v{a+8*g+2*e}, v{a+8*g+2*e+1}")
                k(f"buffer_store_dwordx4 {vr(d,4)}, v{13+q}, s[16:19], s40 offen offset:{b*1280 + g*640} sc1")
    k("s_waitcnt vmcnt(0)\ns_barrier")

def phase_f0(k):
    RS = 1312; LB = 2*24704; LC = LB + 8*RS
    k(A1_TILE.format(rb="s41", cb="s42"))
    k(f"""s_and_b32 s40, s34, 1
    s_lshl_b32 s40, s40, 2
    s_lshr_b32 s36, s34, 1
    s_add_u32 s40, s40, s36
    s_lshl_b32 s40, s40, 5
    s_add_u32 s40, s40, s35
    s_lshl_b32 s32, s40, 3
    s_add_u32 s32, s32, s4
    s_mul_i32 s33, s32, 1280
    v_lshlrev_b32 v3, 2, v1
    s_mul_i32 s38, s41, 40
    s_mul_i32 s39, s4, 5
    s_add_u32 s38, s38, s39
    s_mul_i32 s38, s38, 3840
    s_min_u32 s39, s42, 14
    s_lshl_b32 s39, s39, 8
    s_add_u32 s38, s38, s39""")
    after_kernarg(k)
    k.srd(8, P_X, SZ)
    for i in range(5):
        k(f"buffer_load_dword v{8+i}, v3, s[8:11], s33 offen offset:{i*256}")
    k.srd(20, P_WQKV, 640*3840)
    for i in range(5):
        k(f"buffer_load_dword v{48+i}, v3, s[20:23], s38 offen" + ("\ns_add_u32 s38, s38, 3840" if i < 4 else ""))
    def pf():
        k("s_lshl_b32 s43, s5, 3\ns_add_u32 s43, s43, s4\ns_mul_i32 s43, s43, 960")
        for j, p in enumerate((P_W1, P_W3)):
            k.srd(24, p, 640*3072)
            k(f"buffer_load_dwordx4 {vr(64+4*j,4)}, v2, s[24:27], s43 offen")
    if C("pf") == 1: pf()
    tag_setup(k, 44)
    lab = k.newlabel("tag")
    k(f"""s_or_b32 s7, s5, s4
    s_cmp_lg_u32 s7, 0
    s_cbranch_scc1 {lab}
    s_memrealtime s[76:77]
    s_waitcnt lgkmcnt(0)
    s_or_b32 s76, s76, 1
    v_mov_b32 v18, s76
    v_mov_b32 v19, s77
    s_mov_b64 exec, 1
    buffer_store_dwordx2 v[18:19], v46, s[72:75], 0 offen sc1
    s_mov_b64 exec, -1
    {lab}:""")
    flags_srd(k)
    k.srd(12, P_WS, SZ, WS_XF)
    k.srd(16, P_WS, ST_SZ + CS_SZ, WS_ST)
    k(f"""s_mul_i32 s34, s4, {RS}
    s_add_u32 s34, s34, {LB}
    v_add_u32 v4, s34, v3
    v_and_b32 v5, 7, v0
    v_lshrrev_b32 v6, 3, v0
    v_mul_u32_u24 v7, {RS}, v5
    v_lshl_add_u32 v7, v6, 4, v7
    v_add_u32 v7, {LB}, v7
    v_lshlrev_b32 v6, 9, v6
    v_lshl_add_u32 v6, v5, 4, v6
    s_lshr_b32 s35, s40, 2
    s_mul_i32 s35, s35, 40960
    s_and_b32 s36, s40, 3
    s_lshl_b32 s36, s36, 7
    s_add_u32 s35, s35, s36
    s_add_u32 s36, s35, 32768
    s_lshl_b32 s37, s32, 4
    v_lshlrev_b32 v47, 3, v0
    v_lshlrev_b32 v43, 3, v1
    s_lshl_b32 s38, s42, 4
    s_add_u32 s38, s38, s41
    s_lshl_b32 s38, s38, 10
    s_add_u32 s38, s38, {ST_SZ}""")
    X = 16
    for i in range(5):
        k(f"s_waitcnt vmcnt({9-i + (2 if C('pf') == 1 else 0)})")
        if i == 4:
            k(tag_load(44))
            if C("pf") == 2: pf()
        k(f"v_lshlrev_b32 v{X+2*i}, 16, v{8+i}\nv_and_b32 v{X+2*i+1}, 0xffff0000, v{8+i}")
    def reduce(v, t):
        for r in (8, 4, 2, 1):
            k(f"s_nop 1\nv_add_f32_dpp v{v}, v{v}, v{v} row_ror:{r} row_mask:0xf bank_mask:0xf")
        k(f"v_mov_b32 v{t}, v{v}\ns_nop 1\nv_permlane16_swap_b32 v{v}, v{t}\ns_nop 1\nv_add_f32 v{v}, v{v}, v{t}")
        k(f"v_mov_b32 v{t}, v{v}\ns_nop 1\nv_permlane32_swap_b32 v{v}, v{t}\ns_nop 1\nv_add_f32 v{v}, v{v}, v{t}")
    M, V, T = 28, 29, 30
    k(f"v_add_f32 v{M}, v{X}, v{X+1}\nv_add_f32 v{T}, v{X+2}, v{X+3}")
    for i in range(4, 10, 2):
        k(f"v_add_f32 v{M}, v{M}, v{X+i}\nv_add_f32 v{T}, v{T}, v{X+i+1}")
    k(f"v_add_f32 v{M}, v{M}, v{T}")
    reduce(M, T)
    k(f"v_mul_f32 v{M}, {f32(1/640)}, v{M}")
    for i in range(10): k(f"v_sub_f32 v{32+i}, v{X+i}, v{M}")
    k(f"v_mul_f32 v{V}, v32, v32\nv_mul_f32 v{T}, v33, v33")
    for i in range(2, 10, 2):
        k(f"v_fmac_f32 v{V}, v{32+i}, v{32+i}\nv_fmac_f32 v{T}, v{33+i}, v{33+i}")
    k(f"v_add_f32 v{V}, v{V}, v{T}")
    reduce(V, T)
    k(f"v_mul_f32 v{V}, {f32(1/640)}, v{V}")
    def rb(v): k(f"v_cvt_pk_bf16_f32 v{v}, v{v}, v{v}\nv_lshlrev_b32 v{v}, 16, v{v}")
    rb(M); rb(V)
    k(f"v_add_f32 v{V}, {f32(1e-5)}, v{V}"); rb(V)
    k(f"v_sqrt_f32 v{V}, v{V}\ns_nop 0"); rb(V)
    k(f"v_rcp_f32 v{V}, v{V}\ns_waitcnt vmcnt({2 if C('pf') == 2 else 0})")
    tag_take(k, 44, True)
    k(f"v_mov_b32 v{T}, s6\nv_mov_b32 v{T+1}, s7")
    k(f"s_mov_b64 exec, 1\nbuffer_store_dwordx4 {vr(M,4)}, v46, s[16:19], s37 offen sc1\ns_mov_b64 exec, -1")
    k("v_lshlrev_b32 v32, 16, v48\nv_and_b32 v33, 0xffff0000, v48")
    for i in range(1, 5):
        k(f"v_lshlrev_b32 v34, 16, v{48+i}\nv_and_b32 v35, 0xffff0000, v{48+i}\nv_add_f32 v32, v32, v34\nv_add_f32 v33, v33, v35")
    k(f"ds_write_b64 v47, v[32:33] offset:{LC}")
    for i in range(5):
        a, b = X+2*i, X+2*i+1
        k(f"v_sub_f32 v{a}, v{a}, v{M}\nv_sub_f32 v{b}, v{b}, v{M}")
        k(f"v_cvt_pk_bf16_f32 v{b}, v{a}, v{b}")
        k(f"v_lshlrev_b32 v{a}, 16, v{b}\nv_and_b32 v{b}, 0xffff0000, v{b}")
        k(f"v_mul_f32 v{a}, v{a}, v{V}\nv_mul_f32 v{b}, v{b}, v{V}")
        k(f"v_cvt_pk_bf16_f32 v{8+i}, v{a}, v{b}")
        k(f"ds_write_b32 v4, v{8+i} offset:{i*256}")
    k("s_waitcnt lgkmcnt(0)\ns_barrier")
    l1 = k.newlabel("f0w"); l2 = k.newlabel("f0c")
    k(f"ds_read_b128 v[8:11], v7\ns_cmp_lg_u32 s4, 2\ns_cbranch_scc1 {l2}")
    for i in range(8): k(f"ds_read_b64 {vr(48+2*i,2)}, v43 offset:{LC + i*512}")
    k("s_waitcnt lgkmcnt(0)")
    for st in (8, 4, 2):
        for e in range(st): k(f"v_add_f32 v{48+e}, v{48+e}, v{48+st+e}")
    k(f"v_mov_b32 v50, s6\nv_mov_b32 v51, s7\nbuffer_store_dwordx4 v[48:51], v2, s[16:19], s38 offen sc1\n{l2}:")
    k(f"""s_cmp_ge_u32 s4, 2
    s_cbranch_scc1 {l1}
    ds_read_b128 v[12:15], v7 offset:1024
    s_waitcnt lgkmcnt(0)
    buffer_store_dwordx4 v[12:15], v6, s[12:15], s36 offen sc1
    {l1}:
    s_waitcnt lgkmcnt(0)
    buffer_store_dwordx4 v[8:11], v6, s[12:15], s35 offen sc1""")
    if C("tlb"):
        lab = k.newlabel("f0t")
        k(f"s_cmp_lg_u32 s4, 3\ns_cbranch_scc1 {lab}\nv_lshlrev_b32 v64, {C('tlb_sh', 19)}, v1")
        for j, (p, n) in enumerate(((P_WS, WS_FL + FL_N*128), (P_OUT, SZ), (P_W2, 1536*1280), (P_WO, 640*1280))):
            k.srd(24, p, n)
            k(f"buffer_load_dword v{65+j}, v64, s[24:27], 0 offen")
        k.label(lab)
    lab = k.newlabel("f0p")
    k(f"s_waitcnt vmcnt(0)\ns_barrier\ns_cmp_lg_u32 s4, 0\ns_cbranch_scc1 {lab}")
    set_flag(k, f"s_add_u32 s78, s40, {FL_LN}", 8)
    k.label(lab)

def gemm2(k, vm, stages, ksteps, NB, acc, wbuf, R, wgroup, wread, aload, areg, AW, nst_total, zero_first,
          hook=None, lead=None):
    steps = [(s, ks) for s in stages for ks in range(ksteps)]
    wb = lambda n, nb: wbuf + ((n & 1) * NB + nb) * 4
    vm.wait(("W", stages[0]))
    k("s_barrier")
    for nb in range(NB):
        for i in wread(stages[0], 0, nb, wb(0, nb)): k(i)
    pending = []
    for n, (s, ks) in enumerate(steps):
        last = (n == len(steps)-1)
        if hook: hook(n)
        if ks == ksteps-1 and not last:
            assert not pending
            vm.wait(("W", s+1))
            k("s_barrier")
            if s+R-1 < nst_total and ("W", s+R-1) not in vm.tags:
                pending = [(u, i) for i, u in enumerate(wgroup(s+R-1))]
                plast = len(pending)-1; ps = s+R-1
        vm.wait(("A", s, ks))
        for nb in range(NB):
            k(f"s_waitcnt lgkmcnt({2*(NB-1-nb) if last else 2*(NB-1)})")
            k(mfma(acc+16*nb, wb(n, nb), areg(n), "0" if (n == 0 and zero_first) else None))
            if not last:
                s2, ks2 = steps[n+1]
                for i in wread(s2, ks2, nb, wb(n+1, nb)): k(i)
            if pending and nb != NB-1:
                u, i = pending.pop(0)
                vm.op(u, ("W", ps) if i == plast else None)
        w = lead(n) if lead else AW
        for m in range(n+1, min(n+w+1, len(steps))):
            s2, ks2 = steps[m]
            if ("A", s2, ks2) not in vm.tags:
                vm.op(aload(s2, ks2, areg(m)), ("A", s2, ks2))
    assert not pending

def phase_f1(k):
    R = 3; UOFF = 12288 + 128; SLOT = 24704
    vm = VM(k)
    k("""s_and_b32 s34, s5, 7
    s_lshr_b32 s35, s5, 3
    s_and_b32 s36, s34, 1
    s_lshl_b32 s36, s36, 2
    s_and_b32 s37, s35, 3
    s_add_u32 s32, s36, s37
    s_lshr_b32 s36, s34, 1
    s_lshl_b32 s36, s36, 3
    s_lshr_b32 s37, s35, 2
    s_add_u32 s33, s36, s37""")
    k(f"""s_cmp_lt_u32 s4, 4
    s_cselect_b32 s8, s{P_W1}, s{P_W3}
    s_cselect_b32 s9, s{P_W1+1}, s{P_W3+1}
    s_cselect_b32 s42, 0, {UOFF}
    s_mov_b32 s10, {640*3072}
    s_mov_b32 s11, 0x00020000
    s_and_b32 s36, s4, 3
    s_mul_i32 s37, s36, 3072
    s_add_u32 s42, s42, s37
    s_lshl_b32 s36, s36, 5
    s_mul_i32 s37, s33, 96""")
    if C("diag_x"): k.srd(12, P_X, SZ)
    else: k.srd(12, P_WS, SZ, WS_XF)
    k.srd(16, P_WS, HF_SZ, WS_HF)
    for i in range(3):
        k(f"""v_add_u32 v3, {64*i}, v1
        v_mul_u32_u24 v8, 10923, v3
        v_lshrrev_b32 v8, 16, v8
        v_mul_u32_u24 v9, 6, v8
        v_sub_u32 v9, v3, v9
        v_add_u32 v8, s36, v8
        v_mul_u32_u24 v8, 3072, v8
        v_lshl_add_u32 v8, v9, 4, v8
        v_add_u32 v{4+i}, s37, v8""")
    k(f"""v_lshrrev_b32 v12, 5, v1
    v_bfe_u32 v13, v1, 2, 2
    v_lshl_add_u32 v14, v12, 3, v13
    v_mul_u32_u24 v14, 96, v14
    v_bfe_u32 v15, v1, 4, 1
    v_mul_u32_u24 v15, {UOFF}, v15
    v_add_u32 v14, v14, v15
    v_and_b32 v15, 3, v1
    v_lshl_add_u32 v8, v15, 3, v14
    v_add_u32 v3, 4096, v2""")
    k("s_add_u32 s40, s32, s33")
    mod_small(k, 40, 5, 43, 38)
    k(f"""s_lshl_b32 s46, s32, 3
    s_add_u32 s46, s46, s4
    s_mul_i32 s41, s46, 40960
    s_mul_i32 s44, s40, {128*3072}
    s_lshl_b32 s45, s40, 13
    s_add_u32 s45, s45, s41
    s_add_u32 s47, s41, 40960""")
    ACC, WB, AB = 16, 64, 88
    def wgroup(s):
        u = []
        for i in range(3):
            post = f"\ns_add_u32 s44, s44, {128*3072}\ns_cmp_eq_u32 s44, {640*3072}\ns_cselect_b32 s44, 0, s44" if i == 2 else ""
            u.append(f"s_add_u32 m0, s42, {(s % R)*SLOT + i*1024}\ns_nop 0\nbuffer_load_dwordx4 v{4+i}, s[8:11], s44 offen lds" + post)
        return u
    def wread(s, ks, nb, dst):
        o = (s % R)*SLOT + ks*16*96 + nb*32
        return [f"ds_read_b64_tr_b16 {vr(dst,2)}, v8 offset:{o}", f"ds_read_b64_tr_b16 {vr(dst+2,2)}, v8 offset:{o+4*96}"]
    def aload(s, ks, dst):
        post = "\ns_add_u32 s45, s45, 8192\ns_cmp_eq_u32 s45, s47\ns_cselect_b32 s45, s41, s45" if ks == 7 else ""
        return f"buffer_load_dwordx4 {vr(dst,4)}, v{3 if ks >= 4 else 2}, s[12:15], s45 offen offset:{(ks%4)*1024} sc1" + post
    AW = C("f1_aw", 8)
    areg = lambda n: AB + 4*(n % AW)
    def wpro():
        for s in range(R-1):
            g = wgroup(s)
            for i, u in enumerate(g): vm.op(u, ("W", s) if i == len(g)-1 else None)
    def apro():
        for ks in range(AW): vm.op(aload(0, ks, areg(ks)), ("A", 0, ks))
    def go_poll():
        polln(k, f"s_add_u32 s78, s5, {FL_GO}" if C("go_a2") else f"""s_and_b32 s68, s34, 1
        s_lshl_b32 s68, s68, 3
        s_and_b32 s69, s35, 7
        s_add_u32 s68, s68, s69
        s_lshr_b32 s69, s34, 1
        s_lshl_b32 s69, s69, 2
        s_lshr_b32 s70, s35, 3
        s_add_u32 s69, s69, s70
        s_min_u32 s69, s69, 14
        s_lshl_b32 s78, s69, 4
        s_add_u32 s78, s78, s68
        s_add_u32 s78, s78, {FL_QKV if C("go_q") else FL_GO}""", 1, 10, sleep=C("go_sleep", 4))
    early = C("f1_early", 0)
    if early >= 1: wpro()
    lab = k.newlabel("f1p")
    k(f"s_cmp_lg_u32 s4, 0\ns_cbranch_scc1 {lab}")
    polln(k, f"s_lshl_b32 s78, s32, 5\ns_add_u32 s78, s78, {FL_LN}", 32, 10, sleep=4)
    if early < 2 and C("f1_hold", 1): go_poll()
    k(f"{lab}:\ns_barrier")
    if early < 1: wpro()
    apro()
    if early >= 2 and C("f1_hold", 1):
        lab = k.newlabel("f1g")
        k(f"s_cmp_lg_u32 s4, 0\ns_cbranch_scc1 {lab}")
        go_poll()
        k.label(lab)
    k.stamp(2)
    def hook(n):
        if n == C("f1_sw", 99): k(f"s_setprio {C('prio_f1b', 1)}")
    gemm2(k, vm, list(range(5)), 8, 3, ACC, WB, R, wgroup, wread, aload, areg, AW, 5, True, hook, lambda n: C("f1_lead", 8) if n < C("f1_leadn", 24) else AW)
    k.stamp(3)
    k(f"""s_mul_i32 s36, s46, 96
    s_mul_i32 s37, s33, 3
    s_add_u32 s36, s36, s37
    s_lshl_b32 s36, s36, 10
    s_mov_b32 s38, {f32(-LOG2E)}
    s_setprio {C('prio_f1e', 3)}
    s_nop 7""")
    for nb in range(3):
        a = ACC + 16*nb; t = WB + 8*(nb % 2); d = AB + 4*nb
        for e in range(8): k(f"v_mul_f32 v{t+e}, s38, v{a+e}")
        for e in range(8): k(f"v_exp_f32 v{t+e}, v{t+e}")
        for e in range(8): k(f"v_mul_f32 v{a+e}, v{a+e}, v{a+8+e}")
        for e in range(8): k(f"v_add_f32 v{t+e}, 1.0, v{t+e}")
        for e in range(8): k(f"v_rcp_f32 v{t+e}, v{t+e}")
        k("s_nop 0")
        for e in range(8): k(f"v_mul_f32 v{a+e}, v{a+e}, v{t+e}")
        for e in range(4): k(f"v_cvt_pk_bf16_f32 v{d+e}, v{a+2*e}, v{a+2*e+1}")
        k(f"buffer_store_dwordx4 {vr(d,4)}, v2, s[16:19], s36 offen offset:{nb*1024} sc1")
    k(f"s_setprio {C('prio_f2', 2)}")
    if True:
        lab = k.newlabel("f1f")
        k(f"s_waitcnt vmcnt(0)\ns_barrier\ns_cmp_lg_u32 s4, 0\ns_cbranch_scc1 {lab}")
        set_flag(k, f"s_lshl_b32 s78, s32, 5\ns_add_u32 s78, s78, s33\ns_add_u32 s78, s78, {FL_H}", 10)
        k.label(lab)

def mfma16(d, a, b, c=None):
    cs = vr(d, 4) if c is None else c
    return f"v_mfma_f32_16x16x32_bf16 {vr(d,4)}, {vr(a,4)}, {vr(b,4)}, {cs}"

def phase_f2(k, endlab):
    R = 4; SLOT = 20480; NST = 17
    vm = VM(k)
    k("""s_and_b32 s34, s5, 7
    s_lshr_b32 s35, s5, 3
    s_lshl_b32 s36, s34, 2
    s_and_b32 s37, s35, 3
    s_add_u32 s32, s36, s37
    s_lshr_b32 s33, s35, 2
    s_and_b32 s37, s4, 1
    s_lshr_b32 s38, s4, 1
    s_mul_i32 s39, s4, 160
    s_mul_i32 s43, s33, 160""")
    k.srd(8, P_W2, 1536*1280)
    k.srd(16, P_WO, 640*1280)
    k.srd(12, P_WS, HF_SZ, WS_HF)
    k.srd(24, P_WS, SZ, WS_OF)
    k.srd(20, P_X, SZ)
    ACC, WB, AB, XR = 16, 56, 76, 116
    for i in range(3):
        k(f"""v_add_u32 v3, s39, v1
        v_add_u32 v3, {64*i}, v3
        v_mul_u32_u24 v{7+i}, 6554, v3
        v_lshrrev_b32 v{7+i}, 16, v{7+i}
        v_mul_u32_u24 v13, 10, v{7+i}
        v_sub_u32 v13, v3, v13
        v_lshl_add_u32 v{10+i}, v13, 4, s43
        s_movk_i32 s36, 1280
        v_mad_u32_u24 v{4+i}, v{7+i}, s36, v{10+i}""")
    def dma_addr(mode, i):
        if mode == 1: c = f"v_lshrrev_b32 v3, 4, v{7+i}\nv_lshl_add_u32 v3, v3, 2, v{7+i}\n"
        else: c = f"v_lshrrev_b32 v3, 2, v{7+i}\nv_lshl_add_u32 v3, v3, 4, v{7+i}\nv_add_u32 v3, 16, v3\n"
        return c + f"v_mad_u32_u24 v{4+i}, v3, s36, v{10+i}"
    k(f"""v_lshrrev_b32 v3, 5, v1
    v_lshlrev_b32 v13, 4, v3
    v_bfe_u32 v14, v1, 2, 3
    v_add_u32 v13, v13, v14
    s_lshl_b32 s44, s38, 5
    v_add_u32 v13, s44, v13
    v_mul_u32_u24 v13, 160, v13
    v_and_b32 v14, 3, v1
    v_lshl_add_u32 v13, v14, 3, v13
    v_add_u32 v14, {3*SLOT}, v13
    v_lshrrev_b32 v3, 4, v1
    v_lshlrev_b32 v3, 9, v3
    v_and_b32 v15, 15, v1
    v_lshl_add_u32 v15, v15, 4, v3""")
    k("s_and_b32 s40, s32, 3\ns_mul_i32 s40, s40, 3\ns_mul_i32 s44, s33, 5\ns_add_u32 s40, s40, s44")
    mod_small(k, 40, 12, 44, 44)
    k(f"""s_lshl_b32 s46, s32, 1
    s_add_u32 s46, s46, s37
    s_mul_i32 s41, s46, 98304
    s_lshl_b32 s44, s38, 11
    s_add_u32 s41, s41, s44
    s_mul_i32 s47, s46, 40960
    s_add_u32 s47, s47, s44
    s_mul_i32 s42, s4, 2560
    s_mul_i32 s44, s40, {128*1280}
    s_lshl_b32 s45, s40, 13
    s_add_u32 s45, s45, s41
    s_add_u32 s68, s41, 98304""")
    def wgroup(s):
        u = []
        for i in range(3):
            pre = post = ""
            if s < 12:
                ld = f"buffer_load_dwordx4 v{4+i}, s[8:11], s44 offen lds"
                if i == 2: post = f"\ns_add_u32 s44, s44, {128*1280}\ns_cmp_eq_u32 s44, {1536*1280}\ns_cselect_b32 s44, 0, s44"
            elif s < 16:
                if s == 12: pre = dma_addr(1, i) + "\n"
                if i == 0: pre += f"s_mov_b32 s44, {(s-12)*160*1280}\n"
                ld = f"buffer_load_dwordx4 v{4+i}, s[16:19], s44 offen lds"
            else:
                ld = f"buffer_load_dwordx4 v{4+i}, s[16:19], 0 offen lds"
            if i == 2: ld = "s_mov_b32 exec_hi, 0\n" + ld + "\ns_mov_b32 exec_hi, -1"
            else: ld = "s_nop 0\n" + ld
            u.append(pre + f"s_add_u32 m0, s42, {(s % R)*SLOT + i*1024}\n" + ld + post)
        return u
    def wread(s, j):
        slot = s % R
        va = 14 if slot == 3 else 13
        o = (slot % 3)*SLOT*(slot != 3) + j*32
        return [f"ds_read_b64_tr_b16 {vr(WB+4*j,2)}, v{va} offset:{o}", f"ds_read_b64_tr_b16 {vr(WB+4*j+2,2)}, v{va} offset:{o+1280}"]
    AW = 5
    areg = lambda s, b: AB + 8*(s % AW) + 4*b
    def issue_a(s):
        for b in range(2):
            if s < 12:
                post = "\ns_add_u32 s45, s45, 8192\ns_cmp_eq_u32 s45, s68\ns_cselect_b32 s45, s41, s45" if b else ""
                vm.op(f"buffer_load_dwordx4 {vr(areg(s,b),4)}, v15, s[12:15], s45 offen offset:{b*256} sc1" + post, ("A", s))
            else:
                post = "\ns_add_u32 s47, s47, 8192" if b else ""
                vm.op(f"buffer_load_dwordx4 {vr(areg(s,b),4)}, v15, s[24:27], s47 offen offset:{b*256} sc1" + post, ("A", s))
    def issue_w(s):
        for u in wgroup(s): vm.op(u, ("W", s))
    def run(stages, zero_first, pre_read):
        if pre_read:
            vm.wait(("W", stages[0])); k("s_barrier")
            for j in range(5):
                for i in wread(stages[0], j): k(i)
        for n, s in enumerate(stages):
            more = s+1 < NST
            pending = []
            if more:
                vm.wait(("W", s+1)); k("s_barrier")
                if s+R-1 < NST and ("W", s+R-1) not in vm.tags: pending = wgroup(s+R-1)
            vm.wait(("A", s))
            for j in range(5):
                k(f"s_waitcnt lgkmcnt({8 if more else 8-2*j})")
                for b in range(2):
                    k(mfma16(ACC + (5*b+j)*4, WB+4*j, areg(s, b), "0" if (zero_first and n == 0) else None))
                if more:
                    for i in wread(s+1, j): k(i)
                if pending: vm.op(pending.pop(0), ("W", s+R-1))
            if s+AW <= stages[-1]: issue_a(s+AW)
    for s in range(R-1): issue_w(s)
    k("s_lshl_b32 s69, s32, 6")
    for i in range(2):
        k(f"""v_add_u32 v3, {512*i}, v0
        v_mul_u32_u24 v{124+i}, 6554, v3
        v_lshrrev_b32 v{124+i}, 16, v{124+i}
        v_mul_u32_u24 v{126+i}, 10, v{124+i}
        v_sub_u32 v{126+i}, v3, v{126+i}
        v_add_u32 v3, s69, v{124+i}
        v_mul_u32_u24 v3, 1280, v3
        v_lshl_add_u32 v3, v{126+i}, 4, v3""")
        vm.op(f"buffer_load_dwordx4 {vr(XR+4*i,4)}, v3, s[20:23], s43 offen", "x")
    lab = k.newlabel("f2p")
    k(f"s_cmp_lg_u32 s4, 0\ns_cbranch_scc1 {lab}")
    polln(k, f"s_lshr_b32 s78, s32, 2\ns_lshl_b32 s78, s78, 5\ns_add_u32 s78, s78, {FL_H}", 32, AB, sleep=4)
    k(f"{lab}:\ns_barrier")
    k.stamp(4)
    for s in range(AW): issue_a(s)
    run(list(range(12)), True, True)
    k("s_waitcnt lgkmcnt(0)\ns_barrier")
    issue_w(15)
    for i in range(3): k(dma_addr(2, i))
    issue_w(16)
    k(f"""s_mul_i32 s44, s4, 10240
    v_and_b32 v3, 48, v1
    v_lshrrev_b32 v9, 5, v1
    v_add_u32 v9, v9, v1""")
    for j in range(5):
        k(f"""v_add_u32 v{4+j}, {2*j}, v9
        v_and_or_b32 v{4+j}, v{4+j}, 15, v3
        v_lshl_add_u32 v{4+j}, v{4+j}, 4, s44""")
    for i in range(2):
        k(f"""v_lshrrev_b32 v3, 4, v{124+i}
        v_mul_u32_u24 v3, 5120, v3
        v_lshl_add_u32 v3, v{126+i}, 9, v3
        v_add_u32 v{9+i}, v{124+i}, v{126+i}
        v_and_b32 v{9+i}, 15, v{9+i}
        v_lshl_add_u32 v{9+i}, v{9+i}, 4, v3
        v_add_u32 v3, s69, v{124+i}
        v_mul_u32_u24 v3, 1280, v3
        v_lshl_add_u32 v{11+i}, v{126+i}, 4, v3""")
    k.srd(8, P_OUT, SZ)
    k.stamp(5)
    lab = k.newlabel("f2q")
    k(f"s_cmp_lg_u32 s4, 0\ns_cbranch_scc1 {lab}")
    polln(k, f"s_lshr_b32 s78, s32, 2\ns_lshl_b32 s78, s78, 5\ns_add_u32 s78, s78, {FL_O}", 32, AB, sleep=2)
    k(f"{lab}:\ns_waitcnt vmcnt(0)\ns_barrier\ns_setprio {C('prio_tail', 3)}")
    vm.drained()
    k.stamp(6)
    for s in range(12, 17): issue_a(s)
    for s in range(12, 17):
        more = s < 16
        vm.wait(("A", s))
        for j in range(5):
            k(f"s_waitcnt lgkmcnt({8 if more else 8-2*j})")
            for b in range(2): k(mfma16(ACC + (5*b+j)*4, WB+4*j, areg(s, b)))
            if more:
                for i in wread(s+1, j): k(i)
    k("s_barrier\ns_nop 4")
    for j in range(5):
        for b in range(2):
            k(f"ds_write_b128 v{4+j}, {vr(ACC+(5*b+j)*4,4)} offset:{(5*b+j)*1024}")
    k("s_waitcnt lgkmcnt(0)\ns_barrier")
    lab = k.newlabel("f2e"); lab2 = k.newlabel("f2f")
    RB = 16
    def rd(i):
        for q in range(4):
            for h in range(2):
                if i == 1 and q == 3: k("s_waitcnt lgkmcnt(13)")
                k(f"ds_read_b128 {vr(RB + 32*i + 8*q + 4*h, 4)}, v{9+i} offset:{q*20480 + h*256}")
    def fin(i):
        b = RB + 32*i; x = XR + 4*i; t = 80 + 8*i
        for e in range(4): k(f"v_lshlrev_b32 v{t+2*e}, 16, v{x+e}\nv_and_b32 v{t+2*e+1}, 0xffff0000, v{x+e}")
        k("s_waitcnt lgkmcnt(0)")
        for e in range(0, 8, 2): k(f"v_pk_add_f32 {vr(b+e,2)}, {vr(b+e,2)}, {vr(b+8+e,2)}\nv_pk_add_f32 {vr(b+16+e,2)}, {vr(b+16+e,2)}, {vr(b+24+e,2)}")
        for e in range(0, 8, 2): k(f"v_pk_add_f32 {vr(b+e,2)}, {vr(b+e,2)}, {vr(t+e,2)}")
        for e in range(0, 8, 2): k(f"v_pk_add_f32 {vr(b+e,2)}, {vr(b+e,2)}, {vr(b+16+e,2)}")
        for e in range(4): k(f"v_cvt_pk_bf16_f32 v{b+8+e}, v{b+2*e}, v{b+2*e+1}")
        k(f"buffer_store_dwordx4 {vr(b+8,4)}, v{11+i}, s[8:11], s43 offen{' sc1' if C('out_sc1') else ''}")
    rd(0)
    k(f"s_cmp_ge_u32 s4, 2\ns_cbranch_scc1 {lab}")
    rd(1); fin(1)
    k.label(lab)
    fin(0)

def phase_a2(k, force_fallback=False):
    SLOT = 26624; VOFF = 10240
    Lchk, Lchkr, Lloop, Lfin, Lslow, Lsl, Lend = [k.newlabel(x) for x in ("atc", "atcr", "atl", "atf", "ats", "atsl", "ate")]
    k("""s_and_b32 s34, s5, 7
    s_lshr_b32 s35, s5, 3
    s_lshl_b32 s32, s34, 2
    s_lshr_b32 s34, s35, 3
    s_add_u32 s32, s32, s34
    s_and_b32 s33, s35, 7""")
    Q1, Q2 = 16, 20
    K1, K2 = 24, 22
    V0, V1 = 28, 32
    P = 36; T = 44
    CC, O = 48, 64
    S = 80; U = 96
    k("v_and_b32 v3, 31, v1\nv_lshrrev_b32 v4, 5, v1\nv_mov_b32 v15, 0\nv_mov_b32 v100, 0\ns_mov_b32 s3, 0")
    lab = k.newlabel("a2p"); lab2 = k.newlabel("a2q")
    k(f"s_cmp_lg_u32 s4, 4\ns_cbranch_scc1 {lab}")
    get_tag(k, U)
    k(f"""s_mov_b32 s3, 1
    s_mul_i32 s76, s32, 20
    s_add_u32 s77, s76, 19
    s_lshr_b32 s76, s76, 7
    s_lshr_b32 s77, s77, 7
    s_sub_u32 s77, s77, s76
    s_lshl_b32 s78, s33, 1
    v_bfe_u32 v{U+4}, v1, 4, 1
    v_mul_u32_u24 v{U+4}, s77, v{U+4}
    v_add_u32 v{U+4}, s76, v{U+4}
    v_lshlrev_b32 v{U+4}, 4, v{U+4}
    v_add_u32 v{U}, s78, v1
    v_and_b32 v{U+1}, 15, v{U}
    v_mul_u32_u24 v15, 80, v4
    v_add3_u32 v15, v15, v{U+4}, v{U+1}
    v_add_u32 v15, {FL_QKV + 80}, v15
    v_lshlrev_b32 v15, 7, v15
    v_add_u32 v{U}, 12, v{U}
    v_and_b32 v{U}, 15, v{U}
    v_add_u32 v{U}, v{U}, v{U+4}
    v_add_u32 v{U}, {FL_QKV}, v{U}
    v_mov_b32 v{U+4}, v15
    s_mov_b64 exec, 0x00300030
    v_lshlrev_b32 v{U+4}, 7, v{U}
    s_mov_b64 exec, -1
    {lab}:""")
    k("v_mul_u32_u24 v5, 320, v4\nv_lshl_add_u32 v5, v3, 4, v5")
    k(f"""v_lshlrev_b32 v6, 12, v4
    v_lshl_add_u32 v6, v3, 3, v6
    v_add_u32 v7, 256, v6
    v_add_u32 v10, {VOFF}, v2
    s_lshl_b32 s37, s33, 3
    s_add_u32 s37, s37, s4
    s_lshl_b32 s38, s37, 5
    v_add_u32 v11, s38, v3
    v_lshlrev_b32 v11, 3, v11
    v_mov_b32 v12, v11
    v_lshl_add_u32 v11, v4, 15, v11
    s_mul_i32 s39, s32, 81920
    s_mov_b32 s68, 0x000fffff
    s_mov_b32 s69, 0x000fffff
    s_mov_b32 s70, -1
    s_mov_b32 s71, 0""")
    k.srd(8, P_WS, SZ, WS_QP)
    k.srd(12, P_WS, SZ, WS_KP)
    k.srd(16, P_WS, SZ, WS_VI)
    k.srd(20, P_WS, SZ, WS_OF)
    k(f"""s_lshr_b32 s40, s4, 1
    s_lshl_b32 s40, s40, 14
    s_and_b32 s44, s4, 1
    s_lshl_b32 s44, s44, 10
    s_add_u32 s40, s40, s44
    s_add_u32 s40, s40, s39
    s_lshl_b32 s45, s4, 8
    s_add_u32 s41, s45, s39
    s_add_u32 s41, s41, 65536
    s_add_u32 s45, s45, 8192
    s_mul_i32 s42, s4, 1280
    s_add_u32 s42, s42, s39
    s_lshl_b32 s44, s4, 10
    s_lshl_b32 s46, s4, 11
    s_add_u32 s46, s46, {VOFF}
    s_mov_b32 s24, s33
    s_mov_b32 s43, 0""")
    NEXT = "s_lshl_b32 s26, s24, 11\ns_add_u32 s25, s26, s40\ns_add_u32 s26, s26, s41\ns_mul_i32 s27, s24, 10240\ns_add_u32 s27, s27, s42\ns_add_u32 s24, s24, 1\ns_and_b32 s24, s24, 7"
    ADV = f"s_add_u32 s43, s43, {SLOT}\ns_cmp_eq_u32 s43, {3*SLOT}\ns_cselect_b32 s43, 0, s43"
    du = ["s_add_u32 m0, s43, s44\ns_nop 0\nbuffer_load_dwordx4 v2, s[12:15], s25 offen sc1 lds",
          "s_add_u32 m0, s43, s45\ns_mov_b64 exec, 0xffff\nbuffer_load_dwordx4 v2, s[12:15], s26 offen sc1 lds\ns_mov_b64 exec, -1",
          "s_add_u32 m0, s43, s46\ns_mov_b64 exec, s[68:69]\nbuffer_load_dwordx4 v5, s[16:19], s27 offen sc1 lds\ns_mov_b64 exec, -1",
          "s_add_u32 m0, m0, 384\ns_mov_b64 exec, s[68:69]\nbuffer_load_dwordx4 v5, s[16:19], s27 offen offset:640 sc1 lds\ns_mov_b64 exec, -1"]
    k(NEXT)
    k(f"""v_cmp_eq_u32 vcc, 20, v3
    v_cmp_eq_u32 s[34:35], 24, v3
    v_mov_b32 v13, 0x3f803f80
    s_or_b64 vcc, vcc, s[34:35]
    s_nop 1
    v_cndmask_b32 v{T}, 0, v13, vcc""")
    for e in range(1, 4): k(f"v_mov_b32 v{T+e}, v{T}")
    k("v_add_u32 v13, s46, v2\ns_not_b64 exec, s[68:69]")
    for slot in range(3):
        for i in range(2):
            k(f"ds_write_b128 v13, {vr(T,4)} offset:{slot*SLOT + i*1024}")
    k("s_mov_b64 exec, -1")
    for r in list(range(O, O+16)) + [Q2, Q2+1]: k(f"v_mov_b32 v{r}, 0")
    k("s_add_u32 s34, s39, 16384\ns_add_u32 s35, s39, 65536")
    k.stamp(3)
    k(f"s_cmp_lg_u32 s4, 4\ns_cbranch_scc1 {lab2}\ns_mov_b32 exec_lo, 0x003f003f\ns_mov_b32 exec_hi, 0x000f000f")
    poll(k, U+4, "0", U, sleep=1)
    k(f"{lab2}:\ns_barrier")
    k.stamp(4)
    k(f"buffer_load_dwordx2 {vr(Q1,2)}, v11, s[8:11], s39 offen sc1")
    k(f"buffer_load_dwordx2 {vr(Q1+2,2)}, v11, s[8:11], s34 offen sc1")
    k(f"s_mov_b64 exec, s[70:71]\nbuffer_load_dwordx2 {vr(Q2,2)}, v12, s[8:11], s35 offen sc1\ns_mov_b64 exec, -1")
    for u in du: k(u)
    k(NEXT); k(ADV)
    for u in du: k(u)
    if C("go_a2"):
        lab = k.newlabel("a2g")
        k(f"s_cmp_lg_u32 s4, 4\ns_cbranch_scc1 {lab}")
        set_flag(k, f"s_add_u32 s78, s5, {FL_GO}", U+6)
        k.label(lab)
    k("s_waitcnt vmcnt(4) lgkmcnt(0)\ns_barrier")
    def k1read(t):
        tt = t % 8; va = 6 + (tt & 1); a = tt >> 1
        return f"ds_read2st64_b64 {vr(K1,4)}, v{va} offset0:{a} offset1:{a+4}"
    def k2read(t):
        tt = t % 8; va = 6 + (tt & 1); a = tt >> 1
        return f"ds_read_b64 {vr(K2,2)}, v{va} offset:{8192 + a*512}"
    def vread(t, g):
        va = 10
        return f"ds_read_b128 {vr(V1 if g else V0,4)}, v{va} offset:{(t%8)*2048 + g*1024}"
    k(k1read(0)); k(k2read(0))
    k("s_waitcnt lgkmcnt(0)")
    k(mfma(S, K1, Q1, "0")); k(mfma8(S, K2, Q2))
    k(k1read(1)); k(k2read(1)); k(vread(0, 0)); k(vread(0, 1))
    k(f"s_mov_b32 s47, 0\ns_mov_b32 s76, {SLOT}\ns_mov_b32 s77, {(-2*SLOT) & 0xffffffff}\ns_nop 7")
    k(f"v_max3_f32 v{T}, v{S}, v{S+1}, v{S+2}\nv_max3_f32 v{T+1}, v{S+3}, v{S+4}, v{S+5}")
    k(f"v_max3_f32 v{T}, v{T}, v{S+6}, v{S+7}\nv_max3_f32 v{T+1}, v{T+1}, v{S+8}, v{S+9}")
    k(f"v_max3_f32 v{T}, v{T}, v{S+10}, v{S+11}\nv_max3_f32 v{T+1}, v{T+1}, v{S+12}, v{S+13}")
    k(f"v_max3_f32 v{T}, v{T}, v{S+14}, v{S+15}\nv_max_f32 v{T}, v{T}, v{T+1}")
    k(f"v_mov_b32 v{T+1}, v{T}\ns_nop 1\nv_permlane32_swap_b32 v{T}, v{T+1}\ns_nop 1\nv_max_f32 v{T}, v{T}, v{T+1}")
    for e in range(16): k(f"v_sub_f32 v{CC+e}, 0, v{T}")
    for e in range(16): k(f"v_sub_f32 v{S+e}, v{S+e}, v{T}")
    lab = k.newlabel("a2r")
    k(f"s_cmp_lg_u32 s4, 4\ns_cbranch_scc1 {lab}\nbuffer_load_dwordx2 {vr(U,2)}, v15, s[28:31], 0 offen sc1\n{lab}:")
    plo, pmid, phi = C("pp_lo", 0), C("pp_mid", 1), C("pp_hi", 3)
    k(f"s_setprio {plo}")
    k.stamp(5)
    if C("cyc") in (1, 2) and STAMP[0]: k("s_memtime s[82:83]\ns_waitcnt lgkmcnt(0)\ns_mov_b32 s98, 0\ns_mov_b32 s99, 0")
    TB = C("a2_tb", 4)
    LY = k.newlabel("atY"); Lout = k.newlabel("ato")
    nx = NEXT.split("\n"); adv = ADV.split("\n")
    def body(Y, top):
        k(".p2align 6")
        k.label(top)
        for t in range(8):
            for i in range(4):
                for e in range(4):
                    k(f"v_exp_f32 v{S+4*i+e}, v{S+4*i+e}")
                    if i == 0 and e == 0: k(f"s_setprio {pmid}")
                k(f"v_cvt_pk_bf16_f32 v{P+2*i}, v{S+4*i}, v{S+4*i+1}")
                k(f"v_cvt_pk_bf16_f32 v{P+2*i+1}, v{S+4*i+2}, v{S+4*i+3}")
            k(f"s_setprio {phi}")
            if t == TB and Y:
                k(f"s_waitcnt vmcnt(0)\ns_cmp_lg_u32 s3, 0\ns_cbranch_scc1 {Lchk}\n{Lchkr}:\ns_barrier")
            gaps = [[], [], [], []]
            if t == 0: gaps[0] = nx[:4]; gaps[2] = nx[4:]
            if t == 1:
                gaps[0] = adv
                gaps[2] = ["s_cmp_eq_u32 s47, 2", "s_cselect_b32 s36, s77, s76", "s_cmp_eq_u32 s47, 5", "s_cselect_b32 s36, s77, s36"]
            if t == TB+1: gaps[0] = [du[0]]; gaps[2] = [du[1]]
            if t == TB+2: gaps[0] = [du[2]]; gaps[2] = [du[3]]
            if t == 5: gaps[3] = ["v_add_u32 v6, s36, v6", "v_add_u32 v7, s36, v7"]
            if t == 6: gaps[3] = ["v_add_u32 v10, s36, v10"]
            if t == 7: gaps[3 if TB == 5 else 2] = ["s_add_u32 s47, s47, 1", "s_cmp_lt_u32 s47, 8"]
            k("s_waitcnt lgkmcnt(0)")
            k(mfma(S, K1, Q1, vr(CC, 16))); k(k1read(t+2))
            for x in gaps[0]: k(x)
            k(mfma8(S, K2, Q2)); k(k2read(t+2))
            for x in gaps[1]: k(x)
            k(mfma(O, V0, P)); k(vread(t+1, 0))
            for x in gaps[2]: k(x)
            k(mfma(O, V1, P+4)); k(vread(t+1, 1))
            for x in gaps[3]: k(x)
            if t == TB and not Y: k("s_waitcnt vmcnt(0)\ns_barrier")
            k(f"s_setprio {plo}")
        k(f"s_cbranch_scc1 {top}")
    k(f"s_cmp_ge_u32 s4, 4\ns_cbranch_scc1 {LY}")
    body(False, Lloop)
    k(f"s_branch {Lout}")
    body(True, LY)
    k.label(Lout)
    k.stamp(6)
    if C("cyc") in (1, 2) and STAMP[0]: k("s_memtime s[84:85]\ns_waitcnt lgkmcnt(0)\ns_sub_u32 s84, s84, s82\ns_mul_i32 s84, s84, 100\ns_lshr_b32 s84, s84, 10\ns_add_u32 s84, s84, s80\ns_mov_b32 s82, s80")
    if C("cyc") == 2 and STAMP[0]: k("s_mul_i32 s98, s98, 100\ns_lshr_b32 s98, s98, 10\ns_add_u32 s86, s98, s80\ns_mul_i32 s99, s99, 100\ns_lshr_b32 s99, s99, 10\ns_add_u32 s88, s99, s80")
    k(f"""s_setprio 3
    s_mul_i32 s72, s37, 40960
    s_lshl_b32 s73, s32, 10
    s_add_u32 s73, s73, s72
    s_lshr_b32 s74, s32, 2
    s_add_u32 s74, s74, 32
    s_lshl_b32 s74, s74, 10
    s_add_u32 s74, s74, s72
    s_and_b32 s75, s32, 1
    s_lshl_b32 s75, s75, 9
    s_add_u32 s74, s74, s75
    s_and_b32 s75, s32, 2
    s_lshl_b32 s75, s75, 2
    s_add_u32 s74, s74, s75
    s_waitcnt lgkmcnt(0)
    s_mov_b64 exec, s[70:71]
    v_mov_b32 v{T+2}, v{O+12}
    s_not_b64 exec, s[70:71]
    v_mov_b32 v{T+2}, v{O+8}
    s_mov_b64 exec, -1
    s_mov_b32 s72, {f32(2.0**60) if not force_fallback else f32(0.0)}
    v_cmp_ngt_f32 vcc, s72, v{T+2}
    s_nop 1
    s_cbranch_vccnz {Lslow}""")
    k.label(Lfin)
    k(f"v_rcp_f32 v{T}, v{T+2}\ns_nop 0")
    for e in range(12): k(f"v_mul_f32 v{O+e}, v{O+e}, v{T}")
    for e in range(6): k(f"v_cvt_pk_bf16_f32 v{P+e}, v{O+2*e}, v{O+2*e+1}")
    k(f"buffer_store_dwordx4 {vr(P,4)}, v2, s[20:23], s73 offen sc1")
    k(f"s_mov_b64 exec, s[70:71]\nbuffer_store_dwordx2 {vr(P+4,2)}, v2, s[20:23], s74 offen sc1\ns_mov_b64 exec, -1")
    k(f"s_waitcnt vmcnt(0)\ns_barrier\ns_cmp_lg_u32 s4, 4\ns_cbranch_scc1 {Lend}")
    set_flag(k, f"s_lshl_b32 s78, s33, 5\ns_add_u32 s78, s78, s32\ns_add_u32 s78, s78, {FL_O}", T)
    k.label(Lend)
    if C("cyc") == 3 and STAMP[0]: k("s_mul_i32 s96, s96, 100\ns_lshr_b32 s96, s96, 10\ns_add_u32 s86, s96, s80\ns_mul_i32 s98, s98, 100\ns_lshr_b32 s98, s98, 10\ns_add_u32 s88, s98, s80\ns_cmp_eq_u32 s82, 0\ns_cselect_b32 s86, 0, s86\ns_cselect_b32 s88, 0, s88")
    k.stamp(7); k.stamp_flush(0, "s5")
    k("s_endpgm")
    k.label(Lchk)
    k("s_mov_b32 s3, 0")
    poll(k, 15, "0", U, sleep=1, loaded=True)
    k(f"s_branch {Lchkr}")
    k.label(Lslow)
    M = CC
    k(f"""v_lshlrev_b32 v7, 3, v3
    v_lshl_add_u32 v6, v4, 15, v7
    v_mov_b32 v{M}, {f32(-3.0e38)}
    s_mov_b32 s40, s39
    s_mov_b32 s42, s39
    s_mov_b32 s47, 0""")
    for r in range(O, O+16): k(f"v_mov_b32 v{r}, 0")
    for r in range(V0, V0+8): k(f"v_mov_b32 v{r}, 0x3f803f80")
    k.label(Lsl)
    k(f"""s_add_u32 s41, s40, 16384
    s_add_u32 s43, s40, 65536
    buffer_load_dwordx2 {vr(K1,2)}, v6, s[12:15], s40 offen sc1
    buffer_load_dwordx2 {vr(K1+2,2)}, v6, s[12:15], s41 offen sc1
    buffer_load_dwordx2 {vr(K2,2)}, v7, s[12:15], s43 offen sc1
    s_mov_b64 exec, s[68:69]
    buffer_load_dwordx4 {vr(V0,4)}, v5, s[16:19], s42 offen sc1
    buffer_load_dwordx4 {vr(V1,4)}, v5, s[16:19], s42 offen offset:640 sc1
    s_mov_b64 exec, -1
    s_waitcnt vmcnt(0)""")
    k(mfma(S, K1, Q1, "0")); k(mfma8(S, K2, Q2))
    k("s_nop 15\ns_nop 3")
    k(f"v_max3_f32 v{T}, v{S}, v{S+1}, v{M}")
    for e in range(2, 16, 2): k(f"v_max3_f32 v{T}, v{T}, v{S+e}, v{S+e+1}")
    k(f"v_mov_b32 v{T+1}, v{T}\ns_nop 1\nv_permlane32_swap_b32 v{T}, v{T+1}\ns_nop 1\nv_max_f32 v{T}, v{T}, v{T+1}")
    k(f"v_sub_f32 v{T+1}, v{M}, v{T}\nv_exp_f32 v{T+1}, v{T+1}\nv_mov_b32 v{M}, v{T}")
    for e in range(16): k(f"v_mul_f32 v{O+e}, v{O+e}, v{T+1}")
    for e in range(16): k(f"v_sub_f32 v{S+e}, v{S+e}, v{T}")
    for e in range(16): k(f"v_exp_f32 v{S+e}, v{S+e}")
    k("s_nop 0")
    for e in range(8): k(f"v_cvt_pk_bf16_f32 v{P+e}, v{S+2*e}, v{S+2*e+1}")
    k("s_nop 1")
    k(mfma(O, V0, P)); k(mfma(O, V1, P+4))
    k(f"""s_nop 15
    s_nop 3
    s_add_u32 s40, s40, 256
    s_add_u32 s42, s42, 1280
    s_add_u32 s47, s47, 1
    s_cmp_lt_u32 s47, 64
    s_cbranch_scc1 {Lsl}
    v_mov_b32 v{T+2}, v{O+12}
    s_branch {Lfin}""")

NAME = "parallel_sum__softmax_full_mha__glu_gated_swiglu__prompt_kernel"
def fused():
    k = Kern(NAME, 512, 512, 81920)
    k("s_load_dwordx16 s[48:63], s[0:1], 0\ns_load_dwordx4 s[64:67], s[0:1], 64")
    k.stamp_init(); k.stamp(0, wait=False)
    k(f"""v_lshrrev_b32 v1, 6, v0
    s_and_b32 s5, s2, 255
    v_readfirstlane_b32 s4, v1
    v_and_b32 v1, 63, v0
    v_lshlrev_b32 v2, 4, v1
    s_mov_b32 s6, 0
    s_setprio 3
    s_cmp_ge_u32 s2, 512
    s_cbranch_scc1 L_end
    {"s_cmp_lt_u32 s2, 256" if C("ffirst", 1) else "s_cmp_ge_u32 s2, 256"}
    s_cbranch_scc1 L_roleF""")
    k(A1_TILE.format(rb="s32", cb="s33"))
    k("s_cmp_ge_u32 s33, 15\ns_cbranch_scc1 L_skipA1\ns_cmp_lt_u32 s4, 4\ns_cbranch_scc1 L_a1c")
    a1_loader(k, "L_a2")
    k.label("L_roleF")
    k(f"s_setprio {C('prio_f0', 3)}")
    phase_f0(k)
    k(f"s_setprio {C('prio_f', 0)}")
    k.stamp(1)
    if C("nof1"): k("s_branch L_end")
    phase_f1(k)
    if C("nof2"): k("s_branch L_end")
    phase_f2(k, "L_end")
    if STAMP[0]: k("s_waitcnt vmcnt(0)")
    k.stamp(7); k.stamp_flush(1, "s5")
    k.label("L_end"); k("s_endpgm")
    k.label("L_skipA1")
    after_kernarg(k); flags_srd(k)
    k("s_branch L_a2")
    k.label("L_a1c")
    a1_compute(k, "L_a2")
    k.label("L_a2")
    k.mute = C("cyc") == 4
    phase_a2(k, C("ff"))
    return build([k], single=True)

if __name__ == "__main__":
    STAMP[0] = 2 if "--dstamp" in sys.argv else ("--stamp" in sys.argv)
    for a in sys.argv[2:]:
        if "=" in a:
            n, v = a.split("="); CFG[n] = int(v)
    open(sys.argv[1], "w").write(fused())
```

```python
import sys, math
from asmlib2 import *

SZ = 2621440
WS_XF, WS_QP, WS_KP, WS_VI, WS_OF, WS_HF = 0, SZ, 2*SZ, 3*SZ, 4*SZ, 5*SZ
HF_SZ = 2048*1536*2
WS_ST = WS_HF + HF_SZ
ST_SZ = 32768
WS_CS = WS_ST + ST_SZ
CS_SZ = 15*16*1024
WS_FL = WS_CS + 262144
FL_LN, FL_QKV, FL_GO, FL_H, FL_O, FL_N = 0, 256, 512, 768, 1024, 1280
LOG2E = math.log2(math.e)
QSCALE = 20 ** -0.5 * LOG2E
P_X, P_WQKV, P_WO, P_W1, P_W3, P_W2, P_OUT, P_DBG, P_WS = 48, 50, 52, 56, 58, 60, 62, 64, 66
SPIN_MAX = 100000
CFG = {}
def C(n, d=0): return CFG.get(n, d)

def mod_small(k, s, m, t, maxval):
    q = 1
    while q * m * 2 <= maxval: q *= 2
    while q >= 1:
        k(f"s_cmp_ge_u32 s{s}, {q*m}\ns_cselect_b32 s{t}, {q*m}, 0\ns_sub_u32 s{s}, s{s}, s{t}")
        q //= 2

def tag_load(vt): return f"buffer_load_dwordx2 {vr(vt,2)}, v{vt+2}, s[72:75], 0 offen sc1"
def tag_setup(k, vt):
    k.srd(72, P_DBG, 256)
    k(f"v_mov_b32 v{vt+2}, 0")
def tag_take(k, vt, loaded):
    top = k.newlabel("tg"); mid = k.newlabel("tgm"); done = k.newlabel("tgd")
    k(f"s_mov_b32 s79, {SPIN_MAX}")
    if loaded: k(f"s_branch {mid}")
    k(f"{top}:\n{tag_load(vt)}\ns_waitcnt vmcnt(0)\n{mid}:")
    k(f"""v_readfirstlane_b32 s6, v{vt}
    v_readfirstlane_b32 s7, v{vt+1}
    s_nop 1
    s_cmp_lg_u32 s6, 0
    s_cbranch_scc1 {done}
    s_sleep 2
    s_sub_u32 s79, s79, 1
    s_cmp_lg_u32 s79, 0
    s_cbranch_scc1 {top}
    {done}:""")
def get_tag(k, vt):
    lab = k.newlabel("gt")
    k(f"s_cmp_lg_u32 s6, 0\ns_cbranch_scc1 {lab}")
    tag_setup(k, vt); tag_take(k, vt, False)
    k.label(lab)
def set_flag(k, idx_expr, vt):
    k(idx_expr)
    k(f"""s_lshl_b32 s78, s78, 7
    v_mov_b32 v{vt}, s6
    v_mov_b32 v{vt+1}, s7
    v_mov_b32 v{vt+2}, 0
    s_mov_b64 exec, 1
    buffer_store_dwordx2 {vr(vt,2)}, v{vt+2}, s[28:31], s78 offen sc1
    s_mov_b64 exec, -1""")
def poll(k, voff, soff, vt, sleep=2, loaded=False):
    top = k.newlabel("poll"); done = k.newlabel("polled"); mid = k.newlabel("pmid")
    k(f"s_mov_b32 s79, {SPIN_MAX}")
    if loaded: k(f"s_branch {mid}")
    k(f"{top}:\nbuffer_load_dwordx2 {vr(vt,2)}, v{voff}, s[28:31], {soff} offen sc1\ns_waitcnt vmcnt(0)\n{mid}:")
    k(f"""v_cmp_ne_u64 vcc, s[6:7], {vr(vt,2)}
    s_nop 1
    s_and_b64 exec, exec, vcc
    s_cbranch_scc0 {done}
    s_sleep {sleep}
    s_sub_u32 s79, s79, 1
    s_cmp_lg_u32 s79, 0
    s_cbranch_scc1 {top}
    {done}:
    s_mov_b64 exec, -1""")
def polln(k, idx_expr, n, vt, sleep=2):
    k(idx_expr)
    k(f"s_lshl_b32 s78, s78, 7\nv_lshlrev_b32 v{vt+2}, 7, v1\ns_mov_b32 exec_lo, {hex((1 << n) - 1)}\ns_mov_b32 exec_hi, 0")
    poll(k, vt+2, "s78", vt, sleep)
A1_TILE = """s_and_b32 s34, s5, 7
    s_lshr_b32 s35, s5, 3
    s_and_b32 s36, s34, 1
    s_lshl_b32 s36, s36, 3
    s_and_b32 s37, s35, 7
    s_add_u32 {rb}, s36, s37
    s_lshr_b32 s36, s34, 1
    s_lshl_b32 s36, s36, 2
    s_lshr_b32 s37, s35, 3
    s_add_u32 {cb}, s36, s37"""
def after_kernarg(k):
    k("s_waitcnt lgkmcnt(0)")
def flags_srd(k): k.srd(28, P_WS, FL_N*128, WS_FL)

NAME = "parallel_sum__softmax_full_mha__glu_gated_swiglu__prompt_kernel"
WBASE = 49152; CSO = 16384; STO = 16384 + 1024

def a1_loader(k, Lj):
    vm = VM(k)
    k("""s_and_b32 s36, s4, 3
    s_lshr_b32 s37, s36, 1
    s_lshl_b32 s37, s37, 6
    s_and_b32 s38, s36, 1
    s_add_u32 s37, s37, s38
    s_lshl_b32 s38, s36, 5
    s_cmp_lt_u32 s33, 10
    s_cselect_b32 s37, s37, s38
    s_mov_b32 s38, 1280
    s_cselect_b32 s38, 2560, s38
    s_lshl_b32 s39, s32, 7
    s_add_u32 s37, s37, s39
    s_mul_i32 s37, s37, 1280
    v_lshrrev_b32 v3, 3, v1
    v_lshrrev_b32 v10, 4, v1
    v_and_b32 v11, 7, v1
    v_mul_u32_u24 v12, s38, v3
    v_xor_b32 v13, v10, v11
    v_lshl_add_u32 v12, v13, 4, v12
    v_add_u32 v4, s37, v12
    s_lshl_b32 s39, s38, 3
    v_xor_b32 v5, 64, v4
    v_add_u32 v5, s39, v5
    s_lshl_b32 s39, s38, 4
    v_add_u32 v6, s39, v4
    v_add_u32 v7, s39, v5
    v_lshlrev_b32 v12, 2, v10
    v_and_b32 v13, 15, v1
    v_xor_b32 v13, v13, v12
    s_lshl_b32 s39, s36, 3
    v_add_u32 v12, s39, v10
    v_mul_u32_u24 v14, 3840, v12
    v_lshl_add_u32 v14, v13, 4, v14
    s_lshl_b32 s39, s33, 8
    v_add_u32 v8, s39, v14
    v_add_u32 v9, 15360, v8
    s_mul_i32 s40, s33, 3
    s_add_u32 s40, s40, s32""")
    mod_small(k, 40, 10, 43, 58)
    k(f"""s_mul_i32 s44, s40, {64*3840}
    s_lshl_b32 s45, s40, 7
    s_lshl_b32 s42, s36, 12
    s_lshl_b32 s43, s36, 11
    s_add_u32 s43, s43, {WBASE}""")
    if C("cyc") == 5: k.stamp(3, wait=False)
    after_kernarg(k)
    if C("cyc") == 5: k.stamp(4, wait=False)
    k.srd(12, P_X, SZ)
    k.srd(8, P_WQKV, 640*3840)
    def iss_a(s, half):
        for i in (2*half, 2*half+1):
            if C("diag_nodma") and s > 2: vm.tags[("A", s)] = 0; continue
            vm.op(f"s_add_u32 m0, s42, {(s % 3)*16384 + i*1024}\ns_nop 0\nbuffer_load_dwordx4 v{4+i}, s[12:15], s45 offen lds", ("A", s) if i == 3 else None)
        if half: k("s_add_u32 s45, s45, 128\ns_cmp_eq_u32 s45, 1280\ns_cselect_b32 s45, 0, s45")
    def iss_w(j):
        for i in range(2):
            if C("diag_nodma") and j > 3: vm.tags[("W", j)] = 0; continue
            vm.op(f"s_add_u32 m0, s43, {(j % 4)*8192 + i*1024}\ns_nop 0\nbuffer_load_dwordx4 v{8+i}, s[8:11], s44 offen lds", ("W", j) if i == 1 else None)
        k(f"s_add_u32 s44, s44, {32*3840}\ns_cmp_eq_u32 s44, {640*3840}\ns_cselect_b32 s44, 0, s44")
    iss_a(0, 0); iss_a(0, 1); iss_w(0)
    if C("cyc") == 5: k.stamp(5, wait=False)
    rest = [lambda: iss_w(1), lambda: iss_a(1, 0), lambda: iss_a(1, 1), lambda: iss_w(2), lambda: iss_w(3), lambda: iss_a(2, 0), lambda: iss_a(2, 1)]
    NP = C("a1_np", 1)
    for f in rest[:NP]: f()
    rest = rest[NP:]
    if C("cyc") == 5: k.stamp(6, wait=False)
    flags_srd(k)
    k.srd(16, P_WS, ST_SZ + CS_SZ, WS_ST)
    tag_setup(k, 42)
    k(f"""v_and_b32 v41, 31, v1
    v_lshlrev_b32 v40, 4, v41
    s_lshl_b32 s46, s36, 5
    v_add_lshl_u32 v41, v41, s46, 2
    s_lshl_b32 s46, s32, 2
    s_add_u32 s46, s46, s36
    s_lshl_b32 s46, s46, 9
    s_lshl_b32 s47, s33, 14
    s_lshl_b32 s68, s36, 8
    s_add_u32 s47, s47, s68
    s_add_u32 s47, s47, {ST_SZ}
    v_and_b32 v45, 15, v1
    v_lshlrev_b32 v46, 4, v45
    v_lshl_add_u32 v46, v10, 12, v46
    s_lshl_b32 s68, s36, 7
    v_lshl_add_u32 v45, v45, 3, s68""")
    gl = ["buffer_load_dwordx4 v[16:19], v40, s[16:19], s46 offen sc1"] + \
         [f"buffer_load_dwordx4 {vr(20+4*i,4)}, v46, s[16:19], s47 offen offset:{i*1024} sc1" for i in range(4)]
    JF = C("a1_jf", 10)
    for j in range(20):
        vm.wait(("A", j >> 1)); vm.wait(("W", j))
        if C("cyc") == 5 and j == 0: k.stamp(7, wait=False)
        k("s_barrier")
        if C("cyc") == 4 and j in (4, 8, 12, 16, 18): k.stamp({4: 3, 8: 4, 12: 5, 16: 6, 18: 7}[j], wait=False)
        if j == 0:
            n0 = max(0, C("a1_n0", 4) - NP)
            for f in rest[:n0]: f()
            rest = rest[n0:]
        if j == 1:
            for f in rest: f()
        if j >= 1 and j+3 < 20: iss_w(j+3)
        if j >= 2 and j//2+2 < 10: iss_a(j//2+2, j & 1)
        if j == 2: vm.op(tag_load(42), "tag")
        if j == 6:
            vm.wait("tag"); tag_take(k, 42, True)
        if j == JF:
            for g in gl: vm.op(g, "gr")
        if j == C("go_j", 14) and not C("go_a2") and not C("go_q"):
            lab = k.newlabel("a1g")
            k(f"s_cmp_lg_u32 s4, 5\ns_cbranch_scc1 {lab}")
            set_flag(k, f"s_lshl_b32 s78, s33, 4\ns_add_u32 s78, s78, s32\ns_add_u32 s78, s78, {FL_GO}", 48)
            k.label(lab)
        if j == C("a1_jc", 14):
            vm.wait("gr")
            top = k.newlabel("gr"); done = k.newlabel("grd")
            k(f"s_mov_b32 s79, {SPIN_MAX}\n{top}:")
            k("v_cmp_ne_u64 s[68:69], s[6:7], v[18:19]")
            for i in range(4):
                k(f"v_cmp_ne_u64 vcc, s[6:7], {vr(22+4*i,2)}\ns_nop 0\ns_or_b64 s[68:69], s[68:69], vcc")
            k(f"s_cbranch_scc0 {done}\ns_sleep 2")
            for g in gl: k(g)
            k(f"s_waitcnt vmcnt(0)\ns_sub_u32 s79, s79, 1\ns_cmp_lg_u32 s79, 0\ns_cbranch_scc1 {top}\n{done}:")
        if j == C("a1_jc", 14) + 1:
            k("""v_add_f32 v20, v20, v24
            v_add_f32 v21, v21, v25
            v_add_f32 v28, v28, v32
            v_add_f32 v29, v29, v33
            v_add_f32 v20, v20, v28
            v_add_f32 v21, v21, v29""")
            for sw in ("v_permlane16_swap_b32", "v_permlane32_swap_b32"):
                k(f"v_mov_b32 v22, v20\nv_mov_b32 v23, v21\ns_nop 1\n{sw} v20, v22\n{sw} v21, v23\ns_nop 1\nv_add_f32 v20, v20, v22\nv_add_f32 v21, v21, v23")
        if j == 16:
            k(f"ds_write_b32 v41, v16 offset:{STO}\nds_write_b32 v41, v17 offset:{STO+512}\nds_write_b64 v45, v[20:21] offset:{CSO}")
        if j == 17: k("s_waitcnt lgkmcnt(0)")
    k("s_barrier")
    k(f"s_cmp_lg_u32 s4, 4\ns_cbranch_scc1 {Lj}")
    set_flag(k, f"s_lshl_b32 s78, s33, 4\ns_add_u32 s78, s78, s32\ns_add_u32 s78, s78, {FL_QKV}", 40)
    k(f"s_branch {Lj}")

def a1_compute(k, Lj):
    Lv = k.newlabel("a1v")
    k(f"""s_and_b32 s36, s4, 1
    s_lshr_b32 s37, s4, 1
    v_and_b32 v3, 31, v1
    v_lshrrev_b32 v10, 5, v1
    s_lshl_b32 s38, s36, 6
    v_add_u32 v11, s38, v3
    v_lshlrev_b32 v11, 7, v11
    v_bfe_u32 v12, v1, 1, 3
    v_xor_b32 v12, v12, v10
    v_lshl_add_u32 v4, v12, 4, v11
    v_xor_b32 v5, 32, v4
    v_xor_b32 v6, 64, v4
    v_xor_b32 v7, 96, v4
    v_bfe_u32 v13, v1, 2, 2
    v_lshl_add_u32 v14, v10, 3, v13
    v_lshlrev_b32 v14, 8, v14
    v_bfe_u32 v15, v1, 4, 1
    v_lshl_add_u32 v14, v15, 5, v14
    v_and_b32 v15, 3, v1
    v_lshl_add_u32 v14, v15, 3, v14
    v_lshl_add_u32 v14, v13, 6, v14
    s_lshl_b32 s38, s37, 7
    v_xor_b32 v14, s38, v14
    v_add_u32 v8, {WBASE}, v14
    v_xor_b32 v9, 64, v8""")
    if C("cpf"):
        lab = k.newlabel("cpf"); here = k.newlabel("pc")
        k(f"""s_lshr_b32 s38, s5, 3
        s_and_b32 s38, s38, 15
        s_lshl_b32 s38, s38, 2
        s_add_u32 s38, s38, s4
        s_lshl_b32 s38, s38, 10
        s_cmp_ge_u32 s38, (L_code_end - {NAME}) - 1024
        s_cbranch_scc1 {lab}
        s_getpc_b64 s[40:41]
        {here}:
        s_sub_u32 s40, s40, {here} - {NAME}
        s_subb_u32 s41, s41, 0
        s_add_u32 s40, s40, s38
        s_addc_u32 s41, s41, 0
        v_mov_b32 v17, s41
        v_add_co_u32 v16, vcc, s40, v2
        s_nop 1
        v_addc_co_u32 v17, vcc, 0, v17, vcc
        global_load_dwordx4 v[116:119], v[16:17], off
        {lab}:""")
    after_kernarg(k)
    flags_srd(k)
    ACC = 16; FR = 80
    def reads(n):
        if n >= 40: return []
        s, ks, j = n >> 2, n & 3, n >> 1
        f = FR + (n % 3)*16
        ao = (s % 3)*16384; wo = (j % 4)*8192 + (n & 1)*4096
        return [f"ds_read_b64_tr_b16 {vr(f+8,2)}, v8 offset:{wo}", f"ds_read_b64_tr_b16 {vr(f+10,2)}, v8 offset:{wo+1024}",
                f"ds_read_b128 {vr(f,4)}, v{4+ks} offset:{ao}", f"ds_read_b128 {vr(f+4,4)}, v{4+ks} offset:{ao+4096}",
                f"ds_read_b64_tr_b16 {vr(f+12,2)}, v9 offset:{wo}", f"ds_read_b64_tr_b16 {vr(f+14,2)}, v9 offset:{wo+1024}"]
    def loop(swap):
        if C("cpf"): k("s_waitcnt vmcnt(0)")
        k("s_barrier")
        k.stamp(1)
        if C("cyc") == 3 and STAMP[0]: k("s_memtime s[96:97]\ns_mov_b32 s98, 0\ns_waitcnt lgkmcnt(0)")
        for i in reads(0) + reads(1): k(i)
        for n in range(40):
            f = FR + (n % 3)*16
            rd = reads(n+2)
            if n % 2 == 0: k("s_waitcnt lgkmcnt(6)")
            for m, (q, b) in enumerate(((0, 0), (0, 1), (1, 1), (1, 0))):
                a_, b_ = f+8+4*q, f+4*b
                if swap: a_, b_ = b_, a_
                if not C("diag_nomfma") or n == 0: k(mfma(ACC + (2*q+b)*16, a_, b_, "0" if n == 0 else None))
                if n % 2 == 0:
                    if m == 2:
                        k("s_waitcnt lgkmcnt(0)")
                        if n < 38: k("s_barrier")
                    if m >= 2:
                        for i in rd[3*(m-2):3*(m-2)+3]: k(i)
                elif m < 2:
                    for i in rd[3*m:3*m+3]: k(i)
        k.stamp(2)
        if C("cyc") == 3 and STAMP[0]: k("s_memtime s[72:73]\ns_waitcnt lgkmcnt(0)\ns_sub_u32 s96, s72, s96")
    k(f"s_cmp_ge_u32 s33, 10\ns_cbranch_scc1 {Lv}")
    k.srd(16, P_WS, 2*SZ, WS_QP)
    k(f"""s_cmp_lt_u32 s33, 5
    s_cselect_b32 s47, {f32(QSCALE)}, 1.0
    s_lshl_b32 s38, s36, 6
    v_lshl_add_u32 v11, v3, 1, s38
    v_lshlrev_b32 v12, 2, v11
    s_lshl_b32 s38, s37, 8
    v_lshl_add_u32 v13, v10, 4, s38
    v_lshlrev_b32 v11, 3, v11
    s_lshl_b32 s39, s32, 10
    v_add_u32 v11, s39, v11
    v_lshl_add_u32 v11, v10, 14, v11
    s_lshl_b32 s40, s33, 19
    s_lshl_b32 s41, s37, 18
    s_add_u32 s40, s40, s41""")
    loop(False)
    k(f"ds_read_b64 v[4:5], v12 offset:{STO}\nds_read_b64 v[6:7], v12 offset:{STO+512}")
    for q in range(2):
        for j in range(4):
            k(f"ds_read_b128 {vr(FR+16*q+4*j,4)}, v13 offset:{CSO + q*128 + j*32}")
    k("s_waitcnt lgkmcnt(8)\nv_mul_f32 v6, s47, v6\nv_mul_f32 v7, s47, v7")
    for q in range(2):
        for j in range(4):
            k(f"s_waitcnt lgkmcnt({7 - (4*q+j)})")
            c = FR+16*q+4*j; d = 112 + 4*((4*q+j) % 4)
            for b in range(2):
                a = ACC + (2*q+b)*16 + 4*j
                if C("pk"):
                    for e in (0, 2): k(f"v_pk_fma_f32 {vr(a+e,2)}, v[4:5], {vr(c+e,2)}, {vr(a+e,2)} op_sel:[{b},0,0] op_sel_hi:[{b},1,1] neg_lo:[1,0,0] neg_hi:[1,0,0]")
                else:
                    for e in range(4): k(f"v_fma_f32 v{a+e}, -v{4+b}, v{c+e}, v{a+e}")
            for b in range(2):
                a = ACC + (2*q+b)*16 + 4*j
                if C("pk"):
                    for e in (0, 2): k(f"v_pk_mul_f32 {vr(a+e,2)}, {vr(a+e,2)}, v[6:7] op_sel:[0,{b}] op_sel_hi:[1,{b}]")
                else:
                    for e in range(4): k(f"v_mul_f32 v{a+e}, v{a+e}, v{6+b}")
            for b in range(2):
                a = ACC + (2*q+b)*16 + 4*j
                k(f"v_cvt_pk_bf16_f32 v{d+2*b}, v{a}, v{a+1}\nv_cvt_pk_bf16_f32 v{d+2*b+1}, v{a+2}, v{a+3}")
            k(f"s_add_u32 s41, s40, {(8*q+2*j)*16384}")
            k(f"buffer_store_dwordx4 {vr(d,4)}, v11, s[16:19], s41 offen sc1")
    k(f"s_waitcnt vmcnt(0)\ns_barrier\ns_branch {Lj}")
    k.label(Lv)
    k.srd(16, P_WS, SZ, WS_VI)
    k(f"""s_lshl_b32 s39, s37, 6
    v_add_u32 v12, s39, v3
    v_lshlrev_b32 v12, 2, v12
    s_lshl_b32 s40, s36, 8
    v_lshl_add_u32 v11, v10, 4, s40
    s_sub_u32 s38, s33, 10
    s_lshl_b32 s38, s38, 7
    s_add_u32 s38, s38, s39
    s_mov_b32 s41, {81920-320}""")
    for q in range(2):
        k(f"""v_add_u32 v112, s38, v3
        v_add_u32 v112, {32*q}, v112
        v_mul_u32_u24 v15, 3277, v112
        v_lshrrev_b32 v15, 16, v15
        v_mul_lo_u32 v15, v15, s41
        v_lshl_add_u32 v15, v112, 4, v15
        v_mul_u32_u24 v112, 320, v10
        v_add_u32 v{13+q}, v15, v112""")
    k("s_lshl_b32 s40, s32, 1\ns_add_u32 s40, s40, s36\ns_mul_i32 s40, s40, 2560")
    loop(True)
    k(f"ds_read_b32 v6, v12 offset:{CSO}\nds_read_b32 v7, v12 offset:{CSO+128}")
    for b in range(2):
        for j in range(4):
            k(f"ds_read_b128 {vr(FR+4*j,4)}, v11 offset:{STO + b*128 + j*32}")
            k(f"ds_read_b128 {vr(FR+16+4*j,4)}, v11 offset:{STO + 512 + b*128 + j*32}")
        k("s_waitcnt lgkmcnt(0)")
        if b == 0: k("s_nop 1")
        for q in range(2):
            a = ACC + (2*q+b)*16
            for g in range(2):
                d = 112 + 4*(2*q+g)
                if C("pk"):
                    for r in range(8*g, 8*g+8, 2): k(f"v_pk_fma_f32 {vr(a+r,2)}, {vr(FR+r,2)}, v[6:7], {vr(a+r,2)} op_sel:[0,{q},0] op_sel_hi:[1,{q},1] neg_lo:[1,0,0] neg_hi:[1,0,0]")
                    for r in range(8*g, 8*g+8, 2): k(f"v_pk_mul_f32 {vr(a+r,2)}, {vr(a+r,2)}, {vr(FR+16+r,2)}")
                else:
                    for r in range(8*g, 8*g+8): k(f"v_fma_f32 v{a+r}, -v{FR+r}, v{6+q}, v{a+r}")
                    for r in range(8*g, 8*g+8): k(f"v_mul_f32 v{a+r}, v{a+r}, v{FR+16+r}")
                for e in range(4): k(f"v_cvt_pk_bf16_f32 v{d+e}, v{a+8*g+2*e}, v{a+8*g+2*e+1}")
                k(f"buffer_store_dwordx4 {vr(d,4)}, v{13+q}, s[16:19], s40 offen offset:{b*1280 + g*640} sc1")
    k("s_waitcnt vmcnt(0)\ns_barrier")

def phase_f0(k):
    RS = 1312; LB = 2*24704; LC = LB + 8*RS
    k(A1_TILE.format(rb="s41", cb="s42"))
    k(f"""s_and_b32 s40, s34, 1
    s_lshl_b32 s40, s40, 2
    s_lshr_b32 s36, s34, 1
    s_add_u32 s40, s40, s36
    s_lshl_b32 s40, s40, 5
    s_add_u32 s40, s40, s35
    s_lshl_b32 s32, s40, 3
    s_add_u32 s32, s32, s4
    s_mul_i32 s33, s32, 1280
    v_lshlrev_b32 v3, 2, v1
    s_mul_i32 s38, s41, 40
    s_mul_i32 s39, s4, 5
    s_add_u32 s38, s38, s39
    s_mul_i32 s38, s38, 3840
    s_min_u32 s39, s42, 14
    s_lshl_b32 s39, s39, 8
    s_add_u32 s38, s38, s39""")
    after_kernarg(k)
    k.srd(8, P_X, SZ)
    for i in range(5):
        k(f"buffer_load_dword v{8+i}, v3, s[8:11], s33 offen offset:{i*256}")
    k.srd(20, P_WQKV, 640*3840)
    for i in range(5):
        k(f"buffer_load_dword v{48+i}, v3, s[20:23], s38 offen" + ("\ns_add_u32 s38, s38, 3840" if i < 4 else ""))
    def pf():
        k("s_lshl_b32 s43, s5, 3\ns_add_u32 s43, s43, s4\ns_mul_i32 s43, s43, 960")
        for j, p in enumerate((P_W1, P_W3)):
            k.srd(24, p, 640*3072)
            k(f"buffer_load_dwordx4 {vr(64+4*j,4)}, v2, s[24:27], s43 offen")
    if C("pf") == 1: pf()
    tag_setup(k, 44)
    lab = k.newlabel("tag")
    k(f"""s_or_b32 s7, s5, s4
    s_cmp_lg_u32 s7, 0
    s_cbranch_scc1 {lab}
    s_memrealtime s[76:77]
    s_waitcnt lgkmcnt(0)
    s_or_b32 s76, s76, 1
    v_mov_b32 v18, s76
    v_mov_b32 v19, s77
    s_mov_b64 exec, 1
    buffer_store_dwordx2 v[18:19], v46, s[72:75], 0 offen sc1
    s_mov_b64 exec, -1
    {lab}:""")
    flags_srd(k)
    k.srd(12, P_WS, SZ, WS_XF)
    k.srd(16, P_WS, ST_SZ + CS_SZ, WS_ST)
    k(f"""s_mul_i32 s34, s4, {RS}
    s_add_u32 s34, s34, {LB}
    v_add_u32 v4, s34, v3
    v_and_b32 v5, 7, v0
    v_lshrrev_b32 v6, 3, v0
    v_mul_u32_u24 v7, {RS}, v5
    v_lshl_add_u32 v7, v6, 4, v7
    v_add_u32 v7, {LB}, v7
    v_lshlrev_b32 v6, 9, v6
    v_lshl_add_u32 v6, v5, 4, v6
    s_lshr_b32 s35, s40, 2
    s_mul_i32 s35, s35, 40960
    s_and_b32 s36, s40, 3
    s_lshl_b32 s36, s36, 7
    s_add_u32 s35, s35, s36
    s_add_u32 s36, s35, 32768
    s_lshl_b32 s37, s32, 4
    v_lshlrev_b32 v47, 3, v0
    v_lshlrev_b32 v43, 3, v1
    s_lshl_b32 s38, s42, 4
    s_add_u32 s38, s38, s41
    s_lshl_b32 s38, s38, 10
    s_add_u32 s38, s38, {ST_SZ}""")
    X = 16
    for i in range(5):
        k(f"s_waitcnt vmcnt({9-i + (2 if C('pf') == 1 else 0)})")
        if i == 4:
            k(tag_load(44))
            if C("pf") == 2: pf()
        k(f"v_lshlrev_b32 v{X+2*i}, 16, v{8+i}\nv_and_b32 v{X+2*i+1}, 0xffff0000, v{8+i}")
    def reduce(v, t):
        for r in (8, 4, 2, 1):
            k(f"s_nop 1\nv_add_f32_dpp v{v}, v{v}, v{v} row_ror:{r} row_mask:0xf bank_mask:0xf")
        k(f"v_mov_b32 v{t}, v{v}\ns_nop 1\nv_permlane16_swap_b32 v{v}, v{t}\ns_nop 1\nv_add_f32 v{v}, v{v}, v{t}")
        k(f"v_mov_b32 v{t}, v{v}\ns_nop 1\nv_permlane32_swap_b32 v{v}, v{t}\ns_nop 1\nv_add_f32 v{v}, v{v}, v{t}")
    M, V, T = 28, 29, 30
    k(f"v_add_f32 v{M}, v{X}, v{X+1}\nv_add_f32 v{T}, v{X+2}, v{X+3}")
    for i in range(4, 10, 2):
        k(f"v_add_f32 v{M}, v{M}, v{X+i}\nv_add_f32 v{T}, v{T}, v{X+i+1}")
    k(f"v_add_f32 v{M}, v{M}, v{T}")
    reduce(M, T)
    k(f"v_mul_f32 v{M}, {f32(1/640)}, v{M}")
    for i in range(10): k(f"v_sub_f32 v{32+i}, v{X+i}, v{M}")
    k(f"v_mul_f32 v{V}, v32, v32\nv_mul_f32 v{T}, v33, v33")
    for i in range(2, 10, 2):
        k(f"v_fmac_f32 v{V}, v{32+i}, v{32+i}\nv_fmac_f32 v{T}, v{33+i}, v{33+i}")
    k(f"v_add_f32 v{V}, v{V}, v{T}")
    reduce(V, T)
    k(f"v_mul_f32 v{V}, {f32(1/640)}, v{V}")
    def rb(v): k(f"v_cvt_pk_bf16_f32 v{v}, v{v}, v{v}\nv_lshlrev_b32 v{v}, 16, v{v}")
    rb(M); rb(V)
    k(f"v_add_f32 v{V}, {f32(1e-5)}, v{V}"); rb(V)
    k(f"v_sqrt_f32 v{V}, v{V}\ns_nop 0"); rb(V)
    k(f"v_rcp_f32 v{V}, v{V}\ns_waitcnt vmcnt({2 if C('pf') == 2 else 0})")
    tag_take(k, 44, True)
    k(f"v_mov_b32 v{T}, s6\nv_mov_b32 v{T+1}, s7")
    k(f"s_mov_b64 exec, 1\nbuffer_store_dwordx4 {vr(M,4)}, v46, s[16:19], s37 offen sc1\ns_mov_b64 exec, -1")
    k("v_lshlrev_b32 v32, 16, v48\nv_and_b32 v33, 0xffff0000, v48")
    for i in range(1, 5):
        k(f"v_lshlrev_b32 v34, 16, v{48+i}\nv_and_b32 v35, 0xffff0000, v{48+i}\nv_add_f32 v32, v32, v34\nv_add_f32 v33, v33, v35")
    k(f"ds_write_b64 v47, v[32:33] offset:{LC}")
    for i in range(5):
        a, b = X+2*i, X+2*i+1
        k(f"v_sub_f32 v{a}, v{a}, v{M}\nv_sub_f32 v{b}, v{b}, v{M}")
        k(f"v_cvt_pk_bf16_f32 v{b}, v{a}, v{b}")
        k(f"v_lshlrev_b32 v{a}, 16, v{b}\nv_and_b32 v{b}, 0xffff0000, v{b}")
        k(f"v_mul_f32 v{a}, v{a}, v{V}\nv_mul_f32 v{b}, v{b}, v{V}")
        k(f"v_cvt_pk_bf16_f32 v{8+i}, v{a}, v{b}")
        k(f"ds_write_b32 v4, v{8+i} offset:{i*256}")
    k("s_waitcnt lgkmcnt(0)\ns_barrier")
    l1 = k.newlabel("f0w"); l2 = k.newlabel("f0c")
    k(f"ds_read_b128 v[8:11], v7\ns_cmp_lg_u32 s4, 2\ns_cbranch_scc1 {l2}")
    for i in range(8): k(f"ds_read_b64 {vr(48+2*i,2)}, v43 offset:{LC + i*512}")
    k("s_waitcnt lgkmcnt(0)")
    for st in (8, 4, 2):
        for e in range(st): k(f"v_add_f32 v{48+e}, v{48+e}, v{48+st+e}")
    k(f"v_mov_b32 v50, s6\nv_mov_b32 v51, s7\nbuffer_store_dwordx4 v[48:51], v2, s[16:19], s38 offen sc1\n{l2}:")
    k(f"""s_cmp_ge_u32 s4, 2
    s_cbranch_scc1 {l1}
    ds_read_b128 v[12:15], v7 offset:1024
    s_waitcnt lgkmcnt(0)
    buffer_store_dwordx4 v[12:15], v6, s[12:15], s36 offen sc1
    {l1}:
    s_waitcnt lgkmcnt(0)
    buffer_store_dwordx4 v[8:11], v6, s[12:15], s35 offen sc1""")
    if C("tlb"):
        lab = k.newlabel("f0t")
        k(f"s_cmp_lg_u32 s4, 3\ns_cbranch_scc1 {lab}\nv_lshlrev_b32 v64, {C('tlb_sh', 19)}, v1")
        for j, (p, n) in enumerate(((P_WS, WS_FL + FL_N*128), (P_OUT, SZ), (P_W2, 1536*1280), (P_WO, 640*1280))):
            k.srd(24, p, n)
            k(f"buffer_load_dword v{65+j}, v64, s[24:27], 0 offen")
        k.label(lab)
    lab = k.newlabel("f0p")
    k(f"s_waitcnt vmcnt(0)\ns_barrier\ns_cmp_lg_u32 s4, 0\ns_cbranch_scc1 {lab}")
    set_flag(k, f"s_add_u32 s78, s40, {FL_LN}", 8)
    k.label(lab)

def gemm2(k, vm, stages, ksteps, NB, acc, wbuf, R, wgroup, wread, aload, areg, AW, nst_total, zero_first,
          hook=None, lead=None):
    steps = [(s, ks) for s in stages for ks in range(ksteps)]
    wb = lambda n, nb: wbuf + ((n & 1) * NB + nb) * 4
    vm.wait(("W", stages[0]))
    k("s_barrier")
    for nb in range(NB):
        for i in wread(stages[0], 0, nb, wb(0, nb)): k(i)
    pending = []
    for n, (s, ks) in enumerate(steps):
        last = (n == len(steps)-1)
        if hook: hook(n)
        if ks == ksteps-1 and not last:
            assert not pending
            vm.wait(("W", s+1))
            k("s_barrier")
            if s+R-1 < nst_total and ("W", s+R-1) not in vm.tags:
                pending = [(u, i) for i, u in enumerate(wgroup(s+R-1))]
                plast = len(pending)-1; ps = s+R-1
        vm.wait(("A", s, ks))
        for nb in range(NB):
            k(f"s_waitcnt lgkmcnt({2*(NB-1-nb) if last else 2*(NB-1)})")
            k(mfma(acc+16*nb, wb(n, nb), areg(n), "0" if (n == 0 and zero_first) else None))
            if not last:
                s2, ks2 = steps[n+1]
                for i in wread(s2, ks2, nb, wb(n+1, nb)): k(i)
            if pending and nb != NB-1:
                u, i = pending.pop(0)
                vm.op(u, ("W", ps) if i == plast else None)
        w = lead(n) if lead else AW
        for m in range(n+1, min(n+w+1, len(steps))):
            s2, ks2 = steps[m]
            if ("A", s2, ks2) not in vm.tags:
                vm.op(aload(s2, ks2, areg(m)), ("A", s2, ks2))
    assert not pending

def phase_f1(k):
    R = 3; UOFF = 12288 + 128; SLOT = 24704
    vm = VM(k)
    k("""s_and_b32 s34, s5, 7
    s_lshr_b32 s35, s5, 3
    s_and_b32 s36, s34, 1
    s_lshl_b32 s36, s36, 2
    s_and_b32 s37, s35, 3
    s_add_u32 s32, s36, s37
    s_lshr_b32 s36, s34, 1
    s_lshl_b32 s36, s36, 3
    s_lshr_b32 s37, s35, 2
    s_add_u32 s33, s36, s37""")
    k(f"""s_cmp_lt_u32 s4, 4
    s_cselect_b32 s8, s{P_W1}, s{P_W3}
    s_cselect_b32 s9, s{P_W1+1}, s{P_W3+1}
    s_cselect_b32 s42, 0, {UOFF}
    s_mov_b32 s10, {640*3072}
    s_mov_b32 s11, 0x00020000
    s_and_b32 s36, s4, 3
    s_mul_i32 s37, s36, 3072
    s_add_u32 s42, s42, s37
    s_lshl_b32 s36, s36, 5
    s_mul_i32 s37, s33, 96""")
    if C("diag_x"): k.srd(12, P_X, SZ)
    else: k.srd(12, P_WS, SZ, WS_XF)
    k.srd(16, P_WS, HF_SZ, WS_HF)
    for i in range(3):
        k(f"""v_add_u32 v3, {64*i}, v1
        v_mul_u32_u24 v8, 10923, v3
        v_lshrrev_b32 v8, 16, v8
        v_mul_u32_u24 v9, 6, v8
        v_sub_u32 v9, v3, v9
        v_add_u32 v8, s36, v8
        v_mul_u32_u24 v8, 3072, v8
        v_lshl_add_u32 v8, v9, 4, v8
        v_add_u32 v{4+i}, s37, v8""")
    k(f"""v_lshrrev_b32 v12, 5, v1
    v_bfe_u32 v13, v1, 2, 2
    v_lshl_add_u32 v14, v12, 3, v13
    v_mul_u32_u24 v14, 96, v14
    v_bfe_u32 v15, v1, 4, 1
    v_mul_u32_u24 v15, {UOFF}, v15
    v_add_u32 v14, v14, v15
    v_and_b32 v15, 3, v1
    v_lshl_add_u32 v8, v15, 3, v14
    v_add_u32 v3, 4096, v2""")
    k("s_add_u32 s40, s32, s33")
    mod_small(k, 40, 5, 43, 38)
    k(f"""s_lshl_b32 s46, s32, 3
    s_add_u32 s46, s46, s4
    s_mul_i32 s41, s46, 40960
    s_mul_i32 s44, s40, {128*3072}
    s_lshl_b32 s45, s40, 13
    s_add_u32 s45, s45, s41
    s_add_u32 s47, s41, 40960""")
    ACC, WB, AB = 16, 64, 88
    def wgroup(s):
        u = []
        for i in range(3):
            post = f"\ns_add_u32 s44, s44, {128*3072}\ns_cmp_eq_u32 s44, {640*3072}\ns_cselect_b32 s44, 0, s44" if i == 2 else ""
            u.append(f"s_add_u32 m0, s42, {(s % R)*SLOT + i*1024}\ns_nop 0\nbuffer_load_dwordx4 v{4+i}, s[8:11], s44 offen lds" + post)
        return u
    def wread(s, ks, nb, dst):
        o = (s % R)*SLOT + ks*16*96 + nb*32
        return [f"ds_read_b64_tr_b16 {vr(dst,2)}, v8 offset:{o}", f"ds_read_b64_tr_b16 {vr(dst+2,2)}, v8 offset:{o+4*96}"]
    def aload(s, ks, dst):
        post = "\ns_add_u32 s45, s45, 8192\ns_cmp_eq_u32 s45, s47\ns_cselect_b32 s45, s41, s45" if ks == 7 else ""
        return f"buffer_load_dwordx4 {vr(dst,4)}, v{3 if ks >= 4 else 2}, s[12:15], s45 offen offset:{(ks%4)*1024} sc1" + post
    AW = C("f1_aw", 8)
    areg = lambda n: AB + 4*(n % AW)
    def wpro():
        for s in range(R-1):
            g = wgroup(s)
            for i, u in enumerate(g): vm.op(u, ("W", s) if i == len(g)-1 else None)
    def apro():
        for ks in range(AW): vm.op(aload(0, ks, areg(ks)), ("A", 0, ks))
    def go_poll():
        polln(k, f"s_add_u32 s78, s5, {FL_GO}" if C("go_a2") else f"""s_and_b32 s68, s34, 1
        s_lshl_b32 s68, s68, 3
        s_and_b32 s69, s35, 7
        s_add_u32 s68, s68, s69
        s_lshr_b32 s69, s34, 1
        s_lshl_b32 s69, s69, 2
        s_lshr_b32 s70, s35, 3
        s_add_u32 s69, s69, s70
        s_min_u32 s69, s69, 14
        s_lshl_b32 s78, s69, 4
        s_add_u32 s78, s78, s68
        s_add_u32 s78, s78, {FL_QKV if C("go_q") else FL_GO}""", 1, 10, sleep=C("go_sleep", 4))
    early = C("f1_early", 0)
    if early >= 1: wpro()
    lab = k.newlabel("f1p")
    k(f"s_cmp_lg_u32 s4, 0\ns_cbranch_scc1 {lab}")
    polln(k, f"s_lshl_b32 s78, s32, 5\ns_add_u32 s78, s78, {FL_LN}", 32, 10, sleep=4)
    if early < 2 and C("f1_hold", 1): go_poll()
    k(f"{lab}:\ns_barrier")
    if early < 1: wpro()
    apro()
    if early >= 2 and C("f1_hold", 1):
        lab = k.newlabel("f1g")
        k(f"s_cmp_lg_u32 s4, 0\ns_cbranch_scc1 {lab}")
        go_poll()
        k.label(lab)
    k.stamp(2)
    def hook(n):
        if n == C("f1_sw", 99): k(f"s_setprio {C('prio_f1b', 1)}")
    gemm2(k, vm, list(range(5)), 8, 3, ACC, WB, R, wgroup, wread, aload, areg, AW, 5, True, hook, lambda n: C("f1_lead", 8) if n < C("f1_leadn", 24) else AW)
    k.stamp(3)
    k(f"""s_mul_i32 s36, s46, 96
    s_mul_i32 s37, s33, 3
    s_add_u32 s36, s36, s37
    s_lshl_b32 s36, s36, 10
    s_mov_b32 s38, {f32(-LOG2E)}
    s_setprio {C('prio_f1e', 3)}
    s_nop 7""")
    for nb in range(3):
        a = ACC + 16*nb; t = WB + 8*(nb % 2); d = AB + 4*nb
        for e in range(8): k(f"v_mul_f32 v{t+e}, s38, v{a+e}")
        for e in range(8): k(f"v_exp_f32 v{t+e}, v{t+e}")
        for e in range(8): k(f"v_mul_f32 v{a+e}, v{a+e}, v{a+8+e}")
        for e in range(8): k(f"v_add_f32 v{t+e}, 1.0, v{t+e}")
        for e in range(8): k(f"v_rcp_f32 v{t+e}, v{t+e}")
        k("s_nop 0")
        for e in range(8): k(f"v_mul_f32 v{a+e}, v{a+e}, v{t+e}")
        for e in range(4): k(f"v_cvt_pk_bf16_f32 v{d+e}, v{a+2*e}, v{a+2*e+1}")
        k(f"buffer_store_dwordx4 {vr(d,4)}, v2, s[16:19], s36 offen offset:{nb*1024} sc1")
    k(f"s_setprio {C('prio_f2', 2)}")
    if True:
        lab = k.newlabel("f1f")
        k(f"s_waitcnt vmcnt(0)\ns_barrier\ns_cmp_lg_u32 s4, 0\ns_cbranch_scc1 {lab}")
        set_flag(k, f"s_lshl_b32 s78, s32, 5\ns_add_u32 s78, s78, s33\ns_add_u32 s78, s78, {FL_H}", 10)
        k.label(lab)

def mfma16(d, a, b, c=None):
    cs = vr(d, 4) if c is None else c
    return f"v_mfma_f32_16x16x32_bf16 {vr(d,4)}, {vr(a,4)}, {vr(b,4)}, {cs}"

def phase_f2(k, endlab):
    R = 4; SLOT = 20480; NST = 17
    vm = VM(k)
    k("""s_and_b32 s34, s5, 7
    s_lshr_b32 s35, s5, 3
    s_lshl_b32 s36, s34, 2
    s_and_b32 s37, s35, 3
    s_add_u32 s32, s36, s37
    s_lshr_b32 s33, s35, 2
    s_and_b32 s37, s4, 1
    s_lshr_b32 s38, s4, 1
    s_mul_i32 s39, s4, 160
    s_mul_i32 s43, s33, 160""")
    k.srd(8, P_W2, 1536*1280)
    k.srd(16, P_WO, 640*1280)
    k.srd(12, P_WS, HF_SZ, WS_HF)
    k.srd(24, P_WS, SZ, WS_OF)
    k.srd(20, P_X, SZ)
    ACC, WB, AB, XR = 16, 56, 76, 116
    for i in range(3):
        k(f"""v_add_u32 v3, s39, v1
        v_add_u32 v3, {64*i}, v3
        v_mul_u32_u24 v{7+i}, 6554, v3
        v_lshrrev_b32 v{7+i}, 16, v{7+i}
        v_mul_u32_u24 v13, 10, v{7+i}
        v_sub_u32 v13, v3, v13
        v_lshl_add_u32 v{10+i}, v13, 4, s43
        s_movk_i32 s36, 1280
        v_mad_u32_u24 v{4+i}, v{7+i}, s36, v{10+i}""")
    def dma_addr(mode, i):
        if mode == 1: c = f"v_lshrrev_b32 v3, 4, v{7+i}\nv_lshl_add_u32 v3, v3, 2, v{7+i}\n"
        else: c = f"v_lshrrev_b32 v3, 2, v{7+i}\nv_lshl_add_u32 v3, v3, 4, v{7+i}\nv_add_u32 v3, 16, v3\n"
        return c + f"v_mad_u32_u24 v{4+i}, v3, s36, v{10+i}"
    k(f"""v_lshrrev_b32 v3, 5, v1
    v_lshlrev_b32 v13, 4, v3
    v_bfe_u32 v14, v1, 2, 3
    v_add_u32 v13, v13, v14
    s_lshl_b32 s44, s38, 5
    v_add_u32 v13, s44, v13
    v_mul_u32_u24 v13, 160, v13
    v_and_b32 v14, 3, v1
    v_lshl_add_u32 v13, v14, 3, v13
    v_add_u32 v14, {3*SLOT}, v13
    v_lshrrev_b32 v3, 4, v1
    v_lshlrev_b32 v3, 9, v3
    v_and_b32 v15, 15, v1
    v_lshl_add_u32 v15, v15, 4, v3""")
    k("s_and_b32 s40, s32, 3\ns_mul_i32 s40, s40, 3\ns_mul_i32 s44, s33, 5\ns_add_u32 s40, s40, s44")
    mod_small(k, 40, 12, 44, 44)
    k(f"""s_lshl_b32 s46, s32, 1
    s_add_u32 s46, s46, s37
    s_mul_i32 s41, s46, 98304
    s_lshl_b32 s44, s38, 11
    s_add_u32 s41, s41, s44
    s_mul_i32 s47, s46, 40960
    s_add_u32 s47, s47, s44
    s_mul_i32 s42, s4, 2560
    s_mul_i32 s44, s40, {128*1280}
    s_lshl_b32 s45, s40, 13
    s_add_u32 s45, s45, s41
    s_add_u32 s68, s41, 98304""")
    def wgroup(s):
        u = []
        for i in range(3):
            pre = post = ""
            if s < 12:
                ld = f"buffer_load_dwordx4 v{4+i}, s[8:11], s44 offen lds"
                if i == 2: post = f"\ns_add_u32 s44, s44, {128*1280}\ns_cmp_eq_u32 s44, {1536*1280}\ns_cselect_b32 s44, 0, s44"
            elif s < 16:
                if s == 12: pre = dma_addr(1, i) + "\n"
                if i == 0: pre += f"s_mov_b32 s44, {(s-12)*160*1280}\n"
                ld = f"buffer_load_dwordx4 v{4+i}, s[16:19], s44 offen lds"
            else:
                ld = f"buffer_load_dwordx4 v{4+i}, s[16:19], 0 offen lds"
            if i == 2: ld = "s_mov_b32 exec_hi, 0\n" + ld + "\ns_mov_b32 exec_hi, -1"
            else: ld = "s_nop 0\n" + ld
            u.append(pre + f"s_add_u32 m0, s42, {(s % R)*SLOT + i*1024}\n" + ld + post)
        return u
    def wread(s, j):
        slot = s % R
        va = 14 if slot == 3 else 13
        o = (slot % 3)*SLOT*(slot != 3) + j*32
        return [f"ds_read_b64_tr_b16 {vr(WB+4*j,2)}, v{va} offset:{o}", f"ds_read_b64_tr_b16 {vr(WB+4*j+2,2)}, v{va} offset:{o+1280}"]
    AW = 5
    areg = lambda s, b: AB + 8*(s % AW) + 4*b
    def issue_a(s):
        for b in range(2):
            if s < 12:
                post = "\ns_add_u32 s45, s45, 8192\ns_cmp_eq_u32 s45, s68\ns_cselect_b32 s45, s41, s45" if b else ""
                vm.op(f"buffer_load_dwordx4 {vr(areg(s,b),4)}, v15, s[12:15], s45 offen offset:{b*256} sc1" + post, ("A", s))
            else:
                post = "\ns_add_u32 s47, s47, 8192" if b else ""
                vm.op(f"buffer_load_dwordx4 {vr(areg(s,b),4)}, v15, s[24:27], s47 offen offset:{b*256} sc1" + post, ("A", s))
    def issue_w(s):
        for u in wgroup(s): vm.op(u, ("W", s))
    def run(stages, zero_first):
        vm.wait(("W", 1)); k("s_barrier")
        for j in range(5):
            for i in wread(stages[0], j): k(i)
        pending = []
        for n, s in enumerate(stages):
            if s % 2 == 1:
                assert not pending
                vm.wait(("W", s+2)); k("s_waitcnt lgkmcnt(0)\ns_barrier")
                pending = [(u, s+3) for u in wgroup(s+3)] + [(u, s+4) for u in wgroup(s+4)]
            vm.wait(("A", s))
            for j in range(5):
                if s % 2 == 0: k("s_waitcnt lgkmcnt(8)")
                for b in range(2):
                    k(mfma16(ACC + (5*b+j)*4, WB+4*j, areg(s, b), "0" if (zero_first and n == 0) else None))
                for i in wread(s+1, j): k(i)
                if pending:
                    u, t = pending.pop(0); vm.op(u, ("W", t))
            if s+AW <= stages[-1]: issue_a(s+AW)
        for u, t in pending: vm.op(u, ("W", t))
    for s in range(R): issue_w(s)
    k("s_lshl_b32 s69, s32, 6")
    for i in range(2):
        k(f"""v_add_u32 v3, {512*i}, v0
        v_mul_u32_u24 v{124+i}, 6554, v3
        v_lshrrev_b32 v{124+i}, 16, v{124+i}
        v_mul_u32_u24 v{126+i}, 10, v{124+i}
        v_sub_u32 v{126+i}, v3, v{126+i}
        v_add_u32 v3, s69, v{124+i}
        v_mul_u32_u24 v3, 1280, v3
        v_lshl_add_u32 v3, v{126+i}, 4, v3""")
        vm.op(f"buffer_load_dwordx4 {vr(XR+4*i,4)}, v3, s[20:23], s43 offen", "x")
    lab = k.newlabel("f2p")
    k(f"s_cmp_lg_u32 s4, 0\ns_cbranch_scc1 {lab}")
    polln(k, f"s_lshr_b32 s78, s32, 2\ns_lshl_b32 s78, s78, 5\ns_add_u32 s78, s78, {FL_H}", 32, AB, sleep=4)
    k(f"{lab}:\ns_barrier")
    k.stamp(4)
    for s in range(AW): issue_a(s)
    run(list(range(12)), True)
    k("s_waitcnt lgkmcnt(0)\ns_barrier")
    for i in range(3): k(dma_addr(2, i))
    issue_w(16)
    k(f"""s_mul_i32 s44, s4, 10240
    v_and_b32 v3, 48, v1
    v_lshrrev_b32 v9, 5, v1
    v_add_u32 v9, v9, v1""")
    for j in range(5):
        k(f"""v_add_u32 v{4+j}, {2*j}, v9
        v_and_or_b32 v{4+j}, v{4+j}, 15, v3
        v_lshl_add_u32 v{4+j}, v{4+j}, 4, s44""")
    for i in range(2):
        k(f"""v_lshrrev_b32 v3, 4, v{124+i}
        v_mul_u32_u24 v3, 5120, v3
        v_lshl_add_u32 v3, v{126+i}, 9, v3
        v_add_u32 v{9+i}, v{124+i}, v{126+i}
        v_and_b32 v{9+i}, 15, v{9+i}
        v_lshl_add_u32 v{9+i}, v{9+i}, 4, v3
        v_add_u32 v3, s69, v{124+i}
        v_mul_u32_u24 v3, 1280, v3
        v_lshl_add_u32 v{11+i}, v{126+i}, 4, v3""")
    k.srd(8, P_OUT, SZ)
    k.stamp(5)
    lab = k.newlabel("f2q")
    k(f"s_cmp_lg_u32 s4, 0\ns_cbranch_scc1 {lab}")
    polln(k, f"s_lshr_b32 s78, s32, 2\ns_lshl_b32 s78, s78, 5\ns_add_u32 s78, s78, {FL_O}", 32, AB, sleep=2)
    k(f"{lab}:\ns_waitcnt vmcnt(0)\ns_barrier\ns_setprio {C('prio_tail', 3)}")
    vm.drained()
    k.stamp(6)
    for s in range(12, 17): issue_a(s)
    for s in range(12, 17):
        more = s < 16
        vm.wait(("A", s))
        for j in range(5):
            k(f"s_waitcnt lgkmcnt({8 if more else 8-2*j})")
            for b in range(2): k(mfma16(ACC + (5*b+j)*4, WB+4*j, areg(s, b)))
            if more:
                for i in wread(s+1, j): k(i)
    k("s_barrier\ns_nop 4")
    for j in range(5):
        for b in range(2):
            k(f"ds_write_b128 v{4+j}, {vr(ACC+(5*b+j)*4,4)} offset:{(5*b+j)*1024}")
    k("s_waitcnt lgkmcnt(0)\ns_barrier")
    lab = k.newlabel("f2e"); lab2 = k.newlabel("f2f")
    RB = 16
    def rd(i):
        for q in range(4):
            for h in range(2):
                if i == 1 and q == 3: k("s_waitcnt lgkmcnt(13)")
                k(f"ds_read_b128 {vr(RB + 32*i + 8*q + 4*h, 4)}, v{9+i} offset:{q*20480 + h*256}")
    def fin(i):
        b = RB + 32*i; x = XR + 4*i; t = 80 + 8*i
        for e in range(4): k(f"v_lshlrev_b32 v{t+2*e}, 16, v{x+e}\nv_and_b32 v{t+2*e+1}, 0xffff0000, v{x+e}")
        k("s_waitcnt lgkmcnt(0)")
        for e in range(0, 8, 2): k(f"v_pk_add_f32 {vr(b+e,2)}, {vr(b+e,2)}, {vr(b+8+e,2)}\nv_pk_add_f32 {vr(b+16+e,2)}, {vr(b+16+e,2)}, {vr(b+24+e,2)}")
        for e in range(0, 8, 2): k(f"v_pk_add_f32 {vr(b+e,2)}, {vr(b+e,2)}, {vr(t+e,2)}")
        for e in range(0, 8, 2): k(f"v_pk_add_f32 {vr(b+e,2)}, {vr(b+e,2)}, {vr(b+16+e,2)}")
        for e in range(4): k(f"v_cvt_pk_bf16_f32 v{b+8+e}, v{b+2*e}, v{b+2*e+1}")
        k(f"buffer_store_dwordx4 {vr(b+8,4)}, v{11+i}, s[8:11], s43 offen{' sc1' if C('out_sc1') else ''}")
    rd(0)
    k(f"s_cmp_ge_u32 s4, 2\ns_cbranch_scc1 {lab}")
    rd(1); fin(1)
    k.label(lab)
    fin(0)

def phase_a2(k, force_fallback=False):
    SLOT = 26624; VOFF = 10240
    Lchk, Lchkr, Lloop, Lfin, Lslow, Lsl, Lend = [k.newlabel(x) for x in ("atc", "atcr", "atl", "atf", "ats", "atsl", "ate")]
    k("""s_and_b32 s34, s5, 7
    s_lshr_b32 s35, s5, 3
    s_lshl_b32 s32, s34, 2
    s_lshr_b32 s34, s35, 3
    s_add_u32 s32, s32, s34
    s_and_b32 s33, s35, 7""")
    Q1, Q2 = 16, 20
    K1, K2 = 24, 22
    V0, V1 = 28, 32
    P = 36; T = 44
    CC, O = 48, 64
    S = 80; U = 96
    k("v_and_b32 v3, 31, v1\nv_lshrrev_b32 v4, 5, v1\nv_mov_b32 v15, 0\nv_mov_b32 v100, 0\ns_mov_b32 s3, 0")
    lab = k.newlabel("a2p"); lab2 = k.newlabel("a2q")
    k(f"s_cmp_lg_u32 s4, 4\ns_cbranch_scc1 {lab}")
    get_tag(k, U)
    k(f"""s_mov_b32 s3, 1
    s_mul_i32 s76, s32, 20
    s_add_u32 s77, s76, 19
    s_lshr_b32 s76, s76, 7
    s_lshr_b32 s77, s77, 7
    s_sub_u32 s77, s77, s76
    s_lshl_b32 s78, s33, 1
    v_bfe_u32 v{U+4}, v1, 4, 1
    v_mul_u32_u24 v{U+4}, s77, v{U+4}
    v_add_u32 v{U+4}, s76, v{U+4}
    v_lshlrev_b32 v{U+4}, 4, v{U+4}
    v_add_u32 v{U}, s78, v1
    v_and_b32 v{U+1}, 15, v{U}
    v_mul_u32_u24 v15, 80, v4
    v_add3_u32 v15, v15, v{U+4}, v{U+1}
    v_add_u32 v15, {FL_QKV + 80}, v15
    v_lshlrev_b32 v15, 7, v15
    v_add_u32 v{U}, 12, v{U}
    v_and_b32 v{U}, 15, v{U}
    v_add_u32 v{U}, v{U}, v{U+4}
    v_add_u32 v{U}, {FL_QKV}, v{U}
    v_mov_b32 v{U+4}, v15
    s_mov_b64 exec, 0x00300030
    v_lshlrev_b32 v{U+4}, 7, v{U}
    s_mov_b64 exec, -1
    {lab}:""")
    k("v_mul_u32_u24 v5, 320, v4\nv_lshl_add_u32 v5, v3, 4, v5")
    k(f"""v_lshlrev_b32 v6, 12, v4
    v_lshl_add_u32 v6, v3, 3, v6
    v_add_u32 v7, 256, v6
    v_add_u32 v10, {VOFF}, v2
    s_lshl_b32 s37, s33, 3
    s_add_u32 s37, s37, s4
    s_lshl_b32 s38, s37, 5
    v_add_u32 v11, s38, v3
    v_lshlrev_b32 v11, 3, v11
    v_mov_b32 v12, v11
    v_lshl_add_u32 v11, v4, 15, v11
    s_mul_i32 s39, s32, 81920
    s_mov_b32 s68, 0x000fffff
    s_mov_b32 s69, 0x000fffff
    s_mov_b32 s70, -1
    s_mov_b32 s71, 0""")
    k.srd(8, P_WS, SZ, WS_QP)
    k.srd(12, P_WS, SZ, WS_KP)
    k.srd(16, P_WS, SZ, WS_VI)
    k.srd(20, P_WS, SZ, WS_OF)
    k(f"""s_lshr_b32 s40, s4, 1
    s_lshl_b32 s40, s40, 14
    s_and_b32 s44, s4, 1
    s_lshl_b32 s44, s44, 10
    s_add_u32 s40, s40, s44
    s_add_u32 s40, s40, s39
    s_lshl_b32 s45, s4, 8
    s_add_u32 s41, s45, s39
    s_add_u32 s41, s41, 65536
    s_add_u32 s45, s45, 8192
    s_mul_i32 s42, s4, 1280
    s_add_u32 s42, s42, s39
    s_lshl_b32 s44, s4, 10
    s_lshl_b32 s46, s4, 11
    s_add_u32 s46, s46, {VOFF}
    s_mov_b32 s24, s33
    s_mov_b32 s43, 0""")
    NEXT = "s_lshl_b32 s26, s24, 11\ns_add_u32 s25, s26, s40\ns_add_u32 s26, s26, s41\ns_mul_i32 s27, s24, 10240\ns_add_u32 s27, s27, s42\ns_add_u32 s24, s24, 1\ns_and_b32 s24, s24, 7"
    ADV = f"s_add_u32 s43, s43, {SLOT}\ns_cmp_eq_u32 s43, {3*SLOT}\ns_cselect_b32 s43, 0, s43"
    du = ["s_add_u32 m0, s43, s44\ns_nop 0\nbuffer_load_dwordx4 v2, s[12:15], s25 offen sc1 lds",
          "s_add_u32 m0, s43, s45\ns_mov_b64 exec, 0xffff\nbuffer_load_dwordx4 v2, s[12:15], s26 offen sc1 lds\ns_mov_b64 exec, -1",
          "s_add_u32 m0, s43, s46\ns_mov_b64 exec, s[68:69]\nbuffer_load_dwordx4 v5, s[16:19], s27 offen sc1 lds\ns_mov_b64 exec, -1",
          "s_add_u32 m0, m0, 384\ns_mov_b64 exec, s[68:69]\nbuffer_load_dwordx4 v5, s[16:19], s27 offen offset:640 sc1 lds\ns_mov_b64 exec, -1"]
    k(NEXT)
    k(f"""v_cmp_eq_u32 vcc, 20, v3
    v_cmp_eq_u32 s[34:35], 24, v3
    v_mov_b32 v13, 0x3f803f80
    s_or_b64 vcc, vcc, s[34:35]
    s_nop 1
    v_cndmask_b32 v{T}, 0, v13, vcc""")
    for e in range(1, 4): k(f"v_mov_b32 v{T+e}, v{T}")
    k("v_add_u32 v13, s46, v2\ns_not_b64 exec, s[68:69]")
    for slot in range(3):
        for i in range(2):
            k(f"ds_write_b128 v13, {vr(T,4)} offset:{slot*SLOT + i*1024}")
    k("s_mov_b64 exec, -1")
    for r in list(range(O, O+16)) + [Q2, Q2+1]: k(f"v_mov_b32 v{r}, 0")
    k("s_add_u32 s34, s39, 16384\ns_add_u32 s35, s39, 65536")
    k.stamp(3)
    k(f"s_cmp_lg_u32 s4, 4\ns_cbranch_scc1 {lab2}\ns_mov_b32 exec_lo, 0x003f003f\ns_mov_b32 exec_hi, 0x000f000f")
    poll(k, U+4, "0", U, sleep=1)
    k(f"{lab2}:\ns_barrier")
    k.stamp(4)
    k(f"buffer_load_dwordx2 {vr(Q1,2)}, v11, s[8:11], s39 offen sc1")
    k(f"buffer_load_dwordx2 {vr(Q1+2,2)}, v11, s[8:11], s34 offen sc1")
    k(f"s_mov_b64 exec, s[70:71]\nbuffer_load_dwordx2 {vr(Q2,2)}, v12, s[8:11], s35 offen sc1\ns_mov_b64 exec, -1")
    for u in du: k(u)
    k(NEXT); k(ADV)
    for u in du: k(u)
    if C("go_a2"):
        lab = k.newlabel("a2g")
        k(f"s_cmp_lg_u32 s4, 4\ns_cbranch_scc1 {lab}")
        set_flag(k, f"s_add_u32 s78, s5, {FL_GO}", U+6)
        k.label(lab)
    k("s_waitcnt vmcnt(4) lgkmcnt(0)\ns_barrier")
    def k1read(t):
        tt = t % 8; va = 6 + (tt & 1); a = tt >> 1
        return f"ds_read2st64_b64 {vr(K1,4)}, v{va} offset0:{a} offset1:{a+4}"
    def k2read(t):
        tt = t % 8; va = 6 + (tt & 1); a = tt >> 1
        return f"ds_read_b64 {vr(K2,2)}, v{va} offset:{8192 + a*512}"
    def vread(t, g):
        va = 10
        return f"ds_read_b128 {vr(V1 if g else V0,4)}, v{va} offset:{(t%8)*2048 + g*1024}"
    k(k1read(0)); k(k2read(0))
    k("s_waitcnt lgkmcnt(0)")
    k(mfma(S, K1, Q1, "0")); k(mfma8(S, K2, Q2))
    k(k1read(1)); k(k2read(1)); k(vread(0, 0)); k(vread(0, 1))
    k(f"s_mov_b32 s47, 0\ns_mov_b32 s76, {SLOT}\ns_mov_b32 s77, {(-2*SLOT) & 0xffffffff}\ns_nop 7")
    k(f"v_max3_f32 v{T}, v{S}, v{S+1}, v{S+2}\nv_max3_f32 v{T+1}, v{S+3}, v{S+4}, v{S+5}")
    k(f"v_max3_f32 v{T}, v{T}, v{S+6}, v{S+7}\nv_max3_f32 v{T+1}, v{T+1}, v{S+8}, v{S+9}")
    k(f"v_max3_f32 v{T}, v{T}, v{S+10}, v{S+11}\nv_max3_f32 v{T+1}, v{T+1}, v{S+12}, v{S+13}")
    k(f"v_max3_f32 v{T}, v{T}, v{S+14}, v{S+15}\nv_max_f32 v{T}, v{T}, v{T+1}")
    k(f"v_mov_b32 v{T+1}, v{T}\ns_nop 1\nv_permlane32_swap_b32 v{T}, v{T+1}\ns_nop 1\nv_max_f32 v{T}, v{T}, v{T+1}")
    for e in range(16): k(f"v_sub_f32 v{CC+e}, 0, v{T}")
    for e in range(16): k(f"v_sub_f32 v{S+e}, v{S+e}, v{T}")
    lab = k.newlabel("a2r")
    k(f"s_cmp_lg_u32 s4, 4\ns_cbranch_scc1 {lab}\nbuffer_load_dwordx2 {vr(U,2)}, v15, s[28:31], 0 offen sc1\n{lab}:")
    plo, pmid, phi = C("pp_lo", 0), C("pp_mid", 1), C("pp_hi", 3)
    k(f"s_setprio {plo}")
    k.stamp(5)
    if C("cyc") in (1, 2) and STAMP[0]: k("s_memtime s[82:83]\ns_waitcnt lgkmcnt(0)\ns_mov_b32 s98, 0\ns_mov_b32 s99, 0")
    TB = C("a2_tb", 4)
    LY = k.newlabel("atY"); Lout = k.newlabel("ato")
    nx = NEXT.split("\n"); adv = ADV.split("\n")
    def body(Y, top):
        k(".p2align 6")
        k.label(top)
        for t in range(8):
            for i in range(4):
                for e in range(4):
                    k(f"v_exp_f32 v{S+4*i+e}, v{S+4*i+e}")
                    if i == 0 and e == 0: k(f"s_setprio {pmid}")
                k(f"v_cvt_pk_bf16_f32 v{P+2*i}, v{S+4*i}, v{S+4*i+1}")
                k(f"v_cvt_pk_bf16_f32 v{P+2*i+1}, v{S+4*i+2}, v{S+4*i+3}")
            k(f"s_setprio {phi}")
            if t == TB and Y:
                k(f"s_waitcnt vmcnt(0)\ns_cmp_lg_u32 s3, 0\ns_cbranch_scc1 {Lchk}\n{Lchkr}:\ns_barrier")
            gaps = [[], [], [], []]
            if t == 0: gaps[0] = nx[:4]; gaps[2] = nx[4:]
            if t == 1:
                gaps[0] = adv
                gaps[2] = ["s_cmp_eq_u32 s47, 2", "s_cselect_b32 s36, s77, s76", "s_cmp_eq_u32 s47, 5", "s_cselect_b32 s36, s77, s36"]
            if t == TB+1: gaps[0] = [du[0]]; gaps[2] = [du[1]]
            if t == TB+2: gaps[0] = [du[2]]; gaps[2] = [du[3]]
            if t == 5: gaps[3] = ["v_add_u32 v6, s36, v6", "v_add_u32 v7, s36, v7"]
            if t == 6: gaps[3] = ["v_add_u32 v10, s36, v10"]
            if t == 7: gaps[3 if TB == 5 else 2] = ["s_add_u32 s47, s47, 1", "s_cmp_lt_u32 s47, 8"]
            k("s_waitcnt lgkmcnt(0)")
            k(mfma(S, K1, Q1, vr(CC, 16))); k(k1read(t+2))
            for x in gaps[0]: k(x)
            k(mfma8(S, K2, Q2)); k(k2read(t+2))
            for x in gaps[1]: k(x)
            k(mfma(O, V0, P)); k(vread(t+1, 0))
            for x in gaps[2]: k(x)
            k(mfma(O, V1, P+4)); k(vread(t+1, 1))
            for x in gaps[3]: k(x)
            if t == TB and not Y: k("s_waitcnt vmcnt(0)\ns_barrier")
            k(f"s_setprio {plo}")
        k(f"s_cbranch_scc1 {top}")
    k(f"s_cmp_ge_u32 s4, 4\ns_cbranch_scc1 {LY}")
    body(False, Lloop)
    k(f"s_branch {Lout}")
    body(True, LY)
    k.label(Lout)
    k.stamp(6)
    if C("cyc") in (1, 2) and STAMP[0]: k("s_memtime s[84:85]\ns_waitcnt lgkmcnt(0)\ns_sub_u32 s84, s84, s82\ns_mul_i32 s84, s84, 100\ns_lshr_b32 s84, s84, 10\ns_add_u32 s84, s84, s80\ns_mov_b32 s82, s80")
    if C("cyc") == 2 and STAMP[0]: k("s_mul_i32 s98, s98, 100\ns_lshr_b32 s98, s98, 10\ns_add_u32 s86, s98, s80\ns_mul_i32 s99, s99, 100\ns_lshr_b32 s99, s99, 10\ns_add_u32 s88, s99, s80")
    k(f"""s_setprio 3
    s_mul_i32 s72, s37, 40960
    s_lshl_b32 s73, s32, 10
    s_add_u32 s73, s73, s72
    s_lshr_b32 s74, s32, 2
    s_add_u32 s74, s74, 32
    s_lshl_b32 s74, s74, 10
    s_add_u32 s74, s74, s72
    s_and_b32 s75, s32, 1
    s_lshl_b32 s75, s75, 9
    s_add_u32 s74, s74, s75
    s_and_b32 s75, s32, 2
    s_lshl_b32 s75, s75, 2
    s_add_u32 s74, s74, s75
    s_waitcnt lgkmcnt(0)
    s_mov_b64 exec, s[70:71]
    v_mov_b32 v{T+2}, v{O+12}
    s_not_b64 exec, s[70:71]
    v_mov_b32 v{T+2}, v{O+8}
    s_mov_b64 exec, -1
    s_mov_b32 s72, {f32(2.0**60) if not force_fallback else f32(0.0)}
    v_cmp_ngt_f32 vcc, s72, v{T+2}
    s_nop 1
    s_cbranch_vccnz {Lslow}""")
    k.label(Lfin)
    k(f"v_rcp_f32 v{T}, v{T+2}\ns_nop 0")
    for e in range(12): k(f"v_mul_f32 v{O+e}, v{O+e}, v{T}")
    for e in range(6): k(f"v_cvt_pk_bf16_f32 v{P+e}, v{O+2*e}, v{O+2*e+1}")
    k(f"buffer_store_dwordx4 {vr(P,4)}, v2, s[20:23], s73 offen sc1")
    k(f"s_mov_b64 exec, s[70:71]\nbuffer_store_dwordx2 {vr(P+4,2)}, v2, s[20:23], s74 offen sc1\ns_mov_b64 exec, -1")
    k(f"s_waitcnt vmcnt(0)\ns_barrier\ns_cmp_lg_u32 s4, 4\ns_cbranch_scc1 {Lend}")
    set_flag(k, f"s_lshl_b32 s78, s33, 5\ns_add_u32 s78, s78, s32\ns_add_u32 s78, s78, {FL_O}", T)
    k.label(Lend)
    if C("cyc") == 3 and STAMP[0]: k("s_mul_i32 s96, s96, 100\ns_lshr_b32 s96, s96, 10\ns_add_u32 s86, s96, s80\ns_mul_i32 s98, s98, 100\ns_lshr_b32 s98, s98, 10\ns_add_u32 s88, s98, s80\ns_cmp_eq_u32 s82, 0\ns_cselect_b32 s86, 0, s86\ns_cselect_b32 s88, 0, s88")
    k.stamp(7); k.stamp_flush(0, "s5")
    k("s_endpgm")
    k.label(Lchk)
    k("s_mov_b32 s3, 0")
    poll(k, 15, "0", U, sleep=1, loaded=True)
    k(f"s_branch {Lchkr}")
    k.label(Lslow)
    M = CC
    k(f"""v_lshlrev_b32 v7, 3, v3
    v_lshl_add_u32 v6, v4, 15, v7
    v_mov_b32 v{M}, {f32(-3.0e38)}
    s_mov_b32 s40, s39
    s_mov_b32 s42, s39
    s_mov_b32 s47, 0""")
    for r in range(O, O+16): k(f"v_mov_b32 v{r}, 0")
    for r in range(V0, V0+8): k(f"v_mov_b32 v{r}, 0x3f803f80")
    k.label(Lsl)
    k(f"""s_add_u32 s41, s40, 16384
    s_add_u32 s43, s40, 65536
    buffer_load_dwordx2 {vr(K1,2)}, v6, s[12:15], s40 offen sc1
    buffer_load_dwordx2 {vr(K1+2,2)}, v6, s[12:15], s41 offen sc1
    buffer_load_dwordx2 {vr(K2,2)}, v7, s[12:15], s43 offen sc1
    s_mov_b64 exec, s[68:69]
    buffer_load_dwordx4 {vr(V0,4)}, v5, s[16:19], s42 offen sc1
    buffer_load_dwordx4 {vr(V1,4)}, v5, s[16:19], s42 offen offset:640 sc1
    s_mov_b64 exec, -1
    s_waitcnt vmcnt(0)""")
    k(mfma(S, K1, Q1, "0")); k(mfma8(S, K2, Q2))
    k("s_nop 15\ns_nop 3")
    k(f"v_max3_f32 v{T}, v{S}, v{S+1}, v{M}")
    for e in range(2, 16, 2): k(f"v_max3_f32 v{T}, v{T}, v{S+e}, v{S+e+1}")
    k(f"v_mov_b32 v{T+1}, v{T}\ns_nop 1\nv_permlane32_swap_b32 v{T}, v{T+1}\ns_nop 1\nv_max_f32 v{T}, v{T}, v{T+1}")
    k(f"v_sub_f32 v{T+1}, v{M}, v{T}\nv_exp_f32 v{T+1}, v{T+1}\nv_mov_b32 v{M}, v{T}")
    for e in range(16): k(f"v_mul_f32 v{O+e}, v{O+e}, v{T+1}")
    for e in range(16): k(f"v_sub_f32 v{S+e}, v{S+e}, v{T}")
    for e in range(16): k(f"v_exp_f32 v{S+e}, v{S+e}")
    k("s_nop 0")
    for e in range(8): k(f"v_cvt_pk_bf16_f32 v{P+e}, v{S+2*e}, v{S+2*e+1}")
    k("s_nop 1")
    k(mfma(O, V0, P)); k(mfma(O, V1, P+4))
    k(f"""s_nop 15
    s_nop 3
    s_add_u32 s40, s40, 256
    s_add_u32 s42, s42, 1280
    s_add_u32 s47, s47, 1
    s_cmp_lt_u32 s47, 64
    s_cbranch_scc1 {Lsl}
    v_mov_b32 v{T+2}, v{O+12}
    s_branch {Lfin}""")

NAME = "parallel_sum__softmax_full_mha__glu_gated_swiglu__prompt_kernel"
def fused():
    k = Kern(NAME, 512, 512, 81920)
    k("s_load_dwordx16 s[48:63], s[0:1], 0\ns_load_dwordx4 s[64:67], s[0:1], 64")
    k.stamp_init(); k.stamp(0, wait=False)
    k(f"""v_lshrrev_b32 v1, 6, v0
    s_and_b32 s5, s2, 255
    v_readfirstlane_b32 s4, v1
    v_and_b32 v1, 63, v0
    v_lshlrev_b32 v2, 4, v1
    s_mov_b32 s6, 0
    s_setprio 3
    s_cmp_ge_u32 s2, 512
    s_cbranch_scc1 L_end
    {"s_cmp_lt_u32 s2, 256" if C("ffirst", 1) else "s_cmp_ge_u32 s2, 256"}
    s_cbranch_scc1 L_roleF""")
    k(A1_TILE.format(rb="s32", cb="s33"))
    k("s_cmp_ge_u32 s33, 15\ns_cbranch_scc1 L_skipA1\ns_cmp_lt_u32 s4, 4\ns_cbranch_scc1 L_a1c")
    a1_loader(k, "L_a2")
    k.label("L_roleF")
    k(f"s_setprio {C('prio_f0', 3)}")
    phase_f0(k)
    k(f"s_setprio {C('prio_f', 0)}")
    k.stamp(1)
    if C("nof1"): k("s_branch L_end")
    phase_f1(k)
    if C("nof2"): k("s_branch L_end")
    phase_f2(k, "L_end")
    if STAMP[0]: k("s_waitcnt vmcnt(0)")
    k.stamp(7); k.stamp_flush(1, "s5")
    k.label("L_end"); k("s_endpgm")
    k.label("L_skipA1")
    after_kernarg(k); flags_srd(k)
    k("s_branch L_a2")
    k.label("L_a1c")
    a1_compute(k, "L_a2")
    k.label("L_a2")
    k.mute = C("cyc") in (4, 5)
    phase_a2(k, C("ff"))
    k.label("L_code_end")
    return build([k], single=True)

if __name__ == "__main__":
    STAMP[0] = 2 if "--dstamp" in sys.argv else ("--stamp" in sys.argv)
    for a in sys.argv[2:]:
        if "=" in a:
            n, v = a.split("="); CFG[n] = int(v)
    open(sys.argv[1], "w").write(fused())
```

```python
import sys, math
from asmlib2 import *

SZ = 2621440
WS_XF, WS_QP, WS_KP, WS_VI, WS_OF, WS_HF = 0, SZ, 2*SZ, 3*SZ, 4*SZ, 5*SZ
HF_SZ = 2048*1536*2
WS_ST = WS_HF + HF_SZ
ST_SZ = 32768
WS_CS = WS_ST + ST_SZ
CS_SZ = 15*16*1024
WS_FL = WS_CS + 262144
FL_LN, FL_QKV, FL_GO, FL_H, FL_O, FL_N = 0, 256, 512, 768, 1024, 1280
LOG2E = math.log2(math.e)
QSCALE = 20 ** -0.5 * LOG2E
P_X, P_WQKV, P_WO, P_W1, P_W3, P_W2, P_OUT, P_DBG, P_WS = 48, 50, 52, 56, 58, 60, 62, 64, 66
SPIN_MAX = 100000
CFG = {}
def C(n, d=0): return CFG.get(n, d)

def mod_small(k, s, m, t, maxval):
    q = 1
    while q * m * 2 <= maxval: q *= 2
    while q >= 1:
        k(f"s_cmp_ge_u32 s{s}, {q*m}\ns_cselect_b32 s{t}, {q*m}, 0\ns_sub_u32 s{s}, s{s}, s{t}")
        q //= 2

def tag_load(vt): return f"buffer_load_dwordx2 {vr(vt,2)}, v{vt+2}, s[72:75], 0 offen sc1"
def tag_setup(k, vt):
    k.srd(72, P_DBG, 256)
    k(f"v_mov_b32 v{vt+2}, 0")
def tag_take(k, vt, loaded):
    top = k.newlabel("tg"); mid = k.newlabel("tgm"); done = k.newlabel("tgd")
    k(f"s_mov_b32 s79, {SPIN_MAX}")
    if loaded: k(f"s_branch {mid}")
    k(f"{top}:\n{tag_load(vt)}\ns_waitcnt vmcnt(0)\n{mid}:")
    k(f"""v_readfirstlane_b32 s6, v{vt}
    v_readfirstlane_b32 s7, v{vt+1}
    s_nop 1
    s_cmp_lg_u32 s6, 0
    s_cbranch_scc1 {done}
    s_sleep 2
    s_sub_u32 s79, s79, 1
    s_cmp_lg_u32 s79, 0
    s_cbranch_scc1 {top}
    {done}:""")
def get_tag(k, vt):
    lab = k.newlabel("gt")
    k(f"s_cmp_lg_u32 s6, 0\ns_cbranch_scc1 {lab}")
    tag_setup(k, vt); tag_take(k, vt, False)
    k.label(lab)
def set_flag(k, idx_expr, vt):
    k(idx_expr)
    k(f"""s_lshl_b32 s78, s78, 7
    v_mov_b32 v{vt}, s6
    v_mov_b32 v{vt+1}, s7
    v_mov_b32 v{vt+2}, 0
    s_mov_b64 exec, 1
    buffer_store_dwordx2 {vr(vt,2)}, v{vt+2}, s[28:31], s78 offen sc1
    s_mov_b64 exec, -1""")
def poll(k, voff, soff, vt, sleep=2, loaded=False):
    top = k.newlabel("poll"); done = k.newlabel("polled"); mid = k.newlabel("pmid")
    k(f"s_mov_b32 s79, {SPIN_MAX}")
    if loaded: k(f"s_branch {mid}")
    k(f"{top}:\nbuffer_load_dwordx2 {vr(vt,2)}, v{voff}, s[28:31], {soff} offen sc1\ns_waitcnt vmcnt(0)\n{mid}:")
    k(f"""v_cmp_ne_u64 vcc, s[6:7], {vr(vt,2)}
    s_nop 1
    s_and_b64 exec, exec, vcc
    s_cbranch_scc0 {done}
    s_sleep {sleep}
    s_sub_u32 s79, s79, 1
    s_cmp_lg_u32 s79, 0
    s_cbranch_scc1 {top}
    {done}:
    s_mov_b64 exec, -1""")
def polln(k, idx_expr, n, vt, sleep=2):
    k(idx_expr)
    k(f"s_lshl_b32 s78, s78, 7\nv_lshlrev_b32 v{vt+2}, 7, v1\ns_mov_b32 exec_lo, {hex((1 << n) - 1)}\ns_mov_b32 exec_hi, 0")
    poll(k, vt+2, "s78", vt, sleep)
A1_TILE = """s_and_b32 s34, s5, 7
    s_lshr_b32 s35, s5, 3
    s_and_b32 s36, s34, 1
    s_lshl_b32 s36, s36, 3
    s_and_b32 s37, s35, 7
    s_add_u32 {rb}, s36, s37
    s_lshr_b32 s36, s34, 1
    s_lshl_b32 s36, s36, 2
    s_lshr_b32 s37, s35, 3
    s_add_u32 {cb}, s36, s37"""
def after_kernarg(k):
    k("s_waitcnt lgkmcnt(0)")
def flags_srd(k): k.srd(28, P_WS, FL_N*128, WS_FL)

NAME = "parallel_sum__softmax_full_mha__glu_gated_swiglu__prompt_kernel"
WBASE = 49152; CSO = 16384; STO = 16384 + 1024

def a1_loader(k, Lj):
    vm = VM(k)
    k("""s_and_b32 s36, s4, 3
    s_lshr_b32 s37, s36, 1
    s_lshl_b32 s37, s37, 6
    s_and_b32 s38, s36, 1
    s_add_u32 s37, s37, s38
    s_lshl_b32 s38, s36, 5
    s_cmp_lt_u32 s33, 10
    s_cselect_b32 s37, s37, s38
    s_mov_b32 s38, 1280
    s_cselect_b32 s38, 2560, s38
    s_lshl_b32 s39, s32, 7
    s_add_u32 s37, s37, s39
    s_mul_i32 s37, s37, 1280
    v_lshrrev_b32 v3, 3, v1
    v_lshrrev_b32 v10, 4, v1
    v_and_b32 v11, 7, v1
    v_mul_u32_u24 v12, s38, v3
    v_xor_b32 v13, v10, v11
    v_lshl_add_u32 v12, v13, 4, v12
    v_add_u32 v4, s37, v12
    s_lshl_b32 s39, s38, 3
    v_xor_b32 v5, 64, v4
    v_add_u32 v5, s39, v5
    s_lshl_b32 s39, s38, 4
    v_add_u32 v6, s39, v4
    v_add_u32 v7, s39, v5
    v_lshlrev_b32 v12, 2, v10
    v_and_b32 v13, 15, v1
    v_xor_b32 v13, v13, v12
    s_lshl_b32 s39, s36, 3
    v_add_u32 v12, s39, v10
    v_mul_u32_u24 v14, 3840, v12
    v_lshl_add_u32 v14, v13, 4, v14
    s_lshl_b32 s39, s33, 8
    v_add_u32 v8, s39, v14
    v_add_u32 v9, 15360, v8
    s_mul_i32 s40, s33, 3
    s_add_u32 s40, s40, s32""")
    mod_small(k, 40, 10, 43, 58)
    k(f"""s_mul_i32 s44, s40, {64*3840}
    s_lshl_b32 s45, s40, 7
    s_lshl_b32 s42, s36, 12
    s_lshl_b32 s43, s36, 11
    s_add_u32 s43, s43, {WBASE}""")
    if C("cyc") == 5: k.stamp(3, wait=False)
    after_kernarg(k)
    if C("cyc") == 5: k.stamp(4, wait=False)
    k.srd(12, P_X, SZ)
    k.srd(8, P_WQKV, 640*3840)
    def iss_a(s, half):
        for i in (2*half, 2*half+1):
            if C("diag_nodma") and s > 2: vm.tags[("A", s)] = 0; continue
            vm.op(f"s_add_u32 m0, s42, {(s % 3)*16384 + i*1024}\ns_nop 0\nbuffer_load_dwordx4 v{4+i}, s[12:15], s45 offen{[ '', ' nt', ' sc1'][C('nta')]} lds", ("A", s) if i == 3 else None)
        if half: k("s_add_u32 s45, s45, 128\ns_cmp_eq_u32 s45, 1280\ns_cselect_b32 s45, 0, s45")
    def iss_w(j):
        for i in range(2):
            if C("diag_nodma") and j > 3: vm.tags[("W", j)] = 0; continue
            vm.op(f"s_add_u32 m0, s43, {(j % 4)*8192 + i*1024}\ns_nop 0\nbuffer_load_dwordx4 v{8+i}, s[8:11], s44 offen{[ '', ' nt', ' sc1'][C('nta')]} lds", ("W", j) if i == 1 else None)
        k(f"s_add_u32 s44, s44, {32*3840}\ns_cmp_eq_u32 s44, {640*3840}\ns_cselect_b32 s44, 0, s44")
    iss_a(0, 0); iss_a(0, 1); iss_w(0)
    if C("cyc") == 5: k.stamp(5, wait=False)
    rest = [lambda: iss_w(1), lambda: iss_a(1, 0), lambda: iss_a(1, 1), lambda: iss_w(2), lambda: iss_w(3), lambda: iss_a(2, 0), lambda: iss_a(2, 1)]
    NP = C("a1_np", 1)
    for f in rest[:NP]: f()
    rest = rest[NP:]
    if C("cyc") == 5: k.stamp(6, wait=False)
    flags_srd(k)
    k.srd(16, P_WS, ST_SZ + CS_SZ, WS_ST)
    tag_setup(k, 42)
    k(f"""v_and_b32 v41, 31, v1
    v_lshlrev_b32 v40, 4, v41
    s_lshl_b32 s46, s36, 5
    v_add_lshl_u32 v41, v41, s46, 2
    s_lshl_b32 s46, s32, 2
    s_add_u32 s46, s46, s36
    s_lshl_b32 s46, s46, 9
    s_lshl_b32 s47, s33, 14
    s_lshl_b32 s68, s36, 8
    s_add_u32 s47, s47, s68
    s_add_u32 s47, s47, {ST_SZ}
    v_and_b32 v45, 15, v1
    v_lshlrev_b32 v46, 4, v45
    v_lshl_add_u32 v46, v10, 12, v46
    s_lshl_b32 s68, s36, 7
    v_lshl_add_u32 v45, v45, 3, s68""")
    gl = ["buffer_load_dwordx4 v[16:19], v40, s[16:19], s46 offen sc1"] + \
         [f"buffer_load_dwordx4 {vr(20+4*i,4)}, v46, s[16:19], s47 offen offset:{i*1024} sc1" for i in range(4)]
    JF = C("a1_jf", 10)
    for j in range(20):
        vm.wait(("A", j >> 1)); vm.wait(("W", j))
        if C("cyc") == 5 and j == 0: k.stamp(7, wait=False)
        k("s_barrier")
        if C("cyc") == 4 and j in (4, 8, 12, 16, 18): k.stamp({4: 3, 8: 4, 12: 5, 16: 6, 18: 7}[j], wait=False)
        if j == 0:
            n0 = max(0, C("a1_n0", 4) - NP)
            for f in rest[:n0]: f()
            rest = rest[n0:]
        if j == 1:
            for f in rest: f()
        if j >= 1 and j+3 < 20: iss_w(j+3)
        if j >= 2 and j//2+2 < 10: iss_a(j//2+2, j & 1)
        if j == 2: vm.op(tag_load(42), "tag")
        if j == 6:
            vm.wait("tag"); tag_take(k, 42, True)
        if j == JF:
            for g in gl: vm.op(g, "gr")
        if j == C("go_j", 14) and not C("go_a2") and not C("go_q"):
            lab = k.newlabel("a1g")
            k(f"s_cmp_lg_u32 s4, 5\ns_cbranch_scc1 {lab}")
            set_flag(k, f"s_lshl_b32 s78, s33, 4\ns_add_u32 s78, s78, s32\ns_add_u32 s78, s78, {FL_GO}", 48)
            k.label(lab)
        if j == C("a1_jc", 14):
            vm.wait("gr")
            top = k.newlabel("gr"); done = k.newlabel("grd")
            k(f"s_mov_b32 s79, {SPIN_MAX}\n{top}:")
            k("v_cmp_ne_u64 s[68:69], s[6:7], v[18:19]")
            for i in range(4):
                k(f"v_cmp_ne_u64 vcc, s[6:7], {vr(22+4*i,2)}\ns_nop 0\ns_or_b64 s[68:69], s[68:69], vcc")
            k(f"s_cbranch_scc0 {done}\ns_sleep 2")
            for g in gl: k(g)
            k(f"s_waitcnt vmcnt(0)\ns_sub_u32 s79, s79, 1\ns_cmp_lg_u32 s79, 0\ns_cbranch_scc1 {top}\n{done}:")
        if j == C("a1_jc", 14) + 1:
            k("""v_add_f32 v20, v20, v24
            v_add_f32 v21, v21, v25
            v_add_f32 v28, v28, v32
            v_add_f32 v29, v29, v33
            v_add_f32 v20, v20, v28
            v_add_f32 v21, v21, v29""")
            for sw in ("v_permlane16_swap_b32", "v_permlane32_swap_b32"):
                k(f"v_mov_b32 v22, v20\nv_mov_b32 v23, v21\ns_nop 1\n{sw} v20, v22\n{sw} v21, v23\ns_nop 1\nv_add_f32 v20, v20, v22\nv_add_f32 v21, v21, v23")
        if j == 16:
            k(f"ds_write_b32 v41, v16 offset:{STO}\nds_write_b32 v41, v17 offset:{STO+512}\nds_write_b64 v45, v[20:21] offset:{CSO}")
        if j == 17: k("s_waitcnt lgkmcnt(0)")
    k("s_barrier")
    k(f"s_cmp_lg_u32 s4, 4\ns_cbranch_scc1 {Lj}")
    set_flag(k, f"s_lshl_b32 s78, s33, 4\ns_add_u32 s78, s78, s32\ns_add_u32 s78, s78, {FL_QKV}", 40)
    k(f"s_branch {Lj}")

def a1_compute(k, Lj):
    Lv = k.newlabel("a1v")
    k(f"""s_and_b32 s36, s4, 1
    s_lshr_b32 s37, s4, 1
    v_and_b32 v3, 31, v1
    v_lshrrev_b32 v10, 5, v1
    s_lshl_b32 s38, s36, 6
    v_add_u32 v11, s38, v3
    v_lshlrev_b32 v11, 7, v11
    v_bfe_u32 v12, v1, 1, 3
    v_xor_b32 v12, v12, v10
    v_lshl_add_u32 v4, v12, 4, v11
    v_xor_b32 v5, 32, v4
    v_xor_b32 v6, 64, v4
    v_xor_b32 v7, 96, v4
    v_bfe_u32 v13, v1, 2, 2
    v_lshl_add_u32 v14, v10, 3, v13
    v_lshlrev_b32 v14, 8, v14
    v_bfe_u32 v15, v1, 4, 1
    v_lshl_add_u32 v14, v15, 5, v14
    v_and_b32 v15, 3, v1
    v_lshl_add_u32 v14, v15, 3, v14
    v_lshl_add_u32 v14, v13, 6, v14
    s_lshl_b32 s38, s37, 7
    v_xor_b32 v14, s38, v14
    v_add_u32 v8, {WBASE}, v14
    v_xor_b32 v9, 64, v8""")
    if C("cpf"):
        lab = k.newlabel("cpf"); here = k.newlabel("pc")
        k(f"""s_lshr_b32 s38, s5, 3
        s_and_b32 s38, s38, 15
        s_lshl_b32 s38, s38, 2
        s_add_u32 s38, s38, s4
        s_lshl_b32 s38, s38, 10
        s_cmp_ge_u32 s38, (L_code_end - {NAME}) - 1024
        s_cbranch_scc1 {lab}
        s_getpc_b64 s[40:41]
        {here}:
        s_sub_u32 s40, s40, {here} - {NAME}
        s_subb_u32 s41, s41, 0
        s_add_u32 s40, s40, s38
        s_addc_u32 s41, s41, 0
        v_mov_b32 v17, s41
        v_add_co_u32 v16, vcc, s40, v2
        s_nop 1
        v_addc_co_u32 v17, vcc, 0, v17, vcc
        global_load_dwordx4 v[116:119], v[16:17], off
        {lab}:""")
    after_kernarg(k)
    flags_srd(k)
    ACC = 16; FR = 80
    def reads(n):
        if n >= 40: return []
        s, ks, j = n >> 2, n & 3, n >> 1
        f = FR + (n % 3)*16
        ao = (s % 3)*16384; wo = (j % 4)*8192 + (n & 1)*4096
        return [f"ds_read_b64_tr_b16 {vr(f+8,2)}, v8 offset:{wo}", f"ds_read_b64_tr_b16 {vr(f+10,2)}, v8 offset:{wo+1024}",
                f"ds_read_b128 {vr(f,4)}, v{4+ks} offset:{ao}", f"ds_read_b128 {vr(f+4,4)}, v{4+ks} offset:{ao+4096}",
                f"ds_read_b64_tr_b16 {vr(f+12,2)}, v9 offset:{wo}", f"ds_read_b64_tr_b16 {vr(f+14,2)}, v9 offset:{wo+1024}"]
    def loop(swap):
        if C("cpf"): k("s_waitcnt vmcnt(0)")
        k("s_barrier")
        k.stamp(1)
        if C("cyc") == 3 and STAMP[0]: k("s_memtime s[96:97]\ns_mov_b32 s98, 0\ns_waitcnt lgkmcnt(0)")
        for i in reads(0) + reads(1): k(i)
        for n in range(40):
            f = FR + (n % 3)*16
            rd = reads(n+2)
            if n % 2 == 0: k("s_waitcnt lgkmcnt(6)")
            for m, (q, b) in enumerate(((0, 0), (0, 1), (1, 1), (1, 0))):
                a_, b_ = f+8+4*q, f+4*b
                if swap: a_, b_ = b_, a_
                if not C("diag_nomfma") or n == 0: k(mfma(ACC + (2*q+b)*16, a_, b_, "0" if n == 0 else None))
                if n % 2 == 0:
                    if m == 2:
                        k("s_waitcnt lgkmcnt(0)")
                        if n < 38: k("s_barrier")
                    if m >= 2:
                        for i in rd[3*(m-2):3*(m-2)+3]: k(i)
                elif m < 2:
                    for i in rd[3*m:3*m+3]: k(i)
        k.stamp(2)
        if C("cyc") == 3 and STAMP[0]: k("s_memtime s[72:73]\ns_waitcnt lgkmcnt(0)\ns_sub_u32 s96, s72, s96")
    k(f"s_cmp_ge_u32 s33, 10\ns_cbranch_scc1 {Lv}")
    k.srd(16, P_WS, 2*SZ, WS_QP)
    k(f"""s_cmp_lt_u32 s33, 5
    s_cselect_b32 s47, {f32(QSCALE)}, 1.0
    s_lshl_b32 s38, s36, 6
    v_lshl_add_u32 v11, v3, 1, s38
    v_lshlrev_b32 v12, 2, v11
    s_lshl_b32 s38, s37, 8
    v_lshl_add_u32 v13, v10, 4, s38
    v_lshlrev_b32 v11, 3, v11
    s_lshl_b32 s39, s32, 10
    v_add_u32 v11, s39, v11
    v_lshl_add_u32 v11, v10, 14, v11
    s_lshl_b32 s40, s33, 19
    s_lshl_b32 s41, s37, 18
    s_add_u32 s40, s40, s41""")
    loop(False)
    k(f"ds_read_b64 v[4:5], v12 offset:{STO}\nds_read_b64 v[6:7], v12 offset:{STO+512}")
    for q in range(2):
        for j in range(4):
            k(f"ds_read_b128 {vr(FR+16*q+4*j,4)}, v13 offset:{CSO + q*128 + j*32}")
    k("s_waitcnt lgkmcnt(8)\nv_mul_f32 v6, s47, v6\nv_mul_f32 v7, s47, v7")
    for q in range(2):
        for j in range(4):
            k(f"s_waitcnt lgkmcnt({7 - (4*q+j)})")
            c = FR+16*q+4*j; d = 112 + 4*((4*q+j) % 4)
            for b in range(2):
                a = ACC + (2*q+b)*16 + 4*j
                if C("pk"):
                    for e in (0, 2): k(f"v_pk_fma_f32 {vr(a+e,2)}, v[4:5], {vr(c+e,2)}, {vr(a+e,2)} op_sel:[{b},0,0] op_sel_hi:[{b},1,1] neg_lo:[1,0,0] neg_hi:[1,0,0]")
                else:
                    for e in range(4): k(f"v_fma_f32 v{a+e}, -v{4+b}, v{c+e}, v{a+e}")
            for b in range(2):
                a = ACC + (2*q+b)*16 + 4*j
                if C("pk"):
                    for e in (0, 2): k(f"v_pk_mul_f32 {vr(a+e,2)}, {vr(a+e,2)}, v[6:7] op_sel:[0,{b}] op_sel_hi:[1,{b}]")
                else:
                    for e in range(4): k(f"v_mul_f32 v{a+e}, v{a+e}, v{6+b}")
            for b in range(2):
                a = ACC + (2*q+b)*16 + 4*j
                k(f"v_cvt_pk_bf16_f32 v{d+2*b}, v{a}, v{a+1}\nv_cvt_pk_bf16_f32 v{d+2*b+1}, v{a+2}, v{a+3}")
            k(f"s_add_u32 s41, s40, {(8*q+2*j)*16384}")
            k(f"buffer_store_dwordx4 {vr(d,4)}, v11, s[16:19], s41 offen sc1")
    k(f"s_waitcnt vmcnt(0)\ns_barrier\ns_branch {Lj}")
    k.label(Lv)
    k.srd(16, P_WS, SZ, WS_VI)
    k(f"""s_lshl_b32 s39, s37, 6
    v_add_u32 v12, s39, v3
    v_lshlrev_b32 v12, 2, v12
    s_lshl_b32 s40, s36, 8
    v_lshl_add_u32 v11, v10, 4, s40
    s_sub_u32 s38, s33, 10
    s_lshl_b32 s38, s38, 7
    s_add_u32 s38, s38, s39
    s_mov_b32 s41, {81920-320}""")
    for q in range(2):
        k(f"""v_add_u32 v112, s38, v3
        v_add_u32 v112, {32*q}, v112
        v_mul_u32_u24 v15, 3277, v112
        v_lshrrev_b32 v15, 16, v15
        v_mul_lo_u32 v15, v15, s41
        v_lshl_add_u32 v15, v112, 4, v15
        v_mul_u32_u24 v112, 320, v10
        v_add_u32 v{13+q}, v15, v112""")
    k("s_lshl_b32 s40, s32, 1\ns_add_u32 s40, s40, s36\ns_mul_i32 s40, s40, 2560")
    loop(True)
    k(f"ds_read_b32 v6, v12 offset:{CSO}\nds_read_b32 v7, v12 offset:{CSO+128}")
    for b in range(2):
        for j in range(4):
            k(f"ds_read_b128 {vr(FR+4*j,4)}, v11 offset:{STO + b*128 + j*32}")
            k(f"ds_read_b128 {vr(FR+16+4*j,4)}, v11 offset:{STO + 512 + b*128 + j*32}")
        k("s_waitcnt lgkmcnt(0)")
        if b == 0: k("s_nop 1")
        for q in range(2):
            a = ACC + (2*q+b)*16
            for g in range(2):
                d = 112 + 4*(2*q+g)
                if C("pk"):
                    for r in range(8*g, 8*g+8, 2): k(f"v_pk_fma_f32 {vr(a+r,2)}, {vr(FR+r,2)}, v[6:7], {vr(a+r,2)} op_sel:[0,{q},0] op_sel_hi:[1,{q},1] neg_lo:[1,0,0] neg_hi:[1,0,0]")
                    for r in range(8*g, 8*g+8, 2): k(f"v_pk_mul_f32 {vr(a+r,2)}, {vr(a+r,2)}, {vr(FR+16+r,2)}")
                else:
                    for r in range(8*g, 8*g+8): k(f"v_fma_f32 v{a+r}, -v{FR+r}, v{6+q}, v{a+r}")
                    for r in range(8*g, 8*g+8): k(f"v_mul_f32 v{a+r}, v{a+r}, v{FR+16+r}")
                for e in range(4): k(f"v_cvt_pk_bf16_f32 v{d+e}, v{a+8*g+2*e}, v{a+8*g+2*e+1}")
                k(f"buffer_store_dwordx4 {vr(d,4)}, v{13+q}, s[16:19], s40 offen offset:{b*1280 + g*640} sc1")
    k("s_waitcnt vmcnt(0)\ns_barrier")

def f1_w_early(k):
    UOFF = 12288 + 128; SLOT = 24704
    k(f"""s_and_b32 s68, s34, 1
    s_lshl_b32 s68, s68, 2
    s_and_b32 s69, s35, 3
    s_add_u32 s68, s68, s69
    s_lshr_b32 s69, s34, 1
    s_lshl_b32 s69, s69, 3
    s_lshr_b32 s70, s35, 2
    s_add_u32 s69, s69, s70
    s_cmp_lt_u32 s4, 4
    s_cselect_b32 s24, s{P_W1}, s{P_W3}
    s_cselect_b32 s25, s{P_W1+1}, s{P_W3+1}
    s_cselect_b32 s70, 0, {UOFF}
    s_mov_b32 s26, {640*3072}
    s_mov_b32 s27, 0x00020000
    s_and_b32 s71, s4, 3
    s_mul_i32 s76, s71, 3072
    s_add_u32 s70, s70, s76
    s_lshl_b32 s71, s71, 5
    s_mul_i32 s76, s69, 96
    s_add_u32 s68, s68, s69""")
    mod_small(k, 68, 5, 69, 38)
    k(f"s_mul_i32 s68, s68, {128*3072}")
    for i in range(3):
        k(f"""v_add_u32 v103, {64*i}, v1
        v_mul_u32_u24 v104, 10923, v103
        v_lshrrev_b32 v104, 16, v104
        v_mul_u32_u24 v105, 6, v104
        v_sub_u32 v105, v103, v105
        v_add_u32 v104, s71, v104
        v_mul_u32_u24 v104, 3072, v104
        v_lshl_add_u32 v104, v105, 4, v104
        v_add_u32 v{100+i}, s76, v104""")
    for st in range(2):
        for i in range(3):
            k(f"s_add_u32 m0, s70, {st*SLOT + i*1024}\ns_nop 0\nbuffer_load_dwordx4 v{100+i}, s[24:27], s68 offen lds")
        k(f"s_add_u32 s68, s68, {128*3072}\ns_cmp_eq_u32 s68, {640*3072}\ns_cselect_b32 s68, 0, s68")

def phase_f0(k):
    RS = 1312; LB = 2*24704; LC = LB + 8*RS
    k(A1_TILE.format(rb="s41", cb="s42"))
    k(f"""s_and_b32 s40, s34, 1
    s_lshl_b32 s40, s40, 2
    s_lshr_b32 s36, s34, 1
    s_add_u32 s40, s40, s36
    s_lshl_b32 s40, s40, 5
    s_add_u32 s40, s40, s35
    s_lshl_b32 s32, s40, 3
    s_add_u32 s32, s32, s4
    s_mul_i32 s33, s32, 1280
    v_lshlrev_b32 v3, 2, v1
    s_mul_i32 s38, s41, 40
    s_mul_i32 s39, s4, 5
    s_add_u32 s38, s38, s39
    s_mul_i32 s38, s38, 3840
    s_min_u32 s39, s42, 14
    s_lshl_b32 s39, s39, 8
    s_add_u32 s38, s38, s39""")
    after_kernarg(k)
    k.srd(8, P_X, SZ)
    for i in range(5):
        k(f"buffer_load_dword v{8+i}, v3, s[8:11], s33 offen offset:{i*256}")
    k.srd(20, P_WQKV, 640*3840)
    for i in range(5):
        k(f"buffer_load_dword v{48+i}, v3, s[20:23], s38 offen" + ("\ns_add_u32 s38, s38, 3840" if i < 4 else ""))
    def pf():
        k("s_lshl_b32 s43, s5, 3\ns_add_u32 s43, s43, s4\ns_mul_i32 s43, s43, 960")
        for j, p in enumerate((P_W1, P_W3)):
            k.srd(24, p, 640*3072)
            k(f"buffer_load_dwordx4 {vr(64+4*j,4)}, v2, s[24:27], s43 offen")
    if C("pf") == 1: pf()
    if C("f1_early") == 3: f1_w_early(k)
    tag_setup(k, 44)
    lab = k.newlabel("tag")
    k(f"""s_or_b32 s7, s5, s4
    s_cmp_lg_u32 s7, 0
    s_cbranch_scc1 {lab}
    s_memrealtime s[76:77]
    s_waitcnt lgkmcnt(0)
    s_or_b32 s76, s76, 1
    v_mov_b32 v18, s76
    v_mov_b32 v19, s77
    s_mov_b64 exec, 1
    buffer_store_dwordx2 v[18:19], v46, s[72:75], 0 offen sc1
    s_mov_b64 exec, -1
    {lab}:""")
    flags_srd(k)
    k.srd(12, P_WS, SZ, WS_XF)
    k.srd(16, P_WS, ST_SZ + CS_SZ, WS_ST)
    k(f"""s_mul_i32 s34, s4, {RS}
    s_add_u32 s34, s34, {LB}
    v_add_u32 v4, s34, v3
    v_and_b32 v5, 7, v0
    v_lshrrev_b32 v6, 3, v0
    v_mul_u32_u24 v7, {RS}, v5
    v_lshl_add_u32 v7, v6, 4, v7
    v_add_u32 v7, {LB}, v7
    v_lshlrev_b32 v6, 9, v6
    v_lshl_add_u32 v6, v5, 4, v6
    s_lshr_b32 s35, s40, 2
    s_mul_i32 s35, s35, 40960
    s_and_b32 s36, s40, 3
    s_lshl_b32 s36, s36, 7
    s_add_u32 s35, s35, s36
    s_add_u32 s36, s35, 32768
    s_lshl_b32 s37, s32, 4
    v_lshlrev_b32 v47, 3, v0
    v_lshlrev_b32 v43, 3, v1
    s_lshl_b32 s38, s42, 4
    s_add_u32 s38, s38, s41
    s_lshl_b32 s38, s38, 10
    s_add_u32 s38, s38, {ST_SZ}""")
    X = 16
    for i in range(5):
        k(f"s_waitcnt vmcnt({9-i + (2 if C('pf') == 1 else 0) + (6 if C('f1_early') == 3 else 0)})")
        if i == 4:
            k(tag_load(44))
            if C("pf") == 2: pf()
        k(f"v_lshlrev_b32 v{X+2*i}, 16, v{8+i}\nv_and_b32 v{X+2*i+1}, 0xffff0000, v{8+i}")
    def reduce(v, t):
        for r in (8, 4, 2, 1):
            k(f"s_nop 1\nv_add_f32_dpp v{v}, v{v}, v{v} row_ror:{r} row_mask:0xf bank_mask:0xf")
        k(f"v_mov_b32 v{t}, v{v}\ns_nop 1\nv_permlane16_swap_b32 v{v}, v{t}\ns_nop 1\nv_add_f32 v{v}, v{v}, v{t}")
        k(f"v_mov_b32 v{t}, v{v}\ns_nop 1\nv_permlane32_swap_b32 v{v}, v{t}\ns_nop 1\nv_add_f32 v{v}, v{v}, v{t}")
    M, V, T = 28, 29, 30
    k(f"v_add_f32 v{M}, v{X}, v{X+1}\nv_add_f32 v{T}, v{X+2}, v{X+3}")
    for i in range(4, 10, 2):
        k(f"v_add_f32 v{M}, v{M}, v{X+i}\nv_add_f32 v{T}, v{T}, v{X+i+1}")
    k(f"v_add_f32 v{M}, v{M}, v{T}")
    reduce(M, T)
    k(f"v_mul_f32 v{M}, {f32(1/640)}, v{M}")
    for i in range(10): k(f"v_sub_f32 v{32+i}, v{X+i}, v{M}")
    k(f"v_mul_f32 v{V}, v32, v32\nv_mul_f32 v{T}, v33, v33")
    for i in range(2, 10, 2):
        k(f"v_fmac_f32 v{V}, v{32+i}, v{32+i}\nv_fmac_f32 v{T}, v{33+i}, v{33+i}")
    k(f"v_add_f32 v{V}, v{V}, v{T}")
    reduce(V, T)
    k(f"v_mul_f32 v{V}, {f32(1/640)}, v{V}")
    def rb(v): k(f"v_cvt_pk_bf16_f32 v{v}, v{v}, v{v}\nv_lshlrev_b32 v{v}, 16, v{v}")
    rb(M); rb(V)
    k(f"v_add_f32 v{V}, {f32(1e-5)}, v{V}"); rb(V)
    k(f"v_sqrt_f32 v{V}, v{V}\ns_nop 0"); rb(V)
    k(f"v_rcp_f32 v{V}, v{V}\ns_waitcnt vmcnt({2 if C('pf') == 2 else 0})")
    tag_take(k, 44, True)
    k(f"v_mov_b32 v{T}, s6\nv_mov_b32 v{T+1}, s7")
    k(f"s_mov_b64 exec, 1\nbuffer_store_dwordx4 {vr(M,4)}, v46, s[16:19], s37 offen sc1\ns_mov_b64 exec, -1")
    k("v_lshlrev_b32 v32, 16, v48\nv_and_b32 v33, 0xffff0000, v48")
    for i in range(1, 5):
        k(f"v_lshlrev_b32 v34, 16, v{48+i}\nv_and_b32 v35, 0xffff0000, v{48+i}\nv_add_f32 v32, v32, v34\nv_add_f32 v33, v33, v35")
    k(f"ds_write_b64 v47, v[32:33] offset:{LC}")
    for i in range(5):
        a, b = X+2*i, X+2*i+1
        k(f"v_sub_f32 v{a}, v{a}, v{M}\nv_sub_f32 v{b}, v{b}, v{M}")
        k(f"v_cvt_pk_bf16_f32 v{b}, v{a}, v{b}")
        k(f"v_lshlrev_b32 v{a}, 16, v{b}\nv_and_b32 v{b}, 0xffff0000, v{b}")
        k(f"v_mul_f32 v{a}, v{a}, v{V}\nv_mul_f32 v{b}, v{b}, v{V}")
        k(f"v_cvt_pk_bf16_f32 v{8+i}, v{a}, v{b}")
        k(f"ds_write_b32 v4, v{8+i} offset:{i*256}")
    k("s_waitcnt lgkmcnt(0)\ns_barrier")
    l1 = k.newlabel("f0w"); l2 = k.newlabel("f0c")
    k(f"ds_read_b128 v[8:11], v7\ns_cmp_lg_u32 s4, 2\ns_cbranch_scc1 {l2}")
    for i in range(8): k(f"ds_read_b64 {vr(48+2*i,2)}, v43 offset:{LC + i*512}")
    k("s_waitcnt lgkmcnt(0)")
    for st in (8, 4, 2):
        for e in range(st): k(f"v_add_f32 v{48+e}, v{48+e}, v{48+st+e}")
    k(f"v_mov_b32 v50, s6\nv_mov_b32 v51, s7\nbuffer_store_dwordx4 v[48:51], v2, s[16:19], s38 offen sc1\n{l2}:")
    k(f"""s_cmp_ge_u32 s4, 2
    s_cbranch_scc1 {l1}
    ds_read_b128 v[12:15], v7 offset:1024
    s_waitcnt lgkmcnt(0)
    buffer_store_dwordx4 v[12:15], v6, s[12:15], s36 offen sc1
    {l1}:
    s_waitcnt lgkmcnt(0)
    buffer_store_dwordx4 v[8:11], v6, s[12:15], s35 offen sc1""")
    if C("tlb"):
        lab = k.newlabel("f0t")
        k(f"s_cmp_lg_u32 s4, 3\ns_cbranch_scc1 {lab}\nv_lshlrev_b32 v64, {C('tlb_sh', 19)}, v1")
        for j, (p, n) in enumerate(((P_WS, WS_FL + FL_N*128), (P_OUT, SZ), (P_W2, 1536*1280), (P_WO, 640*1280))):
            k.srd(24, p, n)
            k(f"buffer_load_dword v{65+j}, v64, s[24:27], 0 offen")
        k.label(lab)
    lab = k.newlabel("f0p")
    k(f"s_waitcnt vmcnt(0)\ns_barrier\ns_cmp_lg_u32 s4, 0\ns_cbranch_scc1 {lab}")
    set_flag(k, f"s_add_u32 s78, s40, {FL_LN}", 8)
    k.label(lab)

def gemm2(k, vm, stages, ksteps, NB, acc, wbuf, R, wgroup, wread, aload, areg, AW, nst_total, zero_first,
          hook=None, lead=None):
    steps = [(s, ks) for s in stages for ks in range(ksteps)]
    wb = lambda n, nb: wbuf + ((n & 1) * NB + nb) * 4
    vm.wait(("W", stages[0]))
    k("s_barrier")
    for nb in range(NB):
        for i in wread(stages[0], 0, nb, wb(0, nb)): k(i)
    pending = []
    for n, (s, ks) in enumerate(steps):
        last = (n == len(steps)-1)
        if hook: hook(n)
        if ks == ksteps-1 and not last:
            assert not pending
            vm.wait(("W", s+1))
            k("s_barrier")
            if s+R-1 < nst_total and ("W", s+R-1) not in vm.tags:
                pending = [(u, i) for i, u in enumerate(wgroup(s+R-1))]
                plast = len(pending)-1; ps = s+R-1
        vm.wait(("A", s, ks))
        for nb in range(NB):
            k(f"s_waitcnt lgkmcnt({2*(NB-1-nb) if last else 2*(NB-1)})")
            k(mfma(acc+16*nb, wb(n, nb), areg(n), "0" if (n == 0 and zero_first) else None))
            if not last:
                s2, ks2 = steps[n+1]
                for i in wread(s2, ks2, nb, wb(n+1, nb)): k(i)
            if pending and nb != NB-1:
                u, i = pending.pop(0)
                vm.op(u, ("W", ps) if i == plast else None)
        w = lead(n) if lead else AW
        for m in range(n+1, min(n+w+1, len(steps))):
            s2, ks2 = steps[m]
            if ("A", s2, ks2) not in vm.tags:
                vm.op(aload(s2, ks2, areg(m)), ("A", s2, ks2))
    assert not pending

def phase_f1(k):
    R = 3; UOFF = 12288 + 128; SLOT = 24704
    vm = VM(k)
    k("""s_and_b32 s34, s5, 7
    s_lshr_b32 s35, s5, 3
    s_and_b32 s36, s34, 1
    s_lshl_b32 s36, s36, 2
    s_and_b32 s37, s35, 3
    s_add_u32 s32, s36, s37
    s_lshr_b32 s36, s34, 1
    s_lshl_b32 s36, s36, 3
    s_lshr_b32 s37, s35, 2
    s_add_u32 s33, s36, s37""")
    k(f"""s_cmp_lt_u32 s4, 4
    s_cselect_b32 s8, s{P_W1}, s{P_W3}
    s_cselect_b32 s9, s{P_W1+1}, s{P_W3+1}
    s_cselect_b32 s42, 0, {UOFF}
    s_mov_b32 s10, {640*3072}
    s_mov_b32 s11, 0x00020000
    s_and_b32 s36, s4, 3
    s_mul_i32 s37, s36, 3072
    s_add_u32 s42, s42, s37
    s_lshl_b32 s36, s36, 5
    s_mul_i32 s37, s33, 96""")
    if C("diag_x"): k.srd(12, P_X, SZ)
    else: k.srd(12, P_WS, SZ, WS_XF)
    k.srd(16, P_WS, HF_SZ, WS_HF)
    for i in range(3):
        k(f"""v_add_u32 v3, {64*i}, v1
        v_mul_u32_u24 v8, 10923, v3
        v_lshrrev_b32 v8, 16, v8
        v_mul_u32_u24 v9, 6, v8
        v_sub_u32 v9, v3, v9
        v_add_u32 v8, s36, v8
        v_mul_u32_u24 v8, 3072, v8
        v_lshl_add_u32 v8, v9, 4, v8
        v_add_u32 v{4+i}, s37, v8""")
    k(f"""v_lshrrev_b32 v12, 5, v1
    v_bfe_u32 v13, v1, 2, 2
    v_lshl_add_u32 v14, v12, 3, v13
    v_mul_u32_u24 v14, 96, v14
    v_bfe_u32 v15, v1, 4, 1
    v_mul_u32_u24 v15, {UOFF}, v15
    v_add_u32 v14, v14, v15
    v_and_b32 v15, 3, v1
    v_lshl_add_u32 v8, v15, 3, v14
    v_add_u32 v3, 4096, v2""")
    k("s_add_u32 s40, s32, s33")
    mod_small(k, 40, 5, 43, 38)
    k(f"""s_lshl_b32 s46, s32, 3
    s_add_u32 s46, s46, s4
    s_mul_i32 s41, s46, 40960
    s_mul_i32 s44, s40, {128*3072}
    s_lshl_b32 s45, s40, 13
    s_add_u32 s45, s45, s41
    s_add_u32 s47, s41, 40960""")
    ACC, WB, AB = 16, 64, 88
    def wgroup(s):
        u = []
        for i in range(3):
            post = f"\ns_add_u32 s44, s44, {128*3072}\ns_cmp_eq_u32 s44, {640*3072}\ns_cselect_b32 s44, 0, s44" if i == 2 else ""
            u.append(f"s_add_u32 m0, s42, {(s % R)*SLOT + i*1024}\ns_nop 0\nbuffer_load_dwordx4 v{4+i}, s[8:11], s44 offen{' nt' if C('nt1') else ''} lds" + post)
        return u
    def wread(s, ks, nb, dst):
        o = (s % R)*SLOT + ks*16*96 + nb*32
        return [f"ds_read_b64_tr_b16 {vr(dst,2)}, v8 offset:{o}", f"ds_read_b64_tr_b16 {vr(dst+2,2)}, v8 offset:{o+4*96}"]
    def aload(s, ks, dst):
        post = "\ns_add_u32 s45, s45, 8192\ns_cmp_eq_u32 s45, s47\ns_cselect_b32 s45, s41, s45" if ks == 7 else ""
        return f"buffer_load_dwordx4 {vr(dst,4)}, v{3 if ks >= 4 else 2}, s[12:15], s45 offen offset:{(ks%4)*1024} sc1" + post
    AW = C("f1_aw", 8)
    areg = lambda n: AB + 4*(n % AW)
    def wpro():
        for s in range(R-1):
            g = wgroup(s)
            for i, u in enumerate(g):
                thr(); vm.op(u, ("W", s) if i == len(g)-1 else None)
    def thr():
        if C("f1_thr") and vm.n >= C("f1_thr"): k(f"s_waitcnt vmcnt({C('f1_thr')-1})")
    def apro():
        for ks in range(AW):
            thr(); vm.op(aload(0, ks, areg(ks)), ("A", 0, ks))
    def go_poll():
        polln(k, f"s_add_u32 s78, s5, {FL_GO}" if C("go_a2") else f"""s_and_b32 s68, s34, 1
        s_lshl_b32 s68, s68, 3
        s_and_b32 s69, s35, 7
        s_add_u32 s68, s68, s69
        s_lshr_b32 s69, s34, 1
        s_lshl_b32 s69, s69, 2
        s_lshr_b32 s70, s35, 3
        s_add_u32 s69, s69, s70
        s_min_u32 s69, s69, 14
        s_lshl_b32 s78, s69, 4
        s_add_u32 s78, s78, s68
        s_add_u32 s78, s78, {FL_QKV if C("go_q") else FL_GO}""", 1, 10, sleep=C("go_sleep", 4))
    early = C("f1_early", 0)
    if early == 3:
        k("s_mov_b32 s44, s68"); vm.tags[("W", 0)] = 0; vm.tags[("W", 1)] = 0
    elif early >= 1: wpro()
    lab = k.newlabel("f1p")
    k(f"s_cmp_lg_u32 s4, 0\ns_cbranch_scc1 {lab}")
    polln(k, f"s_lshl_b32 s78, s32, 5\ns_add_u32 s78, s78, {FL_LN}", 32, 10, sleep=4)
    if early < 2 and C("f1_hold", 1): go_poll()
    k(f"{lab}:\ns_barrier")
    if early < 1: wpro()
    apro()
    if early >= 2 and C("f1_hold", 1):
        lab = k.newlabel("f1g")
        k(f"s_cmp_lg_u32 s4, 0\ns_cbranch_scc1 {lab}")
        go_poll()
        k.label(lab)
    k.stamp(2)
    def hook(n):
        if n == C("f1_sw", 99): k(f"s_setprio {C('prio_f1b', 1)}")
    gemm2(k, vm, list(range(5)), 8, 3, ACC, WB, R, wgroup, wread, aload, areg, AW, 5, True, hook, lambda n: C("f1_lead", 8) if n < C("f1_leadn", 24) else AW)
    k.stamp(3)
    k(f"""s_mul_i32 s36, s46, 96
    s_mul_i32 s37, s33, 3
    s_add_u32 s36, s36, s37
    s_lshl_b32 s36, s36, 10
    s_mov_b32 s38, {f32(-LOG2E)}
    s_setprio {C('prio_f1e', 3)}
    s_nop 7""")
    for nb in range(3):
        a = ACC + 16*nb; t = WB + 8*(nb % 2); d = AB + 4*nb
        for e in range(8): k(f"v_mul_f32 v{t+e}, s38, v{a+e}")
        for e in range(8): k(f"v_exp_f32 v{t+e}, v{t+e}")
        for e in range(8): k(f"v_mul_f32 v{a+e}, v{a+e}, v{a+8+e}")
        for e in range(8): k(f"v_add_f32 v{t+e}, 1.0, v{t+e}")
        for e in range(8): k(f"v_rcp_f32 v{t+e}, v{t+e}")
        k("s_nop 0")
        for e in range(8): k(f"v_mul_f32 v{a+e}, v{a+e}, v{t+e}")
        for e in range(4): k(f"v_cvt_pk_bf16_f32 v{d+e}, v{a+2*e}, v{a+2*e+1}")
        k(f"buffer_store_dwordx4 {vr(d,4)}, v2, s[16:19], s36 offen offset:{nb*1024} sc1")
    k(f"s_setprio {C('prio_f2', 2)}")
    if True:
        lab = k.newlabel("f1f")
        k(f"s_waitcnt vmcnt(0)\ns_barrier\ns_cmp_lg_u32 s4, 0\ns_cbranch_scc1 {lab}")
        set_flag(k, f"s_lshl_b32 s78, s32, 5\ns_add_u32 s78, s78, s33\ns_add_u32 s78, s78, {FL_H}", 10)
        k.label(lab)

def mfma16(d, a, b, c=None):
    cs = vr(d, 4) if c is None else c
    return f"v_mfma_f32_16x16x32_bf16 {vr(d,4)}, {vr(a,4)}, {vr(b,4)}, {cs}"

def phase_f2(k, endlab):
    R = 4; SLOT = 20480; NST = 17
    vm = VM(k)
    k("""s_and_b32 s34, s5, 7
    s_lshr_b32 s35, s5, 3
    s_lshl_b32 s36, s34, 2
    s_and_b32 s37, s35, 3
    s_add_u32 s32, s36, s37
    s_lshr_b32 s33, s35, 2
    s_and_b32 s37, s4, 1
    s_lshr_b32 s38, s4, 1
    s_mul_i32 s39, s4, 160
    s_mul_i32 s43, s33, 160""")
    k.srd(8, P_W2, 1536*1280)
    k.srd(16, P_WO, 640*1280)
    k.srd(12, P_WS, HF_SZ, WS_HF)
    k.srd(24, P_WS, SZ, WS_OF)
    k.srd(20, P_X, SZ)
    ACC, WB, AB, XR = 16, 56, 76, 116
    for i in range(3):
        k(f"""v_add_u32 v3, s39, v1
        v_add_u32 v3, {64*i}, v3
        v_mul_u32_u24 v{7+i}, 6554, v3
        v_lshrrev_b32 v{7+i}, 16, v{7+i}
        v_mul_u32_u24 v13, 10, v{7+i}
        v_sub_u32 v13, v3, v13
        v_lshl_add_u32 v{10+i}, v13, 4, s43
        s_movk_i32 s36, 1280
        v_mad_u32_u24 v{4+i}, v{7+i}, s36, v{10+i}""")
    def dma_addr(mode, i):
        if mode == 1: c = f"v_lshrrev_b32 v3, 4, v{7+i}\nv_lshl_add_u32 v3, v3, 2, v{7+i}\n"
        else: c = f"v_lshrrev_b32 v3, 2, v{7+i}\nv_lshl_add_u32 v3, v3, 4, v{7+i}\nv_add_u32 v3, 16, v3\n"
        return c + f"v_mad_u32_u24 v{4+i}, v3, s36, v{10+i}"
    k(f"""v_lshrrev_b32 v3, 5, v1
    v_lshlrev_b32 v13, 4, v3
    v_bfe_u32 v14, v1, 2, 3
    v_add_u32 v13, v13, v14
    s_lshl_b32 s44, s38, 5
    v_add_u32 v13, s44, v13
    v_mul_u32_u24 v13, 160, v13
    v_and_b32 v14, 3, v1
    v_lshl_add_u32 v13, v14, 3, v13
    v_add_u32 v14, {3*SLOT}, v13
    v_lshrrev_b32 v3, 4, v1
    v_lshlrev_b32 v3, 9, v3
    v_and_b32 v15, 15, v1
    v_lshl_add_u32 v15, v15, 4, v3""")
    k("s_and_b32 s40, s32, 3\ns_mul_i32 s40, s40, 3\ns_mul_i32 s44, s33, 5\ns_add_u32 s40, s40, s44")
    mod_small(k, 40, 12, 44, 44)
    k(f"""s_lshl_b32 s46, s32, 1
    s_add_u32 s46, s46, s37
    s_mul_i32 s41, s46, 98304
    s_lshl_b32 s44, s38, 11
    s_add_u32 s41, s41, s44
    s_mul_i32 s47, s46, 40960
    s_add_u32 s47, s47, s44
    s_mul_i32 s42, s4, 2560
    s_mul_i32 s44, s40, {128*1280}
    s_lshl_b32 s45, s40, 13
    s_add_u32 s45, s45, s41
    s_add_u32 s68, s41, 98304""")
    def wgroup(s):
        u = []
        for i in range(3):
            pre = post = ""
            if s < 12:
                ld = f"buffer_load_dwordx4 v{4+i}, s[8:11], s44 offen{' nt' if C('nt2') else ''} lds"
                if i == 2: post = f"\ns_add_u32 s44, s44, {128*1280}\ns_cmp_eq_u32 s44, {1536*1280}\ns_cselect_b32 s44, 0, s44"
            elif s < 16:
                if s == 12: pre = dma_addr(1, i) + "\n"
                if i == 0: pre += f"s_mov_b32 s44, {(s-12)*160*1280}\n"
                ld = f"buffer_load_dwordx4 v{4+i}, s[16:19], s44 offen lds"
            else:
                ld = f"buffer_load_dwordx4 v{4+i}, s[16:19], 0 offen lds"
            if i == 2: ld = "s_mov_b32 exec_hi, 0\n" + ld + "\ns_mov_b32 exec_hi, -1"
            else: ld = "s_nop 0\n" + ld
            u.append(pre + f"s_add_u32 m0, s42, {(s % R)*SLOT + i*1024}\n" + ld + post)
        return u
    def wread(s, j):
        slot = s % R
        va = 14 if slot == 3 else 13
        o = (slot % 3)*SLOT*(slot != 3) + j*32
        return [f"ds_read_b64_tr_b16 {vr(WB+4*j,2)}, v{va} offset:{o}", f"ds_read_b64_tr_b16 {vr(WB+4*j+2,2)}, v{va} offset:{o+1280}"]
    AW = 5
    areg = lambda s, b: AB + 8*(s % AW) + 4*b
    def issue_a(s):
        for b in range(2):
            if s < 12:
                post = "\ns_add_u32 s45, s45, 8192\ns_cmp_eq_u32 s45, s68\ns_cselect_b32 s45, s41, s45" if b else ""
                vm.op(f"buffer_load_dwordx4 {vr(areg(s,b),4)}, v15, s[12:15], s45 offen offset:{b*256} sc1" + post, ("A", s))
            else:
                post = "\ns_add_u32 s47, s47, 8192" if b else ""
                vm.op(f"buffer_load_dwordx4 {vr(areg(s,b),4)}, v15, s[24:27], s47 offen offset:{b*256} sc1" + post, ("A", s))
    def issue_w(s):
        for u in wgroup(s): vm.op(u, ("W", s))
    def run(stages, zero_first):
        vm.wait(("W", 1)); k("s_barrier")
        for j in range(5):
            for i in wread(stages[0], j): k(i)
        pending = []
        for n, s in enumerate(stages):
            if s % 2 == 1:
                assert not pending
                vm.wait(("W", s+2)); k("s_waitcnt lgkmcnt(0)\ns_barrier")
                pending = [(u, s+3) for u in wgroup(s+3)] + [(u, s+4) for u in wgroup(s+4)]
            vm.wait(("A", s))
            for j in range(5):
                if s % 2 == 0: k("s_waitcnt lgkmcnt(8)")
                for b in range(2):
                    k(mfma16(ACC + (5*b+j)*4, WB+4*j, areg(s, b), "0" if (zero_first and n == 0) else None))
                for i in wread(s+1, j): k(i)
                if pending:
                    u, t = pending.pop(0); vm.op(u, ("W", t))
            if s+AW <= stages[-1]: issue_a(s+AW)
        for u, t in pending: vm.op(u, ("W", t))
    for s in range(R): issue_w(s)
    k("s_lshl_b32 s69, s32, 6")
    for i in range(2):
        k(f"""v_add_u32 v3, {512*i}, v0
        v_mul_u32_u24 v{124+i}, 6554, v3
        v_lshrrev_b32 v{124+i}, 16, v{124+i}
        v_mul_u32_u24 v{126+i}, 10, v{124+i}
        v_sub_u32 v{126+i}, v3, v{126+i}
        v_add_u32 v3, s69, v{124+i}
        v_mul_u32_u24 v3, 1280, v3
        v_lshl_add_u32 v3, v{126+i}, 4, v3""")
        vm.op(f"buffer_load_dwordx4 {vr(XR+4*i,4)}, v3, s[20:23], s43 offen", "x")
    lab = k.newlabel("f2p")
    k(f"s_cmp_lg_u32 s4, 0\ns_cbranch_scc1 {lab}")
    polln(k, f"s_lshr_b32 s78, s32, 2\ns_lshl_b32 s78, s78, 5\ns_add_u32 s78, s78, {FL_H}", 32, AB, sleep=4)
    k(f"{lab}:\ns_barrier")
    k.stamp(4)
    for s in range(AW): issue_a(s)
    run(list(range(12)), True)
    k("s_waitcnt lgkmcnt(0)\ns_barrier")
    for i in range(3): k(dma_addr(2, i))
    issue_w(16)
    k(f"""s_mul_i32 s44, s4, 10240
    v_and_b32 v3, 48, v1
    v_lshrrev_b32 v9, 5, v1
    v_add_u32 v9, v9, v1""")
    for j in range(5):
        k(f"""v_add_u32 v{4+j}, {2*j}, v9
        v_and_or_b32 v{4+j}, v{4+j}, 15, v3
        v_lshl_add_u32 v{4+j}, v{4+j}, 4, s44""")
    for i in range(2):
        k(f"""v_lshrrev_b32 v3, 4, v{124+i}
        v_mul_u32_u24 v3, 5120, v3
        v_lshl_add_u32 v3, v{126+i}, 9, v3
        v_add_u32 v{9+i}, v{124+i}, v{126+i}
        v_and_b32 v{9+i}, 15, v{9+i}
        v_lshl_add_u32 v{9+i}, v{9+i}, 4, v3
        v_add_u32 v3, s69, v{124+i}
        v_mul_u32_u24 v3, 1280, v3
        v_lshl_add_u32 v{11+i}, v{126+i}, 4, v3""")
    k.srd(8, P_OUT, SZ)
    k.stamp(5)
    lab = k.newlabel("f2q")
    k(f"s_cmp_lg_u32 s4, 0\ns_cbranch_scc1 {lab}")
    polln(k, f"s_lshr_b32 s78, s32, 2\ns_lshl_b32 s78, s78, 5\ns_add_u32 s78, s78, {FL_O}", 32, AB, sleep=2)
    k(f"{lab}:\ns_waitcnt vmcnt(0)\ns_barrier\ns_setprio {C('prio_tail', 3)}")
    vm.drained()
    k.stamp(6)
    for s in range(12, 17): issue_a(s)
    for s in range(12, 17):
        more = s < 16
        vm.wait(("A", s))
        for j in range(5):
            k(f"s_waitcnt lgkmcnt({8 if more else 8-2*j})")
            for b in range(2): k(mfma16(ACC + (5*b+j)*4, WB+4*j, areg(s, b)))
            if more:
                for i in wread(s+1, j): k(i)
    k("s_barrier\ns_nop 4")
    for j in range(5):
        for b in range(2):
            k(f"ds_write_b128 v{4+j}, {vr(ACC+(5*b+j)*4,4)} offset:{(5*b+j)*1024}")
    k("s_waitcnt lgkmcnt(0)\ns_barrier")
    lab = k.newlabel("f2e"); lab2 = k.newlabel("f2f")
    RB = 16
    def rd(i):
        for q in range(4):
            for h in range(2):
                if i == 1 and q == 3: k("s_waitcnt lgkmcnt(13)")
                k(f"ds_read_b128 {vr(RB + 32*i + 8*q + 4*h, 4)}, v{9+i} offset:{q*20480 + h*256}")
    def fin(i):
        b = RB + 32*i; x = XR + 4*i; t = 80 + 8*i
        for e in range(4): k(f"v_lshlrev_b32 v{t+2*e}, 16, v{x+e}\nv_and_b32 v{t+2*e+1}, 0xffff0000, v{x+e}")
        k("s_waitcnt lgkmcnt(0)")
        for e in range(0, 8, 2): k(f"v_pk_add_f32 {vr(b+e,2)}, {vr(b+e,2)}, {vr(b+8+e,2)}\nv_pk_add_f32 {vr(b+16+e,2)}, {vr(b+16+e,2)}, {vr(b+24+e,2)}")
        for e in range(0, 8, 2): k(f"v_pk_add_f32 {vr(b+e,2)}, {vr(b+e,2)}, {vr(t+e,2)}")
        for e in range(0, 8, 2): k(f"v_pk_add_f32 {vr(b+e,2)}, {vr(b+e,2)}, {vr(b+16+e,2)}")
        for e in range(4): k(f"v_cvt_pk_bf16_f32 v{b+8+e}, v{b+2*e}, v{b+2*e+1}")
        k(f"buffer_store_dwordx4 {vr(b+8,4)}, v{11+i}, s[8:11], s43 offen{' sc1' if C('out_sc1') else ''}")
    rd(0)
    k(f"s_cmp_ge_u32 s4, 2\ns_cbranch_scc1 {lab}")
    rd(1); fin(1)
    k.label(lab)
    fin(0)

def phase_a2(k, force_fallback=False):
    SLOT = 26624; VOFF = 10240
    Lchk, Lchkr, Lloop, Lfin, Lslow, Lsl, Lend = [k.newlabel(x) for x in ("atc", "atcr", "atl", "atf", "ats", "atsl", "ate")]
    k("""s_and_b32 s34, s5, 7
    s_lshr_b32 s35, s5, 3
    s_lshl_b32 s32, s34, 2
    s_lshr_b32 s34, s35, 3
    s_add_u32 s32, s32, s34
    s_and_b32 s33, s35, 7""")
    Q1, Q2 = 16, 20
    K1, K2 = 24, 22
    V0, V1 = 28, 32
    P = 36; T = 44
    CC, O = 48, 64
    S = 80; U = 96
    k("v_and_b32 v3, 31, v1\nv_lshrrev_b32 v4, 5, v1\nv_mov_b32 v15, 0\nv_mov_b32 v100, 0\ns_mov_b32 s3, 0")
    lab = k.newlabel("a2p"); lab2 = k.newlabel("a2q")
    k(f"s_cmp_lg_u32 s4, 4\ns_cbranch_scc1 {lab}")
    get_tag(k, U)
    k(f"""s_mov_b32 s3, 1
    s_mul_i32 s76, s32, 20
    s_add_u32 s77, s76, 19
    s_lshr_b32 s76, s76, 7
    s_lshr_b32 s77, s77, 7
    s_sub_u32 s77, s77, s76
    s_lshl_b32 s78, s33, 1
    v_bfe_u32 v{U+4}, v1, 4, 1
    v_mul_u32_u24 v{U+4}, s77, v{U+4}
    v_add_u32 v{U+4}, s76, v{U+4}
    v_lshlrev_b32 v{U+4}, 4, v{U+4}
    v_add_u32 v{U}, s78, v1
    v_and_b32 v{U+1}, 15, v{U}
    v_mul_u32_u24 v15, 80, v4
    v_add3_u32 v15, v15, v{U+4}, v{U+1}
    v_add_u32 v15, {FL_QKV + 80}, v15
    v_lshlrev_b32 v15, 7, v15
    v_add_u32 v{U}, 12, v{U}
    v_and_b32 v{U}, 15, v{U}
    v_add_u32 v{U}, v{U}, v{U+4}
    v_add_u32 v{U}, {FL_QKV}, v{U}
    v_mov_b32 v{U+4}, v15
    s_mov_b64 exec, 0x00300030
    v_lshlrev_b32 v{U+4}, 7, v{U}
    s_mov_b64 exec, -1
    {lab}:""")
    k("v_mul_u32_u24 v5, 320, v4\nv_lshl_add_u32 v5, v3, 4, v5")
    k(f"""v_lshlrev_b32 v6, 12, v4
    v_lshl_add_u32 v6, v3, 3, v6
    v_add_u32 v7, 256, v6
    v_add_u32 v10, {VOFF}, v2
    s_lshl_b32 s37, s33, 3
    s_add_u32 s37, s37, s4
    s_lshl_b32 s38, s37, 5
    v_add_u32 v11, s38, v3
    v_lshlrev_b32 v11, 3, v11
    v_mov_b32 v12, v11
    v_lshl_add_u32 v11, v4, 15, v11
    s_mul_i32 s39, s32, 81920
    s_mov_b32 s68, 0x000fffff
    s_mov_b32 s69, 0x000fffff
    s_mov_b32 s70, -1
    s_mov_b32 s71, 0""")
    k.srd(8, P_WS, SZ, WS_QP)
    k.srd(12, P_WS, SZ, WS_KP)
    k.srd(16, P_WS, SZ, WS_VI)
    k.srd(20, P_WS, SZ, WS_OF)
    k(f"""s_lshr_b32 s40, s4, 1
    s_lshl_b32 s40, s40, 14
    s_and_b32 s44, s4, 1
    s_lshl_b32 s44, s44, 10
    s_add_u32 s40, s40, s44
    s_add_u32 s40, s40, s39
    s_lshl_b32 s45, s4, 8
    s_add_u32 s41, s45, s39
    s_add_u32 s41, s41, 65536
    s_add_u32 s45, s45, 8192
    s_mul_i32 s42, s4, 1280
    s_add_u32 s42, s42, s39
    s_lshl_b32 s44, s4, 10
    s_lshl_b32 s46, s4, 11
    s_add_u32 s46, s46, {VOFF}
    s_mov_b32 s24, s33
    s_mov_b32 s43, 0""")
    NEXT = "s_lshl_b32 s26, s24, 11\ns_add_u32 s25, s26, s40\ns_add_u32 s26, s26, s41\ns_mul_i32 s27, s24, 10240\ns_add_u32 s27, s27, s42\ns_add_u32 s24, s24, 1\ns_and_b32 s24, s24, 7"
    ADV = f"s_add_u32 s43, s43, {SLOT}\ns_cmp_eq_u32 s43, {3*SLOT}\ns_cselect_b32 s43, 0, s43"
    du = ["s_add_u32 m0, s43, s44\ns_nop 0\nbuffer_load_dwordx4 v2, s[12:15], s25 offen sc1 lds",
          "s_add_u32 m0, s43, s45\ns_mov_b64 exec, 0xffff\nbuffer_load_dwordx4 v2, s[12:15], s26 offen sc1 lds\ns_mov_b64 exec, -1",
          "s_add_u32 m0, s43, s46\ns_mov_b64 exec, s[68:69]\nbuffer_load_dwordx4 v5, s[16:19], s27 offen sc1 lds\ns_mov_b64 exec, -1",
          "s_add_u32 m0, m0, 384\ns_mov_b64 exec, s[68:69]\nbuffer_load_dwordx4 v5, s[16:19], s27 offen offset:640 sc1 lds\ns_mov_b64 exec, -1"]
    k(NEXT)
    k(f"""v_cmp_eq_u32 vcc, 20, v3
    v_cmp_eq_u32 s[34:35], 24, v3
    v_mov_b32 v13, 0x3f803f80
    s_or_b64 vcc, vcc, s[34:35]
    s_nop 1
    v_cndmask_b32 v{T}, 0, v13, vcc""")
    for e in range(1, 4): k(f"v_mov_b32 v{T+e}, v{T}")
    k("v_add_u32 v13, s46, v2\ns_not_b64 exec, s[68:69]")
    for slot in range(3):
        for i in range(2):
            k(f"ds_write_b128 v13, {vr(T,4)} offset:{slot*SLOT + i*1024}")
    k("s_mov_b64 exec, -1")
    for r in list(range(O, O+16)) + [Q2, Q2+1]: k(f"v_mov_b32 v{r}, 0")
    k("s_add_u32 s34, s39, 16384\ns_add_u32 s35, s39, 65536")
    k.stamp(3)
    k(f"s_cmp_lg_u32 s4, 4\ns_cbranch_scc1 {lab2}\ns_mov_b32 exec_lo, 0x003f003f\ns_mov_b32 exec_hi, 0x000f000f")
    poll(k, U+4, "0", U, sleep=1)
    k(f"{lab2}:\ns_barrier")
    k.stamp(4)
    k(f"buffer_load_dwordx2 {vr(Q1,2)}, v11, s[8:11], s39 offen sc1")
    k(f"buffer_load_dwordx2 {vr(Q1+2,2)}, v11, s[8:11], s34 offen sc1")
    k(f"s_mov_b64 exec, s[70:71]\nbuffer_load_dwordx2 {vr(Q2,2)}, v12, s[8:11], s35 offen sc1\ns_mov_b64 exec, -1")
    for u in du: k(u)
    k(NEXT); k(ADV)
    for u in du: k(u)
    if C("go_a2"):
        lab = k.newlabel("a2g")
        k(f"s_cmp_lg_u32 s4, 4\ns_cbranch_scc1 {lab}")
        set_flag(k, f"s_add_u32 s78, s5, {FL_GO}", U+6)
        k.label(lab)
    k("s_waitcnt vmcnt(4) lgkmcnt(0)\ns_barrier")
    def k1read(t):
        tt = t % 8; va = 6 + (tt & 1); a = tt >> 1
        return f"ds_read2st64_b64 {vr(K1,4)}, v{va} offset0:{a} offset1:{a+4}"
    def k2read(t):
        tt = t % 8; va = 6 + (tt & 1); a = tt >> 1
        return f"ds_read_b64 {vr(K2,2)}, v{va} offset:{8192 + a*512}"
    def vread(t, g):
        va = 10
        return f"ds_read_b128 {vr(V1 if g else V0,4)}, v{va} offset:{(t%8)*2048 + g*1024}"
    k(k1read(0)); k(k2read(0))
    k("s_waitcnt lgkmcnt(0)")
    k(mfma(S, K1, Q1, "0")); k(mfma8(S, K2, Q2))
    k(k1read(1)); k(k2read(1)); k(vread(0, 0)); k(vread(0, 1))
    k(f"s_mov_b32 s47, 0\ns_mov_b32 s76, {SLOT}\ns_mov_b32 s77, {(-2*SLOT) & 0xffffffff}\ns_nop 7")
    k(f"v_max3_f32 v{T}, v{S}, v{S+1}, v{S+2}\nv_max3_f32 v{T+1}, v{S+3}, v{S+4}, v{S+5}")
    k(f"v_max3_f32 v{T}, v{T}, v{S+6}, v{S+7}\nv_max3_f32 v{T+1}, v{T+1}, v{S+8}, v{S+9}")
    k(f"v_max3_f32 v{T}, v{T}, v{S+10}, v{S+11}\nv_max3_f32 v{T+1}, v{T+1}, v{S+12}, v{S+13}")
    k(f"v_max3_f32 v{T}, v{T}, v{S+14}, v{S+15}\nv_max_f32 v{T}, v{T}, v{T+1}")
    k(f"v_mov_b32 v{T+1}, v{T}\ns_nop 1\nv_permlane32_swap_b32 v{T}, v{T+1}\ns_nop 1\nv_max_f32 v{T}, v{T}, v{T+1}")
    for e in range(16): k(f"v_sub_f32 v{CC+e}, 0, v{T}")
    for e in range(16): k(f"v_sub_f32 v{S+e}, v{S+e}, v{T}")
    lab = k.newlabel("a2r")
    k(f"s_cmp_lg_u32 s4, 4\ns_cbranch_scc1 {lab}\nbuffer_load_dwordx2 {vr(U,2)}, v15, s[28:31], 0 offen sc1\n{lab}:")
    plo, pmid, phi = C("pp_lo", 0), C("pp_mid", 1), C("pp_hi", 3)
    k(f"s_setprio {plo}")
    k.stamp(5)
    if C("cyc") in (1, 2) and STAMP[0]: k("s_memtime s[82:83]\ns_waitcnt lgkmcnt(0)\ns_mov_b32 s98, 0\ns_mov_b32 s99, 0")
    TB = C("a2_tb", 4)
    LY = k.newlabel("atY"); Lout = k.newlabel("ato")
    nx = NEXT.split("\n"); adv = ADV.split("\n")
    def body(Y, top):
        k(".p2align 6")
        k.label(top)
        for t in range(8):
            for i in range(4):
                for e in range(4):
                    k(f"v_exp_f32 v{S+4*i+e}, v{S+4*i+e}")
                    if i == 0 and e == 0: k(f"s_setprio {pmid}")
                k(f"v_cvt_pk_bf16_f32 v{P+2*i}, v{S+4*i}, v{S+4*i+1}")
                k(f"v_cvt_pk_bf16_f32 v{P+2*i+1}, v{S+4*i+2}, v{S+4*i+3}")
            k(f"s_setprio {phi}")
            if t == TB and Y:
                k(f"s_waitcnt vmcnt(0)\ns_cmp_lg_u32 s3, 0\ns_cbranch_scc1 {Lchk}\n{Lchkr}:\ns_barrier")
            gaps = [[], [], [], []]
            if t == 0: gaps[0] = nx[:4]; gaps[2] = nx[4:]
            if t == 1:
                gaps[0] = adv
                gaps[2] = ["s_cmp_eq_u32 s47, 2", "s_cselect_b32 s36, s77, s76", "s_cmp_eq_u32 s47, 5", "s_cselect_b32 s36, s77, s36"]
            if t == 2 and C("a2_nod", 1):
                gaps[2] = ["s_cmp_ge_u32 s47, 6", f"s_cselect_b32 s25, {SZ}, s25", f"s_cselect_b32 s26, {SZ}, s26", f"s_cselect_b32 s27, {SZ}, s27"]
            if t == TB+1: gaps[0] = [du[0]]; gaps[2] = [du[1]]
            if t == TB+2: gaps[0] = [du[2]]; gaps[2] = [du[3]]
            if t == 5: gaps[3] = ["v_add_u32 v6, s36, v6", "v_add_u32 v7, s36, v7"]
            if t == 6: gaps[3] = ["v_add_u32 v10, s36, v10"]
            if t == 7: gaps[3 if TB == 5 else 2] = ["s_add_u32 s47, s47, 1", "s_cmp_lt_u32 s47, 8"]
            k("s_waitcnt lgkmcnt(0)")
            k(mfma(S, K1, Q1, vr(CC, 16))); k(k1read(t+2))
            for x in gaps[0]: k(x)
            k(mfma8(S, K2, Q2)); k(k2read(t+2))
            for x in gaps[1]: k(x)
            k(mfma(O, V0, P)); k(vread(t+1, 0))
            for x in gaps[2]: k(x)
            k(mfma(O, V1, P+4)); k(vread(t+1, 1))
            for x in gaps[3]: k(x)
            if t == TB and not Y: k("s_waitcnt vmcnt(0)\ns_barrier")
            k(f"s_setprio {plo}")
        k(f"s_cbranch_scc1 {top}")
    k(f"s_cmp_ge_u32 s4, 4\ns_cbranch_scc1 {LY}")
    body(False, Lloop)
    k(f"s_branch {Lout}")
    body(True, LY)
    k.label(Lout)
    k.stamp(6)
    if C("cyc") in (1, 2) and STAMP[0]: k("s_memtime s[84:85]\ns_waitcnt lgkmcnt(0)\ns_sub_u32 s84, s84, s82\ns_mul_i32 s84, s84, 100\ns_lshr_b32 s84, s84, 10\ns_add_u32 s84, s84, s80\ns_mov_b32 s82, s80")
    if C("cyc") == 2 and STAMP[0]: k("s_mul_i32 s98, s98, 100\ns_lshr_b32 s98, s98, 10\ns_add_u32 s86, s98, s80\ns_mul_i32 s99, s99, 100\ns_lshr_b32 s99, s99, 10\ns_add_u32 s88, s99, s80")
    k(f"""s_setprio 3
    s_mul_i32 s72, s37, 40960
    s_lshl_b32 s73, s32, 10
    s_add_u32 s73, s73, s72
    s_lshr_b32 s74, s32, 2
    s_add_u32 s74, s74, 32
    s_lshl_b32 s74, s74, 10
    s_add_u32 s74, s74, s72
    s_and_b32 s75, s32, 1
    s_lshl_b32 s75, s75, 9
    s_add_u32 s74, s74, s75
    s_and_b32 s75, s32, 2
    s_lshl_b32 s75, s75, 2
    s_add_u32 s74, s74, s75
    s_waitcnt lgkmcnt(0)
    s_mov_b64 exec, s[70:71]
    v_mov_b32 v{T+2}, v{O+12}
    s_not_b64 exec, s[70:71]
    v_mov_b32 v{T+2}, v{O+8}
    s_mov_b64 exec, -1
    s_mov_b32 s72, {f32(2.0**60) if not force_fallback else f32(0.0)}
    v_cmp_ngt_f32 vcc, s72, v{T+2}
    s_nop 1
    s_cbranch_vccnz {Lslow}""")
    k.label(Lfin)
    k(f"v_rcp_f32 v{T}, v{T+2}\ns_nop 0")
    for e in range(12): k(f"v_mul_f32 v{O+e}, v{O+e}, v{T}")
    for e in range(6): k(f"v_cvt_pk_bf16_f32 v{P+e}, v{O+2*e}, v{O+2*e+1}")
    k(f"buffer_store_dwordx4 {vr(P,4)}, v2, s[20:23], s73 offen sc1")
    k(f"s_mov_b64 exec, s[70:71]\nbuffer_store_dwordx2 {vr(P+4,2)}, v2, s[20:23], s74 offen sc1\ns_mov_b64 exec, -1")
    k(f"s_waitcnt vmcnt(0)\ns_barrier\ns_cmp_lg_u32 s4, 4\ns_cbranch_scc1 {Lend}")
    set_flag(k, f"s_lshl_b32 s78, s33, 5\ns_add_u32 s78, s78, s32\ns_add_u32 s78, s78, {FL_O}", T)
    k.label(Lend)
    if C("cyc") == 3 and STAMP[0]: k("s_mul_i32 s96, s96, 100\ns_lshr_b32 s96, s96, 10\ns_add_u32 s86, s96, s80\ns_mul_i32 s98, s98, 100\ns_lshr_b32 s98, s98, 10\ns_add_u32 s88, s98, s80\ns_cmp_eq_u32 s82, 0\ns_cselect_b32 s86, 0, s86\ns_cselect_b32 s88, 0, s88")
    k.stamp(7); k.stamp_flush(0, "s5")
    k("s_endpgm")
    k.label(Lchk)
    k("s_mov_b32 s3, 0")
    poll(k, 15, "0", U, sleep=1, loaded=True)
    k(f"s_branch {Lchkr}")
    k.label(Lslow)
    M = CC
    k(f"""v_lshlrev_b32 v7, 3, v3
    v_lshl_add_u32 v6, v4, 15, v7
    v_mov_b32 v{M}, {f32(-3.0e38)}
    s_mov_b32 s40, s39
    s_mov_b32 s42, s39
    s_mov_b32 s47, 0""")
    for r in range(O, O+16): k(f"v_mov_b32 v{r}, 0")
    for r in range(V0, V0+8): k(f"v_mov_b32 v{r}, 0x3f803f80")
    k.label(Lsl)
    k(f"""s_add_u32 s41, s40, 16384
    s_add_u32 s43, s40, 65536
    buffer_load_dwordx2 {vr(K1,2)}, v6, s[12:15], s40 offen sc1
    buffer_load_dwordx2 {vr(K1+2,2)}, v6, s[12:15], s41 offen sc1
    buffer_load_dwordx2 {vr(K2,2)}, v7, s[12:15], s43 offen sc1
    s_mov_b64 exec, s[68:69]
    buffer_load_dwordx4 {vr(V0,4)}, v5, s[16:19], s42 offen sc1
    buffer_load_dwordx4 {vr(V1,4)}, v5, s[16:19], s42 offen offset:640 sc1
    s_mov_b64 exec, -1
    s_waitcnt vmcnt(0)""")
    k(mfma(S, K1, Q1, "0")); k(mfma8(S, K2, Q2))
    k("s_nop 15\ns_nop 3")
    k(f"v_max3_f32 v{T}, v{S}, v{S+1}, v{M}")
    for e in range(2, 16, 2): k(f"v_max3_f32 v{T}, v{T}, v{S+e}, v{S+e+1}")
    k(f"v_mov_b32 v{T+1}, v{T}\ns_nop 1\nv_permlane32_swap_b32 v{T}, v{T+1}\ns_nop 1\nv_max_f32 v{T}, v{T}, v{T+1}")
    k(f"v_sub_f32 v{T+1}, v{M}, v{T}\nv_exp_f32 v{T+1}, v{T+1}\nv_mov_b32 v{M}, v{T}")
    for e in range(16): k(f"v_mul_f32 v{O+e}, v{O+e}, v{T+1}")
    for e in range(16): k(f"v_sub_f32 v{S+e}, v{S+e}, v{T}")
    for e in range(16): k(f"v_exp_f32 v{S+e}, v{S+e}")
    k("s_nop 0")
    for e in range(8): k(f"v_cvt_pk_bf16_f32 v{P+e}, v{S+2*e}, v{S+2*e+1}")
    k("s_nop 1")
    k(mfma(O, V0, P)); k(mfma(O, V1, P+4))
    k(f"""s_nop 15
    s_nop 3
    s_add_u32 s40, s40, 256
    s_add_u32 s42, s42, 1280
    s_add_u32 s47, s47, 1
    s_cmp_lt_u32 s47, 64
    s_cbranch_scc1 {Lsl}
    v_mov_b32 v{T+2}, v{O+12}
    s_branch {Lfin}""")

NAME = "parallel_sum__softmax_full_mha__glu_gated_swiglu__prompt_kernel"
def fused():
    k = Kern(NAME, 512, 512, 81920, sgpr=100 if STAMP[0] else 80)
    k("s_load_dwordx16 s[48:63], s[0:1], 0\ns_load_dwordx4 s[64:67], s[0:1], 64")
    k.stamp_init(); k.stamp(0, wait=False)
    k(f"""v_lshrrev_b32 v1, 6, v0
    s_and_b32 s5, s2, 255
    v_readfirstlane_b32 s4, v1
    v_and_b32 v1, 63, v0
    v_lshlrev_b32 v2, 4, v1
    s_mov_b32 s6, 0
    s_setprio 3
    s_cmp_ge_u32 s2, 512
    s_cbranch_scc1 L_end
    {"s_cmp_lt_u32 s2, 256" if C("ffirst", 1) else "s_cmp_ge_u32 s2, 256"}
    s_cbranch_scc1 L_roleF""")
    if C("noa1"): k("s_endpgm")
    k(A1_TILE.format(rb="s32", cb="s33"))
    k("s_cmp_ge_u32 s33, 15\ns_cbranch_scc1 L_skipA1\ns_cmp_lt_u32 s4, 4\ns_cbranch_scc1 L_a1c")
    a1_loader(k, "L_a2")
    k.label("L_roleF")
    k(f"s_setprio {C('prio_f0', 3)}")
    phase_f0(k)
    k(f"s_setprio {C('prio_f', 0)}")
    k.stamp(1)
    if C("nof1"): k("s_branch L_end")
    phase_f1(k)
    if C("nof2"):
        k.stamp(7); k.stamp_flush(1, "s5"); k("s_branch L_end")
    phase_f2(k, "L_end")
    if STAMP[0]: k("s_waitcnt vmcnt(0)")
    k.stamp(7); k.stamp_flush(1, "s5")
    k.label("L_end"); k("s_endpgm")
    k.label("L_skipA1")
    after_kernarg(k); flags_srd(k)
    k("s_branch L_a2")
    k.label("L_a1c")
    a1_compute(k, "L_a2")
    k.label("L_a2")
    if C("noa2"): k("s_endpgm")
    k.mute = C("cyc") in (4, 5)
    phase_a2(k, C("ff"))
    k.label("L_code_end")
    return build([k], single=True)

if __name__ == "__main__":
    STAMP[0] = 2 if "--dstamp" in sys.argv else ("--stamp" in sys.argv)
    for a in sys.argv[2:]:
        if "=" in a:
            n, v = a.split("="); CFG[n] = int(v)
    open(sys.argv[1], "w").write(fused())
```

```python
import sys, math
from asmlib2 import *

SZ = 2621440
WS_XF, WS_QP, WS_KP, WS_VI, WS_OF, WS_HF = 0, SZ, 2*SZ, 3*SZ, 4*SZ, 5*SZ
HF_SZ = 2048*1536*2
WS_ST = WS_HF + HF_SZ
ST_SZ = 32768
WS_CS = WS_ST + ST_SZ
CS_SZ = 15*16*1024
WS_FL = WS_CS + 262144
FL_LN, FL_QKV, FL_GO, FL_H, FL_O, FL_N = 0, 256, 512, 768, 1024, 1280
LOG2E = math.log2(math.e)
QSCALE = 20 ** -0.5 * LOG2E
P_X, P_WQKV, P_WO, P_W1, P_W3, P_W2, P_OUT, P_DBG, P_WS = 48, 50, 52, 56, 58, 60, 62, 64, 66
SPIN_MAX = 100000
CFG = dict(pp_hi=2, prio_f=2, prio_f2=1, prio_f1e=2, f1_sw=20, f1_early=2, f1_hold=0, go_j=99)
def C(n, d=0): return CFG.get(n, d)

def mod_small(k, s, m, t, maxval):
    q = 1
    while q * m * 2 <= maxval: q *= 2
    while q >= 1:
        k(f"s_cmp_ge_u32 s{s}, {q*m}\ns_cselect_b32 s{t}, {q*m}, 0\ns_sub_u32 s{s}, s{s}, s{t}")
        q //= 2

def tag_load(vt): return f"buffer_load_dwordx2 {vr(vt,2)}, v{vt+2}, s[72:75], 0 offen sc1"
def tag_setup(k, vt):
    k.srd(72, P_DBG, 256)
    k(f"v_mov_b32 v{vt+2}, 0")
def tag_take(k, vt, loaded):
    top = k.newlabel("tg"); mid = k.newlabel("tgm"); done = k.newlabel("tgd")
    k(f"s_mov_b32 s79, {SPIN_MAX}")
    if loaded: k(f"s_branch {mid}")
    k(f"{top}:\n{tag_load(vt)}\ns_waitcnt vmcnt(0)\n{mid}:")
    k(f"""v_readfirstlane_b32 s6, v{vt}
    v_readfirstlane_b32 s7, v{vt+1}
    s_nop 1
    s_cmp_lg_u32 s6, 0
    s_cbranch_scc1 {done}
    s_sleep 2
    s_sub_u32 s79, s79, 1
    s_cmp_lg_u32 s79, 0
    s_cbranch_scc1 {top}
    {done}:""")
def get_tag(k, vt):
    lab = k.newlabel("gt")
    k(f"s_cmp_lg_u32 s6, 0\ns_cbranch_scc1 {lab}")
    tag_setup(k, vt); tag_take(k, vt, False)
    k.label(lab)
def set_flag(k, idx_expr, vt):
    k(idx_expr)
    k(f"""s_lshl_b32 s78, s78, 7
    v_mov_b32 v{vt}, s6
    v_mov_b32 v{vt+1}, s7
    v_mov_b32 v{vt+2}, 0
    s_mov_b64 exec, 1
    buffer_store_dwordx2 {vr(vt,2)}, v{vt+2}, s[28:31], s78 offen sc1
    s_mov_b64 exec, -1""")
def poll(k, voff, soff, vt, sleep=2, loaded=False):
    top = k.newlabel("poll"); done = k.newlabel("polled"); mid = k.newlabel("pmid")
    k(f"s_mov_b32 s79, {SPIN_MAX}")
    if loaded: k(f"s_branch {mid}")
    k(f"{top}:\nbuffer_load_dwordx2 {vr(vt,2)}, v{voff}, s[28:31], {soff} offen sc1\ns_waitcnt vmcnt(0)\n{mid}:")
    k(f"""v_cmp_ne_u64 vcc, s[6:7], {vr(vt,2)}
    s_nop 1
    s_and_b64 exec, exec, vcc
    s_cbranch_scc0 {done}
    s_sleep {sleep}
    s_sub_u32 s79, s79, 1
    s_cmp_lg_u32 s79, 0
    s_cbranch_scc1 {top}
    {done}:
    s_mov_b64 exec, -1""")
def polln(k, idx_expr, n, vt, sleep=2):
    k(idx_expr)
    k(f"s_lshl_b32 s78, s78, 7\nv_lshlrev_b32 v{vt+2}, 7, v1\ns_mov_b32 exec_lo, {hex((1 << n) - 1)}\ns_mov_b32 exec_hi, 0")
    poll(k, vt+2, "s78", vt, sleep)
A1_TILE = """s_and_b32 s34, s5, 7
    s_lshr_b32 s35, s5, 3
    s_and_b32 s36, s34, 1
    s_lshl_b32 s36, s36, 3
    s_and_b32 s37, s35, 7
    s_add_u32 {rb}, s36, s37
    s_lshr_b32 s36, s34, 1
    s_lshl_b32 s36, s36, 2
    s_lshr_b32 s37, s35, 3
    s_add_u32 {cb}, s36, s37"""
def after_kernarg(k):
    k("s_waitcnt lgkmcnt(0)")
def flags_srd(k): k.srd(28, P_WS, FL_N*128, WS_FL)

NAME = "parallel_sum__softmax_full_mha__glu_gated_swiglu__prompt_kernel"
WBASE = 49152; CSO = 16384; STO = 16384 + 1024

def a1_loader(k, Lj):
    k.L.append("    ; ---- A1 loader waves: LDS-DMA rings for x (3 x 16 KB) and wqkv (4 x 8 KB); fetch row stats / column sums")
    vm = VM(k)
    k("""s_and_b32 s36, s4, 3
    s_lshr_b32 s37, s36, 1
    s_lshl_b32 s37, s37, 6
    s_and_b32 s38, s36, 1
    s_add_u32 s37, s37, s38
    s_lshl_b32 s38, s36, 5
    s_cmp_lt_u32 s33, 10
    s_cselect_b32 s37, s37, s38
    s_mov_b32 s38, 1280
    s_cselect_b32 s38, 2560, s38
    s_lshl_b32 s39, s32, 7
    s_add_u32 s37, s37, s39
    s_mul_i32 s37, s37, 1280
    v_lshrrev_b32 v3, 3, v1
    v_lshrrev_b32 v10, 4, v1
    v_and_b32 v11, 7, v1
    v_mul_u32_u24 v12, s38, v3
    v_xor_b32 v13, v10, v11
    v_lshl_add_u32 v12, v13, 4, v12
    v_add_u32 v4, s37, v12
    s_lshl_b32 s39, s38, 3
    v_xor_b32 v5, 64, v4
    v_add_u32 v5, s39, v5
    s_lshl_b32 s39, s38, 4
    v_add_u32 v6, s39, v4
    v_add_u32 v7, s39, v5
    v_lshlrev_b32 v12, 2, v10
    v_and_b32 v13, 15, v1
    v_xor_b32 v13, v13, v12
    s_lshl_b32 s39, s36, 3
    v_add_u32 v12, s39, v10
    v_mul_u32_u24 v14, 3840, v12
    v_lshl_add_u32 v14, v13, 4, v14
    s_lshl_b32 s39, s33, 8
    v_add_u32 v8, s39, v14
    v_add_u32 v9, 15360, v8
    s_mul_i32 s40, s33, 3
    s_add_u32 s40, s40, s32""")
    mod_small(k, 40, 10, 43, 58)
    k(f"""s_mul_i32 s44, s40, {64*3840}
    s_lshl_b32 s45, s40, 7
    s_lshl_b32 s42, s36, 12
    s_lshl_b32 s43, s36, 11
    s_add_u32 s43, s43, {WBASE}""")
    if C("cyc") == 5: k.stamp(3, wait=False)
    after_kernarg(k)
    if C("cyc") == 5: k.stamp(4, wait=False)
    k.srd(12, P_X, SZ)
    k.srd(8, P_WQKV, 640*3840)
    def iss_a(s, half):
        for i in (2*half, 2*half+1):
            if C("diag_nodma") and s > 2: vm.tags[("A", s)] = 0; continue
            vm.op(f"s_add_u32 m0, s42, {(s % 3)*16384 + i*1024}\ns_nop 0\nbuffer_load_dwordx4 v{4+i}, s[12:15], s45 offen{[ '', ' nt', ' sc1'][C('nta')]} lds", ("A", s) if i == 3 else None)
        if half: k("s_add_u32 s45, s45, 128\ns_cmp_eq_u32 s45, 1280\ns_cselect_b32 s45, 0, s45")
    def iss_w(j):
        for i in range(2):
            if C("diag_nodma") and j > 3: vm.tags[("W", j)] = 0; continue
            vm.op(f"s_add_u32 m0, s43, {(j % 4)*8192 + i*1024}\ns_nop 0\nbuffer_load_dwordx4 v{8+i}, s[8:11], s44 offen{[ '', ' nt', ' sc1'][C('nta')]} lds", ("W", j) if i == 1 else None)
        k(f"s_add_u32 s44, s44, {32*3840}\ns_cmp_eq_u32 s44, {640*3840}\ns_cselect_b32 s44, 0, s44")
    iss_a(0, 0); iss_a(0, 1); iss_w(0)
    if C("cyc") == 5: k.stamp(5, wait=False)
    rest = [lambda: iss_w(1), lambda: iss_a(1, 0), lambda: iss_a(1, 1), lambda: iss_w(2), lambda: iss_w(3), lambda: iss_a(2, 0), lambda: iss_a(2, 1)]
    NP = C("a1_np", 1)
    for f in rest[:NP]: f()
    rest = rest[NP:]
    if C("cyc") == 5: k.stamp(6, wait=False)
    flags_srd(k)
    k.srd(16, P_WS, ST_SZ + CS_SZ, WS_ST)
    tag_setup(k, 42)
    k(f"""v_and_b32 v41, 31, v1
    v_lshlrev_b32 v40, 4, v41
    s_lshl_b32 s46, s36, 5
    v_add_lshl_u32 v41, v41, s46, 2
    s_lshl_b32 s46, s32, 2
    s_add_u32 s46, s46, s36
    s_lshl_b32 s46, s46, 9
    s_lshl_b32 s47, s33, 14
    s_lshl_b32 s68, s36, 8
    s_add_u32 s47, s47, s68
    s_add_u32 s47, s47, {ST_SZ}
    v_and_b32 v45, 15, v1
    v_lshlrev_b32 v46, 4, v45
    v_lshl_add_u32 v46, v10, 12, v46
    s_lshl_b32 s68, s36, 7
    v_lshl_add_u32 v45, v45, 3, s68""")
    gl = ["buffer_load_dwordx4 v[16:19], v40, s[16:19], s46 offen sc1"] + \
         [f"buffer_load_dwordx4 {vr(20+4*i,4)}, v46, s[16:19], s47 offen offset:{i*1024} sc1" for i in range(4)]
    JF = C("a1_jf", 10)
    for j in range(20):
        vm.wait(("A", j >> 1)); vm.wait(("W", j))
        if C("cyc") == 5 and j == 0: k.stamp(7, wait=False)
        k("s_barrier")
        if C("cyc") == 4 and j in (4, 8, 12, 16, 18): k.stamp({4: 3, 8: 4, 12: 5, 16: 6, 18: 7}[j], wait=False)
        if j == 0:
            n0 = max(0, C("a1_n0", 4) - NP)
            for f in rest[:n0]: f()
            rest = rest[n0:]
        if j == 1:
            for f in rest: f()
        if j >= 1 and j+3 < 20: iss_w(j+3)
        if j >= 2 and j//2+2 < 10: iss_a(j//2+2, j & 1)
        if j == 2: vm.op(tag_load(42), "tag")
        if j == 6:
            vm.wait("tag"); tag_take(k, 42, True)
        if j == JF:
            for g in gl: vm.op(g, "gr")
        if j == C("go_j", 14) and not C("go_a2") and not C("go_q"):
            lab = k.newlabel("a1g")
            k(f"s_cmp_lg_u32 s4, 5\ns_cbranch_scc1 {lab}")
            set_flag(k, f"s_lshl_b32 s78, s33, 4\ns_add_u32 s78, s78, s32\ns_add_u32 s78, s78, {FL_GO}", 48)
            k.label(lab)
        if j == C("a1_jc", 14):
            vm.wait("gr")
            top = k.newlabel("gr"); done = k.newlabel("grd")
            k(f"s_mov_b32 s79, {SPIN_MAX}\n{top}:")
            k("v_cmp_ne_u64 s[68:69], s[6:7], v[18:19]")
            for i in range(4):
                k(f"v_cmp_ne_u64 vcc, s[6:7], {vr(22+4*i,2)}\ns_nop 0\ns_or_b64 s[68:69], s[68:69], vcc")
            k(f"s_cbranch_scc0 {done}\ns_sleep 2")
            for g in gl: k(g)
            k(f"s_waitcnt vmcnt(0)\ns_sub_u32 s79, s79, 1\ns_cmp_lg_u32 s79, 0\ns_cbranch_scc1 {top}\n{done}:")
        if j == C("a1_jc", 14) + 1:
            k("""v_add_f32 v20, v20, v24
            v_add_f32 v21, v21, v25
            v_add_f32 v28, v28, v32
            v_add_f32 v29, v29, v33
            v_add_f32 v20, v20, v28
            v_add_f32 v21, v21, v29""")
            for sw in ("v_permlane16_swap_b32", "v_permlane32_swap_b32"):
                k(f"v_mov_b32 v22, v20\nv_mov_b32 v23, v21\ns_nop 1\n{sw} v20, v22\n{sw} v21, v23\ns_nop 1\nv_add_f32 v20, v20, v22\nv_add_f32 v21, v21, v23")
        if j == 16:
            k(f"ds_write_b32 v41, v16 offset:{STO}\nds_write_b32 v41, v17 offset:{STO+512}\nds_write_b64 v45, v[20:21] offset:{CSO}")
        if j == 17: k("s_waitcnt lgkmcnt(0)")
    k("s_barrier")
    k(f"s_cmp_lg_u32 s4, 4\ns_cbranch_scc1 {Lj}")
    set_flag(k, f"s_lshl_b32 s78, s33, 4\ns_add_u32 s78, s78, s32\ns_add_u32 s78, s78, {FL_QKV}", 40)
    k(f"s_branch {Lj}")

def a1_compute(k, Lj):
    k.L.append("    ; ---- A1 compute waves: 64x64 tile each, LN folded into the epilogue")
    Lv = k.newlabel("a1v")
    k(f"""s_and_b32 s36, s4, 1
    s_lshr_b32 s37, s4, 1
    v_and_b32 v3, 31, v1
    v_lshrrev_b32 v10, 5, v1
    s_lshl_b32 s38, s36, 6
    v_add_u32 v11, s38, v3
    v_lshlrev_b32 v11, 7, v11
    v_bfe_u32 v12, v1, 1, 3
    v_xor_b32 v12, v12, v10
    v_lshl_add_u32 v4, v12, 4, v11
    v_xor_b32 v5, 32, v4
    v_xor_b32 v6, 64, v4
    v_xor_b32 v7, 96, v4
    v_bfe_u32 v13, v1, 2, 2
    v_lshl_add_u32 v14, v10, 3, v13
    v_lshlrev_b32 v14, 8, v14
    v_bfe_u32 v15, v1, 4, 1
    v_lshl_add_u32 v14, v15, 5, v14
    v_and_b32 v15, 3, v1
    v_lshl_add_u32 v14, v15, 3, v14
    v_lshl_add_u32 v14, v13, 6, v14
    s_lshl_b32 s38, s37, 7
    v_xor_b32 v14, s38, v14
    v_add_u32 v8, {WBASE}, v14
    v_xor_b32 v9, 64, v8""")
    if C("cpf"):
        lab = k.newlabel("cpf"); here = k.newlabel("pc")
        k(f"""s_lshr_b32 s38, s5, 3
        s_and_b32 s38, s38, 15
        s_lshl_b32 s38, s38, 2
        s_add_u32 s38, s38, s4
        s_lshl_b32 s38, s38, 10
        s_cmp_ge_u32 s38, (L_code_end - {NAME}) - 1024
        s_cbranch_scc1 {lab}
        s_getpc_b64 s[40:41]
        {here}:
        s_sub_u32 s40, s40, {here} - {NAME}
        s_subb_u32 s41, s41, 0
        s_add_u32 s40, s40, s38
        s_addc_u32 s41, s41, 0
        v_mov_b32 v17, s41
        v_add_co_u32 v16, vcc, s40, v2
        s_nop 1
        v_addc_co_u32 v17, vcc, 0, v17, vcc
        global_load_dwordx4 v[116:119], v[16:17], off
        {lab}:""")
    after_kernarg(k)
    flags_srd(k)
    ACC = 16; FR = 80
    def reads(n):
        if n >= 40: return []
        s, ks, j = n >> 2, n & 3, n >> 1
        f = FR + (n % 3)*16
        ao = (s % 3)*16384; wo = (j % 4)*8192 + (n & 1)*4096
        return [f"ds_read_b64_tr_b16 {vr(f+8,2)}, v8 offset:{wo}", f"ds_read_b64_tr_b16 {vr(f+10,2)}, v8 offset:{wo+1024}",
                f"ds_read_b128 {vr(f,4)}, v{4+ks} offset:{ao}", f"ds_read_b128 {vr(f+4,4)}, v{4+ks} offset:{ao+4096}",
                f"ds_read_b64_tr_b16 {vr(f+12,2)}, v9 offset:{wo}", f"ds_read_b64_tr_b16 {vr(f+14,2)}, v9 offset:{wo+1024}"]
    def loop(swap):
        if C("cpf"): k("s_waitcnt vmcnt(0)")
        k("s_barrier")
        k.stamp(1)
        if C("cyc") == 3 and STAMP[0]: k("s_memtime s[96:97]\ns_mov_b32 s98, 0\ns_waitcnt lgkmcnt(0)")
        for i in reads(0) + reads(1): k(i)
        for n in range(40):
            f = FR + (n % 3)*16
            rd = reads(n+2)
            if n % 2 == 0: k("s_waitcnt lgkmcnt(6)")
            for m, (q, b) in enumerate(((0, 0), (0, 1), (1, 1), (1, 0))):
                a_, b_ = f+8+4*q, f+4*b
                if swap: a_, b_ = b_, a_
                if not C("diag_nomfma") or n == 0: k(mfma(ACC + (2*q+b)*16, a_, b_, "0" if n == 0 else None))
                if n % 2 == 0:
                    if m == 2:
                        k("s_waitcnt lgkmcnt(0)")
                        if n < 38: k("s_barrier")
                    if m >= 2:
                        for i in rd[3*(m-2):3*(m-2)+3]: k(i)
                elif m < 2:
                    for i in rd[3*m:3*m+3]: k(i)
        k.stamp(2)
        if C("cyc") == 3 and STAMP[0]: k("s_memtime s[72:73]\ns_waitcnt lgkmcnt(0)\ns_sub_u32 s96, s72, s96")
    k(f"s_cmp_ge_u32 s33, 10\ns_cbranch_scc1 {Lv}")
    k.srd(16, P_WS, 2*SZ, WS_QP)
    k(f"""s_cmp_lt_u32 s33, 5
    s_cselect_b32 s47, {f32(QSCALE)}, 1.0
    s_lshl_b32 s38, s36, 6
    v_lshl_add_u32 v11, v3, 1, s38
    v_lshlrev_b32 v12, 2, v11
    s_lshl_b32 s38, s37, 8
    v_lshl_add_u32 v13, v10, 4, s38
    v_lshlrev_b32 v11, 3, v11
    s_lshl_b32 s39, s32, 10
    v_add_u32 v11, s39, v11
    v_lshl_add_u32 v11, v10, 14, v11
    s_lshl_b32 s40, s33, 19
    s_lshl_b32 s41, s37, 18
    s_add_u32 s40, s40, s41""")
    loop(False)
    k(f"ds_read_b64 v[4:5], v12 offset:{STO}\nds_read_b64 v[6:7], v12 offset:{STO+512}")
    for q in range(2):
        for j in range(4):
            k(f"ds_read_b128 {vr(FR+16*q+4*j,4)}, v13 offset:{CSO + q*128 + j*32}")
    k("s_waitcnt lgkmcnt(8)\nv_mul_f32 v6, s47, v6\nv_mul_f32 v7, s47, v7")
    for q in range(2):
        for j in range(4):
            k(f"s_waitcnt lgkmcnt({7 - (4*q+j)})")
            c = FR+16*q+4*j; d = 112 + 4*((4*q+j) % 4)
            for b in range(2):
                a = ACC + (2*q+b)*16 + 4*j
                if C("pk"):
                    for e in (0, 2): k(f"v_pk_fma_f32 {vr(a+e,2)}, v[4:5], {vr(c+e,2)}, {vr(a+e,2)} op_sel:[{b},0,0] op_sel_hi:[{b},1,1] neg_lo:[1,0,0] neg_hi:[1,0,0]")
                else:
                    for e in range(4): k(f"v_fma_f32 v{a+e}, -v{4+b}, v{c+e}, v{a+e}")
            for b in range(2):
                a = ACC + (2*q+b)*16 + 4*j
                if C("pk"):
                    for e in (0, 2): k(f"v_pk_mul_f32 {vr(a+e,2)}, {vr(a+e,2)}, v[6:7] op_sel:[0,{b}] op_sel_hi:[1,{b}]")
                else:
                    for e in range(4): k(f"v_mul_f32 v{a+e}, v{a+e}, v{6+b}")
            for b in range(2):
                a = ACC + (2*q+b)*16 + 4*j
                k(f"v_cvt_pk_bf16_f32 v{d+2*b}, v{a}, v{a+1}\nv_cvt_pk_bf16_f32 v{d+2*b+1}, v{a+2}, v{a+3}")
            k(f"s_add_u32 s41, s40, {(8*q+2*j)*16384}")
            k(f"buffer_store_dwordx4 {vr(d,4)}, v11, s[16:19], s41 offen sc1")
    k(f"s_waitcnt vmcnt(0)\ns_barrier\ns_branch {Lj}")
    k.label(Lv)
    k.srd(16, P_WS, SZ, WS_VI)
    k(f"""s_lshl_b32 s39, s37, 6
    v_add_u32 v12, s39, v3
    v_lshlrev_b32 v12, 2, v12
    s_lshl_b32 s40, s36, 8
    v_lshl_add_u32 v11, v10, 4, s40
    s_sub_u32 s38, s33, 10
    s_lshl_b32 s38, s38, 7
    s_add_u32 s38, s38, s39
    s_mov_b32 s41, {81920-320}""")
    for q in range(2):
        k(f"""v_add_u32 v112, s38, v3
        v_add_u32 v112, {32*q}, v112
        v_mul_u32_u24 v15, 3277, v112
        v_lshrrev_b32 v15, 16, v15
        v_mul_lo_u32 v15, v15, s41
        v_lshl_add_u32 v15, v112, 4, v15
        v_mul_u32_u24 v112, 320, v10
        v_add_u32 v{13+q}, v15, v112""")
    k("s_lshl_b32 s40, s32, 1\ns_add_u32 s40, s40, s36\ns_mul_i32 s40, s40, 2560")
    loop(True)
    k(f"ds_read_b32 v6, v12 offset:{CSO}\nds_read_b32 v7, v12 offset:{CSO+128}")
    for b in range(2):
        for j in range(4):
            k(f"ds_read_b128 {vr(FR+4*j,4)}, v11 offset:{STO + b*128 + j*32}")
            k(f"ds_read_b128 {vr(FR+16+4*j,4)}, v11 offset:{STO + 512 + b*128 + j*32}")
        k("s_waitcnt lgkmcnt(0)")
        if b == 0: k("s_nop 1")
        for q in range(2):
            a = ACC + (2*q+b)*16
            for g in range(2):
                d = 112 + 4*(2*q+g)
                if C("pk"):
                    for r in range(8*g, 8*g+8, 2): k(f"v_pk_fma_f32 {vr(a+r,2)}, {vr(FR+r,2)}, v[6:7], {vr(a+r,2)} op_sel:[0,{q},0] op_sel_hi:[1,{q},1] neg_lo:[1,0,0] neg_hi:[1,0,0]")
                    for r in range(8*g, 8*g+8, 2): k(f"v_pk_mul_f32 {vr(a+r,2)}, {vr(a+r,2)}, {vr(FR+16+r,2)}")
                else:
                    for r in range(8*g, 8*g+8): k(f"v_fma_f32 v{a+r}, -v{FR+r}, v{6+q}, v{a+r}")
                    for r in range(8*g, 8*g+8): k(f"v_mul_f32 v{a+r}, v{a+r}, v{FR+16+r}")
                for e in range(4): k(f"v_cvt_pk_bf16_f32 v{d+e}, v{a+8*g+2*e}, v{a+8*g+2*e+1}")
                k(f"buffer_store_dwordx4 {vr(d,4)}, v{13+q}, s[16:19], s40 offen offset:{b*1280 + g*640} sc1")
    k("s_waitcnt vmcnt(0)\ns_barrier")

def f1_w_early(k):
    UOFF = 12288 + 128; SLOT = 24704
    k(f"""s_and_b32 s68, s34, 1
    s_lshl_b32 s68, s68, 2
    s_and_b32 s69, s35, 3
    s_add_u32 s68, s68, s69
    s_lshr_b32 s69, s34, 1
    s_lshl_b32 s69, s69, 3
    s_lshr_b32 s70, s35, 2
    s_add_u32 s69, s69, s70
    s_cmp_lt_u32 s4, 4
    s_cselect_b32 s24, s{P_W1}, s{P_W3}
    s_cselect_b32 s25, s{P_W1+1}, s{P_W3+1}
    s_cselect_b32 s70, 0, {UOFF}
    s_mov_b32 s26, {640*3072}
    s_mov_b32 s27, 0x00020000
    s_and_b32 s71, s4, 3
    s_mul_i32 s76, s71, 3072
    s_add_u32 s70, s70, s76
    s_lshl_b32 s71, s71, 5
    s_mul_i32 s76, s69, 96
    s_add_u32 s68, s68, s69""")
    mod_small(k, 68, 5, 69, 38)
    k(f"s_mul_i32 s68, s68, {128*3072}")
    for i in range(3):
        k(f"""v_add_u32 v103, {64*i}, v1
        v_mul_u32_u24 v104, 10923, v103
        v_lshrrev_b32 v104, 16, v104
        v_mul_u32_u24 v105, 6, v104
        v_sub_u32 v105, v103, v105
        v_add_u32 v104, s71, v104
        v_mul_u32_u24 v104, 3072, v104
        v_lshl_add_u32 v104, v105, 4, v104
        v_add_u32 v{100+i}, s76, v104""")
    for st in range(2):
        for i in range(3):
            k(f"s_add_u32 m0, s70, {st*SLOT + i*1024}\ns_nop 0\nbuffer_load_dwordx4 v{100+i}, s[24:27], s68 offen lds")
        k(f"s_add_u32 s68, s68, {128*3072}\ns_cmp_eq_u32 s68, {640*3072}\ns_cselect_b32 s68, 0, s68")

def phase_f0(k):
    k.L.append("    ; ---- F0: layernorm of 8 rows, stats granules, column-sum partials of wqkv")
    RS = 1312; LB = 2*24704; LC = LB + 8*RS
    k(A1_TILE.format(rb="s41", cb="s42"))
    k(f"""s_and_b32 s40, s34, 1
    s_lshl_b32 s40, s40, 2
    s_lshr_b32 s36, s34, 1
    s_add_u32 s40, s40, s36
    s_lshl_b32 s40, s40, 5
    s_add_u32 s40, s40, s35
    s_lshl_b32 s32, s40, 3
    s_add_u32 s32, s32, s4
    s_mul_i32 s33, s32, 1280
    v_lshlrev_b32 v3, 2, v1
    s_mul_i32 s38, s41, 40
    s_mul_i32 s39, s4, 5
    s_add_u32 s38, s38, s39
    s_mul_i32 s38, s38, 3840
    s_min_u32 s39, s42, 14
    s_lshl_b32 s39, s39, 8
    s_add_u32 s38, s38, s39""")
    after_kernarg(k)
    k.srd(8, P_X, SZ)
    for i in range(5):
        k(f"buffer_load_dword v{8+i}, v3, s[8:11], s33 offen offset:{i*256}")
    k.srd(20, P_WQKV, 640*3840)
    for i in range(5):
        k(f"buffer_load_dword v{48+i}, v3, s[20:23], s38 offen" + ("\ns_add_u32 s38, s38, 3840" if i < 4 else ""))
    def pf():
        k("s_lshl_b32 s43, s5, 3\ns_add_u32 s43, s43, s4\ns_mul_i32 s43, s43, 960")
        for j, p in enumerate((P_W1, P_W3)):
            k.srd(24, p, 640*3072)
            k(f"buffer_load_dwordx4 {vr(64+4*j,4)}, v2, s[24:27], s43 offen")
    if C("pf") == 1: pf()
    if C("f1_early") == 3: f1_w_early(k)
    tag_setup(k, 44)
    lab = k.newlabel("tag")
    k(f"""s_or_b32 s7, s5, s4
    s_cmp_lg_u32 s7, 0
    s_cbranch_scc1 {lab}
    s_memrealtime s[76:77]
    s_waitcnt lgkmcnt(0)
    s_or_b32 s76, s76, 1
    v_mov_b32 v18, s76
    v_mov_b32 v19, s77
    s_mov_b64 exec, 1
    buffer_store_dwordx2 v[18:19], v46, s[72:75], 0 offen sc1
    s_mov_b64 exec, -1
    {lab}:""")
    flags_srd(k)
    k.srd(12, P_WS, SZ, WS_XF)
    k.srd(16, P_WS, ST_SZ + CS_SZ, WS_ST)
    k(f"""s_mul_i32 s34, s4, {RS}
    s_add_u32 s34, s34, {LB}
    v_add_u32 v4, s34, v3
    v_and_b32 v5, 7, v0
    v_lshrrev_b32 v6, 3, v0
    v_mul_u32_u24 v7, {RS}, v5
    v_lshl_add_u32 v7, v6, 4, v7
    v_add_u32 v7, {LB}, v7
    v_lshlrev_b32 v6, 9, v6
    v_lshl_add_u32 v6, v5, 4, v6
    s_lshr_b32 s35, s40, 2
    s_mul_i32 s35, s35, 40960
    s_and_b32 s36, s40, 3
    s_lshl_b32 s36, s36, 7
    s_add_u32 s35, s35, s36
    s_add_u32 s36, s35, 32768
    s_lshl_b32 s37, s32, 4
    v_lshlrev_b32 v47, 3, v0
    v_lshlrev_b32 v43, 3, v1
    s_lshl_b32 s38, s42, 4
    s_add_u32 s38, s38, s41
    s_lshl_b32 s38, s38, 10
    s_add_u32 s38, s38, {ST_SZ}""")
    X = 16
    for i in range(5):
        k(f"s_waitcnt vmcnt({9-i + (2 if C('pf') == 1 else 0) + (6 if C('f1_early') == 3 else 0)})")
        if i == 4:
            k(tag_load(44))
            if C("pf") == 2: pf()
        k(f"v_lshlrev_b32 v{X+2*i}, 16, v{8+i}\nv_and_b32 v{X+2*i+1}, 0xffff0000, v{8+i}")
    def reduce(v, t):
        for r in (8, 4, 2, 1):
            k(f"s_nop 1\nv_add_f32_dpp v{v}, v{v}, v{v} row_ror:{r} row_mask:0xf bank_mask:0xf")
        k(f"v_mov_b32 v{t}, v{v}\ns_nop 1\nv_permlane16_swap_b32 v{v}, v{t}\ns_nop 1\nv_add_f32 v{v}, v{v}, v{t}")
        k(f"v_mov_b32 v{t}, v{v}\ns_nop 1\nv_permlane32_swap_b32 v{v}, v{t}\ns_nop 1\nv_add_f32 v{v}, v{v}, v{t}")
    M, V, T = 28, 29, 30
    k(f"v_add_f32 v{M}, v{X}, v{X+1}\nv_add_f32 v{T}, v{X+2}, v{X+3}")
    for i in range(4, 10, 2):
        k(f"v_add_f32 v{M}, v{M}, v{X+i}\nv_add_f32 v{T}, v{T}, v{X+i+1}")
    k(f"v_add_f32 v{M}, v{M}, v{T}")
    reduce(M, T)
    k(f"v_mul_f32 v{M}, {f32(1/640)}, v{M}")
    for i in range(10): k(f"v_sub_f32 v{32+i}, v{X+i}, v{M}")
    k(f"v_mul_f32 v{V}, v32, v32\nv_mul_f32 v{T}, v33, v33")
    for i in range(2, 10, 2):
        k(f"v_fmac_f32 v{V}, v{32+i}, v{32+i}\nv_fmac_f32 v{T}, v{33+i}, v{33+i}")
    k(f"v_add_f32 v{V}, v{V}, v{T}")
    reduce(V, T)
    k(f"v_mul_f32 v{V}, {f32(1/640)}, v{V}")
    def rb(v): k(f"v_cvt_pk_bf16_f32 v{v}, v{v}, v{v}\nv_lshlrev_b32 v{v}, 16, v{v}")
    rb(M); rb(V)
    k(f"v_add_f32 v{V}, {f32(1e-5)}, v{V}"); rb(V)
    k(f"v_sqrt_f32 v{V}, v{V}\ns_nop 0"); rb(V)
    k(f"v_rcp_f32 v{V}, v{V}\ns_waitcnt vmcnt({2 if C('pf') == 2 else 0})")
    tag_take(k, 44, True)
    k(f"v_mov_b32 v{T}, s6\nv_mov_b32 v{T+1}, s7")
    k(f"s_mov_b64 exec, 1\nbuffer_store_dwordx4 {vr(M,4)}, v46, s[16:19], s37 offen sc1\ns_mov_b64 exec, -1")
    k("v_lshlrev_b32 v32, 16, v48\nv_and_b32 v33, 0xffff0000, v48")
    for i in range(1, 5):
        k(f"v_lshlrev_b32 v34, 16, v{48+i}\nv_and_b32 v35, 0xffff0000, v{48+i}\nv_add_f32 v32, v32, v34\nv_add_f32 v33, v33, v35")
    k(f"ds_write_b64 v47, v[32:33] offset:{LC}")
    for i in range(5):
        a, b = X+2*i, X+2*i+1
        k(f"v_sub_f32 v{a}, v{a}, v{M}\nv_sub_f32 v{b}, v{b}, v{M}")
        k(f"v_cvt_pk_bf16_f32 v{b}, v{a}, v{b}")
        k(f"v_lshlrev_b32 v{a}, 16, v{b}\nv_and_b32 v{b}, 0xffff0000, v{b}")
        k(f"v_mul_f32 v{a}, v{a}, v{V}\nv_mul_f32 v{b}, v{b}, v{V}")
        k(f"v_cvt_pk_bf16_f32 v{8+i}, v{a}, v{b}")
        k(f"ds_write_b32 v4, v{8+i} offset:{i*256}")
    k("s_waitcnt lgkmcnt(0)\ns_barrier")
    l1 = k.newlabel("f0w"); l2 = k.newlabel("f0c")
    k(f"ds_read_b128 v[8:11], v7\ns_cmp_lg_u32 s4, 2\ns_cbranch_scc1 {l2}")
    for i in range(8): k(f"ds_read_b64 {vr(48+2*i,2)}, v43 offset:{LC + i*512}")
    k("s_waitcnt lgkmcnt(0)")
    for st in (8, 4, 2):
        for e in range(st): k(f"v_add_f32 v{48+e}, v{48+e}, v{48+st+e}")
    k(f"v_mov_b32 v50, s6\nv_mov_b32 v51, s7\nbuffer_store_dwordx4 v[48:51], v2, s[16:19], s38 offen sc1\n{l2}:")
    k(f"""s_cmp_ge_u32 s4, 2
    s_cbranch_scc1 {l1}
    ds_read_b128 v[12:15], v7 offset:1024
    s_waitcnt lgkmcnt(0)
    buffer_store_dwordx4 v[12:15], v6, s[12:15], s36 offen sc1
    {l1}:
    s_waitcnt lgkmcnt(0)
    buffer_store_dwordx4 v[8:11], v6, s[12:15], s35 offen sc1""")
    if C("tlb"):
        lab = k.newlabel("f0t")
        k(f"s_cmp_lg_u32 s4, 3\ns_cbranch_scc1 {lab}\nv_lshlrev_b32 v64, {C('tlb_sh', 19)}, v1")
        for j, (p, n) in enumerate(((P_WS, WS_FL + FL_N*128), (P_OUT, SZ), (P_W2, 1536*1280), (P_WO, 640*1280))):
            k.srd(24, p, n)
            k(f"buffer_load_dword v{65+j}, v64, s[24:27], 0 offen")
        k.label(lab)
    lab = k.newlabel("f0p")
    k(f"s_waitcnt vmcnt(0)\ns_barrier\ns_cmp_lg_u32 s4, 0\ns_cbranch_scc1 {lab}")
    set_flag(k, f"s_add_u32 s78, s40, {FL_LN}", 8)
    k.label(lab)

def gemm2(k, vm, stages, ksteps, NB, acc, wbuf, R, wgroup, wread, aload, areg, AW, nst_total, zero_first,
          hook=None, lead=None):
    steps = [(s, ks) for s in stages for ks in range(ksteps)]
    wb = lambda n, nb: wbuf + ((n & 1) * NB + nb) * 4
    vm.wait(("W", stages[0]))
    k("s_barrier")
    for nb in range(NB):
        for i in wread(stages[0], 0, nb, wb(0, nb)): k(i)
    pending = []
    for n, (s, ks) in enumerate(steps):
        last = (n == len(steps)-1)
        if hook: hook(n)
        if ks == ksteps-1 and not last:
            assert not pending
            vm.wait(("W", s+1))
            k("s_barrier")
            if s+R-1 < nst_total and ("W", s+R-1) not in vm.tags:
                pending = [(u, i) for i, u in enumerate(wgroup(s+R-1))]
                plast = len(pending)-1; ps = s+R-1
        vm.wait(("A", s, ks))
        for nb in range(NB):
            k(f"s_waitcnt lgkmcnt({2*(NB-1-nb) if last else 2*(NB-1)})")
            k(mfma(acc+16*nb, wb(n, nb), areg(n), "0" if (n == 0 and zero_first) else None))
            if not last:
                s2, ks2 = steps[n+1]
                for i in wread(s2, ks2, nb, wb(n+1, nb)): k(i)
            if pending and nb != NB-1:
                u, i = pending.pop(0)
                vm.op(u, ("W", ps) if i == plast else None)
        w = lead(n) if lead else AW
        for m in range(n+1, min(n+w+1, len(steps))):
            s2, ks2 = steps[m]
            if ("A", s2, ks2) not in vm.tags:
                vm.op(aload(s2, ks2, areg(m)), ("A", s2, ks2))
    assert not pending

def phase_f1(k):
    k.L.append("    ; ---- F1: 256 tokens x 48 gate/up columns")
    R = 3; UOFF = 12288 + 128; SLOT = 24704
    vm = VM(k)
    k("""s_and_b32 s34, s5, 7
    s_lshr_b32 s35, s5, 3
    s_and_b32 s36, s34, 1
    s_lshl_b32 s36, s36, 2
    s_and_b32 s37, s35, 3
    s_add_u32 s32, s36, s37
    s_lshr_b32 s36, s34, 1
    s_lshl_b32 s36, s36, 3
    s_lshr_b32 s37, s35, 2
    s_add_u32 s33, s36, s37""")
    k(f"""s_cmp_lt_u32 s4, 4
    s_cselect_b32 s8, s{P_W1}, s{P_W3}
    s_cselect_b32 s9, s{P_W1+1}, s{P_W3+1}
    s_cselect_b32 s42, 0, {UOFF}
    s_mov_b32 s10, {640*3072}
    s_mov_b32 s11, 0x00020000
    s_and_b32 s36, s4, 3
    s_mul_i32 s37, s36, 3072
    s_add_u32 s42, s42, s37
    s_lshl_b32 s36, s36, 5
    s_mul_i32 s37, s33, 96""")
    if C("diag_x"): k.srd(12, P_X, SZ)
    else: k.srd(12, P_WS, SZ, WS_XF)
    k.srd(16, P_WS, HF_SZ, WS_HF)
    for i in range(3):
        k(f"""v_add_u32 v3, {64*i}, v1
        v_mul_u32_u24 v8, 10923, v3
        v_lshrrev_b32 v8, 16, v8
        v_mul_u32_u24 v9, 6, v8
        v_sub_u32 v9, v3, v9
        v_add_u32 v8, s36, v8
        v_mul_u32_u24 v8, 3072, v8
        v_lshl_add_u32 v8, v9, 4, v8
        v_add_u32 v{4+i}, s37, v8""")
    k(f"""v_lshrrev_b32 v12, 5, v1
    v_bfe_u32 v13, v1, 2, 2
    v_lshl_add_u32 v14, v12, 3, v13
    v_mul_u32_u24 v14, 96, v14
    v_bfe_u32 v15, v1, 4, 1
    v_mul_u32_u24 v15, {UOFF}, v15
    v_add_u32 v14, v14, v15
    v_and_b32 v15, 3, v1
    v_lshl_add_u32 v8, v15, 3, v14
    v_add_u32 v3, 4096, v2""")
    k("s_add_u32 s40, s32, s33")
    mod_small(k, 40, 5, 43, 38)
    k(f"""s_lshl_b32 s46, s32, 3
    s_add_u32 s46, s46, s4
    s_mul_i32 s41, s46, 40960
    s_mul_i32 s44, s40, {128*3072}
    s_lshl_b32 s45, s40, 13
    s_add_u32 s45, s45, s41
    s_add_u32 s47, s41, 40960""")
    ACC, WB, AB = 16, 64, 88
    def wgroup(s):
        u = []
        for i in range(3):
            post = f"\ns_add_u32 s44, s44, {128*3072}\ns_cmp_eq_u32 s44, {640*3072}\ns_cselect_b32 s44, 0, s44" if i == 2 else ""
            u.append(f"s_add_u32 m0, s42, {(s % R)*SLOT + i*1024}\ns_nop 0\nbuffer_load_dwordx4 v{4+i}, s[8:11], s44 offen{' nt' if C('nt1') else ''} lds" + post)
        return u
    def wread(s, ks, nb, dst):
        o = (s % R)*SLOT + ks*16*96 + nb*32
        return [f"ds_read_b64_tr_b16 {vr(dst,2)}, v8 offset:{o}", f"ds_read_b64_tr_b16 {vr(dst+2,2)}, v8 offset:{o+4*96}"]
    def aload(s, ks, dst):
        post = "\ns_add_u32 s45, s45, 8192\ns_cmp_eq_u32 s45, s47\ns_cselect_b32 s45, s41, s45" if ks == 7 else ""
        return f"buffer_load_dwordx4 {vr(dst,4)}, v{3 if ks >= 4 else 2}, s[12:15], s45 offen offset:{(ks%4)*1024} sc1" + post
    AW = C("f1_aw", 8)
    areg = lambda n: AB + 4*(n % AW)
    def wpro():
        for s in range(R-1):
            g = wgroup(s)
            for i, u in enumerate(g):
                thr(); vm.op(u, ("W", s) if i == len(g)-1 else None)
    def thr():
        if C("f1_thr") and vm.n >= C("f1_thr"): k(f"s_waitcnt vmcnt({C('f1_thr')-1})")
    def apro():
        for ks in range(AW):
            thr(); vm.op(aload(0, ks, areg(ks)), ("A", 0, ks))
    def go_poll():
        polln(k, f"s_add_u32 s78, s5, {FL_GO}" if C("go_a2") else f"""s_and_b32 s68, s34, 1
        s_lshl_b32 s68, s68, 3
        s_and_b32 s69, s35, 7
        s_add_u32 s68, s68, s69
        s_lshr_b32 s69, s34, 1
        s_lshl_b32 s69, s69, 2
        s_lshr_b32 s70, s35, 3
        s_add_u32 s69, s69, s70
        s_min_u32 s69, s69, 14
        s_lshl_b32 s78, s69, 4
        s_add_u32 s78, s78, s68
        s_add_u32 s78, s78, {FL_QKV if C("go_q") else FL_GO}""", 1, 10, sleep=C("go_sleep", 4))
    early = C("f1_early", 0)
    if early == 3:
        k("s_mov_b32 s44, s68"); vm.tags[("W", 0)] = 0; vm.tags[("W", 1)] = 0
    elif early >= 1: wpro()
    lab = k.newlabel("f1p")
    k(f"s_cmp_lg_u32 s4, 0\ns_cbranch_scc1 {lab}")
    polln(k, f"s_lshl_b32 s78, s32, 5\ns_add_u32 s78, s78, {FL_LN}", 32, 10, sleep=4)
    if early < 2 and C("f1_hold", 1): go_poll()
    k(f"{lab}:\ns_barrier")
    if early < 1: wpro()
    apro()
    if early >= 2 and C("f1_hold", 1):
        lab = k.newlabel("f1g")
        k(f"s_cmp_lg_u32 s4, 0\ns_cbranch_scc1 {lab}")
        go_poll()
        k.label(lab)
    k.stamp(2)
    def hook(n):
        if n == C("f1_sw", 99): k(f"s_setprio {C('prio_f1b', 1)}")
    gemm2(k, vm, list(range(5)), 8, 3, ACC, WB, R, wgroup, wread, aload, areg, AW, 5, True, hook, lambda n: C("f1_lead", 8) if n < C("f1_leadn", 24) else AW)
    k.stamp(3)
    k(f"""s_mul_i32 s36, s46, 96
    s_mul_i32 s37, s33, 3
    s_add_u32 s36, s36, s37
    s_lshl_b32 s36, s36, 10
    s_mov_b32 s38, {f32(-LOG2E)}
    s_setprio {C('prio_f1e', 3)}
    s_nop 7""")
    for nb in range(3):
        a = ACC + 16*nb; t = WB + 8*(nb % 2); d = AB + 4*nb
        for e in range(8): k(f"v_mul_f32 v{t+e}, s38, v{a+e}")
        for e in range(8): k(f"v_exp_f32 v{t+e}, v{t+e}")
        for e in range(8): k(f"v_mul_f32 v{a+e}, v{a+e}, v{a+8+e}")
        for e in range(8): k(f"v_add_f32 v{t+e}, 1.0, v{t+e}")
        for e in range(8): k(f"v_rcp_f32 v{t+e}, v{t+e}")
        k("s_nop 0")
        for e in range(8): k(f"v_mul_f32 v{a+e}, v{a+e}, v{t+e}")
        for e in range(4): k(f"v_cvt_pk_bf16_f32 v{d+e}, v{a+2*e}, v{a+2*e+1}")
        k(f"buffer_store_dwordx4 {vr(d,4)}, v2, s[16:19], s36 offen offset:{nb*1024} sc1")
    k(f"s_setprio {C('prio_f2', 2)}")
    if True:
        lab = k.newlabel("f1f")
        k(f"s_waitcnt vmcnt(0)\ns_barrier\ns_cmp_lg_u32 s4, 0\ns_cbranch_scc1 {lab}")
        set_flag(k, f"s_lshl_b32 s78, s32, 5\ns_add_u32 s78, s78, s33\ns_add_u32 s78, s78, {FL_H}", 10)
        k.label(lab)

def mfma16(d, a, b, c=None):
    cs = vr(d, 4) if c is None else c
    return f"v_mfma_f32_16x16x32_bf16 {vr(d,4)}, {vr(a,4)}, {vr(b,4)}, {cs}"

def phase_f2(k, endlab):
    k.L.append("    ; ---- F2: 64 tokens x 80 output columns, K split over 4 wave pairs")
    R = 4; SLOT = 20480; NST = 17
    vm = VM(k)
    k("""s_and_b32 s34, s5, 7
    s_lshr_b32 s35, s5, 3
    s_lshl_b32 s36, s34, 2
    s_and_b32 s37, s35, 3
    s_add_u32 s32, s36, s37
    s_lshr_b32 s33, s35, 2
    s_and_b32 s37, s4, 1
    s_lshr_b32 s38, s4, 1
    s_mul_i32 s39, s4, 160
    s_mul_i32 s43, s33, 160""")
    k.srd(8, P_W2, 1536*1280)
    k.srd(16, P_WO, 640*1280)
    k.srd(12, P_WS, HF_SZ, WS_HF)
    k.srd(24, P_WS, SZ, WS_OF)
    k.srd(20, P_X, SZ)
    ACC, WB, AB, XR = 16, 56, 76, 116
    for i in range(3):
        k(f"""v_add_u32 v3, s39, v1
        v_add_u32 v3, {64*i}, v3
        v_mul_u32_u24 v{7+i}, 6554, v3
        v_lshrrev_b32 v{7+i}, 16, v{7+i}
        v_mul_u32_u24 v13, 10, v{7+i}
        v_sub_u32 v13, v3, v13
        v_lshl_add_u32 v{10+i}, v13, 4, s43
        s_movk_i32 s36, 1280
        v_mad_u32_u24 v{4+i}, v{7+i}, s36, v{10+i}""")
    def dma_addr(mode, i):
        if mode == 1: c = f"v_lshrrev_b32 v3, 4, v{7+i}\nv_lshl_add_u32 v3, v3, 2, v{7+i}\n"
        else: c = f"v_lshrrev_b32 v3, 2, v{7+i}\nv_lshl_add_u32 v3, v3, 4, v{7+i}\nv_add_u32 v3, 16, v3\n"
        return c + f"v_mad_u32_u24 v{4+i}, v3, s36, v{10+i}"
    k(f"""v_lshrrev_b32 v3, 5, v1
    v_lshlrev_b32 v13, 4, v3
    v_bfe_u32 v14, v1, 2, 3
    v_add_u32 v13, v13, v14
    s_lshl_b32 s44, s38, 5
    v_add_u32 v13, s44, v13
    v_mul_u32_u24 v13, 160, v13
    v_and_b32 v14, 3, v1
    v_lshl_add_u32 v13, v14, 3, v13
    v_add_u32 v14, {3*SLOT}, v13
    v_lshrrev_b32 v3, 4, v1
    v_lshlrev_b32 v3, 9, v3
    v_and_b32 v15, 15, v1
    v_lshl_add_u32 v15, v15, 4, v3""")
    k("s_and_b32 s40, s32, 3\ns_mul_i32 s40, s40, 3\ns_mul_i32 s44, s33, 5\ns_add_u32 s40, s40, s44")
    mod_small(k, 40, 12, 44, 44)
    k(f"""s_lshl_b32 s46, s32, 1
    s_add_u32 s46, s46, s37
    s_mul_i32 s41, s46, 98304
    s_lshl_b32 s44, s38, 11
    s_add_u32 s41, s41, s44
    s_mul_i32 s47, s46, 40960
    s_add_u32 s47, s47, s44
    s_mul_i32 s42, s4, 2560
    s_mul_i32 s44, s40, {128*1280}
    s_lshl_b32 s45, s40, 13
    s_add_u32 s45, s45, s41
    s_add_u32 s68, s41, 98304""")
    def wgroup(s):
        u = []
        for i in range(3):
            pre = post = ""
            if s < 12:
                ld = f"buffer_load_dwordx4 v{4+i}, s[8:11], s44 offen{' nt' if C('nt2') else ''} lds"
                if i == 2: post = f"\ns_add_u32 s44, s44, {128*1280}\ns_cmp_eq_u32 s44, {1536*1280}\ns_cselect_b32 s44, 0, s44"
            elif s < 16:
                if s == 12: pre = dma_addr(1, i) + "\n"
                if i == 0: pre += f"s_mov_b32 s44, {(s-12)*160*1280}\n"
                ld = f"buffer_load_dwordx4 v{4+i}, s[16:19], s44 offen lds"
            else:
                ld = f"buffer_load_dwordx4 v{4+i}, s[16:19], 0 offen lds"
            if i == 2: ld = "s_mov_b32 exec_hi, 0\n" + ld + "\ns_mov_b32 exec_hi, -1"
            else: ld = "s_nop 0\n" + ld
            u.append(pre + f"s_add_u32 m0, s42, {(s % R)*SLOT + i*1024}\n" + ld + post)
        return u
    def wread(s, j):
        slot = s % R
        va = 14 if slot == 3 else 13
        o = (slot % 3)*SLOT*(slot != 3) + j*32
        return [f"ds_read_b64_tr_b16 {vr(WB+4*j,2)}, v{va} offset:{o}", f"ds_read_b64_tr_b16 {vr(WB+4*j+2,2)}, v{va} offset:{o+1280}"]
    AW = 5
    areg = lambda s, b: AB + 8*(s % AW) + 4*b
    def issue_a(s):
        for b in range(2):
            if s < 12:
                post = "\ns_add_u32 s45, s45, 8192\ns_cmp_eq_u32 s45, s68\ns_cselect_b32 s45, s41, s45" if b else ""
                vm.op(f"buffer_load_dwordx4 {vr(areg(s,b),4)}, v15, s[12:15], s45 offen offset:{b*256} sc1" + post, ("A", s))
            else:
                post = "\ns_add_u32 s47, s47, 8192" if b else ""
                vm.op(f"buffer_load_dwordx4 {vr(areg(s,b),4)}, v15, s[24:27], s47 offen offset:{b*256} sc1" + post, ("A", s))
    def issue_w(s):
        for u in wgroup(s): vm.op(u, ("W", s))
    def run(stages, zero_first):
        vm.wait(("W", 1)); k("s_barrier")
        for j in range(5):
            for i in wread(stages[0], j): k(i)
        pending = []
        for n, s in enumerate(stages):
            if s % 2 == 1:
                assert not pending
                vm.wait(("W", s+2)); k("s_waitcnt lgkmcnt(0)\ns_barrier")
                pending = [(u, s+3) for u in wgroup(s+3)] + [(u, s+4) for u in wgroup(s+4)]
            vm.wait(("A", s))
            for j in range(5):
                if s % 2 == 0: k("s_waitcnt lgkmcnt(8)")
                for b in range(2):
                    k(mfma16(ACC + (5*b+j)*4, WB+4*j, areg(s, b), "0" if (zero_first and n == 0) else None))
                for i in wread(s+1, j): k(i)
                if pending:
                    u, t = pending.pop(0); vm.op(u, ("W", t))
            if s+AW <= stages[-1]: issue_a(s+AW)
        for u, t in pending: vm.op(u, ("W", t))
    for s in range(R): issue_w(s)
    k("s_lshl_b32 s69, s32, 6")
    for i in range(2):
        k(f"""v_add_u32 v3, {512*i}, v0
        v_mul_u32_u24 v{124+i}, 6554, v3
        v_lshrrev_b32 v{124+i}, 16, v{124+i}
        v_mul_u32_u24 v{126+i}, 10, v{124+i}
        v_sub_u32 v{126+i}, v3, v{126+i}
        v_add_u32 v3, s69, v{124+i}
        v_mul_u32_u24 v3, 1280, v3
        v_lshl_add_u32 v3, v{126+i}, 4, v3""")
        vm.op(f"buffer_load_dwordx4 {vr(XR+4*i,4)}, v3, s[20:23], s43 offen", "x")
    lab = k.newlabel("f2p")
    k(f"s_cmp_lg_u32 s4, 0\ns_cbranch_scc1 {lab}")
    polln(k, f"s_lshr_b32 s78, s32, 2\ns_lshl_b32 s78, s78, 5\ns_add_u32 s78, s78, {FL_H}", 32, AB, sleep=4)
    k(f"{lab}:\ns_barrier")
    k.stamp(4)
    for s in range(AW): issue_a(s)
    run(list(range(12)), True)
    k("s_waitcnt lgkmcnt(0)\ns_barrier")
    for i in range(3): k(dma_addr(2, i))
    issue_w(16)
    k(f"""s_mul_i32 s44, s4, 10240
    v_and_b32 v3, 48, v1
    v_lshrrev_b32 v9, 5, v1
    v_add_u32 v9, v9, v1""")
    for j in range(5):
        k(f"""v_add_u32 v{4+j}, {2*j}, v9
        v_and_or_b32 v{4+j}, v{4+j}, 15, v3
        v_lshl_add_u32 v{4+j}, v{4+j}, 4, s44""")
    for i in range(2):
        k(f"""v_lshrrev_b32 v3, 4, v{124+i}
        v_mul_u32_u24 v3, 5120, v3
        v_lshl_add_u32 v3, v{126+i}, 9, v3
        v_add_u32 v{9+i}, v{124+i}, v{126+i}
        v_and_b32 v{9+i}, 15, v{9+i}
        v_lshl_add_u32 v{9+i}, v{9+i}, 4, v3
        v_add_u32 v3, s69, v{124+i}
        v_mul_u32_u24 v3, 1280, v3
        v_lshl_add_u32 v{11+i}, v{126+i}, 4, v3""")
    k.srd(8, P_OUT, SZ)
    k.stamp(5)
    lab = k.newlabel("f2q")
    k(f"s_cmp_lg_u32 s4, 0\ns_cbranch_scc1 {lab}")
    polln(k, f"s_lshr_b32 s78, s32, 2\ns_lshl_b32 s78, s78, 5\ns_add_u32 s78, s78, {FL_O}", 32, AB, sleep=2)
    k(f"{lab}:\ns_waitcnt vmcnt(0)\ns_barrier\ns_setprio {C('prio_tail', 3)}")
    vm.drained()
    k.stamp(6)
    for s in range(12, 17): issue_a(s)
    for s in range(12, 17):
        more = s < 16
        vm.wait(("A", s))
        for j in range(5):
            k(f"s_waitcnt lgkmcnt({8 if more else 8-2*j})")
            for b in range(2): k(mfma16(ACC + (5*b+j)*4, WB+4*j, areg(s, b)))
            if more:
                for i in wread(s+1, j): k(i)
    k("s_barrier\ns_nop 4")
    for j in range(5):
        for b in range(2):
            k(f"ds_write_b128 v{4+j}, {vr(ACC+(5*b+j)*4,4)} offset:{(5*b+j)*1024}")
    k("s_waitcnt lgkmcnt(0)\ns_barrier")
    lab = k.newlabel("f2e"); lab2 = k.newlabel("f2f")
    RB = 16
    def rd(i):
        for q in range(4):
            for h in range(2):
                if i == 1 and q == 3: k("s_waitcnt lgkmcnt(13)")
                k(f"ds_read_b128 {vr(RB + 32*i + 8*q + 4*h, 4)}, v{9+i} offset:{q*20480 + h*256}")
    def fin(i):
        b = RB + 32*i; x = XR + 4*i; t = 80 + 8*i
        for e in range(4): k(f"v_lshlrev_b32 v{t+2*e}, 16, v{x+e}\nv_and_b32 v{t+2*e+1}, 0xffff0000, v{x+e}")
        k("s_waitcnt lgkmcnt(0)")
        for e in range(0, 8, 2): k(f"v_pk_add_f32 {vr(b+e,2)}, {vr(b+e,2)}, {vr(b+8+e,2)}\nv_pk_add_f32 {vr(b+16+e,2)}, {vr(b+16+e,2)}, {vr(b+24+e,2)}")
        for e in range(0, 8, 2): k(f"v_pk_add_f32 {vr(b+e,2)}, {vr(b+e,2)}, {vr(t+e,2)}")
        for e in range(0, 8, 2): k(f"v_pk_add_f32 {vr(b+e,2)}, {vr(b+e,2)}, {vr(b+16+e,2)}")
        if C("pert"):
            k(f"s_cmp_eq_u32 s5, 0\ns_cselect_b32 s70, {f32(C('pert')/1000)}, 0\nv_add_f32 v{b}, s70, v{b}")
        for e in range(4): k(f"v_cvt_pk_bf16_f32 v{b+8+e}, v{b+2*e}, v{b+2*e+1}")
        k(f"buffer_store_dwordx4 {vr(b+8,4)}, v{11+i}, s[8:11], s43 offen{' sc1' if C('out_sc1') else ''}")
    rd(0)
    k(f"s_cmp_ge_u32 s4, 2\ns_cbranch_scc1 {lab}")
    rd(1); fin(1)
    k.label(lab)
    fin(0)

def phase_a2(k, force_fallback=False):
    k.L.append("    ; ---- A2: attention, two waves per SIMD alternate softmax and MFMA phases")
    SLOT = 26624; VOFF = 10240
    Lchk, Lchkr, Lloop, Lfin, Lslow, Lsl, Lend = [k.newlabel(x) for x in ("atc", "atcr", "atl", "atf", "ats", "atsl", "ate")]
    k("""s_and_b32 s34, s5, 7
    s_lshr_b32 s35, s5, 3
    s_lshl_b32 s32, s34, 2
    s_lshr_b32 s34, s35, 3
    s_add_u32 s32, s32, s34
    s_and_b32 s33, s35, 7""")
    Q1, Q2 = 16, 20
    K1, K2 = 24, 22
    V0, V1 = 28, 32
    P = 36; T = 44
    CC, O = 48, 64
    S = 80; U = 96
    k("v_and_b32 v3, 31, v1\nv_lshrrev_b32 v4, 5, v1\nv_mov_b32 v15, 0\nv_mov_b32 v100, 0\ns_mov_b32 s3, 0")
    lab = k.newlabel("a2p"); lab2 = k.newlabel("a2q")
    k(f"s_cmp_lg_u32 s4, 4\ns_cbranch_scc1 {lab}")
    get_tag(k, U)
    k(f"""s_mov_b32 s3, 1
    s_mul_i32 s76, s32, 20
    s_add_u32 s77, s76, 19
    s_lshr_b32 s76, s76, 7
    s_lshr_b32 s77, s77, 7
    s_sub_u32 s77, s77, s76
    s_lshl_b32 s78, s33, 1
    v_bfe_u32 v{U+4}, v1, 4, 1
    v_mul_u32_u24 v{U+4}, s77, v{U+4}
    v_add_u32 v{U+4}, s76, v{U+4}
    v_lshlrev_b32 v{U+4}, 4, v{U+4}
    v_add_u32 v{U}, s78, v1
    v_and_b32 v{U+1}, 15, v{U}
    v_mul_u32_u24 v15, 80, v4
    v_add3_u32 v15, v15, v{U+4}, v{U+1}
    v_add_u32 v15, {FL_QKV + 80}, v15
    v_lshlrev_b32 v15, 7, v15
    v_add_u32 v{U}, 12, v{U}
    v_and_b32 v{U}, 15, v{U}
    v_add_u32 v{U}, v{U}, v{U+4}
    v_add_u32 v{U}, {FL_QKV}, v{U}
    v_mov_b32 v{U+4}, v15
    s_mov_b64 exec, 0x00300030
    v_lshlrev_b32 v{U+4}, 7, v{U}
    s_mov_b64 exec, -1
    {lab}:""")
    k("v_mul_u32_u24 v5, 320, v4\nv_lshl_add_u32 v5, v3, 4, v5")
    k(f"""v_lshlrev_b32 v6, 12, v4
    v_lshl_add_u32 v6, v3, 3, v6
    v_add_u32 v7, 256, v6
    v_add_u32 v10, {VOFF}, v2
    s_lshl_b32 s37, s33, 3
    s_add_u32 s37, s37, s4
    s_lshl_b32 s38, s37, 5
    v_add_u32 v11, s38, v3
    v_lshlrev_b32 v11, 3, v11
    v_mov_b32 v12, v11
    v_lshl_add_u32 v11, v4, 15, v11
    s_mul_i32 s39, s32, 81920
    s_mov_b32 s68, 0x000fffff
    s_mov_b32 s69, 0x000fffff
    s_mov_b32 s70, -1
    s_mov_b32 s71, 0""")
    k.srd(8, P_WS, SZ, WS_QP)
    k.srd(12, P_WS, SZ, WS_KP)
    k.srd(16, P_WS, SZ, WS_VI)
    k.srd(20, P_WS, SZ, WS_OF)
    k(f"""s_lshr_b32 s40, s4, 1
    s_lshl_b32 s40, s40, 14
    s_and_b32 s44, s4, 1
    s_lshl_b32 s44, s44, 10
    s_add_u32 s40, s40, s44
    s_add_u32 s40, s40, s39
    s_lshl_b32 s45, s4, 8
    s_add_u32 s41, s45, s39
    s_add_u32 s41, s41, 65536
    s_add_u32 s45, s45, 8192
    s_mul_i32 s42, s4, 1280
    s_add_u32 s42, s42, s39
    s_lshl_b32 s44, s4, 10
    s_lshl_b32 s46, s4, 11
    s_add_u32 s46, s46, {VOFF}
    s_mov_b32 s24, s33
    s_mov_b32 s43, 0""")
    NEXT = "s_lshl_b32 s26, s24, 11\ns_add_u32 s25, s26, s40\ns_add_u32 s26, s26, s41\ns_mul_i32 s27, s24, 10240\ns_add_u32 s27, s27, s42\ns_add_u32 s24, s24, 1\ns_and_b32 s24, s24, 7"
    ADV = f"s_add_u32 s43, s43, {SLOT}\ns_cmp_eq_u32 s43, {3*SLOT}\ns_cselect_b32 s43, 0, s43"
    du = ["s_add_u32 m0, s43, s44\ns_nop 0\nbuffer_load_dwordx4 v2, s[12:15], s25 offen sc1 lds",
          "s_add_u32 m0, s43, s45\ns_mov_b64 exec, 0xffff\nbuffer_load_dwordx4 v2, s[12:15], s26 offen sc1 lds\ns_mov_b64 exec, -1",
          "s_add_u32 m0, s43, s46\ns_mov_b64 exec, s[68:69]\nbuffer_load_dwordx4 v5, s[16:19], s27 offen sc1 lds\ns_mov_b64 exec, -1",
          "s_add_u32 m0, m0, 384\ns_mov_b64 exec, s[68:69]\nbuffer_load_dwordx4 v5, s[16:19], s27 offen offset:640 sc1 lds\ns_mov_b64 exec, -1"]
    k(NEXT)
    k(f"""v_cmp_eq_u32 vcc, 20, v3
    v_cmp_eq_u32 s[34:35], 24, v3
    v_mov_b32 v13, 0x3f803f80
    s_or_b64 vcc, vcc, s[34:35]
    s_nop 1
    v_cndmask_b32 v{T}, 0, v13, vcc""")
    for e in range(1, 4): k(f"v_mov_b32 v{T+e}, v{T}")
    k("v_add_u32 v13, s46, v2\ns_not_b64 exec, s[68:69]")
    for slot in range(3):
        for i in range(2):
            k(f"ds_write_b128 v13, {vr(T,4)} offset:{slot*SLOT + i*1024}")
    k("s_mov_b64 exec, -1")
    for r in list(range(O, O+16)) + [Q2, Q2+1]: k(f"v_mov_b32 v{r}, 0")
    k("s_add_u32 s34, s39, 16384\ns_add_u32 s35, s39, 65536")
    k.stamp(3)
    k(f"s_cmp_lg_u32 s4, 4\ns_cbranch_scc1 {lab2}\ns_mov_b32 exec_lo, 0x003f003f\ns_mov_b32 exec_hi, 0x000f000f")
    poll(k, U+4, "0", U, sleep=1)
    k(f"{lab2}:\ns_barrier")
    k.stamp(4)
    k(f"buffer_load_dwordx2 {vr(Q1,2)}, v11, s[8:11], s39 offen sc1")
    k(f"buffer_load_dwordx2 {vr(Q1+2,2)}, v11, s[8:11], s34 offen sc1")
    k(f"s_mov_b64 exec, s[70:71]\nbuffer_load_dwordx2 {vr(Q2,2)}, v12, s[8:11], s35 offen sc1\ns_mov_b64 exec, -1")
    for u in du: k(u)
    k(NEXT); k(ADV)
    for u in du: k(u)
    if C("go_a2"):
        lab = k.newlabel("a2g")
        k(f"s_cmp_lg_u32 s4, 4\ns_cbranch_scc1 {lab}")
        set_flag(k, f"s_add_u32 s78, s5, {FL_GO}", U+6)
        k.label(lab)
    k("s_waitcnt vmcnt(4) lgkmcnt(0)\ns_barrier")
    def k1read(t):
        tt = t % 8; va = 6 + (tt & 1); a = tt >> 1
        return f"ds_read2st64_b64 {vr(K1,4)}, v{va} offset0:{a} offset1:{a+4}"
    def k2read(t):
        tt = t % 8; va = 6 + (tt & 1); a = tt >> 1
        return f"ds_read_b64 {vr(K2,2)}, v{va} offset:{8192 + a*512}"
    def vread(t, g):
        va = 10
        return f"ds_read_b128 {vr(V1 if g else V0,4)}, v{va} offset:{(t%8)*2048 + g*1024}"
    k(k1read(0)); k(k2read(0))
    k("s_waitcnt lgkmcnt(0)")
    k(mfma(S, K1, Q1, "0")); k(mfma8(S, K2, Q2))
    k(k1read(1)); k(k2read(1)); k(vread(0, 0)); k(vread(0, 1))
    k(f"s_mov_b32 s47, 0\ns_mov_b32 s76, {SLOT}\ns_mov_b32 s77, {(-2*SLOT) & 0xffffffff}\ns_nop 7")
    k(f"v_max3_f32 v{T}, v{S}, v{S+1}, v{S+2}\nv_max3_f32 v{T+1}, v{S+3}, v{S+4}, v{S+5}")
    k(f"v_max3_f32 v{T}, v{T}, v{S+6}, v{S+7}\nv_max3_f32 v{T+1}, v{T+1}, v{S+8}, v{S+9}")
    k(f"v_max3_f32 v{T}, v{T}, v{S+10}, v{S+11}\nv_max3_f32 v{T+1}, v{T+1}, v{S+12}, v{S+13}")
    k(f"v_max3_f32 v{T}, v{T}, v{S+14}, v{S+15}\nv_max_f32 v{T}, v{T}, v{T+1}")
    k(f"v_mov_b32 v{T+1}, v{T}\ns_nop 1\nv_permlane32_swap_b32 v{T}, v{T+1}\ns_nop 1\nv_max_f32 v{T}, v{T}, v{T+1}")
    for e in range(16): k(f"v_sub_f32 v{CC+e}, 0, v{T}")
    for e in range(16): k(f"v_sub_f32 v{S+e}, v{S+e}, v{T}")
    lab = k.newlabel("a2r")
    k(f"s_cmp_lg_u32 s4, 4\ns_cbranch_scc1 {lab}\nbuffer_load_dwordx2 {vr(U,2)}, v15, s[28:31], 0 offen sc1\n{lab}:")
    plo, pmid, phi = C("pp_lo", 0), C("pp_mid", 1), C("pp_hi", 3)
    k(f"s_setprio {plo}")
    k.stamp(5)
    if C("cyc") in (1, 2) and STAMP[0]: k("s_memtime s[82:83]\ns_waitcnt lgkmcnt(0)\ns_mov_b32 s98, 0\ns_mov_b32 s99, 0")
    TB = C("a2_tb", 4)
    LY = k.newlabel("atY"); Lout = k.newlabel("ato")
    nx = NEXT.split("\n"); adv = ADV.split("\n")
    def body(Y, top):
        k(".p2align 6")
        k.label(top)
        for t in range(8):
            for i in range(4):
                for e in range(4):
                    k(f"v_exp_f32 v{S+4*i+e}, v{S+4*i+e}")
                    if i == 0 and e == 0: k(f"s_setprio {pmid}")
                k(f"v_cvt_pk_bf16_f32 v{P+2*i}, v{S+4*i}, v{S+4*i+1}")
                k(f"v_cvt_pk_bf16_f32 v{P+2*i+1}, v{S+4*i+2}, v{S+4*i+3}")
            k(f"s_setprio {phi}")
            if t == TB and Y:
                k(f"s_waitcnt vmcnt(0)\ns_cmp_lg_u32 s3, 0\ns_cbranch_scc1 {Lchk}\n{Lchkr}:\ns_barrier")
            gaps = [[], [], [], []]
            if t == 0: gaps[0] = nx[:4]; gaps[2] = nx[4:]
            if t == 1:
                gaps[0] = adv
                gaps[2] = ["s_cmp_eq_u32 s47, 2", "s_cselect_b32 s36, s77, s76", "s_cmp_eq_u32 s47, 5", "s_cselect_b32 s36, s77, s36"]
            if t == 2 and C("a2_nod", 1):
                gaps[2] = ["s_cmp_ge_u32 s47, 6", f"s_cselect_b32 s25, {SZ}, s25", f"s_cselect_b32 s26, {SZ}, s26", f"s_cselect_b32 s27, {SZ}, s27"]
            if t == TB+1: gaps[0] = [du[0]]; gaps[2] = [du[1]]
            if t == TB+2: gaps[0] = [du[2]]; gaps[2] = [du[3]]
            if t == 5: gaps[3] = ["v_add_u32 v6, s36, v6", "v_add_u32 v7, s36, v7"]
            if t == 6: gaps[3] = ["v_add_u32 v10, s36, v10"]
            if t == 7: gaps[3 if TB == 5 else 2] = ["s_add_u32 s47, s47, 1", "s_cmp_lt_u32 s47, 8"]
            k("s_waitcnt lgkmcnt(0)")
            k(mfma(S, K1, Q1, vr(CC, 16))); k(k1read(t+2))
            for x in gaps[0]: k(x)
            k(mfma8(S, K2, Q2)); k(k2read(t+2))
            for x in gaps[1]: k(x)
            k(mfma(O, V0, P)); k(vread(t+1, 0))
            for x in gaps[2]: k(x)
            k(mfma(O, V1, P+4)); k(vread(t+1, 1))
            for x in gaps[3]: k(x)
            if t == TB and not Y: k("s_waitcnt vmcnt(0)\ns_barrier")
            k(f"s_setprio {plo}")
        k(f"s_cbranch_scc1 {top}")
    k(f"s_cmp_ge_u32 s4, 4\ns_cbranch_scc1 {LY}")
    body(False, Lloop)
    k(f"s_branch {Lout}")
    body(True, LY)
    k.label(Lout)
    k.stamp(6)
    if C("cyc") in (1, 2) and STAMP[0]: k("s_memtime s[84:85]\ns_waitcnt lgkmcnt(0)\ns_sub_u32 s84, s84, s82\ns_mul_i32 s84, s84, 100\ns_lshr_b32 s84, s84, 10\ns_add_u32 s84, s84, s80\ns_mov_b32 s82, s80")
    if C("cyc") == 2 and STAMP[0]: k("s_mul_i32 s98, s98, 100\ns_lshr_b32 s98, s98, 10\ns_add_u32 s86, s98, s80\ns_mul_i32 s99, s99, 100\ns_lshr_b32 s99, s99, 10\ns_add_u32 s88, s99, s80")
    k(f"""s_setprio 3
    s_mul_i32 s72, s37, 40960
    s_lshl_b32 s73, s32, 10
    s_add_u32 s73, s73, s72
    s_lshr_b32 s74, s32, 2
    s_add_u32 s74, s74, 32
    s_lshl_b32 s74, s74, 10
    s_add_u32 s74, s74, s72
    s_and_b32 s75, s32, 1
    s_lshl_b32 s75, s75, 9
    s_add_u32 s74, s74, s75
    s_and_b32 s75, s32, 2
    s_lshl_b32 s75, s75, 2
    s_add_u32 s74, s74, s75
    s_waitcnt lgkmcnt(0)
    s_mov_b64 exec, s[70:71]
    v_mov_b32 v{T+2}, v{O+12}
    s_not_b64 exec, s[70:71]
    v_mov_b32 v{T+2}, v{O+8}
    s_mov_b64 exec, -1
    s_mov_b32 s72, {f32(2.0**60) if not force_fallback else f32(0.0)}
    v_cmp_ngt_f32 vcc, s72, v{T+2}
    s_nop 1
    s_cbranch_vccnz {Lslow}""")
    k.label(Lfin)
    k(f"v_rcp_f32 v{T}, v{T+2}\ns_nop 0")
    for e in range(12): k(f"v_mul_f32 v{O+e}, v{O+e}, v{T}")
    for e in range(6): k(f"v_cvt_pk_bf16_f32 v{P+e}, v{O+2*e}, v{O+2*e+1}")
    k(f"buffer_store_dwordx4 {vr(P,4)}, v2, s[20:23], s73 offen sc1")
    k(f"s_mov_b64 exec, s[70:71]\nbuffer_store_dwordx2 {vr(P+4,2)}, v2, s[20:23], s74 offen sc1\ns_mov_b64 exec, -1")
    k(f"s_waitcnt vmcnt(0)\ns_barrier\ns_cmp_lg_u32 s4, 4\ns_cbranch_scc1 {Lend}")
    set_flag(k, f"s_lshl_b32 s78, s33, 5\ns_add_u32 s78, s78, s32\ns_add_u32 s78, s78, {FL_O}", T)
    k.label(Lend)
    if C("cyc") == 3 and STAMP[0]: k("s_mul_i32 s96, s96, 100\ns_lshr_b32 s96, s96, 10\ns_add_u32 s86, s96, s80\ns_mul_i32 s98, s98, 100\ns_lshr_b32 s98, s98, 10\ns_add_u32 s88, s98, s80\ns_cmp_eq_u32 s82, 0\ns_cselect_b32 s86, 0, s86\ns_cselect_b32 s88, 0, s88")
    k.stamp(7); k.stamp_flush(0, "s5")
    k("s_endpgm")
    k.label(Lchk)
    k("s_mov_b32 s3, 0")
    poll(k, 15, "0", U, sleep=1, loaded=True)
    k(f"s_branch {Lchkr}")
    k.label(Lslow)
    M = CC
    k(f"""v_lshlrev_b32 v7, 3, v3
    v_lshl_add_u32 v6, v4, 15, v7
    v_mov_b32 v{M}, {f32(-3.0e38)}
    s_mov_b32 s40, s39
    s_mov_b32 s42, s39
    s_mov_b32 s47, 0""")
    for r in range(O, O+16): k(f"v_mov_b32 v{r}, 0")
    for r in range(V0, V0+8): k(f"v_mov_b32 v{r}, 0x3f803f80")
    k.label(Lsl)
    k(f"""s_add_u32 s41, s40, 16384
    s_add_u32 s43, s40, 65536
    buffer_load_dwordx2 {vr(K1,2)}, v6, s[12:15], s40 offen sc1
    buffer_load_dwordx2 {vr(K1+2,2)}, v6, s[12:15], s41 offen sc1
    buffer_load_dwordx2 {vr(K2,2)}, v7, s[12:15], s43 offen sc1
    s_mov_b64 exec, s[68:69]
    buffer_load_dwordx4 {vr(V0,4)}, v5, s[16:19], s42 offen sc1
    buffer_load_dwordx4 {vr(V1,4)}, v5, s[16:19], s42 offen offset:640 sc1
    s_mov_b64 exec, -1
    s_waitcnt vmcnt(0)""")
    k(mfma(S, K1, Q1, "0")); k(mfma8(S, K2, Q2))
    k("s_nop 15\ns_nop 3")
    k(f"v_max3_f32 v{T}, v{S}, v{S+1}, v{M}")
    for e in range(2, 16, 2): k(f"v_max3_f32 v{T}, v{T}, v{S+e}, v{S+e+1}")
    k(f"v_mov_b32 v{T+1}, v{T}\ns_nop 1\nv_permlane32_swap_b32 v{T}, v{T+1}\ns_nop 1\nv_max_f32 v{T}, v{T}, v{T+1}")
    k(f"v_sub_f32 v{T+1}, v{M}, v{T}\nv_exp_f32 v{T+1}, v{T+1}\nv_mov_b32 v{M}, v{T}")
    for e in range(16): k(f"v_mul_f32 v{O+e}, v{O+e}, v{T+1}")
    for e in range(16): k(f"v_sub_f32 v{S+e}, v{S+e}, v{T}")
    for e in range(16): k(f"v_exp_f32 v{S+e}, v{S+e}")
    k("s_nop 0")
    for e in range(8): k(f"v_cvt_pk_bf16_f32 v{P+e}, v{S+2*e}, v{S+2*e+1}")
    k("s_nop 1")
    k(mfma(O, V0, P)); k(mfma(O, V1, P+4))
    k(f"""s_nop 15
    s_nop 3
    s_add_u32 s40, s40, 256
    s_add_u32 s42, s42, 1280
    s_add_u32 s47, s47, 1
    s_cmp_lt_u32 s47, 64
    s_cbranch_scc1 {Lsl}
    v_mov_b32 v{T+2}, v{O+12}
    s_branch {Lfin}""")


DOC = """;
"""
def fused():
    k = Kern(NAME, 512, 512, 81920, sgpr=100 if STAMP[0] else 80)
    k("s_load_dwordx16 s[48:63], s[0:1], 0\ns_load_dwordx4 s[64:67], s[0:1], 64")
    k.stamp_init(); k.stamp(0, wait=False)
    k(f"""v_lshrrev_b32 v1, 6, v0
    s_and_b32 s5, s2, 255
    v_readfirstlane_b32 s4, v1
    v_and_b32 v1, 63, v0
    v_lshlrev_b32 v2, 4, v1
    s_mov_b32 s6, 0
    s_setprio 3
    s_cmp_ge_u32 s2, 512
    s_cbranch_scc1 L_end
    {"s_cmp_lt_u32 s2, 256" if C("ffirst", 1) else "s_cmp_ge_u32 s2, 256"}
    s_cbranch_scc1 L_roleF""")
    if C("noa1"): k("s_endpgm")
    k(A1_TILE.format(rb="s32", cb="s33"))
    k("s_cmp_ge_u32 s33, 15\ns_cbranch_scc1 L_skipA1\ns_cmp_lt_u32 s4, 4\ns_cbranch_scc1 L_a1c")
    a1_loader(k, "L_a2")
    k.label("L_roleF")
    k(f"s_setprio {C('prio_f0', 3)}")
    phase_f0(k)
    k(f"s_setprio {C('prio_f', 0)}")
    k.stamp(1)
    if C("nof1"): k("s_branch L_end")
    phase_f1(k)
    if C("nof2"):
        k.stamp(7); k.stamp_flush(1, "s5"); k("s_branch L_end")
    phase_f2(k, "L_end")
    if STAMP[0]: k("s_waitcnt vmcnt(0)")
    k.stamp(7); k.stamp_flush(1, "s5")
    k.label("L_end"); k("s_endpgm")
    k.label("L_skipA1")
    after_kernarg(k); flags_srd(k)
    k("s_branch L_a2")
    k.label("L_a1c")
    a1_compute(k, "L_a2")
    k.label("L_a2")
    if C("noa2"): k("s_endpgm")
    k.mute = C("cyc") in (4, 5)
    phase_a2(k, C("ff"))
    k.label("L_code_end")
    t = build([k], single=True)
    return t.replace('.amdgcn_target', DOC + '.amdgcn_target', 1)

if __name__ == "__main__":
    STAMP[0] = 2 if "--dstamp" in sys.argv else ("--stamp" in sys.argv)
    for a in sys.argv[2:]:
        if "=" in a:
            n, v = a.split("="); CFG[n] = int(v)
    open(sys.argv[1], "w").write(fused())
```

```python
import sys, math
from asmlib2 import *

SZ = 2621440
WS_XF, WS_QP, WS_KP, WS_VI, WS_OF, WS_HF = 0, SZ, 2*SZ, 3*SZ, 4*SZ, 5*SZ
HF_SZ = 2048*1536*2
WS_ST = WS_HF + HF_SZ
ST_SZ = 32768
WS_CS = WS_ST + ST_SZ
CS_SZ = 15*16*1024
WS_FL = WS_CS + 262144
FL_LN, FL_QKV, FL_GO, FL_H, FL_O, FL_N = 0, 256, 512, 768, 1024, 1280
LOG2E = math.log2(math.e)
QSCALE = 20 ** -0.5 * LOG2E
P_X, P_WQKV, P_WO, P_W1, P_W3, P_W2, P_OUT, P_DBG, P_WS = 48, 50, 52, 56, 58, 60, 62, 64, 66
SPIN_MAX = 100000
CFG = dict(pp_hi=2, prio_f=2, prio_f2=1, prio_f1e=2, f1_sw=20, f1_early=2, f1_hold=0, go_j=99)
def C(n, d=0): return CFG.get(n, d)

def mod_small(k, s, m, t, maxval):
    q = 1
    while q * m * 2 <= maxval: q *= 2
    while q >= 1:
        k(f"s_cmp_ge_u32 s{s}, {q*m}\ns_cselect_b32 s{t}, {q*m}, 0\ns_sub_u32 s{s}, s{s}, s{t}")
        q //= 2

def tag_load(vt): return f"buffer_load_dwordx2 {vr(vt,2)}, v{vt+2}, s[72:75], 0 offen sc1"
def tag_setup(k, vt):
    k.srd(72, P_DBG, 256)
    k(f"v_mov_b32 v{vt+2}, 0")
def tag_take(k, vt, loaded):
    top = k.newlabel("tg"); mid = k.newlabel("tgm"); done = k.newlabel("tgd")
    k(f"s_mov_b32 s79, {SPIN_MAX}")
    if loaded: k(f"s_branch {mid}")
    k(f"{top}:\n{tag_load(vt)}\ns_waitcnt vmcnt(0)\n{mid}:")
    k(f"""v_readfirstlane_b32 s6, v{vt}
    v_readfirstlane_b32 s7, v{vt+1}
    s_nop 1
    s_cmp_lg_u32 s6, 0
    s_cbranch_scc1 {done}
    s_sleep 2
    s_sub_u32 s79, s79, 1
    s_cmp_lg_u32 s79, 0
    s_cbranch_scc1 {top}
    {done}:""")
def get_tag(k, vt):
    lab = k.newlabel("gt")
    k(f"s_cmp_lg_u32 s6, 0\ns_cbranch_scc1 {lab}")
    tag_setup(k, vt); tag_take(k, vt, False)
    k.label(lab)
def set_flag(k, idx_expr, vt):
    k(idx_expr)
    k(f"""s_lshl_b32 s78, s78, 7
    v_mov_b32 v{vt}, s6
    v_mov_b32 v{vt+1}, s7
    v_mov_b32 v{vt+2}, 0
    s_mov_b64 exec, 1
    buffer_store_dwordx2 {vr(vt,2)}, v{vt+2}, s[28:31], s78 offen sc1
    s_mov_b64 exec, -1""")
def poll(k, voff, soff, vt, sleep=2, loaded=False):
    top = k.newlabel("poll"); done = k.newlabel("polled"); mid = k.newlabel("pmid")
    k(f"s_mov_b32 s79, {SPIN_MAX}")
    if loaded: k(f"s_branch {mid}")
    k(f"{top}:\nbuffer_load_dwordx2 {vr(vt,2)}, v{voff}, s[28:31], {soff} offen sc1\ns_waitcnt vmcnt(0)\n{mid}:")
    k(f"""v_cmp_ne_u64 vcc, s[6:7], {vr(vt,2)}
    s_nop 1
    s_and_b64 exec, exec, vcc
    s_cbranch_scc0 {done}
    s_sleep {sleep}
    s_sub_u32 s79, s79, 1
    s_cmp_lg_u32 s79, 0
    s_cbranch_scc1 {top}
    {done}:
    s_mov_b64 exec, -1""")
def polln(k, idx_expr, n, vt, sleep=2):
    k(idx_expr)
    k(f"s_lshl_b32 s78, s78, 7\nv_lshlrev_b32 v{vt+2}, 7, v1\ns_mov_b32 exec_lo, {hex((1 << n) - 1)}\ns_mov_b32 exec_hi, 0")
    poll(k, vt+2, "s78", vt, sleep)
A1_TILE = """s_and_b32 s34, s5, 7
    s_lshr_b32 s35, s5, 3
    s_and_b32 s36, s34, 1
    s_lshl_b32 s36, s36, 3
    s_and_b32 s37, s35, 7
    s_add_u32 {rb}, s36, s37
    s_lshr_b32 s36, s34, 1
    s_lshl_b32 s36, s36, 2
    s_lshr_b32 s37, s35, 3
    s_add_u32 {cb}, s36, s37"""
def after_kernarg(k):
    k("s_waitcnt lgkmcnt(0)")
def flags_srd(k): k.srd(28, P_WS, FL_N*128, WS_FL)

NAME = "parallel_sum__softmax_full_mha__glu_gated_swiglu__prompt_kernel"
WBASE = 49152; CSO = 16384; STO = 16384 + 1024

def a1_loader(k, Lj):
    k.L.append("    ; ---- A1 loader waves: LDS-DMA rings for x (3 x 16 KB) and wqkv (4 x 8 KB); fetch row stats / column sums")
    vm = VM(k)
    k("""s_and_b32 s36, s4, 3
    s_lshr_b32 s37, s36, 1
    s_lshl_b32 s37, s37, 6
    s_and_b32 s38, s36, 1
    s_add_u32 s37, s37, s38
    s_lshl_b32 s38, s36, 5
    s_cmp_lt_u32 s33, 10
    s_cselect_b32 s37, s37, s38
    s_mov_b32 s38, 1280
    s_cselect_b32 s38, 2560, s38
    s_lshl_b32 s39, s32, 7
    s_add_u32 s37, s37, s39
    s_mul_i32 s37, s37, 1280
    v_lshrrev_b32 v3, 3, v1
    v_lshrrev_b32 v10, 4, v1
    v_and_b32 v11, 7, v1
    v_mul_u32_u24 v12, s38, v3
    v_xor_b32 v13, v10, v11
    v_lshl_add_u32 v12, v13, 4, v12
    v_add_u32 v4, s37, v12
    s_lshl_b32 s39, s38, 3
    v_xor_b32 v5, 64, v4
    v_add_u32 v5, s39, v5
    s_lshl_b32 s39, s38, 4
    v_add_u32 v6, s39, v4
    v_add_u32 v7, s39, v5
    v_lshlrev_b32 v12, 2, v10
    v_and_b32 v13, 15, v1
    v_xor_b32 v13, v13, v12
    s_lshl_b32 s39, s36, 3
    v_add_u32 v12, s39, v10
    v_mul_u32_u24 v14, 3840, v12
    v_lshl_add_u32 v14, v13, 4, v14
    s_lshl_b32 s39, s33, 8
    v_add_u32 v8, s39, v14
    v_add_u32 v9, 15360, v8
    s_mul_i32 s40, s33, 3
    s_add_u32 s40, s40, s32""")
    mod_small(k, 40, 10, 43, 58)
    k(f"""s_mul_i32 s44, s40, {64*3840}
    s_lshl_b32 s45, s40, 7
    s_lshl_b32 s42, s36, 12
    s_lshl_b32 s43, s36, 11
    s_add_u32 s43, s43, {WBASE}""")
    if C("cyc") == 5: k.stamp(3, wait=False)
    after_kernarg(k)
    if C("cyc") == 5: k.stamp(4, wait=False)
    k.srd(12, P_X, SZ)
    k.srd(8, P_WQKV, 640*3840)
    def iss_a(s, half):
        for i in (2*half, 2*half+1):
            if C("diag_nodma") and s > 2: vm.tags[("A", s)] = 0; continue
            vm.op(f"s_add_u32 m0, s42, {(s % 3)*16384 + i*1024}\ns_nop 0\nbuffer_load_dwordx4 v{4+i}, s[12:15], s45 offen{[ '', ' nt', ' sc1'][C('nta')]} lds", ("A", s) if i == 3 else None)
        if half: k("s_add_u32 s45, s45, 128\ns_cmp_eq_u32 s45, 1280\ns_cselect_b32 s45, 0, s45")
    def iss_w(j):
        for i in range(2):
            if C("diag_nodma") and j > 3: vm.tags[("W", j)] = 0; continue
            vm.op(f"s_add_u32 m0, s43, {(j % 4)*8192 + i*1024}\ns_nop 0\nbuffer_load_dwordx4 v{8+i}, s[8:11], s44 offen{[ '', ' nt', ' sc1'][C('nta')]} lds", ("W", j) if i == 1 else None)
        k(f"s_add_u32 s44, s44, {32*3840}\ns_cmp_eq_u32 s44, {640*3840}\ns_cselect_b32 s44, 0, s44")
    iss_a(0, 0); iss_a(0, 1); iss_w(0)
    if C("cyc") == 5: k.stamp(5, wait=False)
    rest = [lambda: iss_w(1), lambda: iss_a(1, 0), lambda: iss_a(1, 1), lambda: iss_w(2), lambda: iss_w(3), lambda: iss_a(2, 0), lambda: iss_a(2, 1)]
    NP = C("a1_np", 1)
    for f in rest[:NP]: f()
    rest = rest[NP:]
    if C("cyc") == 5: k.stamp(6, wait=False)
    flags_srd(k)
    k.srd(16, P_WS, ST_SZ + CS_SZ, WS_ST)
    tag_setup(k, 42)
    k(f"""v_and_b32 v41, 31, v1
    v_lshlrev_b32 v40, 4, v41
    s_lshl_b32 s46, s36, 5
    v_add_lshl_u32 v41, v41, s46, 2
    s_lshl_b32 s46, s32, 2
    s_add_u32 s46, s46, s36
    s_lshl_b32 s46, s46, 9
    s_lshl_b32 s47, s33, 14
    s_lshl_b32 s68, s36, 8
    s_add_u32 s47, s47, s68
    s_add_u32 s47, s47, {ST_SZ}
    v_and_b32 v45, 15, v1
    v_lshlrev_b32 v46, 4, v45
    v_lshl_add_u32 v46, v10, 12, v46
    s_lshl_b32 s68, s36, 7
    v_lshl_add_u32 v45, v45, 3, s68""")
    gl = ["buffer_load_dwordx4 v[16:19], v40, s[16:19], s46 offen sc1"] + \
         [f"buffer_load_dwordx4 {vr(20+4*i,4)}, v46, s[16:19], s47 offen offset:{i*1024} sc1" for i in range(4)]
    JF = C("a1_jf", 10)
    for j in range(20):
        vm.wait(("A", j >> 1)); vm.wait(("W", j))
        if C("cyc") == 5 and j == 0: k.stamp(7, wait=False)
        k("s_barrier")
        if C("cyc") == 4 and j in (4, 8, 12, 16, 18): k.stamp({4: 3, 8: 4, 12: 5, 16: 6, 18: 7}[j], wait=False)
        if j == 0:
            n0 = max(0, C("a1_n0", 4) - NP)
            for f in rest[:n0]: f()
            rest = rest[n0:]
        if j == 1:
            for f in rest: f()
        if j >= 1 and j+3 < 20: iss_w(j+3)
        if j >= 2 and j//2+2 < 10: iss_a(j//2+2, j & 1)
        if j == 2: vm.op(tag_load(42), "tag")
        if j == 6:
            vm.wait("tag"); tag_take(k, 42, True)
        if j == JF:
            for g in gl: vm.op(g, "gr")
        if j == C("go_j", 14) and not C("go_a2") and not C("go_q"):
            lab = k.newlabel("a1g")
            k(f"s_cmp_lg_u32 s4, 5\ns_cbranch_scc1 {lab}")
            set_flag(k, f"s_lshl_b32 s78, s33, 4\ns_add_u32 s78, s78, s32\ns_add_u32 s78, s78, {FL_GO}", 48)
            k.label(lab)
        if j == C("a1_jc", 14):
            vm.wait("gr")
            top = k.newlabel("gr"); done = k.newlabel("grd")
            k(f"s_mov_b32 s79, {SPIN_MAX}\n{top}:")
            k("v_cmp_ne_u64 s[68:69], s[6:7], v[18:19]")
            for i in range(4):
                k(f"v_cmp_ne_u64 vcc, s[6:7], {vr(22+4*i,2)}\ns_nop 0\ns_or_b64 s[68:69], s[68:69], vcc")
            k(f"s_cbranch_scc0 {done}\ns_sleep 2")
            for g in gl: k(g)
            k(f"s_waitcnt vmcnt(0)\ns_sub_u32 s79, s79, 1\ns_cmp_lg_u32 s79, 0\ns_cbranch_scc1 {top}\n{done}:")
        if j == C("a1_jc", 14) + 1:
            k("""v_add_f32 v20, v20, v24
            v_add_f32 v21, v21, v25
            v_add_f32 v28, v28, v32
            v_add_f32 v29, v29, v33
            v_add_f32 v20, v20, v28
            v_add_f32 v21, v21, v29""")
            for sw in ("v_permlane16_swap_b32", "v_permlane32_swap_b32"):
                k(f"v_mov_b32 v22, v20\nv_mov_b32 v23, v21\ns_nop 1\n{sw} v20, v22\n{sw} v21, v23\ns_nop 1\nv_add_f32 v20, v20, v22\nv_add_f32 v21, v21, v23")
        if j == 16:
            k(f"ds_write_b32 v41, v16 offset:{STO}\nds_write_b32 v41, v17 offset:{STO+512}\nds_write_b64 v45, v[20:21] offset:{CSO}")
        if j == 17: k("s_waitcnt lgkmcnt(0)")
    k("s_barrier")
    k(f"s_cmp_lg_u32 s4, 4\ns_cbranch_scc1 {Lj}")
    set_flag(k, f"s_lshl_b32 s78, s33, 4\ns_add_u32 s78, s78, s32\ns_add_u32 s78, s78, {FL_QKV}", 40)
    k(f"s_branch {Lj}")

def a1_compute(k, Lj):
    k.L.append("    ; ---- A1 compute waves: 64x64 tile each, LN folded into the epilogue")
    Lv = k.newlabel("a1v")
    k(f"""s_and_b32 s36, s4, 1
    s_lshr_b32 s37, s4, 1
    v_and_b32 v3, 31, v1
    v_lshrrev_b32 v10, 5, v1
    s_lshl_b32 s38, s36, 6
    v_add_u32 v11, s38, v3
    v_lshlrev_b32 v11, 7, v11
    v_bfe_u32 v12, v1, 1, 3
    v_xor_b32 v12, v12, v10
    v_lshl_add_u32 v4, v12, 4, v11
    v_xor_b32 v5, 32, v4
    v_xor_b32 v6, 64, v4
    v_xor_b32 v7, 96, v4
    v_bfe_u32 v13, v1, 2, 2
    v_lshl_add_u32 v14, v10, 3, v13
    v_lshlrev_b32 v14, 8, v14
    v_bfe_u32 v15, v1, 4, 1
    v_lshl_add_u32 v14, v15, 5, v14
    v_and_b32 v15, 3, v1
    v_lshl_add_u32 v14, v15, 3, v14
    v_lshl_add_u32 v14, v13, 6, v14
    s_lshl_b32 s38, s37, 7
    v_xor_b32 v14, s38, v14
    v_add_u32 v8, {WBASE}, v14
    v_xor_b32 v9, 64, v8""")
    if C("cpf"):
        lab = k.newlabel("cpf"); here = k.newlabel("pc")
        k(f"""s_lshr_b32 s38, s5, 3
        s_and_b32 s38, s38, 15
        s_lshl_b32 s38, s38, 2
        s_add_u32 s38, s38, s4
        s_lshl_b32 s38, s38, 10
        s_cmp_ge_u32 s38, (L_code_end - {NAME}) - 1024
        s_cbranch_scc1 {lab}
        s_getpc_b64 s[40:41]
        {here}:
        s_sub_u32 s40, s40, {here} - {NAME}
        s_subb_u32 s41, s41, 0
        s_add_u32 s40, s40, s38
        s_addc_u32 s41, s41, 0
        v_mov_b32 v17, s41
        v_add_co_u32 v16, vcc, s40, v2
        s_nop 1
        v_addc_co_u32 v17, vcc, 0, v17, vcc
        global_load_dwordx4 v[116:119], v[16:17], off
        {lab}:""")
    after_kernarg(k)
    flags_srd(k)
    ACC = 16; FR = 80
    def reads(n):
        if n >= 40: return []
        s, ks, j = n >> 2, n & 3, n >> 1
        f = FR + (n % 3)*16
        ao = (s % 3)*16384; wo = (j % 4)*8192 + (n & 1)*4096
        return [f"ds_read_b64_tr_b16 {vr(f+8,2)}, v8 offset:{wo}", f"ds_read_b64_tr_b16 {vr(f+10,2)}, v8 offset:{wo+1024}",
                f"ds_read_b128 {vr(f,4)}, v{4+ks} offset:{ao}", f"ds_read_b128 {vr(f+4,4)}, v{4+ks} offset:{ao+4096}",
                f"ds_read_b64_tr_b16 {vr(f+12,2)}, v9 offset:{wo}", f"ds_read_b64_tr_b16 {vr(f+14,2)}, v9 offset:{wo+1024}"]
    def loop(swap):
        if C("cpf"): k("s_waitcnt vmcnt(0)")
        k("s_barrier")
        k.stamp(1)
        if C("cyc") == 3 and STAMP[0]: k("s_memtime s[96:97]\ns_mov_b32 s98, 0\ns_waitcnt lgkmcnt(0)")
        for i in reads(0) + reads(1): k(i)
        for n in range(40):
            f = FR + (n % 3)*16
            rd = reads(n+2)
            if n % 2 == 0: k("s_waitcnt lgkmcnt(6)")
            for m, (q, b) in enumerate(((0, 0), (0, 1), (1, 1), (1, 0))):
                a_, b_ = f+8+4*q, f+4*b
                if swap: a_, b_ = b_, a_
                if not C("diag_nomfma") or n == 0: k(mfma(ACC + (2*q+b)*16, a_, b_, "0" if n == 0 else None))
                if n % 2 == 0:
                    if m == 2:
                        k("s_waitcnt lgkmcnt(0)")
                        if n < 38: k("s_barrier")
                    if m >= 2:
                        for i in rd[3*(m-2):3*(m-2)+3]: k(i)
                elif m < 2:
                    for i in rd[3*m:3*m+3]: k(i)
        k.stamp(2)
        if C("cyc") == 3 and STAMP[0]: k("s_memtime s[72:73]\ns_waitcnt lgkmcnt(0)\ns_sub_u32 s96, s72, s96")
    k(f"s_cmp_ge_u32 s33, 10\ns_cbranch_scc1 {Lv}")
    k.srd(16, P_WS, 2*SZ, WS_QP)
    k(f"""s_cmp_lt_u32 s33, 5
    s_cselect_b32 s47, {f32(QSCALE)}, 1.0
    s_lshl_b32 s38, s36, 6
    v_lshl_add_u32 v11, v3, 1, s38
    v_lshlrev_b32 v12, 2, v11
    s_lshl_b32 s38, s37, 8
    v_lshl_add_u32 v13, v10, 4, s38
    v_lshlrev_b32 v11, 3, v11
    s_lshl_b32 s39, s32, 10
    v_add_u32 v11, s39, v11
    v_lshl_add_u32 v11, v10, 14, v11
    s_lshl_b32 s40, s33, 19
    s_lshl_b32 s41, s37, 18
    s_add_u32 s40, s40, s41""")
    loop(False)
    k(f"ds_read_b64 v[4:5], v12 offset:{STO}\nds_read_b64 v[6:7], v12 offset:{STO+512}")
    for q in range(2):
        for j in range(4):
            k(f"ds_read_b128 {vr(FR+16*q+4*j,4)}, v13 offset:{CSO + q*128 + j*32}")
    k("s_waitcnt lgkmcnt(8)\nv_mul_f32 v6, s47, v6\nv_mul_f32 v7, s47, v7")
    for q in range(2):
        for j in range(4):
            k(f"s_waitcnt lgkmcnt({7 - (4*q+j)})")
            c = FR+16*q+4*j; d = 112 + 4*((4*q+j) % 4)
            for b in range(2):
                a = ACC + (2*q+b)*16 + 4*j
                if C("pk"):
                    for e in (0, 2): k(f"v_pk_fma_f32 {vr(a+e,2)}, v[4:5], {vr(c+e,2)}, {vr(a+e,2)} op_sel:[{b},0,0] op_sel_hi:[{b},1,1] neg_lo:[1,0,0] neg_hi:[1,0,0]")
                else:
                    for e in range(4): k(f"v_fma_f32 v{a+e}, -v{4+b}, v{c+e}, v{a+e}")
            for b in range(2):
                a = ACC + (2*q+b)*16 + 4*j
                if C("pk"):
                    for e in (0, 2): k(f"v_pk_mul_f32 {vr(a+e,2)}, {vr(a+e,2)}, v[6:7] op_sel:[0,{b}] op_sel_hi:[1,{b}]")
                else:
                    for e in range(4): k(f"v_mul_f32 v{a+e}, v{a+e}, v{6+b}")
            for b in range(2):
                a = ACC + (2*q+b)*16 + 4*j
                k(f"v_cvt_pk_bf16_f32 v{d+2*b}, v{a}, v{a+1}\nv_cvt_pk_bf16_f32 v{d+2*b+1}, v{a+2}, v{a+3}")
            k(f"s_add_u32 s41, s40, {(8*q+2*j)*16384}")
            k(f"buffer_store_dwordx4 {vr(d,4)}, v11, s[16:19], s41 offen sc1")
    k(f"s_waitcnt vmcnt(0)\ns_barrier\ns_branch {Lj}")
    k.label(Lv)
    k.srd(16, P_WS, SZ, WS_VI)
    k(f"""s_lshl_b32 s39, s37, 6
    v_add_u32 v12, s39, v3
    v_lshlrev_b32 v12, 2, v12
    s_lshl_b32 s40, s36, 8
    v_lshl_add_u32 v11, v10, 4, s40
    s_sub_u32 s38, s33, 10
    s_lshl_b32 s38, s38, 7
    s_add_u32 s38, s38, s39
    s_mov_b32 s41, {81920-320}""")
    for q in range(2):
        k(f"""v_add_u32 v112, s38, v3
        v_add_u32 v112, {32*q}, v112
        v_mul_u32_u24 v15, 3277, v112
        v_lshrrev_b32 v15, 16, v15
        v_mul_lo_u32 v15, v15, s41
        v_lshl_add_u32 v15, v112, 4, v15
        v_mul_u32_u24 v112, 320, v10
        v_add_u32 v{13+q}, v15, v112""")
    k("s_lshl_b32 s40, s32, 1\ns_add_u32 s40, s40, s36\ns_mul_i32 s40, s40, 2560")
    loop(True)
    k(f"ds_read_b32 v6, v12 offset:{CSO}\nds_read_b32 v7, v12 offset:{CSO+128}")
    for b in range(2):
        for j in range(4):
            k(f"ds_read_b128 {vr(FR+4*j,4)}, v11 offset:{STO + b*128 + j*32}")
            k(f"ds_read_b128 {vr(FR+16+4*j,4)}, v11 offset:{STO + 512 + b*128 + j*32}")
        k("s_waitcnt lgkmcnt(0)")
        if b == 0: k("s_nop 1")
        for q in range(2):
            a = ACC + (2*q+b)*16
            for g in range(2):
                d = 112 + 4*(2*q+g)
                if C("pk"):
                    for r in range(8*g, 8*g+8, 2): k(f"v_pk_fma_f32 {vr(a+r,2)}, {vr(FR+r,2)}, v[6:7], {vr(a+r,2)} op_sel:[0,{q},0] op_sel_hi:[1,{q},1] neg_lo:[1,0,0] neg_hi:[1,0,0]")
                    for r in range(8*g, 8*g+8, 2): k(f"v_pk_mul_f32 {vr(a+r,2)}, {vr(a+r,2)}, {vr(FR+16+r,2)}")
                else:
                    for r in range(8*g, 8*g+8): k(f"v_fma_f32 v{a+r}, -v{FR+r}, v{6+q}, v{a+r}")
                    for r in range(8*g, 8*g+8): k(f"v_mul_f32 v{a+r}, v{a+r}, v{FR+16+r}")
                for e in range(4): k(f"v_cvt_pk_bf16_f32 v{d+e}, v{a+8*g+2*e}, v{a+8*g+2*e+1}")
                k(f"buffer_store_dwordx4 {vr(d,4)}, v{13+q}, s[16:19], s40 offen offset:{b*1280 + g*640} sc1")
    k("s_waitcnt vmcnt(0)\ns_barrier")

def f1_w_early(k):
    UOFF = 12288 + 128; SLOT = 24704
    k(f"""s_and_b32 s68, s34, 1
    s_lshl_b32 s68, s68, 2
    s_and_b32 s69, s35, 3
    s_add_u32 s68, s68, s69
    s_lshr_b32 s69, s34, 1
    s_lshl_b32 s69, s69, 3
    s_lshr_b32 s70, s35, 2
    s_add_u32 s69, s69, s70
    s_cmp_lt_u32 s4, 4
    s_cselect_b32 s24, s{P_W1}, s{P_W3}
    s_cselect_b32 s25, s{P_W1+1}, s{P_W3+1}
    s_cselect_b32 s70, 0, {UOFF}
    s_mov_b32 s26, {640*3072}
    s_mov_b32 s27, 0x00020000
    s_and_b32 s71, s4, 3
    s_mul_i32 s76, s71, 3072
    s_add_u32 s70, s70, s76
    s_lshl_b32 s71, s71, 5
    s_mul_i32 s76, s69, 96
    s_add_u32 s68, s68, s69""")
    mod_small(k, 68, 5, 69, 38)
    k(f"s_mul_i32 s68, s68, {128*3072}")
    for i in range(3):
        k(f"""v_add_u32 v103, {64*i}, v1
        v_mul_u32_u24 v104, 10923, v103
        v_lshrrev_b32 v104, 16, v104
        v_mul_u32_u24 v105, 6, v104
        v_sub_u32 v105, v103, v105
        v_add_u32 v104, s71, v104
        v_mul_u32_u24 v104, 3072, v104
        v_lshl_add_u32 v104, v105, 4, v104
        v_add_u32 v{100+i}, s76, v104""")
    for st in range(2):
        for i in range(3):
            k(f"s_add_u32 m0, s70, {st*SLOT + i*1024}\ns_nop 0\nbuffer_load_dwordx4 v{100+i}, s[24:27], s68 offen lds")
        k(f"s_add_u32 s68, s68, {128*3072}\ns_cmp_eq_u32 s68, {640*3072}\ns_cselect_b32 s68, 0, s68")

def phase_f0(k):
    k.L.append("    ; ---- F0: layernorm of 8 rows, stats granules, column-sum partials of wqkv")
    RS = 1312; LB = 2*24704; LC = LB + 8*RS
    k(A1_TILE.format(rb="s41", cb="s42"))
    k(f"""s_and_b32 s40, s34, 1
    s_lshl_b32 s40, s40, 2
    s_lshr_b32 s36, s34, 1
    s_add_u32 s40, s40, s36
    s_lshl_b32 s40, s40, 5
    s_add_u32 s40, s40, s35
    s_lshl_b32 s32, s40, 3
    s_add_u32 s32, s32, s4
    s_mul_i32 s33, s32, 1280
    v_lshlrev_b32 v3, 2, v1
    s_mul_i32 s38, s41, 40
    s_mul_i32 s39, s4, 5
    s_add_u32 s38, s38, s39
    s_mul_i32 s38, s38, 3840
    s_min_u32 s39, s42, 14
    s_lshl_b32 s39, s39, 8
    s_add_u32 s38, s38, s39""")
    after_kernarg(k)
    k.srd(8, P_X, SZ)
    for i in range(5):
        k(f"buffer_load_dword v{8+i}, v3, s[8:11], s33 offen offset:{i*256}")
    k.srd(20, P_WQKV, 640*3840)
    for i in range(5):
        k(f"buffer_load_dword v{48+i}, v3, s[20:23], s38 offen" + ("\ns_add_u32 s38, s38, 3840" if i < 4 else ""))
    def pf():
        k("s_lshl_b32 s43, s5, 3\ns_add_u32 s43, s43, s4\ns_mul_i32 s43, s43, 960")
        for j, p in enumerate((P_W1, P_W3)):
            k.srd(24, p, 640*3072)
            k(f"buffer_load_dwordx4 {vr(64+4*j,4)}, v2, s[24:27], s43 offen")
    if C("pf") == 1: pf()
    if C("f1_early") == 3: f1_w_early(k)
    tag_setup(k, 44)
    lab = k.newlabel("tag")
    k(f"""s_or_b32 s7, s5, s4
    s_cmp_lg_u32 s7, 0
    s_cbranch_scc1 {lab}
    s_memrealtime s[76:77]
    s_waitcnt lgkmcnt(0)
    s_or_b32 s76, s76, 1
    v_mov_b32 v18, s76
    v_mov_b32 v19, s77
    s_mov_b64 exec, 1
    buffer_store_dwordx2 v[18:19], v46, s[72:75], 0 offen sc1
    s_mov_b64 exec, -1
    {lab}:""")
    flags_srd(k)
    k.srd(12, P_WS, SZ, WS_XF)
    k.srd(16, P_WS, ST_SZ + CS_SZ, WS_ST)
    k(f"""s_mul_i32 s34, s4, {RS}
    s_add_u32 s34, s34, {LB}
    v_add_u32 v4, s34, v3
    v_and_b32 v5, 7, v0
    v_lshrrev_b32 v6, 3, v0
    v_mul_u32_u24 v7, {RS}, v5
    v_lshl_add_u32 v7, v6, 4, v7
    v_add_u32 v7, {LB}, v7
    v_lshlrev_b32 v6, 9, v6
    v_lshl_add_u32 v6, v5, 4, v6
    s_lshr_b32 s35, s40, 2
    s_mul_i32 s35, s35, 40960
    s_and_b32 s36, s40, 3
    s_lshl_b32 s36, s36, 7
    s_add_u32 s35, s35, s36
    s_add_u32 s36, s35, 32768
    s_lshl_b32 s37, s32, 4
    v_lshlrev_b32 v47, 3, v0
    v_lshlrev_b32 v43, 3, v1
    s_lshl_b32 s38, s42, 4
    s_add_u32 s38, s38, s41
    s_lshl_b32 s38, s38, 10
    s_add_u32 s38, s38, {ST_SZ}""")
    X = 16
    for i in range(5):
        k(f"s_waitcnt vmcnt({9-i + (2 if C('pf') == 1 else 0) + (6 if C('f1_early') == 3 else 0)})")
        if i == 4:
            k(tag_load(44))
            if C("pf") == 2: pf()
        k(f"v_lshlrev_b32 v{X+2*i}, 16, v{8+i}\nv_and_b32 v{X+2*i+1}, 0xffff0000, v{8+i}")
    def reduce(v, t):
        for r in (8, 4, 2, 1):
            k(f"s_nop 1\nv_add_f32_dpp v{v}, v{v}, v{v} row_ror:{r} row_mask:0xf bank_mask:0xf")
        k(f"v_mov_b32 v{t}, v{v}\ns_nop 1\nv_permlane16_swap_b32 v{v}, v{t}\ns_nop 1\nv_add_f32 v{v}, v{v}, v{t}")
        k(f"v_mov_b32 v{t}, v{v}\ns_nop 1\nv_permlane32_swap_b32 v{v}, v{t}\ns_nop 1\nv_add_f32 v{v}, v{v}, v{t}")
    M, V, T = 28, 29, 30
    k(f"v_add_f32 v{M}, v{X}, v{X+1}\nv_add_f32 v{T}, v{X+2}, v{X+3}")
    for i in range(4, 10, 2):
        k(f"v_add_f32 v{M}, v{M}, v{X+i}\nv_add_f32 v{T}, v{T}, v{X+i+1}")
    k(f"v_add_f32 v{M}, v{M}, v{T}")
    reduce(M, T)
    k(f"v_mul_f32 v{M}, {f32(1/640)}, v{M}")
    for i in range(10): k(f"v_sub_f32 v{32+i}, v{X+i}, v{M}")
    k(f"v_mul_f32 v{V}, v32, v32\nv_mul_f32 v{T}, v33, v33")
    for i in range(2, 10, 2):
        k(f"v_fmac_f32 v{V}, v{32+i}, v{32+i}\nv_fmac_f32 v{T}, v{33+i}, v{33+i}")
    k(f"v_add_f32 v{V}, v{V}, v{T}")
    reduce(V, T)
    k(f"v_mul_f32 v{V}, {f32(1/640)}, v{V}")
    def rb(v): k(f"v_cvt_pk_bf16_f32 v{v}, v{v}, v{v}\nv_lshlrev_b32 v{v}, 16, v{v}")
    rb(M); rb(V)
    k(f"v_add_f32 v{V}, {f32(1e-5)}, v{V}"); rb(V)
    k(f"v_sqrt_f32 v{V}, v{V}\ns_nop 0"); rb(V)
    k(f"v_rcp_f32 v{V}, v{V}\ns_waitcnt vmcnt({2 if C('pf') == 2 else 0})")
    tag_take(k, 44, True)
    k(f"v_mov_b32 v{T}, s6\nv_mov_b32 v{T+1}, s7")
    k(f"s_mov_b64 exec, 1\nbuffer_store_dwordx4 {vr(M,4)}, v46, s[16:19], s37 offen sc1\ns_mov_b64 exec, -1")
    k("v_lshlrev_b32 v32, 16, v48\nv_and_b32 v33, 0xffff0000, v48")
    for i in range(1, 5):
        k(f"v_lshlrev_b32 v34, 16, v{48+i}\nv_and_b32 v35, 0xffff0000, v{48+i}\nv_add_f32 v32, v32, v34\nv_add_f32 v33, v33, v35")
    k(f"ds_write_b64 v47, v[32:33] offset:{LC}")
    for i in range(5):
        a, b = X+2*i, X+2*i+1
        k(f"v_sub_f32 v{a}, v{a}, v{M}\nv_sub_f32 v{b}, v{b}, v{M}")
        k(f"v_cvt_pk_bf16_f32 v{b}, v{a}, v{b}")
        k(f"v_lshlrev_b32 v{a}, 16, v{b}\nv_and_b32 v{b}, 0xffff0000, v{b}")
        k(f"v_mul_f32 v{a}, v{a}, v{V}\nv_mul_f32 v{b}, v{b}, v{V}")
        k(f"v_cvt_pk_bf16_f32 v{8+i}, v{a}, v{b}")
        k(f"ds_write_b32 v4, v{8+i} offset:{i*256}")
    k("s_waitcnt lgkmcnt(0)\ns_barrier")
    l1 = k.newlabel("f0w"); l2 = k.newlabel("f0c")
    k(f"ds_read_b128 v[8:11], v7\ns_cmp_lg_u32 s4, 2\ns_cbranch_scc1 {l2}")
    for i in range(8): k(f"ds_read_b64 {vr(48+2*i,2)}, v43 offset:{LC + i*512}")
    k("s_waitcnt lgkmcnt(0)")
    for st in (8, 4, 2):
        for e in range(st): k(f"v_add_f32 v{48+e}, v{48+e}, v{48+st+e}")
    k(f"v_mov_b32 v50, s6\nv_mov_b32 v51, s7\nbuffer_store_dwordx4 v[48:51], v2, s[16:19], s38 offen sc1\n{l2}:")
    k(f"""s_cmp_ge_u32 s4, 2
    s_cbranch_scc1 {l1}
    ds_read_b128 v[12:15], v7 offset:1024
    s_waitcnt lgkmcnt(0)
    buffer_store_dwordx4 v[12:15], v6, s[12:15], s36 offen sc1
    {l1}:
    s_waitcnt lgkmcnt(0)
    buffer_store_dwordx4 v[8:11], v6, s[12:15], s35 offen sc1""")
    if C("tlb"):
        lab = k.newlabel("f0t")
        k(f"s_cmp_lg_u32 s4, 3\ns_cbranch_scc1 {lab}\nv_lshlrev_b32 v64, {C('tlb_sh', 19)}, v1")
        for j, (p, n) in enumerate(((P_WS, WS_FL + FL_N*128), (P_OUT, SZ), (P_W2, 1536*1280), (P_WO, 640*1280))):
            k.srd(24, p, n)
            k(f"buffer_load_dword v{65+j}, v64, s[24:27], 0 offen")
        k.label(lab)
    lab = k.newlabel("f0p")
    k(f"s_waitcnt vmcnt(0)\ns_barrier\ns_cmp_lg_u32 s4, 0\ns_cbranch_scc1 {lab}")
    set_flag(k, f"s_add_u32 s78, s40, {FL_LN}", 8)
    k.label(lab)

def gemm2(k, vm, stages, ksteps, NB, acc, wbuf, R, wgroup, wread, aload, areg, AW, nst_total, zero_first,
          hook=None, lead=None):
    steps = [(s, ks) for s in stages for ks in range(ksteps)]
    wb = lambda n, nb: wbuf + ((n & 1) * NB + nb) * 4
    vm.wait(("W", stages[0]))
    k("s_barrier")
    for nb in range(NB):
        for i in wread(stages[0], 0, nb, wb(0, nb)): k(i)
    pending = []
    for n, (s, ks) in enumerate(steps):
        last = (n == len(steps)-1)
        if hook: hook(n)
        if ks == ksteps-1 and not last:
            assert not pending
            vm.wait(("W", s+1))
            k("s_barrier")
            if s+R-1 < nst_total and ("W", s+R-1) not in vm.tags:
                pending = [(u, i) for i, u in enumerate(wgroup(s+R-1))]
                plast = len(pending)-1; ps = s+R-1
        vm.wait(("A", s, ks))
        for nb in range(NB):
            k(f"s_waitcnt lgkmcnt({2*(NB-1-nb) if last else 2*(NB-1)})")
            k(mfma(acc+16*nb, wb(n, nb), areg(n), "0" if (n == 0 and zero_first) else None))
            if not last:
                s2, ks2 = steps[n+1]
                for i in wread(s2, ks2, nb, wb(n+1, nb)): k(i)
            if pending and nb != NB-1:
                u, i = pending.pop(0)
                vm.op(u, ("W", ps) if i == plast else None)
        w = lead(n) if lead else AW
        for m in range(n+1, min(n+w+1, len(steps))):
            s2, ks2 = steps[m]
            if ("A", s2, ks2) not in vm.tags:
                vm.op(aload(s2, ks2, areg(m)), ("A", s2, ks2))
    assert not pending

def phase_f1(k):
    k.L.append("    ; ---- F1: 256 tokens x 48 gate/up columns")
    R = 3; UOFF = 12288 + 128; SLOT = 24704
    vm = VM(k)
    k("""s_and_b32 s34, s5, 7
    s_lshr_b32 s35, s5, 3
    s_and_b32 s36, s34, 1
    s_lshl_b32 s36, s36, 2
    s_and_b32 s37, s35, 3
    s_add_u32 s32, s36, s37
    s_lshr_b32 s36, s34, 1
    s_lshl_b32 s36, s36, 3
    s_lshr_b32 s37, s35, 2
    s_add_u32 s33, s36, s37""")
    k(f"""s_cmp_lt_u32 s4, 4
    s_cselect_b32 s8, s{P_W1}, s{P_W3}
    s_cselect_b32 s9, s{P_W1+1}, s{P_W3+1}
    s_cselect_b32 s42, 0, {UOFF}
    s_mov_b32 s10, {640*3072}
    s_mov_b32 s11, 0x00020000
    s_and_b32 s36, s4, 3
    s_mul_i32 s37, s36, 3072
    s_add_u32 s42, s42, s37
    s_lshl_b32 s36, s36, 5
    s_mul_i32 s37, s33, 96""")
    if C("diag_x"): k.srd(12, P_X, SZ)
    else: k.srd(12, P_WS, SZ, WS_XF)
    k.srd(16, P_WS, HF_SZ, WS_HF)
    for i in range(3):
        k(f"""v_add_u32 v3, {64*i}, v1
        v_mul_u32_u24 v8, 10923, v3
        v_lshrrev_b32 v8, 16, v8
        v_mul_u32_u24 v9, 6, v8
        v_sub_u32 v9, v3, v9
        v_add_u32 v8, s36, v8
        v_mul_u32_u24 v8, 3072, v8
        v_lshl_add_u32 v8, v9, 4, v8
        v_add_u32 v{4+i}, s37, v8""")
    k(f"""v_lshrrev_b32 v12, 5, v1
    v_bfe_u32 v13, v1, 2, 2
    v_lshl_add_u32 v14, v12, 3, v13
    v_mul_u32_u24 v14, 96, v14
    v_bfe_u32 v15, v1, 4, 1
    v_mul_u32_u24 v15, {UOFF}, v15
    v_add_u32 v14, v14, v15
    v_and_b32 v15, 3, v1
    v_lshl_add_u32 v8, v15, 3, v14
    v_add_u32 v3, 4096, v2""")
    k("s_add_u32 s40, s32, s33")
    mod_small(k, 40, 5, 43, 38)
    k(f"""s_lshl_b32 s46, s32, 3
    s_add_u32 s46, s46, s4
    s_mul_i32 s41, s46, 40960
    s_mul_i32 s44, s40, {128*3072}
    s_lshl_b32 s45, s40, 13
    s_add_u32 s45, s45, s41
    s_add_u32 s47, s41, 40960""")
    ACC, WB, AB = 16, 64, 88
    def wgroup(s):
        u = []
        for i in range(3):
            post = f"\ns_add_u32 s44, s44, {128*3072}\ns_cmp_eq_u32 s44, {640*3072}\ns_cselect_b32 s44, 0, s44" if i == 2 else ""
            u.append(f"s_add_u32 m0, s42, {(s % R)*SLOT + i*1024}\ns_nop 0\nbuffer_load_dwordx4 v{4+i}, s[8:11], s44 offen{' nt' if C('nt1') else ''} lds" + post)
        return u
    def wread(s, ks, nb, dst):
        o = (s % R)*SLOT + ks*16*96 + nb*32
        return [f"ds_read_b64_tr_b16 {vr(dst,2)}, v8 offset:{o}", f"ds_read_b64_tr_b16 {vr(dst+2,2)}, v8 offset:{o+4*96}"]
    def aload(s, ks, dst):
        post = "\ns_add_u32 s45, s45, 8192\ns_cmp_eq_u32 s45, s47\ns_cselect_b32 s45, s41, s45" if ks == 7 else ""
        return f"buffer_load_dwordx4 {vr(dst,4)}, v{3 if ks >= 4 else 2}, s[12:15], s45 offen offset:{(ks%4)*1024} sc1" + post
    AW = C("f1_aw", 8)
    areg = lambda n: AB + 4*(n % AW)
    def wpro():
        for s in range(R-1):
            g = wgroup(s)
            for i, u in enumerate(g):
                thr(); vm.op(u, ("W", s) if i == len(g)-1 else None)
    def thr():
        if C("f1_thr") and vm.n >= C("f1_thr"): k(f"s_waitcnt vmcnt({C('f1_thr')-1})")
    def apro():
        for ks in range(AW):
            thr(); vm.op(aload(0, ks, areg(ks)), ("A", 0, ks))
    def go_poll():
        polln(k, f"s_add_u32 s78, s5, {FL_GO}" if C("go_a2") else f"""s_and_b32 s68, s34, 1
        s_lshl_b32 s68, s68, 3
        s_and_b32 s69, s35, 7
        s_add_u32 s68, s68, s69
        s_lshr_b32 s69, s34, 1
        s_lshl_b32 s69, s69, 2
        s_lshr_b32 s70, s35, 3
        s_add_u32 s69, s69, s70
        s_min_u32 s69, s69, 14
        s_lshl_b32 s78, s69, 4
        s_add_u32 s78, s78, s68
        s_add_u32 s78, s78, {FL_QKV if C("go_q") else FL_GO}""", 1, 10, sleep=C("go_sleep", 4))
    early = C("f1_early", 0)
    if early == 3:
        k("s_mov_b32 s44, s68"); vm.tags[("W", 0)] = 0; vm.tags[("W", 1)] = 0
    elif early >= 1: wpro()
    if C("f1_burst", 0) == 1: k(f"s_setprio {C('prio_f', 0)}")
    lab = k.newlabel("f1p")
    k(f"s_cmp_lg_u32 s4, 0\ns_cbranch_scc1 {lab}")
    polln(k, f"s_lshl_b32 s78, s32, 5\ns_add_u32 s78, s78, {FL_LN}", 32, 10, sleep=4)
    if early < 2 and C("f1_hold", 1): go_poll()
    k(f"{lab}:\ns_barrier")
    if early < 1: wpro()
    apro()
    if C("f1_burst", 0) == 2: k(f"s_setprio {C('prio_f', 0)}")
    if early >= 2 and C("f1_hold", 1):
        lab = k.newlabel("f1g")
        k(f"s_cmp_lg_u32 s4, 0\ns_cbranch_scc1 {lab}")
        go_poll()
        k.label(lab)
    k.stamp(2)
    def hook(n):
        if n == C("f1_sw", 99): k(f"s_setprio {C('prio_f1b', 1)}")
    gemm2(k, vm, list(range(5)), 8, 3, ACC, WB, R, wgroup, wread, aload, areg, AW, 5, True, hook, lambda n: C("f1_lead", 8) if n < C("f1_leadn", 24) else AW)
    k.stamp(3)
    k(f"""s_mul_i32 s36, s46, 96
    s_mul_i32 s37, s33, 3
    s_add_u32 s36, s36, s37
    s_lshl_b32 s36, s36, 10
    s_mov_b32 s38, {f32(-LOG2E)}
    s_setprio {C('prio_f1e', 3)}
    s_nop 7""")
    for nb in range(3):
        a = ACC + 16*nb; t = WB + 8*(nb % 2); d = AB + 4*nb
        for e in range(8): k(f"v_mul_f32 v{t+e}, s38, v{a+e}")
        for e in range(8): k(f"v_exp_f32 v{t+e}, v{t+e}")
        for e in range(8): k(f"v_mul_f32 v{a+e}, v{a+e}, v{a+8+e}")
        for e in range(8): k(f"v_add_f32 v{t+e}, 1.0, v{t+e}")
        for e in range(8): k(f"v_rcp_f32 v{t+e}, v{t+e}")
        k("s_nop 0")
        for e in range(8): k(f"v_mul_f32 v{a+e}, v{a+e}, v{t+e}")
        for e in range(4): k(f"v_cvt_pk_bf16_f32 v{d+e}, v{a+2*e}, v{a+2*e+1}")
        k(f"buffer_store_dwordx4 {vr(d,4)}, v2, s[16:19], s36 offen offset:{nb*1024} sc1")
    k(f"s_setprio {C('prio_f2', 2)}")
    if True:
        lab = k.newlabel("f1f")
        k(f"s_waitcnt vmcnt(0)\ns_barrier\ns_cmp_lg_u32 s4, 0\ns_cbranch_scc1 {lab}")
        set_flag(k, f"s_lshl_b32 s78, s32, 5\ns_add_u32 s78, s78, s33\ns_add_u32 s78, s78, {FL_H}", 10)
        k.label(lab)

def mfma16(d, a, b, c=None):
    cs = vr(d, 4) if c is None else c
    return f"v_mfma_f32_16x16x32_bf16 {vr(d,4)}, {vr(a,4)}, {vr(b,4)}, {cs}"

def phase_f2(k, endlab):
    k.L.append("    ; ---- F2: 64 tokens x 80 output columns, K split over 4 wave pairs")
    R = 4; SLOT = 20480; NST = 17
    vm = VM(k)
    k("""s_and_b32 s34, s5, 7
    s_lshr_b32 s35, s5, 3
    s_lshl_b32 s36, s34, 2
    s_and_b32 s37, s35, 3
    s_add_u32 s32, s36, s37
    s_lshr_b32 s33, s35, 2
    s_and_b32 s37, s4, 1
    s_lshr_b32 s38, s4, 1
    s_mul_i32 s39, s4, 160
    s_mul_i32 s43, s33, 160""")
    k.srd(8, P_W2, 1536*1280)
    k.srd(16, P_WO, 640*1280)
    k.srd(12, P_WS, HF_SZ, WS_HF)
    k.srd(24, P_WS, SZ, WS_OF)
    k.srd(20, P_X, SZ)
    ACC, WB, AB, XR = 16, 56, 76, 116
    for i in range(3):
        k(f"""v_add_u32 v3, s39, v1
        v_add_u32 v3, {64*i}, v3
        v_mul_u32_u24 v{7+i}, 6554, v3
        v_lshrrev_b32 v{7+i}, 16, v{7+i}
        v_mul_u32_u24 v13, 10, v{7+i}
        v_sub_u32 v13, v3, v13
        v_lshl_add_u32 v{10+i}, v13, 4, s43
        s_movk_i32 s36, 1280
        v_mad_u32_u24 v{4+i}, v{7+i}, s36, v{10+i}""")
    def dma_addr(mode, i):
        if mode == 1: c = f"v_lshrrev_b32 v3, 4, v{7+i}\nv_lshl_add_u32 v3, v3, 2, v{7+i}\n"
        else: c = f"v_lshrrev_b32 v3, 2, v{7+i}\nv_lshl_add_u32 v3, v3, 4, v{7+i}\nv_add_u32 v3, 16, v3\n"
        return c + f"v_mad_u32_u24 v{4+i}, v3, s36, v{10+i}"
    k(f"""v_lshrrev_b32 v3, 5, v1
    v_lshlrev_b32 v13, 4, v3
    v_bfe_u32 v14, v1, 2, 3
    v_add_u32 v13, v13, v14
    s_lshl_b32 s44, s38, 5
    v_add_u32 v13, s44, v13
    v_mul_u32_u24 v13, 160, v13
    v_and_b32 v14, 3, v1
    v_lshl_add_u32 v13, v14, 3, v13
    v_add_u32 v14, {3*SLOT}, v13
    v_lshrrev_b32 v3, 4, v1
    v_lshlrev_b32 v3, 9, v3
    v_and_b32 v15, 15, v1
    v_lshl_add_u32 v15, v15, 4, v3""")
    k("s_and_b32 s40, s32, 3\ns_mul_i32 s40, s40, 3\ns_mul_i32 s44, s33, 5\ns_add_u32 s40, s40, s44")
    mod_small(k, 40, 12, 44, 44)
    k(f"""s_lshl_b32 s46, s32, 1
    s_add_u32 s46, s46, s37
    s_mul_i32 s41, s46, 98304
    s_lshl_b32 s44, s38, 11
    s_add_u32 s41, s41, s44
    s_mul_i32 s47, s46, 40960
    s_add_u32 s47, s47, s44
    s_mul_i32 s42, s4, 2560
    s_mul_i32 s44, s40, {128*1280}
    s_lshl_b32 s45, s40, 13
    s_add_u32 s45, s45, s41
    s_add_u32 s68, s41, 98304""")
    def wgroup(s):
        u = []
        for i in range(3):
            pre = post = ""
            if s < 12:
                ld = f"buffer_load_dwordx4 v{4+i}, s[8:11], s44 offen{' nt' if C('nt2') else ''} lds"
                if i == 2: post = f"\ns_add_u32 s44, s44, {128*1280}\ns_cmp_eq_u32 s44, {1536*1280}\ns_cselect_b32 s44, 0, s44"
            elif s < 16:
                if s == 12: pre = dma_addr(1, i) + "\n"
                if i == 0: pre += f"s_mov_b32 s44, {(s-12)*160*1280}\n"
                ld = f"buffer_load_dwordx4 v{4+i}, s[16:19], s44 offen lds"
            else:
                ld = f"buffer_load_dwordx4 v{4+i}, s[16:19], 0 offen lds"
            if i == 2: ld = "s_mov_b32 exec_hi, 0\n" + ld + "\ns_mov_b32 exec_hi, -1"
            else: ld = "s_nop 0\n" + ld
            u.append(pre + f"s_add_u32 m0, s42, {(s % R)*SLOT + i*1024}\n" + ld + post)
        return u
    def wread(s, j):
        slot = s % R
        va = 14 if slot == 3 else 13
        o = (slot % 3)*SLOT*(slot != 3) + j*32
        return [f"ds_read_b64_tr_b16 {vr(WB+4*j,2)}, v{va} offset:{o}", f"ds_read_b64_tr_b16 {vr(WB+4*j+2,2)}, v{va} offset:{o+1280}"]
    AW = 5
    areg = lambda s, b: AB + 8*(s % AW) + 4*b
    def issue_a(s):
        for b in range(2):
            if s < 12:
                post = "\ns_add_u32 s45, s45, 8192\ns_cmp_eq_u32 s45, s68\ns_cselect_b32 s45, s41, s45" if b else ""
                vm.op(f"buffer_load_dwordx4 {vr(areg(s,b),4)}, v15, s[12:15], s45 offen offset:{b*256} sc1" + post, ("A", s))
            else:
                post = "\ns_add_u32 s47, s47, 8192" if b else ""
                vm.op(f"buffer_load_dwordx4 {vr(areg(s,b),4)}, v15, s[24:27], s47 offen offset:{b*256} sc1" + post, ("A", s))
    def issue_w(s):
        for u in wgroup(s): vm.op(u, ("W", s))
    def run(stages, zero_first):
        vm.wait(("W", 1)); k("s_barrier")
        for j in range(5):
            for i in wread(stages[0], j): k(i)
        pending = []
        for n, s in enumerate(stages):
            if s == C("f2_sw", 99): k("s_setprio 0")
            if s % 2 == 1:
                assert not pending
                vm.wait(("W", s+2)); k("s_waitcnt lgkmcnt(0)\ns_barrier")
                pending = [(u, s+3) for u in wgroup(s+3)] + [(u, s+4) for u in wgroup(s+4)]
            vm.wait(("A", s))
            for j in range(5):
                if s % 2 == 0: k("s_waitcnt lgkmcnt(8)")
                for b in range(2):
                    k(mfma16(ACC + (5*b+j)*4, WB+4*j, areg(s, b), "0" if (zero_first and n == 0) else None))
                for i in wread(s+1, j): k(i)
                if pending:
                    u, t = pending.pop(0); vm.op(u, ("W", t))
            if s+AW <= stages[-1]: issue_a(s+AW)
        for u, t in pending: vm.op(u, ("W", t))
    for s in range(R): issue_w(s)
    k("s_lshl_b32 s69, s32, 6")
    for i in range(2):
        k(f"""v_add_u32 v3, {512*i}, v0
        v_mul_u32_u24 v{124+i}, 6554, v3
        v_lshrrev_b32 v{124+i}, 16, v{124+i}
        v_mul_u32_u24 v{126+i}, 10, v{124+i}
        v_sub_u32 v{126+i}, v3, v{126+i}
        v_add_u32 v3, s69, v{124+i}
        v_mul_u32_u24 v3, 1280, v3
        v_lshl_add_u32 v3, v{126+i}, 4, v3""")
        vm.op(f"buffer_load_dwordx4 {vr(XR+4*i,4)}, v3, s[20:23], s43 offen", "x")
    lab = k.newlabel("f2p")
    k(f"s_cmp_lg_u32 s4, 0\ns_cbranch_scc1 {lab}")
    polln(k, f"s_lshr_b32 s78, s32, 2\ns_lshl_b32 s78, s78, 5\ns_add_u32 s78, s78, {FL_H}", 32, AB, sleep=4)
    k(f"{lab}:\ns_barrier")
    k.stamp(4)
    for s in range(AW): issue_a(s)
    run(list(range(12)), True)
    k("s_waitcnt lgkmcnt(0)\ns_barrier")
    for i in range(3): k(dma_addr(2, i))
    issue_w(16)
    k(f"""s_mul_i32 s44, s4, 10240
    v_and_b32 v3, 48, v1
    v_lshrrev_b32 v9, 5, v1
    v_add_u32 v9, v9, v1""")
    for j in range(5):
        k(f"""v_add_u32 v{4+j}, {2*j}, v9
        v_and_or_b32 v{4+j}, v{4+j}, 15, v3
        v_lshl_add_u32 v{4+j}, v{4+j}, 4, s44""")
    for i in range(2):
        k(f"""v_lshrrev_b32 v3, 4, v{124+i}
        v_mul_u32_u24 v3, 5120, v3
        v_lshl_add_u32 v3, v{126+i}, 9, v3
        v_add_u32 v{9+i}, v{124+i}, v{126+i}
        v_and_b32 v{9+i}, 15, v{9+i}
        v_lshl_add_u32 v{9+i}, v{9+i}, 4, v3
        v_add_u32 v3, s69, v{124+i}
        v_mul_u32_u24 v3, 1280, v3
        v_lshl_add_u32 v{11+i}, v{126+i}, 4, v3""")
    k.srd(8, P_OUT, SZ)
    k.stamp(5)
    lab = k.newlabel("f2q")
    k(f"s_cmp_lg_u32 s4, 0\ns_cbranch_scc1 {lab}")
    polln(k, f"s_lshr_b32 s78, s32, 2\ns_lshl_b32 s78, s78, 5\ns_add_u32 s78, s78, {FL_O}", 32, AB, sleep=2)
    k(f"{lab}:\ns_waitcnt vmcnt(0)\ns_barrier\ns_setprio {C('prio_tail', 3)}")
    vm.drained()
    k.stamp(6)
    for s in range(12, 17): issue_a(s)
    for s in range(12, 17):
        more = s < 16
        vm.wait(("A", s))
        for j in range(5):
            k(f"s_waitcnt lgkmcnt({8 if more else 8-2*j})")
            for b in range(2): k(mfma16(ACC + (5*b+j)*4, WB+4*j, areg(s, b)))
            if more:
                for i in wread(s+1, j): k(i)
    k("s_barrier\ns_nop 4")
    for j in range(5):
        for b in range(2):
            k(f"ds_write_b128 v{4+j}, {vr(ACC+(5*b+j)*4,4)} offset:{(5*b+j)*1024}")
    k("s_waitcnt lgkmcnt(0)\ns_barrier")
    lab = k.newlabel("f2e"); lab2 = k.newlabel("f2f")
    RB = 16
    def rd(i):
        for q in range(4):
            for h in range(2):
                if i == 1 and q == 3: k("s_waitcnt lgkmcnt(13)")
                k(f"ds_read_b128 {vr(RB + 32*i + 8*q + 4*h, 4)}, v{9+i} offset:{q*20480 + h*256}")
    def fin(i):
        b = RB + 32*i; x = XR + 4*i; t = 80 + 8*i
        for e in range(4): k(f"v_lshlrev_b32 v{t+2*e}, 16, v{x+e}\nv_and_b32 v{t+2*e+1}, 0xffff0000, v{x+e}")
        k("s_waitcnt lgkmcnt(0)")
        for e in range(0, 8, 2): k(f"v_pk_add_f32 {vr(b+e,2)}, {vr(b+e,2)}, {vr(b+8+e,2)}\nv_pk_add_f32 {vr(b+16+e,2)}, {vr(b+16+e,2)}, {vr(b+24+e,2)}")
        for e in range(0, 8, 2): k(f"v_pk_add_f32 {vr(b+e,2)}, {vr(b+e,2)}, {vr(t+e,2)}")
        for e in range(0, 8, 2): k(f"v_pk_add_f32 {vr(b+e,2)}, {vr(b+e,2)}, {vr(b+16+e,2)}")
        for e in range(4): k(f"v_cvt_pk_bf16_f32 v{b+8+e}, v{b+2*e}, v{b+2*e+1}")
        k(f"buffer_store_dwordx4 {vr(b+8,4)}, v{11+i}, s[8:11], s43 offen{' sc1' if C('out_sc1') else ''}")
    rd(0)
    k(f"s_cmp_ge_u32 s4, 2\ns_cbranch_scc1 {lab}")
    rd(1); fin(1)
    k.label(lab)
    fin(0)

def phase_a2(k, force_fallback=False):
    k.L.append("    ; ---- A2: attention, two waves per SIMD alternate softmax and MFMA phases")
    SLOT = 26624; VOFF = 10240
    Lchk, Lchkr, Lloop, Lfin, Lslow, Lsl, Lend = [k.newlabel(x) for x in ("atc", "atcr", "atl", "atf", "ats", "atsl", "ate")]
    k("""s_and_b32 s34, s5, 7
    s_lshr_b32 s35, s5, 3
    s_lshl_b32 s32, s34, 2
    s_lshr_b32 s34, s35, 3
    s_add_u32 s32, s32, s34
    s_and_b32 s33, s35, 7""")
    Q1, Q2 = 16, 20
    K1, K2 = 24, 22
    V0, V1 = 28, 32
    P = 36; T = 44
    CC, O = 48, 64
    S = 80; U = 96
    k("v_and_b32 v3, 31, v1\nv_lshrrev_b32 v4, 5, v1\nv_mov_b32 v15, 0\nv_mov_b32 v100, 0\ns_mov_b32 s3, 0")
    lab = k.newlabel("a2p"); lab2 = k.newlabel("a2q")
    k(f"s_cmp_lg_u32 s4, 4\ns_cbranch_scc1 {lab}")
    get_tag(k, U)
    k(f"""s_mov_b32 s3, 1
    s_mul_i32 s76, s32, 20
    s_add_u32 s77, s76, 19
    s_lshr_b32 s76, s76, 7
    s_lshr_b32 s77, s77, 7
    s_sub_u32 s77, s77, s76
    s_lshl_b32 s78, s33, 1
    v_bfe_u32 v{U+4}, v1, 4, 1
    v_mul_u32_u24 v{U+4}, s77, v{U+4}
    v_add_u32 v{U+4}, s76, v{U+4}
    v_lshlrev_b32 v{U+4}, 4, v{U+4}
    v_add_u32 v{U}, s78, v1
    v_and_b32 v{U+1}, 15, v{U}
    v_mul_u32_u24 v15, 80, v4
    v_add3_u32 v15, v15, v{U+4}, v{U+1}
    v_add_u32 v15, {FL_QKV + 80}, v15
    v_lshlrev_b32 v15, 7, v15
    v_add_u32 v{U}, 12, v{U}
    v_and_b32 v{U}, 15, v{U}
    v_add_u32 v{U}, v{U}, v{U+4}
    v_add_u32 v{U}, {FL_QKV}, v{U}
    v_mov_b32 v{U+4}, v15
    s_mov_b64 exec, 0x00300030
    v_lshlrev_b32 v{U+4}, 7, v{U}
    s_mov_b64 exec, -1
    {lab}:""")
    k("v_mul_u32_u24 v5, 320, v4\nv_lshl_add_u32 v5, v3, 4, v5")
    k(f"""v_lshlrev_b32 v6, 12, v4
    v_lshl_add_u32 v6, v3, 3, v6
    v_add_u32 v7, 256, v6
    v_add_u32 v10, {VOFF}, v2
    s_lshl_b32 s37, s33, 3
    s_add_u32 s37, s37, s4
    s_lshl_b32 s38, s37, 5
    v_add_u32 v11, s38, v3
    v_lshlrev_b32 v11, 3, v11
    v_mov_b32 v12, v11
    v_lshl_add_u32 v11, v4, 15, v11
    s_mul_i32 s39, s32, 81920
    s_mov_b32 s68, 0x000fffff
    s_mov_b32 s69, 0x000fffff
    s_mov_b32 s70, -1
    s_mov_b32 s71, 0""")
    k.srd(8, P_WS, SZ, WS_QP)
    k.srd(12, P_WS, SZ, WS_KP)
    k.srd(16, P_WS, SZ, WS_VI)
    k.srd(20, P_WS, SZ, WS_OF)
    k(f"""s_lshr_b32 s40, s4, 1
    s_lshl_b32 s40, s40, 14
    s_and_b32 s44, s4, 1
    s_lshl_b32 s44, s44, 10
    s_add_u32 s40, s40, s44
    s_add_u32 s40, s40, s39
    s_lshl_b32 s45, s4, 8
    s_add_u32 s41, s45, s39
    s_add_u32 s41, s41, 65536
    s_add_u32 s45, s45, 8192
    s_mul_i32 s42, s4, 1280
    s_add_u32 s42, s42, s39
    s_lshl_b32 s44, s4, 10
    s_lshl_b32 s46, s4, 11
    s_add_u32 s46, s46, {VOFF}
    s_mov_b32 s24, s33
    s_mov_b32 s43, 0""")
    NEXT = "s_lshl_b32 s26, s24, 11\ns_add_u32 s25, s26, s40\ns_add_u32 s26, s26, s41\ns_mul_i32 s27, s24, 10240\ns_add_u32 s27, s27, s42\ns_add_u32 s24, s24, 1\ns_and_b32 s24, s24, 7"
    ADV = f"s_add_u32 s43, s43, {SLOT}\ns_cmp_eq_u32 s43, {3*SLOT}\ns_cselect_b32 s43, 0, s43"
    du = ["s_add_u32 m0, s43, s44\ns_nop 0\nbuffer_load_dwordx4 v2, s[12:15], s25 offen sc1 lds",
          "s_add_u32 m0, s43, s45\ns_mov_b64 exec, 0xffff\nbuffer_load_dwordx4 v2, s[12:15], s26 offen sc1 lds\ns_mov_b64 exec, -1",
          "s_add_u32 m0, s43, s46\ns_mov_b64 exec, s[68:69]\nbuffer_load_dwordx4 v5, s[16:19], s27 offen sc1 lds\ns_mov_b64 exec, -1",
          "s_add_u32 m0, m0, 384\ns_mov_b64 exec, s[68:69]\nbuffer_load_dwordx4 v5, s[16:19], s27 offen offset:640 sc1 lds\ns_mov_b64 exec, -1"]
    k(NEXT)
    k(f"""v_cmp_eq_u32 vcc, 20, v3
    v_cmp_eq_u32 s[34:35], 24, v3
    v_mov_b32 v13, 0x3f803f80
    s_or_b64 vcc, vcc, s[34:35]
    s_nop 1
    v_cndmask_b32 v{T}, 0, v13, vcc""")
    for e in range(1, 4): k(f"v_mov_b32 v{T+e}, v{T}")
    k("v_add_u32 v13, s46, v2\ns_not_b64 exec, s[68:69]")
    for slot in range(3):
        for i in range(2):
            k(f"ds_write_b128 v13, {vr(T,4)} offset:{slot*SLOT + i*1024}")
    k("s_mov_b64 exec, -1")
    for r in list(range(O, O+16)) + [Q2, Q2+1]: k(f"v_mov_b32 v{r}, 0")
    k("s_add_u32 s34, s39, 16384\ns_add_u32 s35, s39, 65536")
    k.stamp(3)
    k(f"s_cmp_lg_u32 s4, 4\ns_cbranch_scc1 {lab2}\ns_mov_b32 exec_lo, 0x003f003f\ns_mov_b32 exec_hi, 0x000f000f")
    poll(k, U+4, "0", U, sleep=1)
    k(f"{lab2}:\ns_barrier")
    k.stamp(4)
    k(f"buffer_load_dwordx2 {vr(Q1,2)}, v11, s[8:11], s39 offen sc1")
    k(f"buffer_load_dwordx2 {vr(Q1+2,2)}, v11, s[8:11], s34 offen sc1")
    k(f"s_mov_b64 exec, s[70:71]\nbuffer_load_dwordx2 {vr(Q2,2)}, v12, s[8:11], s35 offen sc1\ns_mov_b64 exec, -1")
    for u in du: k(u)
    k(NEXT); k(ADV)
    for u in du: k(u)
    if C("go_a2"):
        lab = k.newlabel("a2g")
        k(f"s_cmp_lg_u32 s4, 4\ns_cbranch_scc1 {lab}")
        set_flag(k, f"s_add_u32 s78, s5, {FL_GO}", U+6)
        k.label(lab)
    k("s_waitcnt vmcnt(4) lgkmcnt(0)\ns_barrier")
    def k1read(t):
        tt = t % 8; va = 6 + (tt & 1); a = tt >> 1
        return f"ds_read2st64_b64 {vr(K1,4)}, v{va} offset0:{a} offset1:{a+4}"
    def k2read(t):
        tt = t % 8; va = 6 + (tt & 1); a = tt >> 1
        return f"ds_read_b64 {vr(K2,2)}, v{va} offset:{8192 + a*512}"
    def vread(t, g):
        va = 10
        return f"ds_read_b128 {vr(V1 if g else V0,4)}, v{va} offset:{(t%8)*2048 + g*1024}"
    k(k1read(0)); k(k2read(0))
    k("s_waitcnt lgkmcnt(0)")
    k(mfma(S, K1, Q1, "0")); k(mfma8(S, K2, Q2))
    k(k1read(1)); k(k2read(1)); k(vread(0, 0)); k(vread(0, 1))
    k(f"s_mov_b32 s47, 0\ns_mov_b32 s76, {SLOT}\ns_mov_b32 s77, {(-2*SLOT) & 0xffffffff}\ns_nop 7")
    k(f"v_max3_f32 v{T}, v{S}, v{S+1}, v{S+2}\nv_max3_f32 v{T+1}, v{S+3}, v{S+4}, v{S+5}")
    k(f"v_max3_f32 v{T}, v{T}, v{S+6}, v{S+7}\nv_max3_f32 v{T+1}, v{T+1}, v{S+8}, v{S+9}")
    k(f"v_max3_f32 v{T}, v{T}, v{S+10}, v{S+11}\nv_max3_f32 v{T+1}, v{T+1}, v{S+12}, v{S+13}")
    k(f"v_max3_f32 v{T}, v{T}, v{S+14}, v{S+15}\nv_max_f32 v{T}, v{T}, v{T+1}")
    k(f"v_mov_b32 v{T+1}, v{T}\ns_nop 1\nv_permlane32_swap_b32 v{T}, v{T+1}\ns_nop 1\nv_max_f32 v{T}, v{T}, v{T+1}")
    for e in range(16): k(f"v_sub_f32 v{CC+e}, 0, v{T}")
    for e in range(16): k(f"v_sub_f32 v{S+e}, v{S+e}, v{T}")
    lab = k.newlabel("a2r")
    k(f"s_cmp_lg_u32 s4, 4\ns_cbranch_scc1 {lab}\nbuffer_load_dwordx2 {vr(U,2)}, v15, s[28:31], 0 offen sc1\n{lab}:")
    plo, pmid, phi = C("pp_lo", 0), C("pp_mid", 1), C("pp_hi", 3)
    k(f"s_setprio {plo}")
    k.stamp(5)
    if C("cyc") in (1, 2) and STAMP[0]: k("s_memtime s[82:83]\ns_waitcnt lgkmcnt(0)\ns_mov_b32 s98, 0\ns_mov_b32 s99, 0")
    TB = C("a2_tb", 4)
    LY = k.newlabel("atY"); Lout = k.newlabel("ato")
    nx = NEXT.split("\n"); adv = ADV.split("\n")
    def body(Y, top):
        k(".p2align 6")
        k.label(top)
        for t in range(8):
            for i in range(4):
                for e in range(4):
                    k(f"v_exp_f32 v{S+4*i+e}, v{S+4*i+e}")
                    if i == 0 and e == 0: k(f"s_setprio {pmid}")
                k(f"v_cvt_pk_bf16_f32 v{P+2*i}, v{S+4*i}, v{S+4*i+1}")
                k(f"v_cvt_pk_bf16_f32 v{P+2*i+1}, v{S+4*i+2}, v{S+4*i+3}")
            k(f"s_setprio {phi}")
            if t == TB and Y:
                k(f"s_waitcnt vmcnt(0)\ns_cmp_lg_u32 s3, 0\ns_cbranch_scc1 {Lchk}\n{Lchkr}:\ns_barrier")
            gaps = [[], [], [], []]
            if t == 0: gaps[0] = nx[:4]; gaps[2] = nx[4:]
            if t == 1:
                gaps[0] = adv
                gaps[2] = ["s_cmp_eq_u32 s47, 2", "s_cselect_b32 s36, s77, s76", "s_cmp_eq_u32 s47, 5", "s_cselect_b32 s36, s77, s36"]
            if t == 2 and C("a2_nod", 1):
                gaps[2] = ["s_cmp_ge_u32 s47, 6", f"s_cselect_b32 s25, {SZ}, s25", f"s_cselect_b32 s26, {SZ}, s26", f"s_cselect_b32 s27, {SZ}, s27"]
            if t == TB+1: gaps[0] = [du[0]]; gaps[2] = [du[1]]
            if t == TB+2: gaps[0] = [du[2]]; gaps[2] = [du[3]]
            if t == 5: gaps[3] = ["v_add_u32 v6, s36, v6", "v_add_u32 v7, s36, v7"]
            if t == 6: gaps[3] = ["v_add_u32 v10, s36, v10"]
            if t == 7: gaps[3 if TB == 5 else 2] = ["s_add_u32 s47, s47, 1", "s_cmp_lt_u32 s47, 8"]
            k("s_waitcnt lgkmcnt(0)")
            k(mfma(S, K1, Q1, vr(CC, 16))); k(k1read(t+2))
            for x in gaps[0]: k(x)
            k(mfma8(S, K2, Q2))
            mark = len(k.L)
            k(k2read(t+2))
            for x in gaps[1]: k(x)
            k(mfma(O, V0, P)); k(vread(t+1, 0))
            for x in gaps[2]: k(x)
            k(mfma(O, V1, P+4)); k(vread(t+1, 1))
            for x in gaps[3]: k(x)
            if t == TB and not Y: k("s_waitcnt vmcnt(0)\ns_barrier")
            pad = 12 - (sum(1 for x in k.L[mark:] if not x.endswith(":")) + 1)
            if pad > 0 and C("a2_pad", 1): k(f"s_nop {pad-1}")
            k(f"s_setprio {plo}")
        k(f"s_cbranch_scc1 {top}")
    k(f"s_cmp_ge_u32 s4, 4\ns_cbranch_scc1 {LY}")
    body(False, Lloop)
    k(f"s_branch {Lout}")
    body(True, LY)
    k.label(Lout)
    k.stamp(6)
    if C("cyc") in (1, 2) and STAMP[0]: k("s_memtime s[84:85]\ns_waitcnt lgkmcnt(0)\ns_sub_u32 s84, s84, s82\ns_mul_i32 s84, s84, 100\ns_lshr_b32 s84, s84, 10\ns_add_u32 s84, s84, s80\ns_mov_b32 s82, s80")
    if C("cyc") == 2 and STAMP[0]: k("s_mul_i32 s98, s98, 100\ns_lshr_b32 s98, s98, 10\ns_add_u32 s86, s98, s80\ns_mul_i32 s99, s99, 100\ns_lshr_b32 s99, s99, 10\ns_add_u32 s88, s99, s80")
    k(f"""s_setprio 3
    s_mul_i32 s72, s37, 40960
    s_lshl_b32 s73, s32, 10
    s_add_u32 s73, s73, s72
    s_lshr_b32 s74, s32, 2
    s_add_u32 s74, s74, 32
    s_lshl_b32 s74, s74, 10
    s_add_u32 s74, s74, s72
    s_and_b32 s75, s32, 1
    s_lshl_b32 s75, s75, 9
    s_add_u32 s74, s74, s75
    s_and_b32 s75, s32, 2
    s_lshl_b32 s75, s75, 2
    s_add_u32 s74, s74, s75
    s_waitcnt lgkmcnt(0)
    s_mov_b64 exec, s[70:71]
    v_mov_b32 v{T+2}, v{O+12}
    s_not_b64 exec, s[70:71]
    v_mov_b32 v{T+2}, v{O+8}
    s_mov_b64 exec, -1
    s_mov_b32 s72, {f32(2.0**60) if not force_fallback else f32(0.0)}
    v_cmp_ngt_f32 vcc, s72, v{T+2}
    s_nop 1
    s_cbranch_vccnz {Lslow}""")
    k.label(Lfin)
    k(f"v_rcp_f32 v{T}, v{T+2}\ns_nop 0")
    for e in range(12): k(f"v_mul_f32 v{O+e}, v{O+e}, v{T}")
    for e in range(6): k(f"v_cvt_pk_bf16_f32 v{P+e}, v{O+2*e}, v{O+2*e+1}")
    k(f"buffer_store_dwordx4 {vr(P,4)}, v2, s[20:23], s73 offen sc1")
    k(f"s_mov_b64 exec, s[70:71]\nbuffer_store_dwordx2 {vr(P+4,2)}, v2, s[20:23], s74 offen sc1\ns_mov_b64 exec, -1")
    k(f"s_waitcnt vmcnt(0)\ns_barrier\ns_cmp_lg_u32 s4, 4\ns_cbranch_scc1 {Lend}")
    set_flag(k, f"s_lshl_b32 s78, s33, 5\ns_add_u32 s78, s78, s32\ns_add_u32 s78, s78, {FL_O}", T)
    k.label(Lend)
    if C("cyc") == 3 and STAMP[0]: k("s_mul_i32 s96, s96, 100\ns_lshr_b32 s96, s96, 10\ns_add_u32 s86, s96, s80\ns_mul_i32 s98, s98, 100\ns_lshr_b32 s98, s98, 10\ns_add_u32 s88, s98, s80\ns_cmp_eq_u32 s82, 0\ns_cselect_b32 s86, 0, s86\ns_cselect_b32 s88, 0, s88")
    k.stamp(7); k.stamp_flush(0, "s5")
    k("s_endpgm")
    k.label(Lchk)
    k("s_mov_b32 s3, 0")
    poll(k, 15, "0", U, sleep=1, loaded=True)
    k(f"s_branch {Lchkr}")
    k.label(Lslow)
    M = CC
    k(f"""v_lshlrev_b32 v7, 3, v3
    v_lshl_add_u32 v6, v4, 15, v7
    v_mov_b32 v{M}, {f32(-3.0e38)}
    s_mov_b32 s40, s39
    s_mov_b32 s42, s39
    s_mov_b32 s47, 0""")
    for r in range(O, O+16): k(f"v_mov_b32 v{r}, 0")
    for r in range(V0, V0+8): k(f"v_mov_b32 v{r}, 0x3f803f80")
    k.label(Lsl)
    k(f"""s_add_u32 s41, s40, 16384
    s_add_u32 s43, s40, 65536
    buffer_load_dwordx2 {vr(K1,2)}, v6, s[12:15], s40 offen sc1
    buffer_load_dwordx2 {vr(K1+2,2)}, v6, s[12:15], s41 offen sc1
    buffer_load_dwordx2 {vr(K2,2)}, v7, s[12:15], s43 offen sc1
    s_mov_b64 exec, s[68:69]
    buffer_load_dwordx4 {vr(V0,4)}, v5, s[16:19], s42 offen sc1
    buffer_load_dwordx4 {vr(V1,4)}, v5, s[16:19], s42 offen offset:640 sc1
    s_mov_b64 exec, -1
    s_waitcnt vmcnt(0)""")
    k(mfma(S, K1, Q1, "0")); k(mfma8(S, K2, Q2))
    k("s_nop 15\ns_nop 3")
    k(f"v_max3_f32 v{T}, v{S}, v{S+1}, v{M}")
    for e in range(2, 16, 2): k(f"v_max3_f32 v{T}, v{T}, v{S+e}, v{S+e+1}")
    k(f"v_mov_b32 v{T+1}, v{T}\ns_nop 1\nv_permlane32_swap_b32 v{T}, v{T+1}\ns_nop 1\nv_max_f32 v{T}, v{T}, v{T+1}")
    k(f"v_sub_f32 v{T+1}, v{M}, v{T}\nv_exp_f32 v{T+1}, v{T+1}\nv_mov_b32 v{M}, v{T}")
    for e in range(16): k(f"v_mul_f32 v{O+e}, v{O+e}, v{T+1}")
    for e in range(16): k(f"v_sub_f32 v{S+e}, v{S+e}, v{T}")
    for e in range(16): k(f"v_exp_f32 v{S+e}, v{S+e}")
    k("s_nop 0")
    for e in range(8): k(f"v_cvt_pk_bf16_f32 v{P+e}, v{S+2*e}, v{S+2*e+1}")
    k("s_nop 1")
    k(mfma(O, V0, P)); k(mfma(O, V1, P+4))
    k(f"""s_nop 15
    s_nop 3
    s_add_u32 s40, s40, 256
    s_add_u32 s42, s42, 1280
    s_add_u32 s47, s47, 1
    s_cmp_lt_u32 s47, 64
    s_cbranch_scc1 {Lsl}
    v_mov_b32 v{T+2}, v{O+12}
    s_branch {Lfin}""")


DOC = """;
"""
def fused():
    k = Kern(NAME, 512, 512, 81920, sgpr=100 if STAMP[0] else 80)
    k("s_load_dwordx16 s[48:63], s[0:1], 0\ns_load_dwordx4 s[64:67], s[0:1], 64")
    k.stamp_init(); k.stamp(0, wait=False)
    k(f"""v_lshrrev_b32 v1, 6, v0
    s_and_b32 s5, s2, 255
    v_readfirstlane_b32 s4, v1
    v_and_b32 v1, 63, v0
    v_lshlrev_b32 v2, 4, v1
    s_mov_b32 s6, 0
    s_setprio 3
    s_cmp_ge_u32 s2, 512
    s_cbranch_scc1 L_end
    {"s_cmp_lt_u32 s2, 256" if C("ffirst", 1) else "s_cmp_ge_u32 s2, 256"}
    s_cbranch_scc1 L_roleF""")
    if C("noa1"): k("s_endpgm")
    k(A1_TILE.format(rb="s32", cb="s33"))
    k("s_cmp_ge_u32 s33, 15\ns_cbranch_scc1 L_skipA1\ns_cmp_lt_u32 s4, 4\ns_cbranch_scc1 L_a1c")
    a1_loader(k, "L_a2")
    k.label("L_roleF")
    k(f"s_setprio {C('prio_f0', 3)}")
    phase_f0(k)
    if C("f1_burst", 0) == 0: k(f"s_setprio {C('prio_f', 0)}")
    k.stamp(1)
    if C("nof1"): k("s_branch L_end")
    phase_f1(k)
    if C("nof2"):
        k.stamp(7); k.stamp_flush(1, "s5"); k("s_branch L_end")
    phase_f2(k, "L_end")
    if STAMP[0]: k("s_waitcnt vmcnt(0)")
    k.stamp(7); k.stamp_flush(1, "s5")
    k.label("L_end"); k("s_endpgm")
    k.label("L_skipA1")
    after_kernarg(k); flags_srd(k)
    k("s_branch L_a2")
    k.label("L_a1c")
    a1_compute(k, "L_a2")
    k.label("L_a2")
    if C("noa2"): k("s_endpgm")
    k.mute = C("cyc") in (4, 5)
    phase_a2(k, C("ff"))
    k.label("L_code_end")
    t = build([k], single=True)
    return t.replace('.amdgcn_target', DOC + '.amdgcn_target', 1)

if __name__ == "__main__":
    STAMP[0] = 2 if "--dstamp" in sys.argv else ("--stamp" in sys.argv)
    HWID[0] = "--hwid" in sys.argv
    for a in sys.argv[2:]:
        if "=" in a:
            n, v = a.split("="); CFG[n] = int(v)
    open(sys.argv[1], "w").write(fused())
```

```python
import sys, math
from asmlib2 import *

SZ = 2621440
WS_XF, WS_QP, WS_KP, WS_VI, WS_OF, WS_HF = 0, SZ, 2*SZ, 3*SZ, 4*SZ, 5*SZ
HF_SZ = 2048*1536*2
WS_ST = WS_HF + HF_SZ
ST_SZ = 32768
WS_CS = WS_ST + ST_SZ
CS_SZ = 15*16*1024
WS_FL = WS_CS + 262144
WS_WP = WS_FL + 262144
WP_SZ = 8*16*20480
FL_LN, FL_QKV, FL_PK, FL_H, FL_O, FL_GO, FL_N = 0, 256, 512, 768, 1024, 1280, 1536
LOG2E = math.log2(math.e)
QSCALE = 20 ** -0.5 * LOG2E
P_X, P_WQKV, P_WO, P_W1, P_W3, P_W2, P_OUT, P_DBG, P_WS = 48, 50, 52, 56, 58, 60, 62, 64, 66
SPIN_MAX = 100000
CFG = dict(pp_hi=2, prio_f=2, prio_f2=1, prio_f1e=2, f1_sw=10, f1_early=2, f1_hold=0, go_j=99)
def C(n, d=0): return CFG.get(n, d)

def mfma16(d, a, b, c=None):
    cs = vr(d, 4) if c is None else c
    return f"v_mfma_f32_16x16x32_bf16 {vr(d,4)}, {vr(a,4)}, {vr(b,4)}, {cs}"

def mod_small(k, s, m, t, maxval):
    q = 1
    while q * m * 2 <= maxval: q *= 2
    while q >= 1:
        k(f"s_cmp_ge_u32 s{s}, {q*m}\ns_cselect_b32 s{t}, {q*m}, 0\ns_sub_u32 s{s}, s{s}, s{t}")
        q //= 2

def tag_load(vt): return f"buffer_load_dwordx2 {vr(vt,2)}, v{vt+2}, s[72:75], 0 offen sc1"
def tag_setup(k, vt):
    k.srd(72, P_DBG, 256)
    k(f"v_mov_b32 v{vt+2}, 0")
def tag_take(k, vt, loaded):
    top = k.newlabel("tg"); mid = k.newlabel("tgm"); done = k.newlabel("tgd")
    k(f"s_mov_b32 s79, {SPIN_MAX}")
    if loaded: k(f"s_branch {mid}")
    k(f"{top}:\n{tag_load(vt)}\ns_waitcnt vmcnt(0)\n{mid}:")
    k(f"""v_readfirstlane_b32 s6, v{vt}
    v_readfirstlane_b32 s7, v{vt+1}
    s_nop 1
    s_cmp_lg_u32 s6, 0
    s_cbranch_scc1 {done}
    s_sleep 2
    s_sub_u32 s79, s79, 1
    s_cmp_lg_u32 s79, 0
    s_cbranch_scc1 {top}
    {done}:""")
def get_tag(k, vt):
    lab = k.newlabel("gt")
    k(f"s_cmp_lg_u32 s6, 0\ns_cbranch_scc1 {lab}")
    tag_setup(k, vt); tag_take(k, vt, False)
    k.label(lab)
def set_flag(k, idx_expr, vt):
    k(idx_expr)
    k(f"""s_lshl_b32 s78, s78, 7
    v_mov_b32 v{vt}, s6
    v_mov_b32 v{vt+1}, s7
    v_mov_b32 v{vt+2}, 0
    s_mov_b64 exec, 1
    buffer_store_dwordx2 {vr(vt,2)}, v{vt+2}, s[28:31], s78 offen sc1
    s_mov_b64 exec, -1""")
def poll(k, voff, soff, vt, sleep=2, loaded=False):
    top = k.newlabel("poll"); done = k.newlabel("polled"); mid = k.newlabel("pmid")
    k(f"s_mov_b32 s79, {SPIN_MAX}")
    if loaded: k(f"s_branch {mid}")
    k(f"{top}:\nbuffer_load_dwordx2 {vr(vt,2)}, v{voff}, s[28:31], {soff} offen sc1\ns_waitcnt vmcnt(0)\n{mid}:")
    k(f"""v_cmp_ne_u64 vcc, s[6:7], {vr(vt,2)}
    s_nop 1
    s_and_b64 exec, exec, vcc
    s_cbranch_scc0 {done}
    s_sleep {sleep}
    s_sub_u32 s79, s79, 1
    s_cmp_lg_u32 s79, 0
    s_cbranch_scc1 {top}
    {done}:
    s_mov_b64 exec, -1""")
def polln(k, idx_expr, n, vt, sleep=2):
    k(idx_expr)
    k(f"s_lshl_b32 s78, s78, 7\nv_lshlrev_b32 v{vt+2}, 7, v1\ns_mov_b32 exec_lo, {hex((1 << n) - 1)}\ns_mov_b32 exec_hi, 0")
    poll(k, vt+2, "s78", vt, sleep)
A1_TILE = """s_and_b32 s34, s5, 7
    s_lshr_b32 s35, s5, 3
    s_and_b32 s36, s34, 1
    s_lshl_b32 s36, s36, 3
    s_and_b32 s37, s35, 7
    s_add_u32 {rb}, s36, s37
    s_lshr_b32 s36, s34, 1
    s_lshl_b32 s36, s36, 2
    s_lshr_b32 s37, s35, 3
    s_add_u32 {cb}, s36, s37"""
def after_kernarg(k):
    k("s_waitcnt lgkmcnt(0)")
def flags_srd(k): k.srd(28, P_WS, FL_N*128, WS_FL)

NAME = "parallel_sum__softmax_full_mha__glu_gated_swiglu__prompt_kernel"
WBASE = 49152; CSO = 16384; STO = 16384 + 1024

def a1_loader(k, Lj):
    k.L.append("    ; ---- A1 loader waves: LDS-DMA rings for x (3 x 16 KB) and wqkv (4 x 8 KB); fetch row stats / column sums")
    vm = VM(k)
    k("""s_and_b32 s36, s4, 3
    s_lshr_b32 s37, s36, 1
    s_lshl_b32 s37, s37, 6
    s_and_b32 s38, s36, 1
    s_add_u32 s37, s37, s38
    s_lshl_b32 s38, s36, 5
    s_cmp_lt_u32 s33, 10
    s_cselect_b32 s37, s37, s38
    s_mov_b32 s38, 1280
    s_cselect_b32 s38, 2560, s38
    s_lshl_b32 s39, s32, 7
    s_add_u32 s37, s37, s39
    s_mul_i32 s37, s37, 1280
    v_lshrrev_b32 v3, 3, v1
    v_lshrrev_b32 v10, 4, v1
    v_and_b32 v11, 7, v1
    v_mul_u32_u24 v12, s38, v3
    v_xor_b32 v13, v10, v11
    v_lshl_add_u32 v12, v13, 4, v12
    v_add_u32 v4, s37, v12
    s_lshl_b32 s39, s38, 3
    v_xor_b32 v5, 64, v4
    v_add_u32 v5, s39, v5
    s_lshl_b32 s39, s38, 4
    v_add_u32 v6, s39, v4
    v_add_u32 v7, s39, v5
    v_lshlrev_b32 v12, 2, v10
    v_and_b32 v13, 15, v1
    v_xor_b32 v13, v13, v12
    s_lshl_b32 s39, s36, 3
    v_add_u32 v12, s39, v10
    v_mul_u32_u24 v14, 3840, v12
    v_lshl_add_u32 v14, v13, 4, v14
    s_lshl_b32 s39, s33, 8
    v_add_u32 v8, s39, v14
    v_add_u32 v9, 15360, v8
    s_mul_i32 s40, s33, 3
    s_add_u32 s40, s40, s32""")
    mod_small(k, 40, 10, 43, 58)
    k(f"""s_mul_i32 s44, s40, {64*3840}
    s_lshl_b32 s45, s40, 7
    s_lshl_b32 s42, s36, 12
    s_lshl_b32 s43, s36, 11
    s_add_u32 s43, s43, {WBASE}""")
    if C("cyc") == 5: k.stamp(3, wait=False)
    after_kernarg(k)
    if C("cyc") == 5: k.stamp(4, wait=False)
    k.srd(12, P_X, SZ)
    k.srd(8, P_WQKV, 640*3840)
    def iss_a(s, half):
        for i in (2*half, 2*half+1):
            if C("diag_nodma") and s > 2: vm.tags[("A", s)] = 0; continue
            vm.op(f"s_add_u32 m0, s42, {(s % 3)*16384 + i*1024}\ns_nop 0\nbuffer_load_dwordx4 v{4+i}, s[12:15], s45 offen{[ '', ' nt', ' sc1'][C('nta')]} lds", ("A", s) if i == 3 else None)
        if half: k("s_add_u32 s45, s45, 128\ns_cmp_eq_u32 s45, 1280\ns_cselect_b32 s45, 0, s45")
    def iss_w(j):
        for i in range(2):
            if C("diag_nodma") and j > 3: vm.tags[("W", j)] = 0; continue
            vm.op(f"s_add_u32 m0, s43, {(j % 4)*8192 + i*1024}\ns_nop 0\nbuffer_load_dwordx4 v{8+i}, s[8:11], s44 offen{[ '', ' nt', ' sc1'][C('nta')]} lds", ("W", j) if i == 1 else None)
        k(f"s_add_u32 s44, s44, {32*3840}\ns_cmp_eq_u32 s44, {640*3840}\ns_cselect_b32 s44, 0, s44")
    iss_a(0, 0); iss_a(0, 1); iss_w(0)
    if C("cyc") == 5: k.stamp(5, wait=False)
    rest = [lambda: iss_w(1), lambda: iss_a(1, 0), lambda: iss_a(1, 1), lambda: iss_w(2), lambda: iss_w(3), lambda: iss_a(2, 0), lambda: iss_a(2, 1)]
    NP = C("a1_np", 1)
    for f in rest[:NP]: f()
    rest = rest[NP:]
    if C("cyc") == 5: k.stamp(6, wait=False)
    flags_srd(k)
    k.srd(16, P_WS, ST_SZ + CS_SZ, WS_ST)
    tag_setup(k, 42)
    k(f"""v_and_b32 v41, 31, v1
    v_lshlrev_b32 v40, 4, v41
    s_lshl_b32 s46, s36, 5
    v_add_lshl_u32 v41, v41, s46, 2
    s_lshl_b32 s46, s32, 2
    s_add_u32 s46, s46, s36
    s_lshl_b32 s46, s46, 9
    s_lshl_b32 s47, s33, 14
    s_lshl_b32 s68, s36, 8
    s_add_u32 s47, s47, s68
    s_add_u32 s47, s47, {ST_SZ}
    v_and_b32 v45, 15, v1
    v_lshlrev_b32 v46, 4, v45
    v_lshl_add_u32 v46, v10, 12, v46
    s_lshl_b32 s68, s36, 7
    v_lshl_add_u32 v45, v45, 3, s68""")
    gl = ["buffer_load_dwordx4 v[16:19], v40, s[16:19], s46 offen sc1"] + \
         [f"buffer_load_dwordx4 {vr(20+4*i,4)}, v46, s[16:19], s47 offen offset:{i*1024} sc1" for i in range(4)]
    JF = C("a1_jf", 10)
    for j in range(20):
        vm.wait(("A", j >> 1)); vm.wait(("W", j))
        if C("cyc") == 5 and j == 0: k.stamp(7, wait=False)
        k("s_barrier")
        if C("cyc") == 4 and j in (4, 8, 12, 16, 18): k.stamp({4: 3, 8: 4, 12: 5, 16: 6, 18: 7}[j], wait=False)
        if j == 0:
            n0 = max(0, C("a1_n0", 4) - NP)
            for f in rest[:n0]: f()
            rest = rest[n0:]
        if j == 1:
            for f in rest: f()
        if j >= 1 and j+3 < 20: iss_w(j+3)
        if j >= 2 and j//2+2 < 10: iss_a(j//2+2, j & 1)
        if j == 2: vm.op(tag_load(42), "tag")
        if j == 6:
            vm.wait("tag"); tag_take(k, 42, True)
        if j == JF:
            for g in gl: vm.op(g, "gr")
        if j == C("go_j", 14) and not C("go_a2") and not C("go_q"):
            lab = k.newlabel("a1g")
            k(f"s_cmp_lg_u32 s4, 5\ns_cbranch_scc1 {lab}")
            set_flag(k, f"s_lshl_b32 s78, s33, 4\ns_add_u32 s78, s78, s32\ns_add_u32 s78, s78, {FL_GO}", 48)
            k.label(lab)
        if j == C("a1_jc", 14):
            vm.wait("gr")
            top = k.newlabel("gr"); done = k.newlabel("grd")
            k(f"s_mov_b32 s79, {SPIN_MAX}\n{top}:")
            k("v_cmp_ne_u64 s[68:69], s[6:7], v[18:19]")
            for i in range(4):
                k(f"v_cmp_ne_u64 vcc, s[6:7], {vr(22+4*i,2)}\ns_nop 0\ns_or_b64 s[68:69], s[68:69], vcc")
            k(f"s_cbranch_scc0 {done}\ns_sleep 2")
            for g in gl: k(g)
            k(f"s_waitcnt vmcnt(0)\ns_sub_u32 s79, s79, 1\ns_cmp_lg_u32 s79, 0\ns_cbranch_scc1 {top}\n{done}:")
        if j == C("a1_jc", 14) + 1:
            k("""v_add_f32 v20, v20, v24
            v_add_f32 v21, v21, v25
            v_add_f32 v28, v28, v32
            v_add_f32 v29, v29, v33
            v_add_f32 v20, v20, v28
            v_add_f32 v21, v21, v29""")
            for sw in ("v_permlane16_swap_b32", "v_permlane32_swap_b32"):
                k(f"v_mov_b32 v22, v20\nv_mov_b32 v23, v21\ns_nop 1\n{sw} v20, v22\n{sw} v21, v23\ns_nop 1\nv_add_f32 v20, v20, v22\nv_add_f32 v21, v21, v23")
        if j == 16:
            k(f"ds_write_b32 v41, v16 offset:{STO}\nds_write_b32 v41, v17 offset:{STO+512}\nds_write_b64 v45, v[20:21] offset:{CSO}")
        if j == 17: k("s_waitcnt lgkmcnt(0)")
    k("s_barrier")
    k(f"s_cmp_lg_u32 s4, 4\ns_cbranch_scc1 {Lj}")
    set_flag(k, f"s_lshl_b32 s78, s33, 4\ns_add_u32 s78, s78, s32\ns_add_u32 s78, s78, {FL_QKV}", 40)
    k(f"s_branch {Lj}")

def a1_compute(k, Lj):
    k.L.append("    ; ---- A1 compute waves: 64x64 tile each, LN folded into the epilogue")
    Lv = k.newlabel("a1v")
    k(f"""s_and_b32 s36, s4, 1
    s_lshr_b32 s37, s4, 1
    v_and_b32 v3, 31, v1
    v_lshrrev_b32 v10, 5, v1
    s_lshl_b32 s38, s36, 6
    v_add_u32 v11, s38, v3
    v_lshlrev_b32 v11, 7, v11
    v_bfe_u32 v12, v1, 1, 3
    v_xor_b32 v12, v12, v10
    v_lshl_add_u32 v4, v12, 4, v11
    v_xor_b32 v5, 32, v4
    v_xor_b32 v6, 64, v4
    v_xor_b32 v7, 96, v4
    v_bfe_u32 v13, v1, 2, 2
    v_lshl_add_u32 v14, v10, 3, v13
    v_lshlrev_b32 v14, 8, v14
    v_bfe_u32 v15, v1, 4, 1
    v_lshl_add_u32 v14, v15, 5, v14
    v_and_b32 v15, 3, v1
    v_lshl_add_u32 v14, v15, 3, v14
    v_lshl_add_u32 v14, v13, 6, v14
    s_lshl_b32 s38, s37, 7
    v_xor_b32 v14, s38, v14
    v_add_u32 v8, {WBASE}, v14
    v_xor_b32 v9, 64, v8""")
    if C("cpf"):
        lab = k.newlabel("cpf"); here = k.newlabel("pc")
        k(f"""s_lshr_b32 s38, s5, 3
        s_and_b32 s38, s38, 15
        s_lshl_b32 s38, s38, 2
        s_add_u32 s38, s38, s4
        s_lshl_b32 s38, s38, 10
        s_cmp_ge_u32 s38, (L_code_end - {NAME}) - 1024
        s_cbranch_scc1 {lab}
        s_getpc_b64 s[40:41]
        {here}:
        s_sub_u32 s40, s40, {here} - {NAME}
        s_subb_u32 s41, s41, 0
        s_add_u32 s40, s40, s38
        s_addc_u32 s41, s41, 0
        v_mov_b32 v17, s41
        v_add_co_u32 v16, vcc, s40, v2
        s_nop 1
        v_addc_co_u32 v17, vcc, 0, v17, vcc
        global_load_dwordx4 v[116:119], v[16:17], off
        {lab}:""")
    after_kernarg(k)
    flags_srd(k)
    ACC = 16; FR = 80
    def reads(n):
        if n >= 40: return []
        s, ks, j = n >> 2, n & 3, n >> 1
        f = FR + (n % 3)*16
        ao = (s % 3)*16384; wo = (j % 4)*8192 + (n & 1)*4096
        return [f"ds_read_b64_tr_b16 {vr(f+8,2)}, v8 offset:{wo}", f"ds_read_b64_tr_b16 {vr(f+10,2)}, v8 offset:{wo+1024}",
                f"ds_read_b128 {vr(f,4)}, v{4+ks} offset:{ao}", f"ds_read_b128 {vr(f+4,4)}, v{4+ks} offset:{ao+4096}",
                f"ds_read_b64_tr_b16 {vr(f+12,2)}, v9 offset:{wo}", f"ds_read_b64_tr_b16 {vr(f+14,2)}, v9 offset:{wo+1024}"]
    def loop(swap):
        if C("cpf"): k("s_waitcnt vmcnt(0)")
        k("s_barrier")
        k.stamp(1)
        if C("cyc") == 3 and STAMP[0]: k("s_memtime s[96:97]\ns_mov_b32 s98, 0\ns_waitcnt lgkmcnt(0)")
        for i in reads(0) + reads(1): k(i)
        for n in range(40):
            f = FR + (n % 3)*16
            rd = reads(n+2)
            if n % 2 == 0: k("s_waitcnt lgkmcnt(6)")
            for m, (q, b) in enumerate(((0, 0), (0, 1), (1, 1), (1, 0))):
                a_, b_ = f+8+4*q, f+4*b
                if swap: a_, b_ = b_, a_
                if not C("diag_nomfma") or n == 0: k(mfma(ACC + (2*q+b)*16, a_, b_, "0" if n == 0 else None))
                if n % 2 == 0:
                    if m == 2:
                        k("s_waitcnt lgkmcnt(0)")
                        if n < 38: k("s_barrier")
                    if m >= 2:
                        for i in rd[3*(m-2):3*(m-2)+3]: k(i)
                elif m < 2:
                    for i in rd[3*m:3*m+3]: k(i)
        k.stamp(2)
        if C("cyc") == 3 and STAMP[0]: k("s_memtime s[72:73]\ns_waitcnt lgkmcnt(0)\ns_sub_u32 s96, s72, s96")
    k(f"s_cmp_ge_u32 s33, 10\ns_cbranch_scc1 {Lv}")
    k.srd(16, P_WS, 2*SZ, WS_QP)
    k(f"""s_cmp_lt_u32 s33, 5
    s_cselect_b32 s47, {f32(QSCALE)}, 1.0
    s_lshl_b32 s38, s36, 6
    v_lshl_add_u32 v11, v3, 1, s38
    v_lshlrev_b32 v12, 2, v11
    s_lshl_b32 s38, s37, 8
    v_lshl_add_u32 v13, v10, 4, s38
    v_lshlrev_b32 v11, 3, v11
    s_lshl_b32 s39, s32, 10
    v_add_u32 v11, s39, v11
    v_lshl_add_u32 v11, v10, 14, v11
    s_lshl_b32 s40, s33, 19
    s_lshl_b32 s41, s37, 18
    s_add_u32 s40, s40, s41""")
    loop(False)
    k(f"ds_read_b64 v[4:5], v12 offset:{STO}\nds_read_b64 v[6:7], v12 offset:{STO+512}")
    for q in range(2):
        for j in range(4):
            k(f"ds_read_b128 {vr(FR+16*q+4*j,4)}, v13 offset:{CSO + q*128 + j*32}")
    k("s_waitcnt lgkmcnt(8)\nv_mul_f32 v6, s47, v6\nv_mul_f32 v7, s47, v7")
    for q in range(2):
        for j in range(4):
            k(f"s_waitcnt lgkmcnt({7 - (4*q+j)})")
            c = FR+16*q+4*j; d = 112 + 4*((4*q+j) % 4)
            for b in range(2):
                a = ACC + (2*q+b)*16 + 4*j
                if C("pk"):
                    for e in (0, 2): k(f"v_pk_fma_f32 {vr(a+e,2)}, v[4:5], {vr(c+e,2)}, {vr(a+e,2)} op_sel:[{b},0,0] op_sel_hi:[{b},1,1] neg_lo:[1,0,0] neg_hi:[1,0,0]")
                else:
                    for e in range(4): k(f"v_fma_f32 v{a+e}, -v{4+b}, v{c+e}, v{a+e}")
            for b in range(2):
                a = ACC + (2*q+b)*16 + 4*j
                if C("pk"):
                    for e in (0, 2): k(f"v_pk_mul_f32 {vr(a+e,2)}, {vr(a+e,2)}, v[6:7] op_sel:[0,{b}] op_sel_hi:[1,{b}]")
                else:
                    for e in range(4): k(f"v_mul_f32 v{a+e}, v{a+e}, v{6+b}")
            for b in range(2):
                a = ACC + (2*q+b)*16 + 4*j
                k(f"v_cvt_pk_bf16_f32 v{d+2*b}, v{a}, v{a+1}\nv_cvt_pk_bf16_f32 v{d+2*b+1}, v{a+2}, v{a+3}")
            k(f"s_add_u32 s41, s40, {(8*q+2*j)*16384}")
            k(f"buffer_store_dwordx4 {vr(d,4)}, v11, s[16:19], s41 offen sc1")
    k(f"s_waitcnt vmcnt(0)\ns_barrier\ns_branch {Lj}")
    k.label(Lv)
    k.srd(16, P_WS, SZ, WS_VI)
    k(f"""s_lshl_b32 s39, s37, 6
    v_add_u32 v12, s39, v3
    v_lshlrev_b32 v12, 2, v12
    s_lshl_b32 s40, s36, 8
    v_lshl_add_u32 v11, v10, 4, s40
    s_sub_u32 s38, s33, 10
    s_lshl_b32 s38, s38, 7
    s_add_u32 s38, s38, s39
    s_mov_b32 s41, {81920-320}""")
    for q in range(2):
        k(f"""v_add_u32 v112, s38, v3
        v_add_u32 v112, {32*q}, v112
        v_mul_u32_u24 v15, 3277, v112
        v_lshrrev_b32 v15, 16, v15
        v_mul_lo_u32 v15, v15, s41
        v_lshl_add_u32 v15, v112, 4, v15
        v_mul_u32_u24 v112, 320, v10
        v_add_u32 v{13+q}, v15, v112""")
    k("s_lshl_b32 s40, s32, 1\ns_add_u32 s40, s40, s36\ns_mul_i32 s40, s40, 2560")
    loop(True)
    k(f"ds_read_b32 v6, v12 offset:{CSO}\nds_read_b32 v7, v12 offset:{CSO+128}")
    for b in range(2):
        for j in range(4):
            k(f"ds_read_b128 {vr(FR+4*j,4)}, v11 offset:{STO + b*128 + j*32}")
            k(f"ds_read_b128 {vr(FR+16+4*j,4)}, v11 offset:{STO + 512 + b*128 + j*32}")
        k("s_waitcnt lgkmcnt(0)")
        if b == 0: k("s_nop 1")
        for q in range(2):
            a = ACC + (2*q+b)*16
            for g in range(2):
                d = 112 + 4*(2*q+g)
                if C("pk"):
                    for r in range(8*g, 8*g+8, 2): k(f"v_pk_fma_f32 {vr(a+r,2)}, {vr(FR+r,2)}, v[6:7], {vr(a+r,2)} op_sel:[0,{q},0] op_sel_hi:[1,{q},1] neg_lo:[1,0,0] neg_hi:[1,0,0]")
                    for r in range(8*g, 8*g+8, 2): k(f"v_pk_mul_f32 {vr(a+r,2)}, {vr(a+r,2)}, {vr(FR+16+r,2)}")
                else:
                    for r in range(8*g, 8*g+8): k(f"v_fma_f32 v{a+r}, -v{FR+r}, v{6+q}, v{a+r}")
                    for r in range(8*g, 8*g+8): k(f"v_mul_f32 v{a+r}, v{a+r}, v{FR+16+r}")
                for e in range(4): k(f"v_cvt_pk_bf16_f32 v{d+e}, v{a+8*g+2*e}, v{a+8*g+2*e+1}")
                k(f"buffer_store_dwordx4 {vr(d,4)}, v{13+q}, s[16:19], s40 offen offset:{b*1280 + g*640} sc1")
    k("s_waitcnt vmcnt(0)\ns_barrier")

def f1_w_early(k):
    UOFF = 12288 + 128; SLOT = 24704
    k(f"""s_and_b32 s68, s34, 1
    s_lshl_b32 s68, s68, 2
    s_and_b32 s69, s35, 3
    s_add_u32 s68, s68, s69
    s_lshr_b32 s69, s34, 1
    s_lshl_b32 s69, s69, 3
    s_lshr_b32 s70, s35, 2
    s_add_u32 s69, s69, s70
    s_cmp_lt_u32 s4, 4
    s_cselect_b32 s24, s{P_W1}, s{P_W3}
    s_cselect_b32 s25, s{P_W1+1}, s{P_W3+1}
    s_cselect_b32 s70, 0, {UOFF}
    s_mov_b32 s26, {640*3072}
    s_mov_b32 s27, 0x00020000
    s_and_b32 s71, s4, 3
    s_mul_i32 s76, s71, 3072
    s_add_u32 s70, s70, s76
    s_lshl_b32 s71, s71, 5
    s_mul_i32 s76, s69, 96
    s_add_u32 s68, s68, s69""")
    mod_small(k, 68, 5, 69, 38)
    k(f"s_mul_i32 s68, s68, {128*3072}")
    for i in range(3):
        k(f"""v_add_u32 v103, {64*i}, v1
        v_mul_u32_u24 v104, 10923, v103
        v_lshrrev_b32 v104, 16, v104
        v_mul_u32_u24 v105, 6, v104
        v_sub_u32 v105, v103, v105
        v_add_u32 v104, s71, v104
        v_mul_u32_u24 v104, 3072, v104
        v_lshl_add_u32 v104, v105, 4, v104
        v_add_u32 v{100+i}, s76, v104""")
    for st in range(2):
        for i in range(3):
            k(f"s_add_u32 m0, s70, {st*SLOT + i*1024}\ns_nop 0\nbuffer_load_dwordx4 v{100+i}, s[24:27], s68 offen lds")
        k(f"s_add_u32 s68, s68, {128*3072}\ns_cmp_eq_u32 s68, {640*3072}\ns_cselect_b32 s68, 0, s68")

def phase_f0(k):
    k.L.append("    ; ---- F0: layernorm of 8 rows, stats granules, column-sum partials of wqkv")
    RS = 1312; LB = 2*24704; LC = LB + 8*RS
    k(A1_TILE.format(rb="s41", cb="s42"))
    k(f"""s_and_b32 s40, s34, 1
    s_lshl_b32 s40, s40, 2
    s_lshr_b32 s36, s34, 1
    s_add_u32 s40, s40, s36
    s_lshl_b32 s40, s40, 5
    s_add_u32 s40, s40, s35
    s_lshl_b32 s32, s40, 3
    s_add_u32 s32, s32, s4
    s_mul_i32 s33, s32, 1280
    v_lshlrev_b32 v3, 2, v1
    s_mul_i32 s38, s41, 40
    s_mul_i32 s39, s4, 5
    s_add_u32 s38, s38, s39
    s_mul_i32 s38, s38, 3840
    s_min_u32 s39, s42, 14
    s_lshl_b32 s39, s39, 8
    s_add_u32 s38, s38, s39""")
    after_kernarg(k)
    k.srd(8, P_X, SZ)
    for i in range(5):
        k(f"buffer_load_dword v{8+i}, v3, s[8:11], s33 offen offset:{i*256}")
    k.srd(20, P_WQKV, 640*3840)
    for i in range(5):
        k(f"buffer_load_dword v{48+i}, v3, s[20:23], s38 offen" + ("\ns_add_u32 s38, s38, 3840" if i < 4 else ""))
    def pf():
        k("s_lshl_b32 s43, s5, 3\ns_add_u32 s43, s43, s4\ns_mul_i32 s43, s43, 960")
        for j, p in enumerate((P_W1, P_W3)):
            k.srd(24, p, 640*3072)
            k(f"buffer_load_dwordx4 {vr(64+4*j,4)}, v2, s[24:27], s43 offen")
    if C("pf") == 1: pf()
    if C("f1_early") == 3: f1_w_early(k)
    tag_setup(k, 44)
    if not C('tag_early', 1):
        lab = k.newlabel("tag")
        k(f"""s_or_b32 s7, s5, s4
    s_cmp_lg_u32 s7, 0
    s_cbranch_scc1 {lab}
    s_memrealtime s[76:77]
    s_waitcnt lgkmcnt(0)
    s_or_b32 s76, s76, 1
    v_mov_b32 v18, s76
    v_mov_b32 v19, s77
    s_mov_b64 exec, 1
    buffer_store_dwordx2 v[18:19], v46, s[72:75], 0 offen sc1
    s_mov_b64 exec, -1
    {lab}:""")
    flags_srd(k)
    k.srd(12, P_WS, SZ, WS_XF)
    k.srd(16, P_WS, ST_SZ + CS_SZ, WS_ST)
    k(f"""s_mul_i32 s34, s4, {RS}
    s_add_u32 s34, s34, {LB}
    v_add_u32 v4, s34, v3
    v_and_b32 v5, 7, v0
    v_lshrrev_b32 v6, 3, v0
    v_mul_u32_u24 v7, {RS}, v5
    {"v_lshrrev_b32 v42, 1, v6" + chr(10) + "v_lshl_add_u32 v7, v42, 5, v7" + chr(10) + "v_and_b32 v42, 1, v6" + chr(10) + "v_lshl_add_u32 v7, v42, 3, v7" if C("f1k", 1) else "v_lshl_add_u32 v7, v6, 4, v7"}
    v_add_u32 v7, {LB}, v7
    v_lshlrev_b32 v6, 9, v6
    v_lshl_add_u32 v6, v5, 4, v6
    s_lshr_b32 s35, s40, 2
    s_mul_i32 s35, s35, 40960
    s_and_b32 s36, s40, 3
    s_lshl_b32 s36, s36, 7
    s_add_u32 s35, s35, s36
    s_add_u32 s36, s35, 32768
    s_lshl_b32 s37, s32, 4
    v_lshlrev_b32 v47, 3, v0
    v_lshlrev_b32 v43, 3, v1
    s_lshl_b32 s38, s42, 4
    s_add_u32 s38, s38, s41
    s_lshl_b32 s38, s38, 10
    s_add_u32 s38, s38, {ST_SZ}""")
    X = 16
    for i in range(5):
        k(f"s_waitcnt vmcnt({9-i + (2 if C('pf') == 1 else 0) + (6 if C('f1_early') == 3 else 0)})")
        if i == 4:
            k(tag_load(44))
            if C("pf") == 2: pf()
        k(f"v_lshlrev_b32 v{X+2*i}, 16, v{8+i}\nv_and_b32 v{X+2*i+1}, 0xffff0000, v{8+i}")
    def reduce(v, t):
        for r in (8, 4, 2, 1):
            k(f"s_nop 1\nv_add_f32_dpp v{v}, v{v}, v{v} row_ror:{r} row_mask:0xf bank_mask:0xf")
        k(f"v_mov_b32 v{t}, v{v}\ns_nop 1\nv_permlane16_swap_b32 v{v}, v{t}\ns_nop 1\nv_add_f32 v{v}, v{v}, v{t}")
        k(f"v_mov_b32 v{t}, v{v}\ns_nop 1\nv_permlane32_swap_b32 v{v}, v{t}\ns_nop 1\nv_add_f32 v{v}, v{v}, v{t}")
    M, V, T = 28, 29, 30
    k(f"v_add_f32 v{M}, v{X}, v{X+1}\nv_add_f32 v{T}, v{X+2}, v{X+3}")
    for i in range(4, 10, 2):
        k(f"v_add_f32 v{M}, v{M}, v{X+i}\nv_add_f32 v{T}, v{T}, v{X+i+1}")
    k(f"v_add_f32 v{M}, v{M}, v{T}")
    reduce(M, T)
    k(f"v_mul_f32 v{M}, {f32(1/640)}, v{M}")
    for i in range(10): k(f"v_sub_f32 v{32+i}, v{X+i}, v{M}")
    k(f"v_mul_f32 v{V}, v32, v32\nv_mul_f32 v{T}, v33, v33")
    for i in range(2, 10, 2):
        k(f"v_fmac_f32 v{V}, v{32+i}, v{32+i}\nv_fmac_f32 v{T}, v{33+i}, v{33+i}")
    k(f"v_add_f32 v{V}, v{V}, v{T}")
    reduce(V, T)
    k(f"v_mul_f32 v{V}, {f32(1/640)}, v{V}")
    def rb(v): k(f"v_cvt_pk_bf16_f32 v{v}, v{v}, v{v}\nv_lshlrev_b32 v{v}, 16, v{v}")
    rb(M); rb(V)
    k(f"v_add_f32 v{V}, {f32(1e-5)}, v{V}"); rb(V)
    k(f"v_sqrt_f32 v{V}, v{V}\ns_nop 0"); rb(V)
    k(f"v_rcp_f32 v{V}, v{V}\ns_waitcnt vmcnt({2 if C('pf') == 2 else 0})")
    tag_take(k, 44, True)
    k(f"v_mov_b32 v{T}, s6\nv_mov_b32 v{T+1}, s7")
    k(f"s_mov_b64 exec, 1\nbuffer_store_dwordx4 {vr(M,4)}, v46, s[16:19], s37 offen sc1\ns_mov_b64 exec, -1")
    k("v_lshlrev_b32 v32, 16, v48\nv_and_b32 v33, 0xffff0000, v48")
    for i in range(1, 5):
        k(f"v_lshlrev_b32 v34, 16, v{48+i}\nv_and_b32 v35, 0xffff0000, v{48+i}\nv_add_f32 v32, v32, v34\nv_add_f32 v33, v33, v35")
    k(f"ds_write_b64 v47, v[32:33] offset:{LC}")
    for i in range(5):
        a, b = X+2*i, X+2*i+1
        k(f"v_sub_f32 v{a}, v{a}, v{M}\nv_sub_f32 v{b}, v{b}, v{M}")
        k(f"v_cvt_pk_bf16_f32 v{b}, v{a}, v{b}")
        k(f"v_lshlrev_b32 v{a}, 16, v{b}\nv_and_b32 v{b}, 0xffff0000, v{b}")
        k(f"v_mul_f32 v{a}, v{a}, v{V}\nv_mul_f32 v{b}, v{b}, v{V}")
        k(f"v_cvt_pk_bf16_f32 v{8+i}, v{a}, v{b}")
        k(f"ds_write_b32 v4, v{8+i} offset:{i*256}")
    k("s_waitcnt lgkmcnt(0)\ns_barrier")
    l1 = k.newlabel("f0w"); l2 = k.newlabel("f0c")
    k(f"{'ds_read2_b64 v[8:11], v7 offset0:0 offset1:2' if C('f1k', 1) else 'ds_read_b128 v[8:11], v7'}\ns_cmp_lg_u32 s4, 2\ns_cbranch_scc1 {l2}")
    for i in range(8): k(f"ds_read_b64 {vr(48+2*i,2)}, v43 offset:{LC + i*512}")
    k("s_waitcnt lgkmcnt(0)")
    for st in (8, 4, 2):
        for e in range(st): k(f"v_add_f32 v{48+e}, v{48+e}, v{48+st+e}")
    k(f"v_mov_b32 v50, s6\nv_mov_b32 v51, s7\nbuffer_store_dwordx4 v[48:51], v2, s[16:19], s38 offen sc1\n{l2}:")
    k(f"""s_cmp_ge_u32 s4, 2
    s_cbranch_scc1 {l1}
    {'ds_read2_b64 v[12:15], v7 offset0:128 offset1:130' if C('f1k', 1) else 'ds_read_b128 v[12:15], v7 offset:1024'}
    s_waitcnt lgkmcnt(0)
    buffer_store_dwordx4 v[12:15], v6, s[12:15], s36 offen sc1
    {l1}:
    s_waitcnt lgkmcnt(0)
    buffer_store_dwordx4 v[8:11], v6, s[12:15], s35 offen sc1""")
    if C("tlb"):
        lab = k.newlabel("f0t")
        k(f"s_cmp_lg_u32 s4, 3\ns_cbranch_scc1 {lab}\nv_lshlrev_b32 v64, {C('tlb_sh', 19)}, v1")
        for j, (p, n) in enumerate(((P_WS, WS_FL + FL_N*128), (P_OUT, SZ), (P_W2, 1536*1280), (P_WO, 640*1280))):
            k.srd(24, p, n)
            k(f"buffer_load_dword v{65+j}, v64, s[24:27], 0 offen")
        k.label(lab)
    lab = k.newlabel("f0p")
    k(f"s_waitcnt vmcnt(0)\ns_barrier\ns_cmp_lg_u32 s4, 0\ns_cbranch_scc1 {lab}")
    set_flag(k, f"s_add_u32 s78, s40, {FL_LN}", 8)
    k.label(lab)

def gemm2(k, vm, stages, ksteps, NB, acc, wbuf, R, wgroup, wread, aload, areg, AW, nst_total, zero_first,
          hook=None, lead=None):
    steps = [(s, ks) for s in stages for ks in range(ksteps)]
    wb = lambda n, nb: wbuf + ((n & 1) * NB + nb) * 4
    vm.wait(("W", stages[0]))
    k("s_barrier")
    for nb in range(NB):
        for i in wread(stages[0], 0, nb, wb(0, nb)): k(i)
    pending = []
    for n, (s, ks) in enumerate(steps):
        last = (n == len(steps)-1)
        if hook: hook(n)
        if ks == ksteps-1 and not last:
            assert not pending
            vm.wait(("W", s+1))
            k("s_barrier")
            if s+R-1 < nst_total and ("W", s+R-1) not in vm.tags:
                pending = [(u, i) for i, u in enumerate(wgroup(s+R-1))]
                plast = len(pending)-1; ps = s+R-1
        vm.wait(("A", s, ks))
        for nb in range(NB):
            k(f"s_waitcnt lgkmcnt({2*(NB-1-nb) if last else 2*(NB-1)})")
            k(mfma(acc+16*nb, wb(n, nb), areg(n), "0" if (n == 0 and zero_first) else None))
            if not last:
                s2, ks2 = steps[n+1]
                for i in wread(s2, ks2, nb, wb(n+1, nb)): k(i)
            if pending and nb != NB-1:
                u, i = pending.pop(0)
                vm.op(u, ("W", ps) if i == plast else None)
        w = lead(n) if lead else AW
        for m in range(n+1, min(n+w+1, len(steps))):
            s2, ks2 = steps[m]
            if ("A", s2, ks2) not in vm.tags:
                vm.op(aload(s2, ks2, areg(m)), ("A", s2, ks2))
    assert not pending

def phase_f1(k):
    k.L.append("    ; ---- F1: 256 tokens x 48 gate/up columns")
    R = 3; UOFF = 12288 + 128; SLOT = 24704
    vm = VM(k)
    k("""s_and_b32 s34, s5, 7
    s_lshr_b32 s35, s5, 3
    s_and_b32 s36, s34, 1
    s_lshl_b32 s36, s36, 2
    s_and_b32 s37, s35, 3
    s_add_u32 s32, s36, s37
    s_lshr_b32 s36, s34, 1
    s_lshl_b32 s36, s36, 3
    s_lshr_b32 s37, s35, 2
    s_add_u32 s33, s36, s37""")
    k(f"""s_cmp_lt_u32 s4, 4
    s_cselect_b32 s8, s{P_W1}, s{P_W3}
    s_cselect_b32 s9, s{P_W1+1}, s{P_W3+1}
    s_cselect_b32 s42, 0, {UOFF}
    s_mov_b32 s10, {640*3072}
    s_mov_b32 s11, 0x00020000
    s_and_b32 s36, s4, 3
    s_mul_i32 s37, s36, 3072
    s_add_u32 s42, s42, s37
    s_lshl_b32 s36, s36, 5
    s_mul_i32 s37, s33, 96""")
    if C("diag_x"): k.srd(12, P_X, SZ)
    else: k.srd(12, P_WS, SZ, WS_XF)
    k.srd(16, P_WS, HF_SZ, WS_HF)
    for i in range(3):
        k(f"""v_add_u32 v3, {64*i}, v1
        v_mul_u32_u24 v8, 10923, v3
        v_lshrrev_b32 v8, 16, v8
        v_mul_u32_u24 v9, 6, v8
        v_sub_u32 v9, v3, v9
        v_add_u32 v8, s36, v8
        v_mul_u32_u24 v8, 3072, v8
        v_lshl_add_u32 v8, v9, 4, v8
        v_add_u32 v{4+i}, s37, v8""")
    k(f"""v_lshrrev_b32 v12, 5, v1
    v_bfe_u32 v13, v1, 2, 2
    v_lshl_add_u32 v14, v12, 3, v13
    v_mul_u32_u24 v14, 96, v14
    v_bfe_u32 v15, v1, 4, 1
    v_mul_u32_u24 v15, {UOFF}, v15
    v_add_u32 v14, v14, v15
    v_and_b32 v15, 3, v1
    v_lshl_add_u32 v8, v15, 3, v14
    v_add_u32 v3, 4096, v2""")
    k("s_add_u32 s40, s32, s33")
    mod_small(k, 40, 5, 43, 38)
    k(f"""s_lshl_b32 s46, s32, 3
    s_add_u32 s46, s46, s4
    s_mul_i32 s41, s46, 40960
    s_mul_i32 s44, s40, {128*3072}
    s_lshl_b32 s45, s40, 13
    s_add_u32 s45, s45, s41
    s_add_u32 s47, s41, 40960""")
    ACC, WB, AB = 16, 64, 88
    def wgroup(s):
        u = []
        for i in range(3):
            post = f"\ns_add_u32 s44, s44, {128*3072}\ns_cmp_eq_u32 s44, {640*3072}\ns_cselect_b32 s44, 0, s44" if i == 2 else ""
            u.append(f"s_add_u32 m0, s42, {(s % R)*SLOT + i*1024}\ns_nop 0\nbuffer_load_dwordx4 v{4+i}, s[8:11], s44 offen{' nt' if C('nt1') else ''} lds" + post)
        return u
    def wread(s, ks, nb, dst):
        o = (s % R)*SLOT + ks*16*96 + nb*32
        return [f"ds_read_b64_tr_b16 {vr(dst,2)}, v8 offset:{o}", f"ds_read_b64_tr_b16 {vr(dst+2,2)}, v8 offset:{o+4*96}"]
    def aload(s, ks, dst):
        post = "\ns_add_u32 s45, s45, 8192\ns_cmp_eq_u32 s45, s47\ns_cselect_b32 s45, s41, s45" if ks == 7 else ""
        return f"buffer_load_dwordx4 {vr(dst,4)}, v{3 if ks >= 4 else 2}, s[12:15], s45 offen offset:{(ks%4)*1024} sc1" + post
    AW = C("f1_aw", 8)
    areg = lambda n: AB + 4*(n % AW)
    def wpro():
        for s in range(R-1):
            g = wgroup(s)
            for i, u in enumerate(g):
                thr(); vm.op(u, ("W", s) if i == len(g)-1 else None)
    def thr():
        if C("f1_thr") and vm.n >= C("f1_thr"): k(f"s_waitcnt vmcnt({C('f1_thr')-1})")
    def apro():
        for ks in range(AW):
            thr(); vm.op(aload(0, ks, areg(ks)), ("A", 0, ks))
    def go_poll():
        polln(k, f"s_add_u32 s78, s5, {FL_GO}" if C("go_a2") else f"""s_and_b32 s68, s34, 1
        s_lshl_b32 s68, s68, 3
        s_and_b32 s69, s35, 7
        s_add_u32 s68, s68, s69
        s_lshr_b32 s69, s34, 1
        s_lshl_b32 s69, s69, 2
        s_lshr_b32 s70, s35, 3
        s_add_u32 s69, s69, s70
        s_min_u32 s69, s69, 14
        s_lshl_b32 s78, s69, 4
        s_add_u32 s78, s78, s68
        s_add_u32 s78, s78, {FL_QKV if C("go_q") else FL_GO}""", 1, 10, sleep=C("go_sleep", 4))
    early = C("f1_early", 0)
    if early == 3:
        k("s_mov_b32 s44, s68"); vm.tags[("W", 0)] = 0; vm.tags[("W", 1)] = 0
    elif early >= 1: wpro()
    if C("f1_burst", 0) == 1: k(f"s_setprio {C('prio_f', 0)}")
    lab = k.newlabel("f1p")
    k(f"s_cmp_lg_u32 s4, 0\ns_cbranch_scc1 {lab}")
    polln(k, f"s_lshl_b32 s78, s32, 5\ns_add_u32 s78, s78, {FL_LN}", 32, 10, sleep=4)
    if early < 2 and C("f1_hold", 1): go_poll()
    k(f"{lab}:\ns_barrier")
    if early < 1: wpro()
    apro()
    if C("f1_burst", 0) == 2: k(f"s_setprio {C('prio_f', 0)}")
    if early >= 2 and C("f1_hold", 1):
        lab = k.newlabel("f1g")
        k(f"s_cmp_lg_u32 s4, 0\ns_cbranch_scc1 {lab}")
        go_poll()
        k.label(lab)
    k.stamp(2)
    def hook(n):
        if n == C("f1_sw", 99): k(f"s_setprio {C('prio_f1b', 1)}")
    gemm2(k, vm, list(range(5)), 8, 3, ACC, WB, R, wgroup, wread, aload, areg, AW, 5, True, hook, lambda n: C("f1_lead", 8) if n < C("f1_leadn", 24) else AW)
    k.stamp(3)
    k(f"""s_mul_i32 s36, s46, 96
    s_mul_i32 s37, s33, 3
    s_add_u32 s36, s36, s37
    s_lshl_b32 s36, s36, 10
    s_mov_b32 s38, {f32(-LOG2E)}
    s_setprio {C('prio_f1e', 3)}
    s_nop 7""")
    for nb in range(3):
        a = ACC + 16*nb; t = WB + 8*(nb % 2); d = AB + 4*nb
        for e in range(8): k(f"v_mul_f32 v{t+e}, s38, v{a+e}")
        for e in range(8): k(f"v_exp_f32 v{t+e}, v{t+e}")
        for e in range(8): k(f"v_mul_f32 v{a+e}, v{a+e}, v{a+8+e}")
        for e in range(8): k(f"v_add_f32 v{t+e}, 1.0, v{t+e}")
        for e in range(8): k(f"v_rcp_f32 v{t+e}, v{t+e}")
        k("s_nop 0")
        for e in range(8): k(f"v_mul_f32 v{a+e}, v{a+e}, v{t+e}")
        for e in range(4): k(f"v_cvt_pk_bf16_f32 v{d+e}, v{a+2*e}, v{a+2*e+1}")
        k(f"buffer_store_dwordx4 {vr(d,4)}, v2, s[16:19], s36 offen offset:{nb*1024} sc1")
    k(f"s_setprio {C('prio_f2', 2)}")
    if True:
        lab = k.newlabel("f1f")
        k(f"s_waitcnt vmcnt(0)\ns_barrier\ns_cmp_lg_u32 s4, 0\ns_cbranch_scc1 {lab}")
        set_flag(k, f"s_lshl_b32 s78, s32, 5\ns_add_u32 s78, s78, s33\ns_add_u32 s78, s78, {FL_H}", 10)
        k.label(lab)

def phase_f1b(k):
    k.L.append("    ; ---- F1: 128 tokens x 96 gate/up columns, xn and weights through an LDS ring")
    SLOT = 20480
    ACC, FR = 16, 64
    k(A1_TILE.format(rb="s32", cb="s33"))
    k(f"""s_and_b32 s36, s4, 3
    s_lshl_b32 s37, s36, 11
    v_add_u32 v4, s37, v2
    v_lshrrev_b32 v12, 5, v1
    v_bfe_u32 v13, v1, 2, 2
    v_lshl_add_u32 v14, v12, 3, v13
    v_mul_u32_u24 v14, 192, v14
    v_and_b32 v15, 3, v1
    v_lshl_add_u32 v14, v15, 3, v14
    v_add_u32 v14, 8192, v14
    v_bfe_u32 v15, v1, 4, 1
    v_mul_u32_u24 v5, {6144+32}, v15
    v_add_u32 v5, v5, v14
    v_lshlrev_b32 v15, 6, v15
    v_sub_u32 v6, v5, v15
    s_mul_i32 s40, s32, 5
    s_lshr_b32 s40, s40, 1
    s_mul_i32 s43, s33, 5
    s_add_u32 s40, s40, s43
    s_lshl_b32 s46, s32, 2
    s_add_u32 s46, s46, s36""")
    mod_small(k, 40, 20, 43, 112)
    k.srd(16, P_WS, HF_SZ, WS_HF)
    LB = k.newlabel("f1b"); LE = k.newlabel("f1e")
    def reads(n, ch):
        if n >= 40: return []
        f = FR + (n % 3)*16; so = ((n >> 1) % 4)*SLOT; ks = n & 1
        r = [f"ds_read_b128 {vr(f,4)}, v4 offset:{so + ks*1024}"]
        for nb in range(3):
            B = 3*ch + nb; o = so + ks*3072 + B*32
            r += [f"ds_read_b64_tr_b16 {vr(f+4+4*nb,2)}, v{5 + (B & 1)} offset:{o}", f"ds_read_b64_tr_b16 {vr(f+6+4*nb,2)}, v{5 + (B & 1)} offset:{o+768}"]
        return r
    def body(ch):
        vm = VM(k)
        if ch == 0:
            k(f"""s_cmp_lt_u32 s4, 2
            s_cselect_b32 s8, s{P_W1}, s{P_W3}
            s_cselect_b32 s9, s{P_W1+1}, s{P_W3+1}
            s_cselect_b32 s38, 0, 2
            s_mov_b32 s10, {640*3072}
            s_mov_b32 s11, 0x00020000
            s_mul_i32 s42, s4, 3072
            s_add_u32 s42, s42, 8192
            s_and_b32 s36, s4, 1
            s_lshl_b32 s36, s36, 4
            s_mul_i32 s37, s33, 192
            s_mul_i32 s44, s40, {32*3072}""")
            for i in range(3):
                k(f"""v_add_u32 v3, {64*i}, v1
                v_mul_u32_u24 v10, 5462, v3
                v_lshrrev_b32 v10, 16, v10
                v_mul_u32_u24 v11, 12, v10
                v_sub_u32 v11, v3, v11
                v_xor_b32 v11, s38, v11
                v_add_u32 v10, s36, v10
                v_mul_u32_u24 v10, 3072, v10
                v_lshl_add_u32 v10, v11, 4, v10
                v_add_u32 v{7+i}, s37, v10""")
            def group(j):
                return [f"s_add_u32 m0, s42, {(j % 4)*SLOT + i*1024}\ns_nop 0\nbuffer_load_dwordx4 v{7+i}, s[8:11], s44 offen lds" +
                        (f"\ns_add_u32 s44, s44, {32*3072}\ns_cmp_eq_u32 s44, {640*3072}\ns_cselect_b32 s44, 0, s44" if i == 2 else "") for i in range(3)]
        else:
            k.srd(8, P_WS, SZ, WS_XF)
            k("""s_mul_i32 s41, s46, 40960
            s_lshl_b32 s44, s40, 11
            s_add_u32 s44, s44, s41
            s_add_u32 s47, s41, 40960""")
            polln(k, f"s_lshl_b32 s78, s46, 2\ns_add_u32 s78, s78, {FL_LN}", 4, 10, sleep=4)
            def group(j):
                return [f"s_add_u32 m0, s37, {(j % 4)*SLOT}\ns_nop 0\nbuffer_load_dwordx4 v2, s[8:11], s44 offen sc1 lds",
                        "buffer_load_dwordx4 v2, s[8:11], s44 offen offset:1024 sc1 lds\ns_add_u32 s44, s44, 2048\ns_cmp_eq_u32 s44, s47\ns_cselect_b32 s44, s41, s44"]
        for j in range(4):
            for u in group(j): vm.op(u, j)
        k.stamp(2)
        vm.wait(0); k("s_barrier")
        for i in reads(0, ch) + reads(1, ch): k(i)
        pending = []
        for n in range(40):
            if n == C("f1_sw", 99): k(f"s_setprio {C('prio_f1b', 1)}")
            f = FR + (n % 3)*16; j = n >> 1
            rd = reads(n+2, ch)
            if n % 2 == 0: k("s_waitcnt lgkmcnt(7)")
            for nb in range(3):
                k(mfma(ACC+16*nb, f+4+4*nb, f, "0" if n == 0 else None))
                if n % 2 == 0:
                    if nb == 1:
                        k("s_waitcnt lgkmcnt(0)")
                        if n < 38:
                            vm.wait(j+1); k("s_barrier")
                            assert not pending
                            if j+4 < 20: pending = [(u, j+4) for u in group(j+4)]
                    if nb >= 1:
                        for i in rd[4*(nb-1):4*(nb-1)+4]: k(i)
                else:
                    if nb < 2:
                        for i in rd[4*nb:4*nb+4]: k(i)
                    if nb == 0 and pending:
                        for u, t in pending[:2]: vm.op(u, t)
                        pending = pending[2:]
                    if nb == 2 and pending:
                        for u, t in pending: vm.op(u, t)
                        pending = []
    k(f"s_cmp_ge_u32 s4, 4\ns_cbranch_scc1 {LB}")
    body(0)
    k(f"s_mov_b32 s37, 0\ns_branch {LE}")
    k.label(LB)
    body(1)
    k("s_mov_b32 s37, 3")
    k.label(LE)
    k.stamp(3)
    k(f"""s_mul_i32 s36, s46, 96
    s_add_u32 s36, s36, s37
    s_mul_i32 s37, s33, 6
    s_add_u32 s36, s36, s37
    s_lshl_b32 s36, s36, 10
    s_mov_b32 s38, {f32(-LOG2E)}
    s_setprio {C('prio_f1e', 3)}
    s_nop 7""")
    for nb in range(3):
        a = ACC + 16*nb; t = 80 + 8*(nb % 2); d = 112 + 4*nb
        for e in range(8): k(f"v_mul_f32 v{t+e}, s38, v{a+e}")
        for e in range(8): k(f"v_exp_f32 v{t+e}, v{t+e}")
        for e in range(8): k(f"v_mul_f32 v{a+e}, v{a+e}, v{a+8+e}")
        for e in range(8): k(f"v_add_f32 v{t+e}, 1.0, v{t+e}")
        for e in range(8): k(f"v_rcp_f32 v{t+e}, v{t+e}")
        k("s_nop 0")
        for e in range(8): k(f"v_mul_f32 v{a+e}, v{a+e}, v{t+e}")
        for e in range(4): k(f"v_cvt_pk_bf16_f32 v{d+e}, v{a+2*e}, v{a+2*e+1}")
        k(f"buffer_store_dwordx4 {vr(d,4)}, v2, s[16:19], s36 offen offset:{nb*1024} sc1")
    k(f"s_setprio {C('prio_f2', 2)}")
    lab = k.newlabel("f1f")
    k(f"s_waitcnt vmcnt(0)\ns_barrier\ns_cmp_lg_u32 s4, 0\ns_cbranch_scc1 {lab}")
    set_flag(k, f"s_lshl_b32 s78, s32, 4\ns_add_u32 s78, s78, s33\ns_add_u32 s78, s78, {FL_H}", 10)
    k.label(lab)

def phase_f1c(k):
    k.L.append("    ; ---- F1: 128 tokens x 96 gate/up columns, xn and weights through an LDS ring, 16x16x32 MFMAs")
    SLOT = 20480
    ACC, FR = 16, 64
    k(A1_TILE.format(rb="s32", cb="s33"))
    k(f"""s_and_b32 s36, s4, 3
    s_lshl_b32 s37, s36, 11
    v_lshrrev_b32 v12, 4, v1
    v_lshlrev_b32 v12, 9, v12
    v_and_b32 v4, 15, v1
    v_lshl_add_u32 v4, v4, 4, v12
    v_add_u32 v4, s37, v4
    v_lshrrev_b32 v12, 5, v1
    v_bfe_u32 v13, v1, 2, 3
    v_lshl_add_u32 v14, v12, 4, v13
    v_mul_u32_u24 v14, 192, v14
    v_and_b32 v15, 1, v1
    v_lshl_add_u32 v14, v15, 4, v14
    v_bfe_u32 v15, v1, 1, 1
    v_lshl_add_u32 v14, v15, 3, v14
    v_add_u32 v14, 8192, v14
    v_bfe_u32 v15, v1, 4, 1
    v_lshl_add_u32 v5, v15, 5, v14
    v_lshlrev_b32 v15, 5, v15
    v_sub_u32 v6, v14, v15
    v_add_u32 v120, 6144, v5
    v_add_u32 v121, 6144, v6
    s_mul_i32 s40, s32, 5
    s_lshr_b32 s40, s40, 1
    s_mul_i32 s43, s33, 5
    s_add_u32 s40, s40, s43
    s_lshl_b32 s46, s32, 2
    s_add_u32 s46, s46, s36""")
    mod_small(k, 40, 20, 43, 112)
    k.srd(16, P_WS, HF_SZ, WS_HF)
    LB = k.newlabel("f1b"); LE = k.newlabel("f1e")
    AF = FR + 24
    def wread(n, ch, f):
        B = 3*ch + (f >> 1); o = (n % 4)*SLOT + B*32
        va = (120 if f & 1 else 5) + (B & 1)
        return [f"ds_read_b64_tr_b16 {vr(FR+4*f,2)}, v{va} offset:{o}", f"ds_read_b64_tr_b16 {vr(FR+4*f+2,2)}, v{va} offset:{o+1536}"]
    def aread(n):
        return [f"ds_read_b128 {vr(AF+8*(n & 1)+4*b,4)}, v4 offset:{(n % 4)*SLOT + b*256}" for b in range(2)]
    def body(ch):
        vm = VM(k)
        if ch == 0:
            k(f"""s_cmp_lt_u32 s4, 2
            s_cselect_b32 s8, s{P_W1}, s{P_W3}
            s_cselect_b32 s9, s{P_W1+1}, s{P_W3+1}
            s_mov_b32 s10, {640*3072}
            s_mov_b32 s11, 0x00020000
            s_mul_i32 s42, s4, 3072
            s_add_u32 s42, s42, 8192
            s_and_b32 s36, s4, 1
            s_lshl_b32 s36, s36, 4
            s_mul_i32 s37, s33, 192
            s_mul_i32 s44, s40, {32*3072}""")
            for i in range(3):
                k(f"""v_add_u32 v3, {64*i}, v1
                v_mul_u32_u24 v10, 5462, v3
                v_lshrrev_b32 v10, 16, v10
                v_mul_u32_u24 v11, 12, v10
                v_sub_u32 v11, v3, v11
                v_bfe_u32 v3, v10, 2, 1
                v_lshlrev_b32 v3, 1, v3
                v_xor_b32 v11, v3, v11
                v_add_u32 v10, s36, v10
                v_mul_u32_u24 v10, 3072, v10
                v_lshl_add_u32 v10, v11, 4, v10
                v_add_u32 v{7+i}, s37, v10""")
            def group(j):
                return [f"s_add_u32 m0, s42, {(j % 4)*SLOT + i*1024}\ns_nop 0\nbuffer_load_dwordx4 v{7+i}, s[8:11], s44 offen lds" +
                        (f"\ns_add_u32 s44, s44, {32*3072}\ns_cmp_eq_u32 s44, {640*3072}\ns_cselect_b32 s44, 0, s44" if i == 2 else "") for i in range(3)]
        else:
            k.srd(8, P_WS, SZ, WS_XF)
            k("""s_mul_i32 s41, s46, 40960
            s_lshl_b32 s44, s40, 11
            s_add_u32 s44, s44, s41
            s_add_u32 s47, s41, 40960""")
            polln(k, f"s_lshl_b32 s78, s46, 2\ns_add_u32 s78, s78, {FL_LN}", 4, 10, sleep=4)
            def group(j):
                return [f"s_add_u32 m0, s37, {(j % 4)*SLOT}\ns_nop 0\nbuffer_load_dwordx4 v2, s[8:11], s44 offen sc1 lds",
                        "buffer_load_dwordx4 v2, s[8:11], s44 offen offset:1024 sc1 lds\ns_add_u32 s44, s44, 2048\ns_cmp_eq_u32 s44, s47\ns_cselect_b32 s44, s41, s44"]
        for j in range(4):
            for u in group(j): vm.op(u, j)
        k.stamp(2)
        vm.wait(0); k("s_barrier")
        for i in aread(0): k(i)
        for f in range(6):
            for i in wread(0, ch, f): k(i)
        for n in range(20):
            last = n == 19
            if 2*n == C("f1_sw", 99): k(f"s_setprio {C('prio_f1b', 1)}")
            pending = []
            if C("hold") and n == C("hold_n", 0) and ch == 0:
                lab = k.newlabel("hld")
                k(f"s_cmp_lg_u32 s4, 3\ns_cbranch_scc1 {lab}")
                idx = {1: f"s_min_u32 s78, s33, 14\ns_lshl_b32 s78, s78, 4\ns_add_u32 s78, s78, s32\ns_add_u32 s78, s78, {FL_QKV}",
                       2: f"s_add_u32 s78, s5, {FL_GO}",
                       3: f"s_min_u32 s78, s33, 14\ns_lshl_b32 s78, s78, 4\ns_add_u32 s78, s78, s32\ns_add_u32 s78, s78, {FL_GO}"}[C("hold")]
                polln(k, idx, 1, 10, sleep=2)
                k.label(lab)
            k("s_waitcnt lgkmcnt(0)")
            for f in range(6):
                for b in range(2): k(mfma16(ACC + (2*f+b)*4, FR+4*f, AF+8*(n & 1)+4*b, "0" if n == 0 else None))
                if f == 0 and not last:
                    vm.wait(n+1); k("s_barrier")
                    if n+4 < 20: pending = [(u, n+4) for u in group(n+4)]
                    for i in aread(n+1): k(i)
                if not last:
                    for i in wread(n+1, ch, f): k(i)
                if f == 1 and pending:
                    for u, t in pending[:2]: vm.op(u, t)
                    pending = pending[2:]
                if f == 3 and pending:
                    for u, t in pending: vm.op(u, t)
                if f == 5:
                    PN = C("pk_n", 11)
                    if n == PN:
                        vm.op("buffer_load_dwordx4 v[104:107], v122, s[20:23], s72 offen")
                        vm.op("s_mov_b64 exec, 0xffff\nbuffer_load_dwordx4 v[116:119], v123, s[20:23], s72 offen\ns_mov_b64 exec, -1", "pk")
                    if n == PN+3:
                        vm.wait("pk")
                        vm.op("buffer_store_dwordx4 v[104:107], v2, s[24:27], s73 offen sc1")
                        vm.op("s_mov_b64 exec, 0xffff\nbuffer_store_dwordx4 v[116:119], v2, s[24:27], s73 offen offset:1024 sc1\ns_mov_b64 exec, -1", "pks")
                    if n == PN+6: vm.wait("pks")
                    if n == PN+7 and ch == 0:
                        lab = k.newlabel("pkf")
                        k(f"s_cmp_lg_u32 s4, 0\ns_cbranch_scc1 {lab}")
                        set_flag(k, f"s_add_u32 s78, s5, {FL_PK}", 104)
                        k.label(lab)
    k(f"s_cmp_ge_u32 s4, 4\ns_cbranch_scc1 {LB}")
    body(0)
    k(f"s_mov_b32 s37, 0\ns_branch {LE}")
    k.label(LB)
    body(1)
    k("s_mov_b32 s37, 3")
    k.label(LE)
    k.stamp(3)
    k(f"""s_mul_i32 s70, s46, 96
    s_add_u32 s70, s70, s37
    s_mul_i32 s37, s33, 6
    s_add_u32 s70, s70, s37
    s_lshl_b32 s70, s70, 10
    s_lshl_b32 s71, s32, 4
    s_add_u32 s71, s71, s33
    s_mov_b32 s69, {f32(-LOG2E)}
    s_setprio {C('prio_f1e', 3)}""")
    def epi():
        pkl = [f"s_mov_b32 s78, {(FL_PK + 64*i)*128}\nbuffer_load_dwordx2 {vr(96+2*i,2)}, v104, s[28:31], s78 offen sc1" for i in range(4)]
        lab = k.newlabel("pkl")
        k(f"v_lshlrev_b32 v104, 7, v1\ns_cmp_lg_u32 s4, 1\ns_cbranch_scc1 {lab}")
        for x in pkl: k(x)
        k.label(lab)
        for nb in range(3):
            a = ACC + 16*nb; t = 80 + 8*(nb % 2); d = 64 + 4*nb
            for e in range(8): k(f"v_mul_f32 v{t+e}, s69, v{a+e}")
            for e in range(8): k(f"v_exp_f32 v{t+e}, v{t+e}")
            for e in range(8): k(f"v_mul_f32 v{a+e}, v{a+e}, v{a+8+e}")
            for e in range(8): k(f"v_add_f32 v{t+e}, 1.0, v{t+e}")
            for e in range(8): k(f"v_rcp_f32 v{t+e}, v{t+e}")
            k("s_nop 0")
            for e in range(8): k(f"v_mul_f32 v{a+e}, v{a+e}, v{t+e}")
            for e in range(4): k(f"v_cvt_pk_bf16_f32 v{d+e}, v{a+2*e}, v{a+2*e+1}")
            k(f"s_nop 1\nv_permlane16_swap_b32 v{d}, v{d+2}\nv_permlane16_swap_b32 v{d+1}, v{d+3}")
            k(f"buffer_store_dwordx4 {vr(d,4)}, v2, s[16:19], s70 offen offset:{nb*1024} sc1")
        k(f"s_setprio {C('prio_f2', 2)}")
        if C("cyc") == 9: k.stamp(1)
        lab = k.newlabel("f1f")
        k("s_waitcnt vmcnt(0)\ns_barrier")
        if C("cyc") == 9: k.stamp(2)
        k(f"s_cmp_lg_u32 s4, 0\ns_cbranch_scc1 {lab}")
        set_flag(k, f"s_add_u32 s78, s71, {FL_H}", 80)
        k.label(lab)
        lab = k.newlabel("pkc"); top = k.newlabel("pkt")
        k(f"s_cmp_lg_u32 s4, 1\ns_cbranch_scc1 {lab}\ns_mov_b32 s79, {SPIN_MAX}\n{top}:")
        k("v_cmp_ne_u64 s[74:75], s[6:7], v[96:97]")
        for i in range(1, 4): k(f"v_cmp_ne_u64 vcc, s[6:7], {vr(96+2*i,2)}\ns_nop 0\ns_or_b64 s[74:75], s[74:75], vcc")
        k(f"s_cbranch_scc0 {lab}\ns_sleep 8")
        for x in pkl: k(x)
        k(f"s_waitcnt vmcnt(0)\ns_sub_u32 s79, s79, 1\ns_cmp_lg_u32 s79, 0\ns_cbranch_scc1 {top}\n{lab}:\ns_barrier")
    return epi

def f2_pre(k):
    k("""s_lshr_b32 s43, s5, 5
    s_mul_i32 s43, s43, 160
    s_mul_i32 s39, s4, 160
    s_movk_i32 s36, 1280""")
    for i in range(3):
        k(f"""v_add_u32 v3, s39, v1
        v_add_u32 v3, {64*i}, v3
        v_mul_u32_u24 v14, 6554, v3
        v_lshrrev_b32 v14, 16, v14
        v_mul_u32_u24 v13, 10, v14
        v_sub_u32 v13, v3, v13
        v_lshl_add_u32 v13, v13, 4, s43
        v_lshrrev_b32 v3, 2, v14
        v_lshl_add_u32 v3, v3, 4, v14
        v_add_u32 v3, 16, v3
        v_mad_u32_u24 v{110+i}, v3, s36, v13""")
    k(f"""v_lshrrev_b32 v3, 5, v1
    v_lshlrev_b32 v13, 4, v3
    v_bfe_u32 v14, v1, 2, 3
    v_add_u32 v13, v13, v14
    s_lshr_b32 s44, s4, 1
    s_lshl_b32 s44, s44, 5
    v_add_u32 v13, s44, v13
    v_mul_u32_u24 v13, 160, v13
    v_and_b32 v14, 3, v1
    v_lshl_add_u32 v113, v14, 3, v13
    v_xor_b32 v13, v3, v1
    s_mul_i32 s44, s4, 10240
    v_lshl_add_u32 v115, v13, 4, s44
    v_lshrrev_b32 v3, 4, v1
    v_lshlrev_b32 v3, 9, v3
    v_and_b32 v15, 15, v1
    v_lshl_add_u32 v114, v15, 4, v3
    s_and_b32 s44, s5, 7
    s_lshl_b32 s44, s44, 2
    s_bfe_u32 s45, s5, 0x20003
    s_add_u32 s44, s44, s45
    s_lshl_b32 s44, s44, 6""")
    for i in range(2):
        k(f"""v_add_u32 v3, {64*i}, v1
        v_mul_u32_u24 v14, 6554, v3
        v_lshrrev_b32 v14, 16, v14
        v_mul_u32_u24 v13, 10, v14
        v_sub_u32 v13, v3, v13
        v_lshl_add_u32 v13, v13, 4, s39
        v_mad_u32_u24 v{122+i}, v14, s36, v13""")
    k(f"""s_sub_u32 s45, s5, 192
    s_lshr_b32 s72, s45, 1
    s_mul_i32 s72, s72, 20
    s_and_b32 s45, s45, 1
    s_lshl_b32 s45, s45, 3
    s_add_u32 s72, s72, s45
    s_lshl_b32 s45, s5, 3
    s_cmp_lt_u32 s5, 192
    s_cselect_b32 s72, s45, s72
    s_cselect_b32 s20, s{P_W2}, s{P_WO}
    s_cselect_b32 s21, s{P_W2+1}, s{P_WO+1}
    s_mov_b32 s22, {640*1280}
    s_cselect_b32 s22, {1536*1280}, s22
    s_mov_b32 s23, 0x00020000
    s_mul_i32 s72, s72, 1280
    s_mul_i32 s73, s4, {16*20480}
    s_mul_i32 s45, s5, 1280
    s_add_u32 s73, s73, s45""")
    k.srd(24, P_WS, WP_SZ, WS_WP)
    for i in range(2):
        k(f"""v_add_u32 v3, {512*i}, v0
        v_mul_u32_u24 v13, 6554, v3
        v_lshrrev_b32 v13, 16, v13
        v_mul_u32_u24 v14, 10, v13
        v_sub_u32 v14, v3, v14
        v_lshrrev_b32 v3, 4, v13
        v_mul_u32_u24 v3, 5120, v3
        v_lshl_add_u32 v3, v14, 9, v3
        v_xor_b32 v15, v13, v14
        v_and_b32 v15, 15, v15
        v_lshl_add_u32 v{124+i}, v15, 4, v3
        v_add_u32 v3, s44, v13
        v_mul_u32_u24 v3, 1280, v3
        v_lshl_add_u32 v{126+i}, v14, 4, v3""")

def mfma16(d, a, b, c=None):
    cs = vr(d, 4) if c is None else c
    return f"v_mfma_f32_16x16x32_bf16 {vr(d,4)}, {vr(a,4)}, {vr(b,4)}, {cs}"

def phase_f2(k, endlab, epi):
    k.L.append("    ; ---- F2: 64 tokens x 80 output columns, K split over 4 wave pairs")
    R = 4; SLOT = 20480; NST = 17
    vm = VM(k)
    k("""s_and_b32 s34, s5, 7
    s_lshr_b32 s35, s5, 3
    s_lshl_b32 s36, s34, 2
    s_and_b32 s37, s35, 3
    s_add_u32 s32, s36, s37
    s_lshr_b32 s33, s35, 2
    s_and_b32 s37, s4, 1
    s_lshr_b32 s38, s4, 1
    s_mul_i32 s39, s4, 160
    s_mul_i32 s43, s33, 160""")
    k.srd(8, P_WS, WP_SZ, WS_WP)
    ACC, WB, AB, XR = 16, 56, 76, 116
    for i in range(3): k(f"v_mov_b32 v{10+i}, v{110+i}")
    k("v_mov_b32 v3, v115")
    k(f"v_mov_b32 v13, v113\nv_add_u32 v14, {3*SLOT}, v113\nv_mov_b32 v15, v114")
    k("s_and_b32 s40, s32, 3\ns_mul_i32 s40, s40, 3\ns_mul_i32 s44, s33, 5\ns_add_u32 s40, s40, s44")
    mod_small(k, 40, 12, 44, 44)
    k(f"""s_lshl_b32 s46, s32, 1
    s_add_u32 s46, s46, s37
    s_mul_i32 s41, s46, 98304
    s_lshl_b32 s44, s38, 11
    s_add_u32 s41, s41, s44
    s_mul_i32 s47, s46, 40960
    s_add_u32 s47, s47, s44
    s_mul_i32 s42, s4, 2560
    s_mul_i32 s36, s33, {16*20480}
    s_add_u32 s36, s36, s42
    s_add_u32 s39, s36, {12*20480}
    s_mul_i32 s44, s40, 20480
    s_add_u32 s44, s44, s36
    s_lshl_b32 s45, s40, 13
    s_add_u32 s45, s45, s41
    s_add_u32 s68, s41, 98304""")
    def wgroup(s):
        if s == 16:
            return [f"s_add_u32 m0, s42, {(s % R)*SLOT + i*1024}\n" + ("s_mov_b32 exec_hi, 0\n" if i == 2 else "s_nop 0\n") +
                    f"buffer_load_dwordx4 v{10+i}, s[16:19], 0 offen lds" + ("\ns_mov_b32 exec_hi, -1" if i == 2 else "") for i in range(3)]
        pre = f"s_add_u32 s44, s39, {(s-12)*20480}\n" if s >= 12 else ""
        post = "\ns_add_u32 s44, s44, 20480\ns_cmp_eq_u32 s44, s39\ns_cselect_b32 s44, s36, s44" if s < 11 else ""
        return [pre + f"s_add_u32 m0, s42, {(s % R)*SLOT}\ns_nop 0\nbuffer_load_dwordx4 v2, s[8:11], s44 offen sc1 lds",
                "buffer_load_dwordx4 v2, s[8:11], s44 offen offset:1024 sc1 lds",
                "s_mov_b32 exec_hi, 0\nbuffer_load_dwordx4 v2, s[8:11], s44 offen offset:2048 sc1 lds\ns_mov_b32 exec_hi, -1" + post]
    def wread(s, j):
        slot = s % R
        va = 14 if slot == 3 else 13
        o = (slot % 3)*SLOT*(slot != 3) + j*32
        return [f"ds_read_b64_tr_b16 {vr(WB+4*j,2)}, v{va} offset:{o}", f"ds_read_b64_tr_b16 {vr(WB+4*j+2,2)}, v{va} offset:{o+1280}"]
    AW = 5
    areg = lambda s, b: AB + 8*(s % AW) + 4*b
    def issue_a(s):
        for b in range(2):
            if s < 12:
                post = "\ns_add_u32 s45, s45, 8192\ns_cmp_eq_u32 s45, s68\ns_cselect_b32 s45, s41, s45" if b else ""
                vm.op(f"buffer_load_dwordx4 {vr(areg(s,b),4)}, v15, s[12:15], s45 offen offset:{b*256} sc1" + post, ("A", s))
            else:
                post = "\ns_add_u32 s47, s47, 8192" if b else ""
                vm.op(f"buffer_load_dwordx4 {vr(areg(s,b),4)}, v15, s[24:27], s47 offen offset:{b*256} sc1" + post, ("A", s))
    def issue_w(s):
        for u in wgroup(s): vm.op(u, ("W", s))
    def run(stages, zero_first):
        vm.wait(("W", 0 if C("f2_deep", 1) else 1)); k("s_barrier")
        for j in range(5):
            for i in wread(stages[0], j): k(i)
        pending = []
        for n, s in enumerate(stages):
            if s == C("f2_sw", 99): k("s_setprio 0")
            if C("cyc") == 8 and s in (1, 5, 9): k.stamp({1: 1, 5: 2, 9: 3}[s])
            if C("f2_deep", 1):
                vm.wait(("W", s+1)); k("s_waitcnt lgkmcnt(0)\ns_barrier")
                pending = [(u, s+4) for u in wgroup(s+4)]
            elif s % 2 == 1:
                assert not pending
                vm.wait(("W", s+2)); k("s_waitcnt lgkmcnt(0)\ns_barrier")
                pending = [(u, s+3) for u in wgroup(s+3)] + [(u, s+4) for u in wgroup(s+4)]
            vm.wait(("A", s))
            for j in range(5):
                if s % 2 == 0 and not C("f2_deep", 1): k("s_waitcnt lgkmcnt(8)")
                for b in range(2):
                    k(mfma16(ACC + (5*b+j)*4, WB+4*j, areg(s, b), "0" if (zero_first and n == 0) else None))
                for i in wread(s+1, j): k(i)
                if pending:
                    u, t = pending.pop(0); vm.op(u, ("W", t))
            if s+AW <= stages[-1]: issue_a(s+AW)
        for u, t in pending: vm.op(u, ("W", t))
    NW = C("f2_nw", 0)
    if NW: k("s_barrier")
    for s in range(NW): issue_w(s)
    epi(); vm.drained()
    if C("cyc") == 9: k.stamp(5)
    lab = k.newlabel("f2o")
    k(f"""s_lshr_b32 s77, s32, 1
    s_lshl_b32 s77, s77, 4
    s_add_u32 s77, s77, {FL_H}
    s_lshl_b32 s77, s77, 7
    s_cmp_lg_u32 s4, 2
    s_cbranch_scc1 {lab}
    s_mov_b64 exec, 0xffff
    buffer_load_dwordx2 {vr(AB,2)}, v104, s[28:31], s77 offen sc1
    s_mov_b64 exec, -1
    {lab}:""")
    n0 = vm.n
    W0 = C("f2_w0", 2)
    for s in range(NW, W0): issue_w(s)
    k.srd(16, P_WO, 640*1280)
    k.srd(12, P_WS, HF_SZ, WS_HF)
    k.srd(24, P_WS, SZ, WS_OF)
    k.srd(20, P_X, SZ)
    lab = k.newlabel("f2p")
    k(f"s_cmp_lg_u32 s4, 2\ns_cbranch_scc1 {lab}\ns_waitcnt vmcnt({vm.n - n0})\ns_mov_b64 exec, 0xffff")
    poll(k, 104, "s77", AB, sleep=4, loaded=True)
    k(f"{lab}:\ns_barrier")
    k.stamp(4)
    for s in range(AW):
        issue_a(s)
        if W0 <= s+1 < R: issue_w(s+1)
    for i in range(2): vm.op(f"buffer_load_dwordx4 {vr(XR+4*i,4)}, v{126+i}, s[20:23], s43 offen", "x")
    run(list(range(12)), True)
    k("s_waitcnt lgkmcnt(0)\ns_barrier")
    issue_w(16)
    for j in range(5): k(f"v_xor_b32 v{4+j}, {32*j}, v3")
    k.srd(8, P_OUT, SZ)
    if C("cyc") != 9: k.stamp(5)
    lab = k.newlabel("f2q")
    k(f"s_cmp_lg_u32 s4, 0\ns_cbranch_scc1 {lab}")
    polln(k, f"s_lshr_b32 s78, s32, 2\ns_lshl_b32 s78, s78, 5\ns_add_u32 s78, s78, {FL_O}", 32, AB, sleep=2)
    k(f"{lab}:\ns_waitcnt vmcnt(0)\ns_barrier\ns_setprio {C('prio_tail', 3)}")
    vm.drained()
    k.stamp(6)
    for s in range(12, 17): issue_a(s)
    for s in range(12, 17):
        more = s < 16
        vm.wait(("A", s))
        for j in range(5):
            k(f"s_waitcnt lgkmcnt({8 if more else 8-2*j})")
            for b in range(2): k(mfma16(ACC + (5*b+j)*4, WB+4*j, areg(s, b)))
            if more:
                for i in wread(s+1, j): k(i)
    k("s_barrier\ns_nop 4")
    for j in range(5):
        for b in range(2):
            k(f"ds_write_b128 v{4+j}, {vr(ACC+(5*b+j)*4,4)} offset:{(5*b+j)*1024}")
    k("s_waitcnt lgkmcnt(0)\ns_barrier")
    lab = k.newlabel("f2e"); lab2 = k.newlabel("f2f")
    RB = 16
    def rd(i):
        for q in range(4):
            for h in range(2):
                if i == 1 and q == 3: k("s_waitcnt lgkmcnt(13)")
                k(f"ds_read_b128 {vr(RB + 32*i + 8*q + 4*h, 4)}, v{124+i} offset:{q*20480 + h*256}")
    def fin(i):
        b = RB + 32*i; x = XR + 4*i; t = 80 + 8*i
        for e in range(4): k(f"v_lshlrev_b32 v{t+2*e}, 16, v{x+e}\nv_and_b32 v{t+2*e+1}, 0xffff0000, v{x+e}")
        k("s_waitcnt lgkmcnt(0)")
        for e in range(0, 8, 2): k(f"v_pk_add_f32 {vr(b+e,2)}, {vr(b+e,2)}, {vr(b+8+e,2)}\nv_pk_add_f32 {vr(b+16+e,2)}, {vr(b+16+e,2)}, {vr(b+24+e,2)}")
        for e in range(0, 8, 2): k(f"v_pk_add_f32 {vr(b+e,2)}, {vr(b+e,2)}, {vr(t+e,2)}")
        for e in range(0, 8, 2): k(f"v_pk_add_f32 {vr(b+e,2)}, {vr(b+e,2)}, {vr(b+16+e,2)}")
        for e in range(4): k(f"v_cvt_pk_bf16_f32 v{b+8+e}, v{b+2*e}, v{b+2*e+1}")
        k(f"buffer_store_dwordx4 {vr(b+8,4)}, v{126+i}, s[8:11], s43 offen{' sc1' if C('out_sc1') else ''}")
    rd(0)
    k(f"s_cmp_ge_u32 s4, 2\ns_cbranch_scc1 {lab}")
    rd(1); fin(1)
    k.label(lab)
    fin(0)

def phase_a2(k, force_fallback=False):
    k.L.append("    ; ---- A2: attention, two waves per SIMD alternate softmax and MFMA phases")
    SLOT = 26624; VOFF = 10240
    Lchk, Lchkr, Lloop, Lfin, Lslow, Lsl, Lend = [k.newlabel(x) for x in ("atc", "atcr", "atl", "atf", "ats", "atsl", "ate")]
    k("""s_and_b32 s34, s5, 7
    s_lshr_b32 s35, s5, 3
    s_lshl_b32 s32, s34, 2
    s_lshr_b32 s34, s35, 3
    s_add_u32 s32, s32, s34
    s_and_b32 s33, s35, 7""")
    Q1, Q2 = 16, 20
    K1, K2 = 24, 22
    V0, V1 = 28, 32
    P = 36; T = 44
    CC, O = 48, 64
    S = 80; U = 96
    k("v_and_b32 v3, 31, v1\nv_lshrrev_b32 v4, 5, v1\nv_mov_b32 v15, 0\nv_mov_b32 v100, 0\ns_mov_b32 s3, 0")
    lab = k.newlabel("a2p"); lab2 = k.newlabel("a2q")
    k(f"s_cmp_lg_u32 s4, 4\ns_cbranch_scc1 {lab}")
    get_tag(k, U)
    k(f"""s_mov_b32 s3, 1
    s_mul_i32 s76, s32, 20
    s_add_u32 s77, s76, 19
    s_lshr_b32 s76, s76, 7
    s_lshr_b32 s77, s77, 7
    s_sub_u32 s77, s77, s76
    s_lshl_b32 s78, s33, 1
    v_bfe_u32 v{U+4}, v1, 4, 1
    v_mul_u32_u24 v{U+4}, s77, v{U+4}
    v_add_u32 v{U+4}, s76, v{U+4}
    v_lshlrev_b32 v{U+4}, 4, v{U+4}
    v_add_u32 v{U}, s78, v1
    v_and_b32 v{U+1}, 15, v{U}
    v_mul_u32_u24 v15, 80, v4
    v_add3_u32 v15, v15, v{U+4}, v{U+1}
    v_add_u32 v15, {FL_QKV + 80}, v15
    v_lshlrev_b32 v15, 7, v15
    v_add_u32 v{U}, 12, v{U}
    v_and_b32 v{U}, 15, v{U}
    v_add_u32 v{U}, v{U}, v{U+4}
    v_add_u32 v{U}, {FL_QKV}, v{U}
    v_mov_b32 v{U+4}, v15
    s_mov_b64 exec, 0x00300030
    v_lshlrev_b32 v{U+4}, 7, v{U}
    s_mov_b64 exec, -1
    {lab}:""")
    k("v_mul_u32_u24 v5, 320, v4\nv_lshl_add_u32 v5, v3, 4, v5")
    k(f"""v_lshlrev_b32 v6, 12, v4
    v_lshl_add_u32 v6, v3, 3, v6
    v_add_u32 v7, 256, v6
    v_add_u32 v10, {VOFF}, v2
    s_lshl_b32 s37, s33, 3
    s_add_u32 s37, s37, s4
    s_lshl_b32 s38, s37, 5
    v_add_u32 v11, s38, v3
    v_lshlrev_b32 v11, 3, v11
    v_mov_b32 v12, v11
    v_lshl_add_u32 v11, v4, 15, v11
    s_mul_i32 s39, s32, 81920
    s_mov_b32 s68, 0x000fffff
    s_mov_b32 s69, 0x000fffff
    s_mov_b32 s70, -1
    s_mov_b32 s71, 0""")
    k.srd(8, P_WS, SZ, WS_QP)
    k.srd(12, P_WS, SZ, WS_KP)
    k.srd(16, P_WS, SZ, WS_VI)
    k.srd(20, P_WS, SZ, WS_OF)
    k(f"""s_lshr_b32 s40, s4, 1
    s_lshl_b32 s40, s40, 14
    s_and_b32 s44, s4, 1
    s_lshl_b32 s44, s44, 10
    s_add_u32 s40, s40, s44
    s_add_u32 s40, s40, s39
    s_lshl_b32 s45, s4, 8
    s_add_u32 s41, s45, s39
    s_add_u32 s41, s41, 65536
    s_add_u32 s45, s45, 8192
    s_mul_i32 s42, s4, 1280
    s_add_u32 s42, s42, s39
    s_lshl_b32 s44, s4, 10
    s_lshl_b32 s46, s4, 11
    s_add_u32 s46, s46, {VOFF}
    s_mov_b32 s24, s33
    s_mov_b32 s43, 0""")
    NEXT = "s_lshl_b32 s26, s24, 11\ns_add_u32 s25, s26, s40\ns_add_u32 s26, s26, s41\ns_mul_i32 s27, s24, 10240\ns_add_u32 s27, s27, s42\ns_add_u32 s24, s24, 1\ns_and_b32 s24, s24, 7"
    ADV = f"s_add_u32 s43, s43, {SLOT}\ns_cmp_eq_u32 s43, {3*SLOT}\ns_cselect_b32 s43, 0, s43"
    du = ["s_add_u32 m0, s43, s44\ns_nop 0\nbuffer_load_dwordx4 v2, s[12:15], s25 offen sc1 lds",
          "s_add_u32 m0, s43, s45\ns_mov_b64 exec, 0xffff\nbuffer_load_dwordx4 v2, s[12:15], s26 offen sc1 lds\ns_mov_b64 exec, -1",
          "s_add_u32 m0, s43, s46\ns_mov_b64 exec, s[68:69]\nbuffer_load_dwordx4 v5, s[16:19], s27 offen sc1 lds\ns_mov_b64 exec, -1",
          "s_add_u32 m0, m0, 384\ns_mov_b64 exec, s[68:69]\nbuffer_load_dwordx4 v5, s[16:19], s27 offen offset:640 sc1 lds\ns_mov_b64 exec, -1"]
    k(NEXT)
    k(f"""v_cmp_eq_u32 vcc, 20, v3
    v_cmp_eq_u32 s[34:35], 24, v3
    v_mov_b32 v13, 0x3f803f80
    s_or_b64 vcc, vcc, s[34:35]
    s_nop 1
    v_cndmask_b32 v{T}, 0, v13, vcc""")
    for e in range(1, 4): k(f"v_mov_b32 v{T+e}, v{T}")
    k("v_add_u32 v13, s46, v2\ns_not_b64 exec, s[68:69]")
    for slot in range(3):
        for i in range(2):
            k(f"ds_write_b128 v13, {vr(T,4)} offset:{slot*SLOT + i*1024}")
    k("s_mov_b64 exec, -1")
    for r in list(range(O, O+16)) + [Q2, Q2+1]: k(f"v_mov_b32 v{r}, 0")
    k("s_add_u32 s34, s39, 16384\ns_add_u32 s35, s39, 65536")
    k.stamp(3)
    k(f"s_cmp_lg_u32 s4, 4\ns_cbranch_scc1 {lab2}\ns_mov_b32 exec_lo, 0x003f003f\ns_mov_b32 exec_hi, 0x000f000f")
    poll(k, U+4, "0", U, sleep=1)
    k(f"{lab2}:\ns_barrier")
    k.stamp(4)
    k(f"buffer_load_dwordx2 {vr(Q1,2)}, v11, s[8:11], s39 offen sc1")
    k(f"buffer_load_dwordx2 {vr(Q1+2,2)}, v11, s[8:11], s34 offen sc1")
    k(f"s_mov_b64 exec, s[70:71]\nbuffer_load_dwordx2 {vr(Q2,2)}, v12, s[8:11], s35 offen sc1\ns_mov_b64 exec, -1")
    for u in du: k(u)
    k(NEXT); k(ADV)
    for u in du: k(u)
    if C("go_a2"):
        lab = k.newlabel("a2g")
        k(f"s_cmp_lg_u32 s4, 4\ns_cbranch_scc1 {lab}")
        set_flag(k, f"s_add_u32 s78, s5, {FL_GO}", U+6)
        k.label(lab)
    k("s_waitcnt vmcnt(4) lgkmcnt(0)\ns_barrier")
    def k1read(t):
        tt = t % 8; va = 6 + (tt & 1); a = tt >> 1
        return f"ds_read2st64_b64 {vr(K1,4)}, v{va} offset0:{a} offset1:{a+4}"
    def k2read(t):
        tt = t % 8; va = 6 + (tt & 1); a = tt >> 1
        return f"ds_read_b64 {vr(K2,2)}, v{va} offset:{8192 + a*512}"
    def vread(t, g):
        va = 10
        return f"ds_read_b128 {vr(V1 if g else V0,4)}, v{va} offset:{(t%8)*2048 + g*1024}"
    k(k1read(0)); k(k2read(0))
    k("s_waitcnt lgkmcnt(0)")
    k(mfma(S, K1, Q1, "0")); k(mfma8(S, K2, Q2))
    k(k1read(1)); k(k2read(1)); k(vread(0, 0)); k(vread(0, 1))
    k(f"s_mov_b32 s47, 0\ns_mov_b32 s76, {SLOT}\ns_mov_b32 s77, {(-2*SLOT) & 0xffffffff}\ns_nop 7")
    k(f"v_max3_f32 v{T}, v{S}, v{S+1}, v{S+2}\nv_max3_f32 v{T+1}, v{S+3}, v{S+4}, v{S+5}")
    k(f"v_max3_f32 v{T}, v{T}, v{S+6}, v{S+7}\nv_max3_f32 v{T+1}, v{T+1}, v{S+8}, v{S+9}")
    k(f"v_max3_f32 v{T}, v{T}, v{S+10}, v{S+11}\nv_max3_f32 v{T+1}, v{T+1}, v{S+12}, v{S+13}")
    k(f"v_max3_f32 v{T}, v{T}, v{S+14}, v{S+15}\nv_max_f32 v{T}, v{T}, v{T+1}")
    k(f"v_mov_b32 v{T+1}, v{T}\ns_nop 1\nv_permlane32_swap_b32 v{T}, v{T+1}\ns_nop 1\nv_max_f32 v{T}, v{T}, v{T+1}")
    for e in range(16): k(f"v_sub_f32 v{CC+e}, 0, v{T}")
    for e in range(16): k(f"v_sub_f32 v{S+e}, v{S+e}, v{T}")
    lab = k.newlabel("a2r")
    k(f"s_cmp_lg_u32 s4, 4\ns_cbranch_scc1 {lab}\nbuffer_load_dwordx2 {vr(U,2)}, v15, s[28:31], 0 offen sc1\n{lab}:")
    plo, pmid, phi = C("pp_lo", 0), C("pp_mid", 1), C("pp_hi", 3)
    k(f"s_setprio {plo}")
    k.stamp(5)
    if C("cyc") in (1, 2) and STAMP[0]: k("s_memtime s[82:83]\ns_waitcnt lgkmcnt(0)\ns_mov_b32 s98, 0\ns_mov_b32 s99, 0")
    TB = C("a2_tb", 4)
    LY = k.newlabel("atY"); Lout = k.newlabel("ato")
    nx = NEXT.split("\n"); adv = ADV.split("\n")
    def body(Y, top):
        k(".p2align 6")
        k.label(top)
        for t in range(8):
            for i in range(4):
                for e in range(4):
                    k(f"v_exp_f32 v{S+4*i+e}, v{S+4*i+e}")
                    if i == 0 and e == 0: k(f"s_setprio {pmid}")
                k(f"v_cvt_pk_bf16_f32 v{P+2*i}, v{S+4*i}, v{S+4*i+1}")
                k(f"v_cvt_pk_bf16_f32 v{P+2*i+1}, v{S+4*i+2}, v{S+4*i+3}")
            k(f"s_setprio {phi}")
            if t == TB and Y:
                k(f"s_waitcnt vmcnt(0)\ns_cmp_lg_u32 s3, 0\ns_cbranch_scc1 {Lchk}\n{Lchkr}:\ns_barrier")
            gaps = [[], [], [], []]
            if t == 0: gaps[0] = nx[:4]; gaps[2] = nx[4:]
            if t == 1:
                gaps[0] = adv
                gaps[2] = ["s_cmp_eq_u32 s47, 2", "s_cselect_b32 s36, s77, s76", "s_cmp_eq_u32 s47, 5", "s_cselect_b32 s36, s77, s36"]
            if t == 2 and C("a2_nod", 1):
                gaps[2] = ["s_cmp_ge_u32 s47, 6", f"s_cselect_b32 s25, {SZ}, s25", f"s_cselect_b32 s26, {SZ}, s26", f"s_cselect_b32 s27, {SZ}, s27"]
            if t == TB+1: gaps[0] = [du[0]]; gaps[2] = [du[1]]
            if t == TB+2: gaps[0] = [du[2]]; gaps[2] = [du[3]]
            if t == 5: gaps[3] = ["v_add_u32 v6, s36, v6", "v_add_u32 v7, s36, v7"]
            if t == 6: gaps[3] = ["v_add_u32 v10, s36, v10"]
            if t == 7: gaps[3 if TB == 5 else 2] = ["s_add_u32 s47, s47, 1", "s_cmp_lt_u32 s47, 8"]
            k("s_waitcnt lgkmcnt(0)")
            k(mfma(S, K1, Q1, vr(CC, 16))); k(k1read(t+2))
            for x in gaps[0]: k(x)
            k(mfma8(S, K2, Q2))
            mark = len(k.L)
            k(k2read(t+2))
            for x in gaps[1]: k(x)
            k(mfma(O, V0, P)); k(vread(t+1, 0))
            for x in gaps[2]: k(x)
            k(mfma(O, V1, P+4)); k(vread(t+1, 1))
            for x in gaps[3]: k(x)
            if t == TB and not Y: k("s_waitcnt vmcnt(0)\ns_barrier")
            pad = 12 - (sum(1 for x in k.L[mark:] if not x.endswith(":")) + 1)
            if pad > 0 and C("a2_pad", 1): k(f"s_nop {pad-1}")
            k(f"s_setprio {plo}")
        k(f"s_cbranch_scc1 {top}")
    k(f"s_cmp_ge_u32 s4, 4\ns_cbranch_scc1 {LY}")
    body(False, Lloop)
    k(f"s_branch {Lout}")
    body(True, LY)
    k.label(Lout)
    k.stamp(6)
    if C("cyc") in (1, 2) and STAMP[0]: k("s_memtime s[84:85]\ns_waitcnt lgkmcnt(0)\ns_sub_u32 s84, s84, s82\ns_mul_i32 s84, s84, 100\ns_lshr_b32 s84, s84, 10\ns_add_u32 s84, s84, s80\ns_mov_b32 s82, s80")
    if C("cyc") == 2 and STAMP[0]: k("s_mul_i32 s98, s98, 100\ns_lshr_b32 s98, s98, 10\ns_add_u32 s86, s98, s80\ns_mul_i32 s99, s99, 100\ns_lshr_b32 s99, s99, 10\ns_add_u32 s88, s99, s80")
    k(f"""s_setprio 3
    s_mul_i32 s72, s37, 40960
    s_lshl_b32 s73, s32, 10
    s_add_u32 s73, s73, s72
    s_lshr_b32 s74, s32, 2
    s_add_u32 s74, s74, 32
    s_lshl_b32 s74, s74, 10
    s_add_u32 s74, s74, s72
    s_and_b32 s75, s32, 1
    s_lshl_b32 s75, s75, 9
    s_add_u32 s74, s74, s75
    s_and_b32 s75, s32, 2
    s_lshl_b32 s75, s75, 2
    s_add_u32 s74, s74, s75
    s_waitcnt lgkmcnt(0)
    s_mov_b64 exec, s[70:71]
    v_mov_b32 v{T+2}, v{O+12}
    s_not_b64 exec, s[70:71]
    v_mov_b32 v{T+2}, v{O+8}
    s_mov_b64 exec, -1
    s_mov_b32 s72, {f32(2.0**60) if not force_fallback else f32(0.0)}
    v_cmp_ngt_f32 vcc, s72, v{T+2}
    s_nop 1
    s_cbranch_vccnz {Lslow}""")
    k.label(Lfin)
    k(f"v_rcp_f32 v{T}, v{T+2}\ns_nop 0")
    for e in range(12): k(f"v_mul_f32 v{O+e}, v{O+e}, v{T}")
    for e in range(6): k(f"v_cvt_pk_bf16_f32 v{P+e}, v{O+2*e}, v{O+2*e+1}")
    k(f"buffer_store_dwordx4 {vr(P,4)}, v2, s[20:23], s73 offen sc1")
    k(f"s_mov_b64 exec, s[70:71]\nbuffer_store_dwordx2 {vr(P+4,2)}, v2, s[20:23], s74 offen sc1\ns_mov_b64 exec, -1")
    k(f"s_waitcnt vmcnt(0)\ns_barrier\ns_cmp_lg_u32 s4, 4\ns_cbranch_scc1 {Lend}")
    set_flag(k, f"s_lshl_b32 s78, s33, 5\ns_add_u32 s78, s78, s32\ns_add_u32 s78, s78, {FL_O}", T)
    k.label(Lend)
    if C("cyc") == 3 and STAMP[0]: k("s_mul_i32 s96, s96, 100\ns_lshr_b32 s96, s96, 10\ns_add_u32 s86, s96, s80\ns_mul_i32 s98, s98, 100\ns_lshr_b32 s98, s98, 10\ns_add_u32 s88, s98, s80\ns_cmp_eq_u32 s82, 0\ns_cselect_b32 s86, 0, s86\ns_cselect_b32 s88, 0, s88")
    k.stamp(7); k.stamp_flush(0, "s5")
    k("s_endpgm")
    k.label(Lchk)
    k("s_mov_b32 s3, 0")
    poll(k, 15, "0", U, sleep=1, loaded=True)
    k(f"s_branch {Lchkr}")
    k.label(Lslow)
    M = CC
    k(f"""v_lshlrev_b32 v7, 3, v3
    v_lshl_add_u32 v6, v4, 15, v7
    v_mov_b32 v{M}, {f32(-3.0e38)}
    s_mov_b32 s40, s39
    s_mov_b32 s42, s39
    s_mov_b32 s47, 0""")
    for r in range(O, O+16): k(f"v_mov_b32 v{r}, 0")
    for r in range(V0, V0+8): k(f"v_mov_b32 v{r}, 0x3f803f80")
    k.label(Lsl)
    k(f"""s_add_u32 s41, s40, 16384
    s_add_u32 s43, s40, 65536
    buffer_load_dwordx2 {vr(K1,2)}, v6, s[12:15], s40 offen sc1
    buffer_load_dwordx2 {vr(K1+2,2)}, v6, s[12:15], s41 offen sc1
    buffer_load_dwordx2 {vr(K2,2)}, v7, s[12:15], s43 offen sc1
    s_mov_b64 exec, s[68:69]
    buffer_load_dwordx4 {vr(V0,4)}, v5, s[16:19], s42 offen sc1
    buffer_load_dwordx4 {vr(V1,4)}, v5, s[16:19], s42 offen offset:640 sc1
    s_mov_b64 exec, -1
    s_waitcnt vmcnt(0)""")
    k(mfma(S, K1, Q1, "0")); k(mfma8(S, K2, Q2))
    k("s_nop 15\ns_nop 3")
    k(f"v_max3_f32 v{T}, v{S}, v{S+1}, v{M}")
    for e in range(2, 16, 2): k(f"v_max3_f32 v{T}, v{T}, v{S+e}, v{S+e+1}")
    k(f"v_mov_b32 v{T+1}, v{T}\ns_nop 1\nv_permlane32_swap_b32 v{T}, v{T+1}\ns_nop 1\nv_max_f32 v{T}, v{T}, v{T+1}")
    k(f"v_sub_f32 v{T+1}, v{M}, v{T}\nv_exp_f32 v{T+1}, v{T+1}\nv_mov_b32 v{M}, v{T}")
    for e in range(16): k(f"v_mul_f32 v{O+e}, v{O+e}, v{T+1}")
    for e in range(16): k(f"v_sub_f32 v{S+e}, v{S+e}, v{T}")
    for e in range(16): k(f"v_exp_f32 v{S+e}, v{S+e}")
    k("s_nop 0")
    for e in range(8): k(f"v_cvt_pk_bf16_f32 v{P+e}, v{S+2*e}, v{S+2*e+1}")
    k("s_nop 1")
    k(mfma(O, V0, P)); k(mfma(O, V1, P+4))
    k(f"""s_nop 15
    s_nop 3
    s_add_u32 s40, s40, 256
    s_add_u32 s42, s42, 1280
    s_add_u32 s47, s47, 1
    s_cmp_lt_u32 s47, 64
    s_cbranch_scc1 {Lsl}
    v_mov_b32 v{T+2}, v{O+12}
    s_branch {Lfin}""")


DOC = """;
"""
def fused():
    k = Kern(NAME, 512, 512, 81920, sgpr=100 if STAMP[0] else 80)
    k("s_load_dwordx16 s[48:63], s[0:1], 0\ns_load_dwordx4 s[64:67], s[0:1], 64")
    k.stamp_init(); k.stamp(0, wait=False)
    k(f"""v_lshrrev_b32 v1, 6, v0
    s_and_b32 s5, s2, 255
    v_readfirstlane_b32 s4, v1
    v_and_b32 v1, 63, v0
    v_lshlrev_b32 v2, 4, v1
    s_mov_b32 s6, 0
    s_setprio 3""")
    if C("tag_early", 1):
        k.L.append("    ; workgroup 0 publishes this launch's hand-off tag through d_debug (zero at entry)")
        k(f"""s_or_b32 s7, s2, s4
        s_cmp_lg_u32 s7, 0
        s_cbranch_scc1 L_notag
        s_memrealtime s[76:77]
        v_mov_b32 v3, 0
        s_mov_b32 s74, 256
        s_mov_b32 s75, 0x00020000
        s_waitcnt lgkmcnt(0)
        s_mov_b32 s72, s{P_DBG}
        s_mov_b32 s73, s{P_DBG+1}
        s_or_b32 s76, s76, 1
        v_mov_b32 v4, s76
        v_mov_b32 v5, s77
        s_mov_b64 exec, 1
        buffer_store_dwordx2 v[4:5], v3, s[72:75], 0 offen sc1
        s_mov_b64 exec, -1
        L_notag:""")
    k(f"""
    s_cmp_ge_u32 s2, 512
    s_cbranch_scc1 L_end
    {"s_cmp_lt_u32 s2, 256" if C("ffirst", 1) else "s_cmp_ge_u32 s2, 256"}
    s_cbranch_scc1 L_roleF""")
    if C("noa1"): k("s_endpgm")
    k(A1_TILE.format(rb="s32", cb="s33"))
    k("s_cmp_ge_u32 s33, 15\ns_cbranch_scc1 L_skipA1\ns_cmp_lt_u32 s4, 4\ns_cbranch_scc1 L_a1c")
    a1_loader(k, "L_a2")
    k.label("L_roleF")
    k(f"s_setprio {C('prio_f0', 3)}")
    phase_f0(k)
    if C("f1_burst", 0) == 0: k(f"s_setprio {C('prio_f', 0)}")
    k.stamp(1)
    if C("nof1"): k("s_branch L_end")
    f2_pre(k)
    epi = phase_f1c(k)
    if C("nof2"):
        k.stamp(7); k.stamp_flush(1, "s5"); k("s_branch L_end")
    phase_f2(k, "L_end", epi)
    if STAMP[0]: k("s_waitcnt vmcnt(0)")
    k.stamp(7); k.stamp_flush(1, "s5")
    k.label("L_end"); k("s_endpgm")
    k.label("L_skipA1")
    after_kernarg(k); flags_srd(k)
    k("s_branch L_a2")
    k.label("L_a1c")
    a1_compute(k, "L_a2")
    k.label("L_a2")
    if C("noa2"): k("s_endpgm")
    k.mute = C("cyc") in (4, 5)
    phase_a2(k, C("ff"))
    k.label("L_code_end")
    t = build([k], single=True)
    return t.replace('.amdgcn_target', DOC + '.amdgcn_target', 1)

if __name__ == "__main__":
    STAMP[0] = 2 if "--dstamp" in sys.argv else ("--stamp" in sys.argv)
    HWID[0] = "--hwid" in sys.argv
    for a in sys.argv[2:]:
        if "=" in a:
            n, v = a.split("="); CFG[n] = int(v)
    open(sys.argv[1], "w").write(fused())
```

```python
import sys, math
from asmlib2 import *

SZ = 2621440
WS_XF, WS_QP, WS_KP, WS_VI, WS_OF, WS_HF = 0, SZ, 2*SZ, 3*SZ, 4*SZ, 5*SZ
HF_SZ = 2048*1536*2
WS_ST = WS_HF + HF_SZ
ST_SZ = 32768
WS_CS = WS_ST + ST_SZ
CS_SZ = 15*16*1024
WS_FL = WS_CS + 262144
WS_WP = WS_FL + 262144
WP_SZ = 8*16*20480
FL_LN, FL_QKV, FL_PK, FL_H, FL_O, FL_GO, FL_N = 0, 256, 512, 768, 1024, 1280, 1536
LOG2E = math.log2(math.e)
QSCALE = 20 ** -0.5 * LOG2E
P_X, P_WQKV, P_WO, P_W1, P_W3, P_W2, P_OUT, P_DBG, P_WS = 48, 50, 52, 56, 58, 60, 62, 64, 66
SPIN_MAX = 100000
CFG = dict(pp_hi=2, prio_f=2, prio_f2=1, prio_f1e=2, f1_sw=10, f1_early=2, f1_hold=0, go_j=99)
def C(n, d=0): return CFG.get(n, d)

def mfma16(d, a, b, c=None):
    cs = vr(d, 4) if c is None else c
    return f"v_mfma_f32_16x16x32_bf16 {vr(d,4)}, {vr(a,4)}, {vr(b,4)}, {cs}"

def mod_small(k, s, m, t, maxval):
    q = 1
    while q * m * 2 <= maxval: q *= 2
    while q >= 1:
        k(f"s_cmp_ge_u32 s{s}, {q*m}\ns_cselect_b32 s{t}, {q*m}, 0\ns_sub_u32 s{s}, s{s}, s{t}")
        q //= 2

def tag_load(vt): return f"buffer_load_dwordx2 {vr(vt,2)}, v{vt+2}, s[72:75], 0 offen sc1"
def tag_setup(k, vt):
    k.srd(72, P_DBG, 256)
    k(f"v_mov_b32 v{vt+2}, 0")
def tag_take(k, vt, loaded):
    top = k.newlabel("tg"); mid = k.newlabel("tgm"); done = k.newlabel("tgd")
    k(f"s_mov_b32 s79, {SPIN_MAX}")
    if loaded: k(f"s_branch {mid}")
    k(f"{top}:\n{tag_load(vt)}\ns_waitcnt vmcnt(0)\n{mid}:")
    k(f"""v_readfirstlane_b32 s6, v{vt}
    v_readfirstlane_b32 s7, v{vt+1}
    s_nop 1
    s_cmp_lg_u32 s6, 0
    s_cbranch_scc1 {done}
    s_sleep 2
    s_sub_u32 s79, s79, 1
    s_cmp_lg_u32 s79, 0
    s_cbranch_scc1 {top}
    {done}:""")
def get_tag(k, vt):
    lab = k.newlabel("gt")
    k(f"s_cmp_lg_u32 s6, 0\ns_cbranch_scc1 {lab}")
    tag_setup(k, vt); tag_take(k, vt, False)
    k.label(lab)
def set_flag(k, idx_expr, vt):
    k(idx_expr)
    k(f"""s_lshl_b32 s78, s78, 7
    v_mov_b32 v{vt}, s6
    v_mov_b32 v{vt+1}, s7
    v_mov_b32 v{vt+2}, 0
    s_mov_b64 exec, 1
    buffer_store_dwordx2 {vr(vt,2)}, v{vt+2}, s[28:31], s78 offen sc1
    s_mov_b64 exec, -1""")
def poll(k, voff, soff, vt, sleep=2, loaded=False):
    top = k.newlabel("poll"); done = k.newlabel("polled"); mid = k.newlabel("pmid")
    k(f"s_mov_b32 s79, {SPIN_MAX}")
    if loaded: k(f"s_branch {mid}")
    k(f"{top}:\nbuffer_load_dwordx2 {vr(vt,2)}, v{voff}, s[28:31], {soff} offen sc1\ns_waitcnt vmcnt(0)\n{mid}:")
    k(f"""v_cmp_ne_u64 vcc, s[6:7], {vr(vt,2)}
    s_nop 1
    s_and_b64 exec, exec, vcc
    s_cbranch_scc0 {done}
    s_sleep {sleep}
    s_sub_u32 s79, s79, 1
    s_cmp_lg_u32 s79, 0
    s_cbranch_scc1 {top}
    {done}:
    s_mov_b64 exec, -1""")
def polln(k, idx_expr, n, vt, sleep=2):
    k(idx_expr)
    k(f"s_lshl_b32 s78, s78, 7\nv_lshlrev_b32 v{vt+2}, 7, v1\ns_mov_b32 exec_lo, {hex((1 << n) - 1)}\ns_mov_b32 exec_hi, 0")
    poll(k, vt+2, "s78", vt, sleep)
A1_TILE = """s_and_b32 s34, s5, 7
    s_lshr_b32 s35, s5, 3
    s_and_b32 s36, s34, 1
    s_lshl_b32 s36, s36, 3
    s_and_b32 s37, s35, 7
    s_add_u32 {rb}, s36, s37
    s_lshr_b32 s36, s34, 1
    s_lshl_b32 s36, s36, 2
    s_lshr_b32 s37, s35, 3
    s_add_u32 {cb}, s36, s37"""
def after_kernarg(k):
    k("s_waitcnt lgkmcnt(0)")
def flags_srd(k): k.srd(28, P_WS, FL_N*128, WS_FL)

NAME = "parallel_sum__softmax_full_mha__glu_gated_swiglu__prompt_kernel"
WBASE = 49152; CSO = 16384; STO = 16384 + 1024

def a1_loader(k, Lj):
    k.L.append("    ; ---- A1 loader waves: LDS-DMA rings for x (3 x 16 KB) and wqkv (4 x 8 KB); fetch row stats / column sums")
    vm = VM(k)
    k("""s_and_b32 s36, s4, 3
    s_lshr_b32 s37, s36, 1
    s_lshl_b32 s37, s37, 6
    s_and_b32 s38, s36, 1
    s_add_u32 s37, s37, s38
    s_lshl_b32 s38, s36, 5
    s_cmp_lt_u32 s33, 10
    s_cselect_b32 s37, s37, s38
    s_mov_b32 s38, 1280
    s_cselect_b32 s38, 2560, s38
    s_lshl_b32 s39, s32, 7
    s_add_u32 s37, s37, s39
    s_mul_i32 s37, s37, 1280
    v_lshrrev_b32 v3, 3, v1
    v_lshrrev_b32 v10, 4, v1
    v_and_b32 v11, 7, v1
    v_mul_u32_u24 v12, s38, v3
    v_xor_b32 v13, v10, v11
    v_lshl_add_u32 v12, v13, 4, v12
    v_add_u32 v4, s37, v12
    s_lshl_b32 s39, s38, 3
    v_xor_b32 v5, 64, v4
    v_add_u32 v5, s39, v5
    s_lshl_b32 s39, s38, 4
    v_add_u32 v6, s39, v4
    v_add_u32 v7, s39, v5
    v_lshlrev_b32 v12, 2, v10
    v_and_b32 v13, 15, v1
    v_xor_b32 v13, v13, v12
    s_lshl_b32 s39, s36, 3
    v_add_u32 v12, s39, v10
    v_mul_u32_u24 v14, 3840, v12
    v_lshl_add_u32 v14, v13, 4, v14
    s_lshl_b32 s39, s33, 8
    v_add_u32 v8, s39, v14
    v_add_u32 v9, 15360, v8
    s_mul_i32 s40, s33, 3
    s_add_u32 s40, s40, s32""")
    mod_small(k, 40, 10, 43, 58)
    k(f"""s_mul_i32 s44, s40, {64*3840}
    s_lshl_b32 s45, s40, 7
    s_lshl_b32 s42, s36, 12
    s_lshl_b32 s43, s36, 11
    s_add_u32 s43, s43, {WBASE}""")
    if C("cyc") == 5: k.stamp(3, wait=False)
    after_kernarg(k)
    if C("cyc") == 5: k.stamp(4, wait=False)
    k.srd(12, P_X, SZ)
    k.srd(8, P_WQKV, 640*3840)
    def iss_a(s, half):
        for i in (2*half, 2*half+1):
            if C("diag_nodma") and s > 2: vm.tags[("A", s)] = 0; continue
            vm.op(f"s_add_u32 m0, s42, {(s % 3)*16384 + i*1024}\ns_nop 0\nbuffer_load_dwordx4 v{4+i}, s[12:15], s45 offen{[ '', ' nt', ' sc1'][C('nta')]} lds", ("A", s) if i == 3 else None)
        if half: k("s_add_u32 s45, s45, 128\ns_cmp_eq_u32 s45, 1280\ns_cselect_b32 s45, 0, s45")
    def iss_w(j):
        for i in range(2):
            if C("diag_nodma") and j > 3: vm.tags[("W", j)] = 0; continue
            vm.op(f"s_add_u32 m0, s43, {(j % 4)*8192 + i*1024}\ns_nop 0\nbuffer_load_dwordx4 v{8+i}, s[8:11], s44 offen{[ '', ' nt', ' sc1'][C('nta')]} lds", ("W", j) if i == 1 else None)
        k(f"s_add_u32 s44, s44, {32*3840}\ns_cmp_eq_u32 s44, {640*3840}\ns_cselect_b32 s44, 0, s44")
    iss_a(0, 0); iss_a(0, 1); iss_w(0)
    if C("cyc") == 5: k.stamp(5, wait=False)
    rest = [lambda: iss_w(1), lambda: iss_a(1, 0), lambda: iss_a(1, 1), lambda: iss_w(2), lambda: iss_w(3), lambda: iss_a(2, 0), lambda: iss_a(2, 1)]
    NP = C("a1_np", 1)
    for f in rest[:NP]: f()
    rest = rest[NP:]
    if C("cyc") == 5: k.stamp(6, wait=False)
    flags_srd(k)
    k.srd(16, P_WS, ST_SZ + CS_SZ, WS_ST)
    tag_setup(k, 42)
    k(f"""v_and_b32 v41, 31, v1
    v_lshlrev_b32 v40, 4, v41
    s_lshl_b32 s46, s36, 5
    v_add_lshl_u32 v41, v41, s46, 2
    s_lshl_b32 s46, s32, 2
    s_add_u32 s46, s46, s36
    s_lshl_b32 s46, s46, 9
    s_lshl_b32 s47, s33, 14
    s_lshl_b32 s68, s36, 8
    s_add_u32 s47, s47, s68
    s_add_u32 s47, s47, {ST_SZ}
    v_and_b32 v45, 15, v1
    v_lshlrev_b32 v46, 4, v45
    v_lshl_add_u32 v46, v10, 12, v46
    s_lshl_b32 s68, s36, 7
    v_lshl_add_u32 v45, v45, 3, s68""")
    gl = ["buffer_load_dwordx4 v[16:19], v40, s[16:19], s46 offen sc1"] + \
         [f"buffer_load_dwordx4 {vr(20+4*i,4)}, v46, s[16:19], s47 offen offset:{i*1024} sc1" for i in range(4)]
    JF = C("a1_jf", 10)
    for j in range(20):
        vm.wait(("A", j >> 1)); vm.wait(("W", j))
        if C("cyc") == 5 and j == 0: k.stamp(7, wait=False)
        k("s_barrier")
        if C("cyc") == 4 and j in (4, 8, 12, 16, 18): k.stamp({4: 3, 8: 4, 12: 5, 16: 6, 18: 7}[j], wait=False)
        if j == 0:
            n0 = max(0, C("a1_n0", 4) - NP)
            for f in rest[:n0]: f()
            rest = rest[n0:]
        if j == 1:
            for f in rest: f()
        if j >= 1 and j+3 < 20: iss_w(j+3)
        if j >= 2 and j//2+2 < 10: iss_a(j//2+2, j & 1)
        if j == 2: vm.op(tag_load(42), "tag")
        if j == 6:
            vm.wait("tag"); tag_take(k, 42, True)
        if j == JF:
            for g in gl: vm.op(g, "gr")
        if j == C("go_j", 14) and not C("go_a2") and not C("go_q"):
            lab = k.newlabel("a1g")
            k(f"s_cmp_lg_u32 s4, 5\ns_cbranch_scc1 {lab}")
            set_flag(k, f"s_lshl_b32 s78, s33, 4\ns_add_u32 s78, s78, s32\ns_add_u32 s78, s78, {FL_GO}", 48)
            k.label(lab)
        if j == C("a1_jc", 14):
            vm.wait("gr")
            top = k.newlabel("gr"); done = k.newlabel("grd")
            k(f"s_mov_b32 s79, {SPIN_MAX}\n{top}:")
            k("v_cmp_ne_u64 s[68:69], s[6:7], v[18:19]")
            for i in range(4):
                k(f"v_cmp_ne_u64 vcc, s[6:7], {vr(22+4*i,2)}\ns_nop 0\ns_or_b64 s[68:69], s[68:69], vcc")
            k(f"s_cbranch_scc0 {done}\ns_sleep 2")
            for g in gl: k(g)
            k(f"s_waitcnt vmcnt(0)\ns_sub_u32 s79, s79, 1\ns_cmp_lg_u32 s79, 0\ns_cbranch_scc1 {top}\n{done}:")
        if j == C("a1_jc", 14) + 1:
            k("""v_add_f32 v20, v20, v24
            v_add_f32 v21, v21, v25
            v_add_f32 v28, v28, v32
            v_add_f32 v29, v29, v33
            v_add_f32 v20, v20, v28
            v_add_f32 v21, v21, v29""")
            for sw in ("v_permlane16_swap_b32", "v_permlane32_swap_b32"):
                k(f"v_mov_b32 v22, v20\nv_mov_b32 v23, v21\ns_nop 1\n{sw} v20, v22\n{sw} v21, v23\ns_nop 1\nv_add_f32 v20, v20, v22\nv_add_f32 v21, v21, v23")
        if j == 16:
            k(f"ds_write_b32 v41, v16 offset:{STO}\nds_write_b32 v41, v17 offset:{STO+512}\nds_write_b64 v45, v[20:21] offset:{CSO}")
        if j == 17: k("s_waitcnt lgkmcnt(0)")
    k("s_barrier")
    k(f"s_cmp_lg_u32 s4, 4\ns_cbranch_scc1 {Lj}")
    set_flag(k, f"s_lshl_b32 s78, s33, 4\ns_add_u32 s78, s78, s32\ns_add_u32 s78, s78, {FL_QKV}", 40)
    k(f"s_branch {Lj}")

def a1_compute(k, Lj):
    k.L.append("    ; ---- A1 compute waves: 64x64 tile each, LN folded into the epilogue")
    Lv = k.newlabel("a1v")
    k(f"""s_and_b32 s36, s4, 1
    s_lshr_b32 s37, s4, 1
    v_and_b32 v3, 31, v1
    v_lshrrev_b32 v10, 5, v1
    s_lshl_b32 s38, s36, 6
    v_add_u32 v11, s38, v3
    v_lshlrev_b32 v11, 7, v11
    v_bfe_u32 v12, v1, 1, 3
    v_xor_b32 v12, v12, v10
    v_lshl_add_u32 v4, v12, 4, v11
    v_xor_b32 v5, 32, v4
    v_xor_b32 v6, 64, v4
    v_xor_b32 v7, 96, v4
    v_bfe_u32 v13, v1, 2, 2
    v_lshl_add_u32 v14, v10, 3, v13
    v_lshlrev_b32 v14, 8, v14
    v_bfe_u32 v15, v1, 4, 1
    v_lshl_add_u32 v14, v15, 5, v14
    v_and_b32 v15, 3, v1
    v_lshl_add_u32 v14, v15, 3, v14
    v_lshl_add_u32 v14, v13, 6, v14
    s_lshl_b32 s38, s37, 7
    v_xor_b32 v14, s38, v14
    v_add_u32 v8, {WBASE}, v14
    v_xor_b32 v9, 64, v8""")
    if C("cpf"):
        lab = k.newlabel("cpf"); here = k.newlabel("pc")
        k(f"""s_lshr_b32 s38, s5, 3
        s_and_b32 s38, s38, 15
        s_lshl_b32 s38, s38, 2
        s_add_u32 s38, s38, s4
        s_lshl_b32 s38, s38, 10
        s_cmp_ge_u32 s38, (L_code_end - {NAME}) - 1024
        s_cbranch_scc1 {lab}
        s_getpc_b64 s[40:41]
        {here}:
        s_sub_u32 s40, s40, {here} - {NAME}
        s_subb_u32 s41, s41, 0
        s_add_u32 s40, s40, s38
        s_addc_u32 s41, s41, 0
        v_mov_b32 v17, s41
        v_add_co_u32 v16, vcc, s40, v2
        s_nop 1
        v_addc_co_u32 v17, vcc, 0, v17, vcc
        global_load_dwordx4 v[116:119], v[16:17], off
        {lab}:""")
    after_kernarg(k)
    flags_srd(k)
    ACC = 16; FR = 80
    def reads(n):
        if n >= 40: return []
        s, ks, j = n >> 2, n & 3, n >> 1
        f = FR + (n % 3)*16
        ao = (s % 3)*16384; wo = (j % 4)*8192 + (n & 1)*4096
        return [f"ds_read_b64_tr_b16 {vr(f+8,2)}, v8 offset:{wo}", f"ds_read_b64_tr_b16 {vr(f+10,2)}, v8 offset:{wo+1024}",
                f"ds_read_b128 {vr(f,4)}, v{4+ks} offset:{ao}", f"ds_read_b128 {vr(f+4,4)}, v{4+ks} offset:{ao+4096}",
                f"ds_read_b64_tr_b16 {vr(f+12,2)}, v9 offset:{wo}", f"ds_read_b64_tr_b16 {vr(f+14,2)}, v9 offset:{wo+1024}"]
    def loop(swap):
        if C("cpf"): k("s_waitcnt vmcnt(0)")
        k("s_barrier")
        k.stamp(1)
        if C("cyc") == 3 and STAMP[0]: k("s_memtime s[96:97]\ns_mov_b32 s98, 0\ns_waitcnt lgkmcnt(0)")
        for i in reads(0) + reads(1): k(i)
        for n in range(40):
            f = FR + (n % 3)*16
            rd = reads(n+2)
            if n % 2 == 0: k("s_waitcnt lgkmcnt(6)")
            for m, (q, b) in enumerate(((0, 0), (0, 1), (1, 1), (1, 0))):
                a_, b_ = f+8+4*q, f+4*b
                if swap: a_, b_ = b_, a_
                if not C("diag_nomfma") or n == 0: k(mfma(ACC + (2*q+b)*16, a_, b_, "0" if n == 0 else None))
                if n % 2 == 0:
                    if m == 2:
                        k("s_waitcnt lgkmcnt(0)")
                        if n < 38: k("s_barrier")
                    if m >= 2:
                        for i in rd[3*(m-2):3*(m-2)+3]: k(i)
                elif m < 2:
                    for i in rd[3*m:3*m+3]: k(i)
        k.stamp(2)
        if C("cyc") == 3 and STAMP[0]: k("s_memtime s[72:73]\ns_waitcnt lgkmcnt(0)\ns_sub_u32 s96, s72, s96")
    k(f"s_cmp_ge_u32 s33, 10\ns_cbranch_scc1 {Lv}")
    k.srd(16, P_WS, 2*SZ, WS_QP)
    k(f"""s_cmp_lt_u32 s33, 5
    s_cselect_b32 s47, {f32(QSCALE)}, 1.0
    s_lshl_b32 s38, s36, 6
    v_lshl_add_u32 v11, v3, 1, s38
    v_lshlrev_b32 v12, 2, v11
    s_lshl_b32 s38, s37, 8
    v_lshl_add_u32 v13, v10, 4, s38
    v_lshlrev_b32 v11, 3, v11
    s_lshl_b32 s39, s32, 10
    v_add_u32 v11, s39, v11
    v_lshl_add_u32 v11, v10, 14, v11
    s_lshl_b32 s40, s33, 19
    s_lshl_b32 s41, s37, 18
    s_add_u32 s40, s40, s41""")
    loop(False)
    k(f"ds_read_b64 v[4:5], v12 offset:{STO}\nds_read_b64 v[6:7], v12 offset:{STO+512}")
    for q in range(2):
        for j in range(4):
            k(f"ds_read_b128 {vr(FR+16*q+4*j,4)}, v13 offset:{CSO + q*128 + j*32}")
    k("s_waitcnt lgkmcnt(8)\nv_mul_f32 v6, s47, v6\nv_mul_f32 v7, s47, v7")
    for q in range(2):
        for j in range(4):
            k(f"s_waitcnt lgkmcnt({7 - (4*q+j)})")
            c = FR+16*q+4*j; d = 112 + 4*((4*q+j) % 4)
            for b in range(2):
                a = ACC + (2*q+b)*16 + 4*j
                if C("pk"):
                    for e in (0, 2): k(f"v_pk_fma_f32 {vr(a+e,2)}, v[4:5], {vr(c+e,2)}, {vr(a+e,2)} op_sel:[{b},0,0] op_sel_hi:[{b},1,1] neg_lo:[1,0,0] neg_hi:[1,0,0]")
                else:
                    for e in range(4): k(f"v_fma_f32 v{a+e}, -v{4+b}, v{c+e}, v{a+e}")
            for b in range(2):
                a = ACC + (2*q+b)*16 + 4*j
                if C("pk"):
                    for e in (0, 2): k(f"v_pk_mul_f32 {vr(a+e,2)}, {vr(a+e,2)}, v[6:7] op_sel:[0,{b}] op_sel_hi:[1,{b}]")
                else:
                    for e in range(4): k(f"v_mul_f32 v{a+e}, v{a+e}, v{6+b}")
            for b in range(2):
                a = ACC + (2*q+b)*16 + 4*j
                k(f"v_cvt_pk_bf16_f32 v{d+2*b}, v{a}, v{a+1}\nv_cvt_pk_bf16_f32 v{d+2*b+1}, v{a+2}, v{a+3}")
            k(f"s_add_u32 s41, s40, {(8*q+2*j)*16384}")
            k(f"buffer_store_dwordx4 {vr(d,4)}, v11, s[16:19], s41 offen sc1")
    k(f"s_waitcnt vmcnt(0)\ns_barrier\ns_branch {Lj}")
    k.label(Lv)
    k.srd(16, P_WS, SZ, WS_VI)
    k(f"""s_lshl_b32 s39, s37, 6
    v_add_u32 v12, s39, v3
    v_lshlrev_b32 v12, 2, v12
    s_lshl_b32 s40, s36, 8
    v_lshl_add_u32 v11, v10, 4, s40
    s_sub_u32 s38, s33, 10
    s_lshl_b32 s38, s38, 7
    s_add_u32 s38, s38, s39
    s_mov_b32 s41, {81920-320}""")
    for q in range(2):
        k(f"""v_add_u32 v112, s38, v3
        v_add_u32 v112, {32*q}, v112
        v_mul_u32_u24 v15, 3277, v112
        v_lshrrev_b32 v15, 16, v15
        v_mul_lo_u32 v15, v15, s41
        v_lshl_add_u32 v15, v112, 4, v15
        v_mul_u32_u24 v112, 320, v10
        v_add_u32 v{13+q}, v15, v112""")
    k("s_lshl_b32 s40, s32, 1\ns_add_u32 s40, s40, s36\ns_mul_i32 s40, s40, 2560")
    loop(True)
    k(f"ds_read_b32 v6, v12 offset:{CSO}\nds_read_b32 v7, v12 offset:{CSO+128}")
    for b in range(2):
        for j in range(4):
            k(f"ds_read_b128 {vr(FR+4*j,4)}, v11 offset:{STO + b*128 + j*32}")
            k(f"ds_read_b128 {vr(FR+16+4*j,4)}, v11 offset:{STO + 512 + b*128 + j*32}")
        k("s_waitcnt lgkmcnt(0)")
        if b == 0: k("s_nop 1")
        for q in range(2):
            a = ACC + (2*q+b)*16
            for g in range(2):
                d = 112 + 4*(2*q+g)
                if C("pk"):
                    for r in range(8*g, 8*g+8, 2): k(f"v_pk_fma_f32 {vr(a+r,2)}, {vr(FR+r,2)}, v[6:7], {vr(a+r,2)} op_sel:[0,{q},0] op_sel_hi:[1,{q},1] neg_lo:[1,0,0] neg_hi:[1,0,0]")
                    for r in range(8*g, 8*g+8, 2): k(f"v_pk_mul_f32 {vr(a+r,2)}, {vr(a+r,2)}, {vr(FR+16+r,2)}")
                else:
                    for r in range(8*g, 8*g+8): k(f"v_fma_f32 v{a+r}, -v{FR+r}, v{6+q}, v{a+r}")
                    for r in range(8*g, 8*g+8): k(f"v_mul_f32 v{a+r}, v{a+r}, v{FR+16+r}")
                for e in range(4): k(f"v_cvt_pk_bf16_f32 v{d+e}, v{a+8*g+2*e}, v{a+8*g+2*e+1}")
                k(f"buffer_store_dwordx4 {vr(d,4)}, v{13+q}, s[16:19], s40 offen offset:{b*1280 + g*640} sc1")
    k("s_waitcnt vmcnt(0)\ns_barrier")

def f1_w_early(k):
    UOFF = 12288 + 128; SLOT = 24704
    k(f"""s_and_b32 s68, s34, 1
    s_lshl_b32 s68, s68, 2
    s_and_b32 s69, s35, 3
    s_add_u32 s68, s68, s69
    s_lshr_b32 s69, s34, 1
    s_lshl_b32 s69, s69, 3
    s_lshr_b32 s70, s35, 2
    s_add_u32 s69, s69, s70
    s_cmp_lt_u32 s4, 4
    s_cselect_b32 s24, s{P_W1}, s{P_W3}
    s_cselect_b32 s25, s{P_W1+1}, s{P_W3+1}
    s_cselect_b32 s70, 0, {UOFF}
    s_mov_b32 s26, {640*3072}
    s_mov_b32 s27, 0x00020000
    s_and_b32 s71, s4, 3
    s_mul_i32 s76, s71, 3072
    s_add_u32 s70, s70, s76
    s_lshl_b32 s71, s71, 5
    s_mul_i32 s76, s69, 96
    s_add_u32 s68, s68, s69""")
    mod_small(k, 68, 5, 69, 38)
    k(f"s_mul_i32 s68, s68, {128*3072}")
    for i in range(3):
        k(f"""v_add_u32 v103, {64*i}, v1
        v_mul_u32_u24 v104, 10923, v103
        v_lshrrev_b32 v104, 16, v104
        v_mul_u32_u24 v105, 6, v104
        v_sub_u32 v105, v103, v105
        v_add_u32 v104, s71, v104
        v_mul_u32_u24 v104, 3072, v104
        v_lshl_add_u32 v104, v105, 4, v104
        v_add_u32 v{100+i}, s76, v104""")
    for st in range(2):
        for i in range(3):
            k(f"s_add_u32 m0, s70, {st*SLOT + i*1024}\ns_nop 0\nbuffer_load_dwordx4 v{100+i}, s[24:27], s68 offen lds")
        k(f"s_add_u32 s68, s68, {128*3072}\ns_cmp_eq_u32 s68, {640*3072}\ns_cselect_b32 s68, 0, s68")

def phase_f0(k):
    k.L.append("    ; ---- F0: layernorm of 8 rows, stats granules, column-sum partials of wqkv")
    RS = 1312; LB = 2*24704; LC = LB + 8*RS
    k(A1_TILE.format(rb="s41", cb="s42"))
    k(f"""s_and_b32 s40, s34, 1
    s_lshl_b32 s40, s40, 2
    s_lshr_b32 s36, s34, 1
    s_add_u32 s40, s40, s36
    s_lshl_b32 s40, s40, 5
    s_add_u32 s40, s40, s35
    s_lshl_b32 s32, s40, 3
    s_add_u32 s32, s32, s4
    s_mul_i32 s33, s32, 1280
    v_lshlrev_b32 v3, 2, v1
    s_mul_i32 s38, s41, 40
    s_mul_i32 s39, s4, 5
    s_add_u32 s38, s38, s39
    s_mul_i32 s38, s38, 3840
    s_min_u32 s39, s42, 14
    s_lshl_b32 s39, s39, 8
    s_add_u32 s38, s38, s39""")
    after_kernarg(k)
    k.srd(8, P_X, SZ)
    for i in range(5):
        k(f"buffer_load_dword v{8+i}, v3, s[8:11], s33 offen offset:{i*256}")
    k.srd(20, P_WQKV, 640*3840)
    for i in range(5):
        k(f"buffer_load_dword v{48+i}, v3, s[20:23], s38 offen" + ("\ns_add_u32 s38, s38, 3840" if i < 4 else ""))
    def pf():
        k("s_lshl_b32 s43, s5, 3\ns_add_u32 s43, s43, s4\ns_mul_i32 s43, s43, 960")
        for j, p in enumerate((P_W1, P_W3)):
            k.srd(24, p, 640*3072)
            k(f"buffer_load_dwordx4 {vr(64+4*j,4)}, v2, s[24:27], s43 offen")
    if C("pf") == 1: pf()
    if C("f1_early") == 3: f1_w_early(k)
    tag_setup(k, 44)
    if not C('tag_early', 1):
        lab = k.newlabel("tag")
        k(f"""s_or_b32 s7, s5, s4
    s_cmp_lg_u32 s7, 0
    s_cbranch_scc1 {lab}
    s_memrealtime s[76:77]
    s_waitcnt lgkmcnt(0)
    s_or_b32 s76, s76, 1
    v_mov_b32 v18, s76
    v_mov_b32 v19, s77
    s_mov_b64 exec, 1
    buffer_store_dwordx2 v[18:19], v46, s[72:75], 0 offen sc1
    s_mov_b64 exec, -1
    {lab}:""")
    flags_srd(k)
    k.srd(12, P_WS, SZ, WS_XF)
    k.srd(16, P_WS, ST_SZ + CS_SZ, WS_ST)
    k(f"""s_mul_i32 s34, s4, {RS}
    s_add_u32 s34, s34, {LB}
    v_add_u32 v4, s34, v3
    v_and_b32 v5, 7, v0
    v_lshrrev_b32 v6, 3, v0
    v_mul_u32_u24 v7, {RS}, v5
    {"v_lshrrev_b32 v42, 1, v6" + chr(10) + "v_lshl_add_u32 v7, v42, 5, v7" + chr(10) + "v_and_b32 v42, 1, v6" + chr(10) + "v_lshl_add_u32 v7, v42, 3, v7" if C("f1k", 1) else "v_lshl_add_u32 v7, v6, 4, v7"}
    v_add_u32 v7, {LB}, v7
    v_lshlrev_b32 v6, 9, v6
    v_lshl_add_u32 v6, v5, 4, v6
    s_lshr_b32 s35, s40, 2
    s_mul_i32 s35, s35, 40960
    s_and_b32 s36, s40, 3
    s_lshl_b32 s36, s36, 7
    s_add_u32 s35, s35, s36
    s_add_u32 s36, s35, 32768
    s_lshl_b32 s37, s32, 4
    v_lshlrev_b32 v47, 3, v0
    v_lshlrev_b32 v43, 3, v1
    s_lshl_b32 s38, s42, 4
    s_add_u32 s38, s38, s41
    s_lshl_b32 s38, s38, 10
    s_add_u32 s38, s38, {ST_SZ}""")
    X = 16
    for i in range(5):
        k(f"s_waitcnt vmcnt({9-i + (2 if C('pf') == 1 else 0) + (6 if C('f1_early') == 3 else 0)})")
        if i == 4:
            k(tag_load(44))
            if C("pf") == 2: pf()
        k(f"v_lshlrev_b32 v{X+2*i}, 16, v{8+i}\nv_and_b32 v{X+2*i+1}, 0xffff0000, v{8+i}")
    def reduce(v, t):
        for r in (8, 4, 2, 1):
            k(f"s_nop 1\nv_add_f32_dpp v{v}, v{v}, v{v} row_ror:{r} row_mask:0xf bank_mask:0xf")
        k(f"v_mov_b32 v{t}, v{v}\ns_nop 1\nv_permlane16_swap_b32 v{v}, v{t}\ns_nop 1\nv_add_f32 v{v}, v{v}, v{t}")
        k(f"v_mov_b32 v{t}, v{v}\ns_nop 1\nv_permlane32_swap_b32 v{v}, v{t}\ns_nop 1\nv_add_f32 v{v}, v{v}, v{t}")
    M, V, T = 28, 29, 30
    k(f"v_add_f32 v{M}, v{X}, v{X+1}\nv_add_f32 v{T}, v{X+2}, v{X+3}")
    for i in range(4, 10, 2):
        k(f"v_add_f32 v{M}, v{M}, v{X+i}\nv_add_f32 v{T}, v{T}, v{X+i+1}")
    k(f"v_add_f32 v{M}, v{M}, v{T}")
    reduce(M, T)
    k(f"v_mul_f32 v{M}, {f32(1/640)}, v{M}")
    for i in range(10): k(f"v_sub_f32 v{32+i}, v{X+i}, v{M}")
    k(f"v_mul_f32 v{V}, v32, v32\nv_mul_f32 v{T}, v33, v33")
    for i in range(2, 10, 2):
        k(f"v_fmac_f32 v{V}, v{32+i}, v{32+i}\nv_fmac_f32 v{T}, v{33+i}, v{33+i}")
    k(f"v_add_f32 v{V}, v{V}, v{T}")
    reduce(V, T)
    k(f"v_mul_f32 v{V}, {f32(1/640)}, v{V}")
    def rb(v): k(f"v_cvt_pk_bf16_f32 v{v}, v{v}, v{v}\nv_lshlrev_b32 v{v}, 16, v{v}")
    rb(M); rb(V)
    k(f"v_add_f32 v{V}, {f32(1e-5)}, v{V}"); rb(V)
    k(f"v_sqrt_f32 v{V}, v{V}\ns_nop 0"); rb(V)
    k(f"v_rcp_f32 v{V}, v{V}\ns_waitcnt vmcnt({2 if C('pf') == 2 else 0})")
    tag_take(k, 44, True)
    k(f"v_mov_b32 v{T}, s6\nv_mov_b32 v{T+1}, s7")
    k(f"s_mov_b64 exec, 1\nbuffer_store_dwordx4 {vr(M,4)}, v46, s[16:19], s37 offen sc1\ns_mov_b64 exec, -1")
    k("v_lshlrev_b32 v32, 16, v48\nv_and_b32 v33, 0xffff0000, v48")
    for i in range(1, 5):
        k(f"v_lshlrev_b32 v34, 16, v{48+i}\nv_and_b32 v35, 0xffff0000, v{48+i}\nv_add_f32 v32, v32, v34\nv_add_f32 v33, v33, v35")
    k(f"ds_write_b64 v47, v[32:33] offset:{LC}")
    for i in range(5):
        a, b = X+2*i, X+2*i+1
        k(f"v_sub_f32 v{a}, v{a}, v{M}\nv_sub_f32 v{b}, v{b}, v{M}")
        k(f"v_cvt_pk_bf16_f32 v{b}, v{a}, v{b}")
        k(f"v_lshlrev_b32 v{a}, 16, v{b}\nv_and_b32 v{b}, 0xffff0000, v{b}")
        k(f"v_mul_f32 v{a}, v{a}, v{V}\nv_mul_f32 v{b}, v{b}, v{V}")
        k(f"v_cvt_pk_bf16_f32 v{8+i}, v{a}, v{b}")
        k(f"ds_write_b32 v4, v{8+i} offset:{i*256}")
    k("s_waitcnt lgkmcnt(0)\ns_barrier")
    l1 = k.newlabel("f0w"); l2 = k.newlabel("f0c")
    k(f"{'ds_read2_b64 v[8:11], v7 offset0:0 offset1:2' if C('f1k', 1) else 'ds_read_b128 v[8:11], v7'}\ns_cmp_lg_u32 s4, 2\ns_cbranch_scc1 {l2}")
    for i in range(8): k(f"ds_read_b64 {vr(48+2*i,2)}, v43 offset:{LC + i*512}")
    k("s_waitcnt lgkmcnt(0)")
    for st in (8, 4, 2):
        for e in range(st): k(f"v_add_f32 v{48+e}, v{48+e}, v{48+st+e}")
    k(f"v_mov_b32 v50, s6\nv_mov_b32 v51, s7\nbuffer_store_dwordx4 v[48:51], v2, s[16:19], s38 offen sc1\n{l2}:")
    k(f"""s_cmp_ge_u32 s4, 2
    s_cbranch_scc1 {l1}
    {'ds_read2_b64 v[12:15], v7 offset0:128 offset1:130' if C('f1k', 1) else 'ds_read_b128 v[12:15], v7 offset:1024'}
    s_waitcnt lgkmcnt(0)
    buffer_store_dwordx4 v[12:15], v6, s[12:15], s36 offen sc1
    {l1}:
    s_waitcnt lgkmcnt(0)
    buffer_store_dwordx4 v[8:11], v6, s[12:15], s35 offen sc1""")
    if C("tlb"):
        lab = k.newlabel("f0t")
        k(f"s_cmp_lg_u32 s4, 3\ns_cbranch_scc1 {lab}\nv_lshlrev_b32 v64, {C('tlb_sh', 19)}, v1")
        for j, (p, n) in enumerate(((P_WS, WS_FL + FL_N*128), (P_OUT, SZ), (P_W2, 1536*1280), (P_WO, 640*1280))):
            k.srd(24, p, n)
            k(f"buffer_load_dword v{65+j}, v64, s[24:27], 0 offen")
        k.label(lab)
    lab = k.newlabel("f0p")
    k(f"s_waitcnt vmcnt(0)\ns_barrier\ns_cmp_lg_u32 s4, 0\ns_cbranch_scc1 {lab}")
    set_flag(k, f"s_add_u32 s78, s40, {FL_LN}", 8)
    k.label(lab)

def gemm2(k, vm, stages, ksteps, NB, acc, wbuf, R, wgroup, wread, aload, areg, AW, nst_total, zero_first,
          hook=None, lead=None):
    steps = [(s, ks) for s in stages for ks in range(ksteps)]
    wb = lambda n, nb: wbuf + ((n & 1) * NB + nb) * 4
    vm.wait(("W", stages[0]))
    k("s_barrier")
    for nb in range(NB):
        for i in wread(stages[0], 0, nb, wb(0, nb)): k(i)
    pending = []
    for n, (s, ks) in enumerate(steps):
        last = (n == len(steps)-1)
        if hook: hook(n)
        if ks == ksteps-1 and not last:
            assert not pending
            vm.wait(("W", s+1))
            k("s_barrier")
            if s+R-1 < nst_total and ("W", s+R-1) not in vm.tags:
                pending = [(u, i) for i, u in enumerate(wgroup(s+R-1))]
                plast = len(pending)-1; ps = s+R-1
        vm.wait(("A", s, ks))
        for nb in range(NB):
            k(f"s_waitcnt lgkmcnt({2*(NB-1-nb) if last else 2*(NB-1)})")
            k(mfma(acc+16*nb, wb(n, nb), areg(n), "0" if (n == 0 and zero_first) else None))
            if not last:
                s2, ks2 = steps[n+1]
                for i in wread(s2, ks2, nb, wb(n+1, nb)): k(i)
            if pending and nb != NB-1:
                u, i = pending.pop(0)
                vm.op(u, ("W", ps) if i == plast else None)
        w = lead(n) if lead else AW
        for m in range(n+1, min(n+w+1, len(steps))):
            s2, ks2 = steps[m]
            if ("A", s2, ks2) not in vm.tags:
                vm.op(aload(s2, ks2, areg(m)), ("A", s2, ks2))
    assert not pending

def phase_f1(k):
    k.L.append("    ; ---- F1: 256 tokens x 48 gate/up columns")
    R = 3; UOFF = 12288 + 128; SLOT = 24704
    vm = VM(k)
    k("""s_and_b32 s34, s5, 7
    s_lshr_b32 s35, s5, 3
    s_and_b32 s36, s34, 1
    s_lshl_b32 s36, s36, 2
    s_and_b32 s37, s35, 3
    s_add_u32 s32, s36, s37
    s_lshr_b32 s36, s34, 1
    s_lshl_b32 s36, s36, 3
    s_lshr_b32 s37, s35, 2
    s_add_u32 s33, s36, s37""")
    k(f"""s_cmp_lt_u32 s4, 4
    s_cselect_b32 s8, s{P_W1}, s{P_W3}
    s_cselect_b32 s9, s{P_W1+1}, s{P_W3+1}
    s_cselect_b32 s42, 0, {UOFF}
    s_mov_b32 s10, {640*3072}
    s_mov_b32 s11, 0x00020000
    s_and_b32 s36, s4, 3
    s_mul_i32 s37, s36, 3072
    s_add_u32 s42, s42, s37
    s_lshl_b32 s36, s36, 5
    s_mul_i32 s37, s33, 96""")
    if C("diag_x"): k.srd(12, P_X, SZ)
    else: k.srd(12, P_WS, SZ, WS_XF)
    k.srd(16, P_WS, HF_SZ, WS_HF)
    for i in range(3):
        k(f"""v_add_u32 v3, {64*i}, v1
        v_mul_u32_u24 v8, 10923, v3
        v_lshrrev_b32 v8, 16, v8
        v_mul_u32_u24 v9, 6, v8
        v_sub_u32 v9, v3, v9
        v_add_u32 v8, s36, v8
        v_mul_u32_u24 v8, 3072, v8
        v_lshl_add_u32 v8, v9, 4, v8
        v_add_u32 v{4+i}, s37, v8""")
    k(f"""v_lshrrev_b32 v12, 5, v1
    v_bfe_u32 v13, v1, 2, 2
    v_lshl_add_u32 v14, v12, 3, v13
    v_mul_u32_u24 v14, 96, v14
    v_bfe_u32 v15, v1, 4, 1
    v_mul_u32_u24 v15, {UOFF}, v15
    v_add_u32 v14, v14, v15
    v_and_b32 v15, 3, v1
    v_lshl_add_u32 v8, v15, 3, v14
    v_add_u32 v3, 4096, v2""")
    k("s_add_u32 s40, s32, s33")
    mod_small(k, 40, 5, 43, 38)
    k(f"""s_lshl_b32 s46, s32, 3
    s_add_u32 s46, s46, s4
    s_mul_i32 s41, s46, 40960
    s_mul_i32 s44, s40, {128*3072}
    s_lshl_b32 s45, s40, 13
    s_add_u32 s45, s45, s41
    s_add_u32 s47, s41, 40960""")
    ACC, WB, AB = 16, 64, 88
    def wgroup(s):
        u = []
        for i in range(3):
            post = f"\ns_add_u32 s44, s44, {128*3072}\ns_cmp_eq_u32 s44, {640*3072}\ns_cselect_b32 s44, 0, s44" if i == 2 else ""
            u.append(f"s_add_u32 m0, s42, {(s % R)*SLOT + i*1024}\ns_nop 0\nbuffer_load_dwordx4 v{4+i}, s[8:11], s44 offen{' nt' if C('nt1') else ''} lds" + post)
        return u
    def wread(s, ks, nb, dst):
        o = (s % R)*SLOT + ks*16*96 + nb*32
        return [f"ds_read_b64_tr_b16 {vr(dst,2)}, v8 offset:{o}", f"ds_read_b64_tr_b16 {vr(dst+2,2)}, v8 offset:{o+4*96}"]
    def aload(s, ks, dst):
        post = "\ns_add_u32 s45, s45, 8192\ns_cmp_eq_u32 s45, s47\ns_cselect_b32 s45, s41, s45" if ks == 7 else ""
        return f"buffer_load_dwordx4 {vr(dst,4)}, v{3 if ks >= 4 else 2}, s[12:15], s45 offen offset:{(ks%4)*1024} sc1" + post
    AW = C("f1_aw", 8)
    areg = lambda n: AB + 4*(n % AW)
    def wpro():
        for s in range(R-1):
            g = wgroup(s)
            for i, u in enumerate(g):
                thr(); vm.op(u, ("W", s) if i == len(g)-1 else None)
    def thr():
        if C("f1_thr") and vm.n >= C("f1_thr"): k(f"s_waitcnt vmcnt({C('f1_thr')-1})")
    def apro():
        for ks in range(AW):
            thr(); vm.op(aload(0, ks, areg(ks)), ("A", 0, ks))
    def go_poll():
        polln(k, f"s_add_u32 s78, s5, {FL_GO}" if C("go_a2") else f"""s_and_b32 s68, s34, 1
        s_lshl_b32 s68, s68, 3
        s_and_b32 s69, s35, 7
        s_add_u32 s68, s68, s69
        s_lshr_b32 s69, s34, 1
        s_lshl_b32 s69, s69, 2
        s_lshr_b32 s70, s35, 3
        s_add_u32 s69, s69, s70
        s_min_u32 s69, s69, 14
        s_lshl_b32 s78, s69, 4
        s_add_u32 s78, s78, s68
        s_add_u32 s78, s78, {FL_QKV if C("go_q") else FL_GO}""", 1, 10, sleep=C("go_sleep", 4))
    early = C("f1_early", 0)
    if early == 3:
        k("s_mov_b32 s44, s68"); vm.tags[("W", 0)] = 0; vm.tags[("W", 1)] = 0
    elif early >= 1: wpro()
    if C("f1_burst", 0) == 1: k(f"s_setprio {C('prio_f', 0)}")
    lab = k.newlabel("f1p")
    k(f"s_cmp_lg_u32 s4, 0\ns_cbranch_scc1 {lab}")
    polln(k, f"s_lshl_b32 s78, s32, 5\ns_add_u32 s78, s78, {FL_LN}", 32, 10, sleep=4)
    if early < 2 and C("f1_hold", 1): go_poll()
    k(f"{lab}:\ns_barrier")
    if early < 1: wpro()
    apro()
    if C("f1_burst", 0) == 2: k(f"s_setprio {C('prio_f', 0)}")
    if early >= 2 and C("f1_hold", 1):
        lab = k.newlabel("f1g")
        k(f"s_cmp_lg_u32 s4, 0\ns_cbranch_scc1 {lab}")
        go_poll()
        k.label(lab)
    k.stamp(2)
    def hook(n):
        if n == C("f1_sw", 99): k(f"s_setprio {C('prio_f1b', 1)}")
    gemm2(k, vm, list(range(5)), 8, 3, ACC, WB, R, wgroup, wread, aload, areg, AW, 5, True, hook, lambda n: C("f1_lead", 8) if n < C("f1_leadn", 24) else AW)
    k.stamp(3)
    k(f"""s_mul_i32 s36, s46, 96
    s_mul_i32 s37, s33, 3
    s_add_u32 s36, s36, s37
    s_lshl_b32 s36, s36, 10
    s_mov_b32 s38, {f32(-LOG2E)}
    s_setprio {C('prio_f1e', 3)}
    s_nop 7""")
    for nb in range(3):
        a = ACC + 16*nb; t = WB + 8*(nb % 2); d = AB + 4*nb
        for e in range(8): k(f"v_mul_f32 v{t+e}, s38, v{a+e}")
        for e in range(8): k(f"v_exp_f32 v{t+e}, v{t+e}")
        for e in range(8): k(f"v_mul_f32 v{a+e}, v{a+e}, v{a+8+e}")
        for e in range(8): k(f"v_add_f32 v{t+e}, 1.0, v{t+e}")
        for e in range(8): k(f"v_rcp_f32 v{t+e}, v{t+e}")
        k("s_nop 0")
        for e in range(8): k(f"v_mul_f32 v{a+e}, v{a+e}, v{t+e}")
        for e in range(4): k(f"v_cvt_pk_bf16_f32 v{d+e}, v{a+2*e}, v{a+2*e+1}")
        k(f"buffer_store_dwordx4 {vr(d,4)}, v2, s[16:19], s36 offen offset:{nb*1024} sc1")
    k(f"s_setprio {C('prio_f2', 2)}")
    if True:
        lab = k.newlabel("f1f")
        k(f"s_waitcnt vmcnt(0)\ns_barrier\ns_cmp_lg_u32 s4, 0\ns_cbranch_scc1 {lab}")
        set_flag(k, f"s_lshl_b32 s78, s32, 5\ns_add_u32 s78, s78, s33\ns_add_u32 s78, s78, {FL_H}", 10)
        k.label(lab)

def phase_f1b(k):
    k.L.append("    ; ---- F1: 128 tokens x 96 gate/up columns, xn and weights through an LDS ring")
    SLOT = 20480
    ACC, FR = 16, 64
    k(A1_TILE.format(rb="s32", cb="s33"))
    k(f"""s_and_b32 s36, s4, 3
    s_lshl_b32 s37, s36, 11
    v_add_u32 v4, s37, v2
    v_lshrrev_b32 v12, 5, v1
    v_bfe_u32 v13, v1, 2, 2
    v_lshl_add_u32 v14, v12, 3, v13
    v_mul_u32_u24 v14, 192, v14
    v_and_b32 v15, 3, v1
    v_lshl_add_u32 v14, v15, 3, v14
    v_add_u32 v14, 8192, v14
    v_bfe_u32 v15, v1, 4, 1
    v_mul_u32_u24 v5, {6144+32}, v15
    v_add_u32 v5, v5, v14
    v_lshlrev_b32 v15, 6, v15
    v_sub_u32 v6, v5, v15
    s_mul_i32 s40, s32, 5
    s_lshr_b32 s40, s40, 1
    s_mul_i32 s43, s33, 5
    s_add_u32 s40, s40, s43
    s_lshl_b32 s46, s32, 2
    s_add_u32 s46, s46, s36""")
    mod_small(k, 40, 20, 43, 112)
    k.srd(16, P_WS, HF_SZ, WS_HF)
    LB = k.newlabel("f1b"); LE = k.newlabel("f1e")
    def reads(n, ch):
        if n >= 40: return []
        f = FR + (n % 3)*16; so = ((n >> 1) % 4)*SLOT; ks = n & 1
        r = [f"ds_read_b128 {vr(f,4)}, v4 offset:{so + ks*1024}"]
        for nb in range(3):
            B = 3*ch + nb; o = so + ks*3072 + B*32
            r += [f"ds_read_b64_tr_b16 {vr(f+4+4*nb,2)}, v{5 + (B & 1)} offset:{o}", f"ds_read_b64_tr_b16 {vr(f+6+4*nb,2)}, v{5 + (B & 1)} offset:{o+768}"]
        return r
    def body(ch):
        vm = VM(k)
        if ch == 0:
            k(f"""s_cmp_lt_u32 s4, 2
            s_cselect_b32 s8, s{P_W1}, s{P_W3}
            s_cselect_b32 s9, s{P_W1+1}, s{P_W3+1}
            s_cselect_b32 s38, 0, 2
            s_mov_b32 s10, {640*3072}
            s_mov_b32 s11, 0x00020000
            s_mul_i32 s42, s4, 3072
            s_add_u32 s42, s42, 8192
            s_and_b32 s36, s4, 1
            s_lshl_b32 s36, s36, 4
            s_mul_i32 s37, s33, 192
            s_mul_i32 s44, s40, {32*3072}""")
            for i in range(3):
                k(f"""v_add_u32 v3, {64*i}, v1
                v_mul_u32_u24 v10, 5462, v3
                v_lshrrev_b32 v10, 16, v10
                v_mul_u32_u24 v11, 12, v10
                v_sub_u32 v11, v3, v11
                v_xor_b32 v11, s38, v11
                v_add_u32 v10, s36, v10
                v_mul_u32_u24 v10, 3072, v10
                v_lshl_add_u32 v10, v11, 4, v10
                v_add_u32 v{7+i}, s37, v10""")
            def group(j):
                return [f"s_add_u32 m0, s42, {(j % 4)*SLOT + i*1024}\ns_nop 0\nbuffer_load_dwordx4 v{7+i}, s[8:11], s44 offen lds" +
                        (f"\ns_add_u32 s44, s44, {32*3072}\ns_cmp_eq_u32 s44, {640*3072}\ns_cselect_b32 s44, 0, s44" if i == 2 else "") for i in range(3)]
        else:
            k.srd(8, P_WS, SZ, WS_XF)
            k("""s_mul_i32 s41, s46, 40960
            s_lshl_b32 s44, s40, 11
            s_add_u32 s44, s44, s41
            s_add_u32 s47, s41, 40960""")
            polln(k, f"s_lshl_b32 s78, s46, 2\ns_add_u32 s78, s78, {FL_LN}", 4, 10, sleep=4)
            def group(j):
                return [f"s_add_u32 m0, s37, {(j % 4)*SLOT}\ns_nop 0\nbuffer_load_dwordx4 v2, s[8:11], s44 offen sc1 lds",
                        "buffer_load_dwordx4 v2, s[8:11], s44 offen offset:1024 sc1 lds\ns_add_u32 s44, s44, 2048\ns_cmp_eq_u32 s44, s47\ns_cselect_b32 s44, s41, s44"]
        for j in range(4):
            for u in group(j): vm.op(u, j)
        k.stamp(2)
        vm.wait(0); k("s_barrier")
        for i in reads(0, ch) + reads(1, ch): k(i)
        pending = []
        for n in range(40):
            if n == C("f1_sw", 99): k(f"s_setprio {C('prio_f1b', 1)}")
            f = FR + (n % 3)*16; j = n >> 1
            rd = reads(n+2, ch)
            if n % 2 == 0: k("s_waitcnt lgkmcnt(7)")
            for nb in range(3):
                k(mfma(ACC+16*nb, f+4+4*nb, f, "0" if n == 0 else None))
                if n % 2 == 0:
                    if nb == 1:
                        k("s_waitcnt lgkmcnt(0)")
                        if n < 38:
                            vm.wait(j+1); k("s_barrier")
                            assert not pending
                            if j+4 < 20: pending = [(u, j+4) for u in group(j+4)]
                    if nb >= 1:
                        for i in rd[4*(nb-1):4*(nb-1)+4]: k(i)
                else:
                    if nb < 2:
                        for i in rd[4*nb:4*nb+4]: k(i)
                    if nb == 0 and pending:
                        for u, t in pending[:2]: vm.op(u, t)
                        pending = pending[2:]
                    if nb == 2 and pending:
                        for u, t in pending: vm.op(u, t)
                        pending = []
    k(f"s_cmp_ge_u32 s4, 4\ns_cbranch_scc1 {LB}")
    body(0)
    k(f"s_mov_b32 s37, 0\ns_branch {LE}")
    k.label(LB)
    body(1)
    k("s_mov_b32 s37, 3")
    k.label(LE)
    k.stamp(3)
    k(f"""s_mul_i32 s36, s46, 96
    s_add_u32 s36, s36, s37
    s_mul_i32 s37, s33, 6
    s_add_u32 s36, s36, s37
    s_lshl_b32 s36, s36, 10
    s_mov_b32 s38, {f32(-LOG2E)}
    s_setprio {C('prio_f1e', 3)}
    s_nop 7""")
    for nb in range(3):
        a = ACC + 16*nb; t = 80 + 8*(nb % 2); d = 112 + 4*nb
        for e in range(8): k(f"v_mul_f32 v{t+e}, s38, v{a+e}")
        for e in range(8): k(f"v_exp_f32 v{t+e}, v{t+e}")
        for e in range(8): k(f"v_mul_f32 v{a+e}, v{a+e}, v{a+8+e}")
        for e in range(8): k(f"v_add_f32 v{t+e}, 1.0, v{t+e}")
        for e in range(8): k(f"v_rcp_f32 v{t+e}, v{t+e}")
        k("s_nop 0")
        for e in range(8): k(f"v_mul_f32 v{a+e}, v{a+e}, v{t+e}")
        for e in range(4): k(f"v_cvt_pk_bf16_f32 v{d+e}, v{a+2*e}, v{a+2*e+1}")
        k(f"buffer_store_dwordx4 {vr(d,4)}, v2, s[16:19], s36 offen offset:{nb*1024} sc1")
    k(f"s_setprio {C('prio_f2', 2)}")
    lab = k.newlabel("f1f")
    k(f"s_waitcnt vmcnt(0)\ns_barrier\ns_cmp_lg_u32 s4, 0\ns_cbranch_scc1 {lab}")
    set_flag(k, f"s_lshl_b32 s78, s32, 4\ns_add_u32 s78, s78, s33\ns_add_u32 s78, s78, {FL_H}", 10)
    k.label(lab)

def phase_f1c(k):
    k.L.append("    ; ---- F1: 128 tokens x 96 gate/up columns, xn and weights through an LDS ring, 16x16x32 MFMAs")
    SLOT = 20480
    ACC, FR = 16, 64
    k(A1_TILE.format(rb="s32", cb="s33"))
    k(f"""s_and_b32 s36, s4, 3
    s_lshl_b32 s37, s36, 11
    v_lshrrev_b32 v12, 4, v1
    v_lshlrev_b32 v12, 9, v12
    v_and_b32 v4, 15, v1
    v_lshl_add_u32 v4, v4, 4, v12
    v_add_u32 v4, s37, v4
    v_lshrrev_b32 v12, 5, v1
    v_bfe_u32 v13, v1, 2, 3
    v_lshl_add_u32 v14, v12, 4, v13
    v_mul_u32_u24 v14, 192, v14
    v_and_b32 v15, 1, v1
    v_lshl_add_u32 v14, v15, 4, v14
    v_bfe_u32 v15, v1, 1, 1
    v_lshl_add_u32 v14, v15, 3, v14
    v_add_u32 v14, 8192, v14
    v_bfe_u32 v15, v1, 4, 1
    v_lshl_add_u32 v5, v15, 5, v14
    v_lshlrev_b32 v15, 5, v15
    v_sub_u32 v6, v14, v15
    v_add_u32 v120, 6144, v5
    v_add_u32 v121, 6144, v6
    s_mul_i32 s40, s32, 5
    s_lshr_b32 s40, s40, 1
    s_mul_i32 s43, s33, 5
    s_add_u32 s40, s40, s43
    s_lshl_b32 s46, s32, 2
    s_add_u32 s46, s46, s36""")
    mod_small(k, 40, 20, 43, 112)
    k.srd(16, P_WS, HF_SZ, WS_HF)
    LB = k.newlabel("f1b"); LE = k.newlabel("f1e")
    AF = FR + 24
    def wread(n, ch, f):
        B = 3*ch + (f >> 1); o = (n % 4)*SLOT + B*32
        va = (120 if f & 1 else 5) + (B & 1)
        return [f"ds_read_b64_tr_b16 {vr(FR+4*f,2)}, v{va} offset:{o}", f"ds_read_b64_tr_b16 {vr(FR+4*f+2,2)}, v{va} offset:{o+1536}"]
    def aread(n):
        return [f"ds_read_b128 {vr(AF+8*(n & 1)+4*b,4)}, v4 offset:{(n % 4)*SLOT + b*256}" for b in range(2)]
    def body(ch):
        vm = VM(k)
        if ch == 0:
            k(f"""s_cmp_lt_u32 s4, 2
            s_cselect_b32 s8, s{P_W1}, s{P_W3}
            s_cselect_b32 s9, s{P_W1+1}, s{P_W3+1}
            s_mov_b32 s10, {640*3072}
            s_mov_b32 s11, 0x00020000
            s_mul_i32 s42, s4, 3072
            s_add_u32 s42, s42, 8192
            s_and_b32 s36, s4, 1
            s_lshl_b32 s36, s36, 4
            s_mul_i32 s37, s33, 192
            s_mul_i32 s44, s40, {32*3072}""")
            for i in range(3):
                k(f"""v_add_u32 v3, {64*i}, v1
                v_mul_u32_u24 v10, 5462, v3
                v_lshrrev_b32 v10, 16, v10
                v_mul_u32_u24 v11, 12, v10
                v_sub_u32 v11, v3, v11
                v_bfe_u32 v3, v10, 2, 1
                v_lshlrev_b32 v3, 1, v3
                v_xor_b32 v11, v3, v11
                v_add_u32 v10, s36, v10
                v_mul_u32_u24 v10, 3072, v10
                v_lshl_add_u32 v10, v11, 4, v10
                v_add_u32 v{7+i}, s37, v10""")
            def group(j):
                return [f"s_add_u32 m0, s42, {(j % 4)*SLOT + i*1024}\ns_nop 0\nbuffer_load_dwordx4 v{7+i}, s[8:11], s44 offen lds" +
                        (f"\ns_add_u32 s44, s44, {32*3072}\ns_cmp_eq_u32 s44, {640*3072}\ns_cselect_b32 s44, 0, s44" if i == 2 else "") for i in range(3)]
        else:
            k.srd(8, P_WS, SZ, WS_XF)
            k("""s_mul_i32 s41, s46, 40960
            s_lshl_b32 s44, s40, 11
            s_add_u32 s44, s44, s41
            s_add_u32 s47, s41, 40960""")
            polln(k, f"s_lshl_b32 s78, s46, 2\ns_add_u32 s78, s78, {FL_LN}", 4, 10, sleep=4)
            def group(j):
                return [f"s_add_u32 m0, s37, {(j % 4)*SLOT}\ns_nop 0\nbuffer_load_dwordx4 v2, s[8:11], s44 offen sc1 lds",
                        "buffer_load_dwordx4 v2, s[8:11], s44 offen offset:1024 sc1 lds\ns_add_u32 s44, s44, 2048\ns_cmp_eq_u32 s44, s47\ns_cselect_b32 s44, s41, s44"]
        for j in range(4):
            for u in group(j): vm.op(u, j)
        k.stamp(2)
        vm.wait(0); k("s_barrier")
        for i in aread(0): k(i)
        for f in range(6):
            for i in wread(0, ch, f): k(i)
        for n in range(20):
            last = n == 19
            if 2*n == C("f1_sw", 99): k(f"s_setprio {C('prio_f1b', 1)}")
            pending = []
            if C("hold") and n == C("hold_n", 0) and ch == 0:
                lab = k.newlabel("hld")
                k(f"s_cmp_lg_u32 s4, 3\ns_cbranch_scc1 {lab}")
                idx = {1: f"s_min_u32 s78, s33, 14\ns_lshl_b32 s78, s78, 4\ns_add_u32 s78, s78, s32\ns_add_u32 s78, s78, {FL_QKV}",
                       2: f"s_add_u32 s78, s5, {FL_GO}",
                       3: f"s_min_u32 s78, s33, 14\ns_lshl_b32 s78, s78, 4\ns_add_u32 s78, s78, s32\ns_add_u32 s78, s78, {FL_GO}"}[C("hold")]
                polln(k, idx, 1, 10, sleep=2)
                k.label(lab)
            k("s_waitcnt lgkmcnt(0)")
            for f in range(6):
                for b in range(2): k(mfma16(ACC + (2*f+b)*4, FR+4*f, AF+8*(n & 1)+4*b, "0" if n == 0 else None))
                if f == 0 and not last:
                    vm.wait(n+1); k("s_barrier")
                    if n+4 < 20: pending = [(u, n+4) for u in group(n+4)]
                    for i in aread(n+1): k(i)
                if not last:
                    for i in wread(n+1, ch, f): k(i)
                if f == 1 and pending:
                    for u, t in pending[:2]: vm.op(u, t)
                    pending = pending[2:]
                if f == 3 and pending:
                    for u, t in pending: vm.op(u, t)
                if f == 5:
                    PN = C("pk_n", 11)
                    if n == PN:
                        vm.op("buffer_load_dwordx4 v[104:107], v122, s[20:23], s72 offen")
                        vm.op("s_mov_b64 exec, 0xffff\nbuffer_load_dwordx4 v[116:119], v123, s[20:23], s72 offen\ns_mov_b64 exec, -1", "pk")
                    if n == PN+3:
                        vm.wait("pk")
                        vm.op("buffer_store_dwordx4 v[104:107], v2, s[24:27], s73 offen sc1")
                        vm.op("s_mov_b64 exec, 0xffff\nbuffer_store_dwordx4 v[116:119], v2, s[24:27], s73 offen offset:1024 sc1\ns_mov_b64 exec, -1", "pks")
                    if n == PN+6: vm.wait("pks")
                    if n == PN+7 and ch == 0:
                        lab = k.newlabel("pkf")
                        k(f"s_cmp_lg_u32 s4, 0\ns_cbranch_scc1 {lab}")
                        set_flag(k, f"s_add_u32 s78, s5, {FL_PK}", 104)
                        k.label(lab)
    k(f"s_cmp_ge_u32 s4, 4\ns_cbranch_scc1 {LB}")
    body(0)
    k(f"s_mov_b32 s37, 0\ns_branch {LE}")
    k.label(LB)
    body(1)
    k("s_mov_b32 s37, 3")
    k.label(LE)
    k.stamp(3)
    k(f"""s_mul_i32 s70, s46, 96
    s_add_u32 s70, s70, s37
    s_mul_i32 s37, s33, 6
    s_add_u32 s70, s70, s37
    s_lshl_b32 s70, s70, 10
    s_lshl_b32 s71, s32, 4
    s_add_u32 s71, s71, s33
    s_mov_b32 s69, {f32(-LOG2E)}
    s_setprio {C('prio_f1e', 3)}""")
    def epi():
        pkl = [f"s_mov_b32 s78, {(FL_PK + 64*i)*128}\nbuffer_load_dwordx2 {vr(96+2*i,2)}, v104, s[28:31], s78 offen sc1" for i in range(4)]
        lab = k.newlabel("pkl")
        k(f"v_lshlrev_b32 v104, 7, v1\ns_cmp_lg_u32 s4, 1\ns_cbranch_scc1 {lab}")
        for x in pkl: k(x)
        k.label(lab)
        for nb in range(3):
            a = ACC + 16*nb; t = 80 + 8*(nb % 2); d = 64 + 4*nb
            for e in range(8): k(f"v_mul_f32 v{t+e}, s69, v{a+e}")
            for e in range(8): k(f"v_exp_f32 v{t+e}, v{t+e}")
            for e in range(8): k(f"v_mul_f32 v{a+e}, v{a+e}, v{a+8+e}")
            for e in range(8): k(f"v_add_f32 v{t+e}, 1.0, v{t+e}")
            for e in range(8): k(f"v_rcp_f32 v{t+e}, v{t+e}")
            k("s_nop 0")
            for e in range(8): k(f"v_mul_f32 v{a+e}, v{a+e}, v{t+e}")
            for e in range(4): k(f"v_cvt_pk_bf16_f32 v{d+e}, v{a+2*e}, v{a+2*e+1}")
            k(f"s_nop 1\nv_permlane16_swap_b32 v{d}, v{d+2}\nv_permlane16_swap_b32 v{d+1}, v{d+3}")
            k(f"buffer_store_dwordx4 {vr(d,4)}, v2, s[16:19], s70 offen offset:{nb*1024} sc1")
        k(f"s_setprio {C('prio_f2', 2)}")
        if C("cyc") == 9: k.stamp(1)
        lab = k.newlabel("f1f")
        k("s_waitcnt vmcnt(0)\ns_barrier")
        if C("cyc") == 9: k.stamp(2)
        k(f"s_cmp_lg_u32 s4, 0\ns_cbranch_scc1 {lab}")
        set_flag(k, f"s_add_u32 s78, s71, {FL_H}", 80)
        k.label(lab)
        lab = k.newlabel("pkc"); top = k.newlabel("pkt")
        k(f"s_cmp_lg_u32 s4, 1\ns_cbranch_scc1 {lab}\ns_mov_b32 s79, {SPIN_MAX}\n{top}:")
        k("v_cmp_ne_u64 s[74:75], s[6:7], v[96:97]")
        for i in range(1, 4): k(f"v_cmp_ne_u64 vcc, s[6:7], {vr(96+2*i,2)}\ns_nop 0\ns_or_b64 s[74:75], s[74:75], vcc")
        k(f"s_cbranch_scc0 {lab}\ns_sleep 8")
        for x in pkl: k(x)
        k(f"s_waitcnt vmcnt(0)\ns_sub_u32 s79, s79, 1\ns_cmp_lg_u32 s79, 0\ns_cbranch_scc1 {top}\n{lab}:\ns_barrier")
    return epi

def f2_pre(k):
    k("""s_lshr_b32 s43, s5, 5
    s_mul_i32 s43, s43, 160
    s_mul_i32 s39, s4, 160
    s_movk_i32 s36, 1280""")
    for i in range(3):
        k(f"""v_add_u32 v3, s39, v1
        v_add_u32 v3, {64*i}, v3
        v_mul_u32_u24 v14, 6554, v3
        v_lshrrev_b32 v14, 16, v14
        v_mul_u32_u24 v13, 10, v14
        v_sub_u32 v13, v3, v13
        v_lshl_add_u32 v13, v13, 4, s43
        v_lshrrev_b32 v3, 2, v14
        v_lshl_add_u32 v3, v3, 4, v14
        v_add_u32 v3, 16, v3
        v_mad_u32_u24 v{110+i}, v3, s36, v13""")
    k(f"""v_lshrrev_b32 v3, 5, v1
    v_lshlrev_b32 v13, 4, v3
    v_bfe_u32 v14, v1, 2, 3
    v_add_u32 v13, v13, v14
    s_lshr_b32 s44, s4, 1
    s_lshl_b32 s44, s44, 5
    v_add_u32 v13, s44, v13
    v_mul_u32_u24 v13, 160, v13
    v_and_b32 v14, 3, v1
    v_lshl_add_u32 v113, v14, 3, v13
    v_xor_b32 v13, v3, v1
    s_mul_i32 s44, s4, 10240
    v_lshl_add_u32 v115, v13, 4, s44
    v_lshrrev_b32 v3, 4, v1
    v_lshlrev_b32 v3, 9, v3
    v_and_b32 v15, 15, v1
    v_lshl_add_u32 v114, v15, 4, v3
    s_and_b32 s44, s5, 7
    s_lshl_b32 s44, s44, 2
    s_bfe_u32 s45, s5, 0x20003
    s_add_u32 s44, s44, s45
    s_lshl_b32 s44, s44, 6""")
    for i in range(2):
        k(f"""v_add_u32 v3, {64*i}, v1
        v_mul_u32_u24 v14, 6554, v3
        v_lshrrev_b32 v14, 16, v14
        v_mul_u32_u24 v13, 10, v14
        v_sub_u32 v13, v3, v13
        v_lshl_add_u32 v13, v13, 4, s39
        v_mad_u32_u24 v{122+i}, v14, s36, v13""")
    k(f"""s_sub_u32 s45, s5, 192
    s_lshr_b32 s72, s45, 1
    s_mul_i32 s72, s72, 20
    s_and_b32 s45, s45, 1
    s_lshl_b32 s45, s45, 3
    s_add_u32 s72, s72, s45
    s_lshl_b32 s45, s5, 3
    s_cmp_lt_u32 s5, 192
    s_cselect_b32 s72, s45, s72
    s_cselect_b32 s20, s{P_W2}, s{P_WO}
    s_cselect_b32 s21, s{P_W2+1}, s{P_WO+1}
    s_mov_b32 s22, {640*1280}
    s_cselect_b32 s22, {1536*1280}, s22
    s_mov_b32 s23, 0x00020000
    s_mul_i32 s72, s72, 1280
    s_mul_i32 s73, s4, {16*20480}
    s_mul_i32 s45, s5, 1280
    s_add_u32 s73, s73, s45""")
    k.srd(24, P_WS, WP_SZ, WS_WP)
    for i in range(2):
        k(f"""v_add_u32 v3, {512*i}, v0
        v_mul_u32_u24 v13, 6554, v3
        v_lshrrev_b32 v13, 16, v13
        v_mul_u32_u24 v14, 10, v13
        v_sub_u32 v14, v3, v14
        v_lshrrev_b32 v3, 4, v13
        v_mul_u32_u24 v3, 5120, v3
        v_lshl_add_u32 v3, v14, 9, v3
        v_xor_b32 v15, v13, v14
        v_and_b32 v15, 15, v15
        v_lshl_add_u32 v{124+i}, v15, 4, v3
        v_add_u32 v3, s44, v13
        v_mul_u32_u24 v3, 1280, v3
        v_lshl_add_u32 v{126+i}, v14, 4, v3""")

def mfma16(d, a, b, c=None):
    cs = vr(d, 4) if c is None else c
    return f"v_mfma_f32_16x16x32_bf16 {vr(d,4)}, {vr(a,4)}, {vr(b,4)}, {cs}"

def phase_f2(k, endlab, epi):
    k.L.append("    ; ---- F2: 64 tokens x 80 output columns, K split over 4 wave pairs")
    R = 4; SLOT = 20480; NST = 17
    vm = VM(k)
    k("""s_and_b32 s34, s5, 7
    s_lshr_b32 s35, s5, 3
    s_lshl_b32 s36, s34, 2
    s_and_b32 s37, s35, 3
    s_add_u32 s32, s36, s37
    s_lshr_b32 s33, s35, 2
    s_and_b32 s37, s4, 1
    s_lshr_b32 s38, s4, 1
    s_mul_i32 s39, s4, 160
    s_mul_i32 s43, s33, 160""")
    k.srd(8, P_WS, WP_SZ, WS_WP)
    ACC, WB, AB, XR = 16, 56, 76, 116
    for i in range(3): k(f"v_mov_b32 v{10+i}, v{110+i}")
    k("v_mov_b32 v3, v115")
    k(f"v_mov_b32 v13, v113\nv_add_u32 v14, {3*SLOT}, v113\nv_mov_b32 v15, v114")
    k("s_and_b32 s40, s32, 3\ns_mul_i32 s40, s40, 3\ns_mul_i32 s44, s33, 5\ns_add_u32 s40, s40, s44")
    mod_small(k, 40, 12, 44, 44)
    k(f"""s_lshl_b32 s46, s32, 1
    s_add_u32 s46, s46, s37
    s_mul_i32 s41, s46, 98304
    s_lshl_b32 s44, s38, 11
    s_add_u32 s41, s41, s44
    s_mul_i32 s47, s46, 40960
    s_add_u32 s47, s47, s44
    s_mul_i32 s42, s4, 2560
    s_mul_i32 s36, s33, {16*20480}
    s_add_u32 s36, s36, s42
    s_add_u32 s39, s36, {12*20480}
    s_mul_i32 s44, s40, 20480
    s_add_u32 s44, s44, s36
    s_lshl_b32 s45, s40, 13
    s_add_u32 s45, s45, s41
    s_add_u32 s68, s41, 98304""")
    def wgroup(s):
        if s == 16:
            return [f"s_add_u32 m0, s42, {(s % R)*SLOT + i*1024}\n" + ("s_mov_b32 exec_hi, 0\n" if i == 2 else "s_nop 0\n") +
                    f"buffer_load_dwordx4 v{10+i}, s[16:19], 0 offen lds" + ("\ns_mov_b32 exec_hi, -1" if i == 2 else "") for i in range(3)]
        pre = f"s_add_u32 s44, s39, {(s-12)*20480}\n" if s >= 12 else ""
        post = "\ns_add_u32 s44, s44, 20480\ns_cmp_eq_u32 s44, s39\ns_cselect_b32 s44, s36, s44" if s < 11 else ""
        return [pre + f"s_add_u32 m0, s42, {(s % R)*SLOT}\ns_nop 0\nbuffer_load_dwordx4 v2, s[8:11], s44 offen sc1 lds",
                "buffer_load_dwordx4 v2, s[8:11], s44 offen offset:1024 sc1 lds",
                "s_mov_b32 exec_hi, 0\nbuffer_load_dwordx4 v2, s[8:11], s44 offen offset:2048 sc1 lds\ns_mov_b32 exec_hi, -1" + post]
    def wread(s, j):
        slot = s % R
        va = 14 if slot == 3 else 13
        o = (slot % 3)*SLOT*(slot != 3) + j*32
        return [f"ds_read_b64_tr_b16 {vr(WB+4*j,2)}, v{va} offset:{o}", f"ds_read_b64_tr_b16 {vr(WB+4*j+2,2)}, v{va} offset:{o+1280}"]
    AW = 5
    areg = lambda s, b: AB + 8*(s % AW) + 4*b
    def issue_a(s):
        for b in range(2):
            if s < 12:
                post = "\ns_add_u32 s45, s45, 8192\ns_cmp_eq_u32 s45, s68\ns_cselect_b32 s45, s41, s45" if b else ""
                vm.op(f"buffer_load_dwordx4 {vr(areg(s,b),4)}, v15, s[12:15], s45 offen offset:{b*256} sc1" + post, ("A", s))
            else:
                post = "\ns_add_u32 s47, s47, 8192" if b else ""
                vm.op(f"buffer_load_dwordx4 {vr(areg(s,b),4)}, v15, s[24:27], s47 offen offset:{b*256} sc1" + post, ("A", s))
    def issue_w(s):
        for u in wgroup(s): vm.op(u, ("W", s))
    def run(stages, zero_first):
        vm.wait(("W", 0 if C("f2_deep", 1) else 1)); k("s_barrier")
        for j in range(5):
            for i in wread(stages[0], j): k(i)
        pending = []
        for n, s in enumerate(stages):
            if s == C("f2_sw", 99): k("s_setprio 0")
            if C("cyc") == 8 and s in (1, 5, 9): k.stamp({1: 1, 5: 2, 9: 3}[s])
            if C("f2_deep", 1):
                vm.wait(("W", s+1)); k("s_waitcnt lgkmcnt(0)\ns_barrier")
                pending = [(u, s+4) for u in wgroup(s+4)]
            elif s % 2 == 1:
                assert not pending
                vm.wait(("W", s+2)); k("s_waitcnt lgkmcnt(0)\ns_barrier")
                pending = [(u, s+3) for u in wgroup(s+3)] + [(u, s+4) for u in wgroup(s+4)]
            vm.wait(("A", s))
            for j in range(5):
                if s % 2 == 0 and not C("f2_deep", 1): k("s_waitcnt lgkmcnt(8)")
                for b in range(2):
                    k(mfma16(ACC + (5*b+j)*4, WB+4*j, areg(s, b), "0" if (zero_first and n == 0) else None))
                for i in wread(s+1, j): k(i)
                if ramp: ramp.pop(0)()
                elif pending:
                    u, t = pending.pop(0); vm.op(u, ("W", t))
            while ramp: ramp.pop(0)()
            if C("f2_deep", 1):
                for u, t in pending: vm.op(u, ("W", t))
                pending = []
            if s+AW <= stages[-1]: issue_a(s+AW)
        for u, t in pending: vm.op(u, ("W", t))
    NW = C("f2_nw", 0)
    if NW: k("s_barrier")
    for s in range(NW): issue_w(s)
    epi(); vm.drained()
    if C("cyc") == 9: k.stamp(5)
    lab = k.newlabel("f2o")
    k(f"""s_lshr_b32 s77, s32, 1
    s_lshl_b32 s77, s77, 4
    s_add_u32 s77, s77, {FL_H}
    s_lshl_b32 s77, s77, 7
    s_cmp_lg_u32 s4, 2
    s_cbranch_scc1 {lab}
    s_mov_b64 exec, 0xffff
    buffer_load_dwordx2 {vr(AB,2)}, v104, s[28:31], s77 offen sc1
    s_mov_b64 exec, -1
    {lab}:""")
    n0 = vm.n
    W0 = C("f2_w0", 2)
    for s in range(NW, W0): issue_w(s)
    k.srd(16, P_WO, 640*1280)
    k.srd(12, P_WS, HF_SZ, WS_HF)
    k.srd(24, P_WS, SZ, WS_OF)
    k.srd(20, P_X, SZ)
    lab = k.newlabel("f2p")
    k(f"s_cmp_lg_u32 s4, 2\ns_cbranch_scc1 {lab}\ns_waitcnt vmcnt({vm.n - n0})\ns_mov_b64 exec, 0xffff")
    poll(k, 104, "s77", AB, sleep=4, loaded=True)
    k(f"{lab}:\ns_barrier")
    k.stamp(4)
    A0 = C("f2_a0", 5)
    ramp = []
    xl = lambda: [vm.op(f"buffer_load_dwordx4 {vr(XR+4*i,4)}, v{126+i}, s[20:23], s43 offen", "x") for i in range(2)]
    for s in range(AW):
        items = [(lambda s=s: issue_a(s))] + ([(lambda s=s: issue_w(s+1))] if W0 <= s+1 < R else [])
        if s < A0:
            for f in items: f()
        else: ramp += items
    if A0 >= AW: xl()
    else: ramp.append(xl)
    run(list(range(12)), True)
    k("s_waitcnt lgkmcnt(0)\ns_barrier")
    issue_w(16)
    for j in range(5): k(f"v_xor_b32 v{4+j}, {32*j}, v3")
    k.srd(8, P_OUT, SZ)
    if C("cyc") != 9: k.stamp(5)
    lab = k.newlabel("f2q")
    k(f"s_cmp_lg_u32 s4, 0\ns_cbranch_scc1 {lab}")
    polln(k, f"s_lshr_b32 s78, s32, 2\ns_lshl_b32 s78, s78, 5\ns_add_u32 s78, s78, {FL_O}", 32, AB, sleep=C("o_sleep", 2))
    k(f"{lab}:\ns_waitcnt vmcnt(0)\ns_barrier\ns_setprio {C('prio_tail', 3)}")
    vm.drained()
    k.stamp(6)
    for s in range(12, 17): issue_a(s)
    for s in range(12, 17):
        more = s < 16
        if s == 16 and C("tail_eb", 0): k("s_waitcnt lgkmcnt(0)\ns_barrier")
        vm.wait(("A", s))
        for j in range(5):
            k(f"s_waitcnt lgkmcnt({8 if more else 8-2*j})")
            for b in range(2): k(mfma16(ACC + (5*b+j)*4, WB+4*j, areg(s, b)))
            if more:
                for i in wread(s+1, j): k(i)
    if not C("tail_eb", 0): k("s_barrier\ns_nop 4")
    for j in range(5):
        for b in range(2):
            k(f"ds_write_b128 v{4+j}, {vr(ACC+(5*b+j)*4,4)} offset:{(5*b+j)*1024}")
    k("s_waitcnt lgkmcnt(0)\ns_barrier")
    lab = k.newlabel("f2e"); lab2 = k.newlabel("f2f")
    RB = 16
    def rd(i):
        for q in range(4):
            for h in range(2):
                if i == 1 and q == 3: k("s_waitcnt lgkmcnt(13)")
                k(f"ds_read_b128 {vr(RB + 32*i + 8*q + 4*h, 4)}, v{124+i} offset:{q*20480 + h*256}")
    def fin(i):
        b = RB + 32*i; x = XR + 4*i; t = 80 + 8*i
        for e in range(4): k(f"v_lshlrev_b32 v{t+2*e}, 16, v{x+e}\nv_and_b32 v{t+2*e+1}, 0xffff0000, v{x+e}")
        k("s_waitcnt lgkmcnt(0)")
        for e in range(0, 8, 2): k(f"v_pk_add_f32 {vr(b+e,2)}, {vr(b+e,2)}, {vr(b+8+e,2)}\nv_pk_add_f32 {vr(b+16+e,2)}, {vr(b+16+e,2)}, {vr(b+24+e,2)}")
        for e in range(0, 8, 2): k(f"v_pk_add_f32 {vr(b+e,2)}, {vr(b+e,2)}, {vr(t+e,2)}")
        for e in range(0, 8, 2): k(f"v_pk_add_f32 {vr(b+e,2)}, {vr(b+e,2)}, {vr(b+16+e,2)}")
        for e in range(4): k(f"v_cvt_pk_bf16_f32 v{b+8+e}, v{b+2*e}, v{b+2*e+1}")
        k(f"buffer_store_dwordx4 {vr(b+8,4)}, v{126+i}, s[8:11], s43 offen{' sc1' if C('out_sc1') else ''}")
    rd(0)
    k(f"s_cmp_ge_u32 s4, 2\ns_cbranch_scc1 {lab}")
    rd(1); fin(1)
    k.label(lab)
    fin(0)

def phase_a2(k, force_fallback=False):
    k.L.append("    ; ---- A2: attention, two waves per SIMD alternate softmax and MFMA phases")
    SLOT = 26624; VOFF = 10240
    Lchk, Lchkr, Lloop, Lfin, Lslow, Lsl, Lend = [k.newlabel(x) for x in ("atc", "atcr", "atl", "atf", "ats", "atsl", "ate")]
    k("""s_and_b32 s34, s5, 7
    s_lshr_b32 s35, s5, 3
    s_lshl_b32 s32, s34, 2
    s_lshr_b32 s34, s35, 3
    s_add_u32 s32, s32, s34
    s_and_b32 s33, s35, 7""")
    Q1, Q2 = 16, 20
    K1, K2 = 24, 22
    V0, V1 = 28, 32
    P = 36; T = 44
    CC, O = 48, 64
    S = 80; U = 96
    k("v_and_b32 v3, 31, v1\nv_lshrrev_b32 v4, 5, v1\nv_mov_b32 v15, 0\nv_mov_b32 v100, 0\ns_mov_b32 s3, 0")
    lab = k.newlabel("a2p"); lab2 = k.newlabel("a2q")
    k(f"s_cmp_lg_u32 s4, 4\ns_cbranch_scc1 {lab}")
    get_tag(k, U)
    k(f"""s_mov_b32 s3, 1
    s_mul_i32 s76, s32, 20
    s_add_u32 s77, s76, 19
    s_lshr_b32 s76, s76, 7
    s_lshr_b32 s77, s77, 7
    s_sub_u32 s77, s77, s76
    s_lshl_b32 s78, s33, 1
    v_bfe_u32 v{U+4}, v1, 4, 1
    v_mul_u32_u24 v{U+4}, s77, v{U+4}
    v_add_u32 v{U+4}, s76, v{U+4}
    v_lshlrev_b32 v{U+4}, 4, v{U+4}
    v_add_u32 v{U}, s78, v1
    v_and_b32 v{U+1}, 15, v{U}
    v_mul_u32_u24 v15, 80, v4
    v_add3_u32 v15, v15, v{U+4}, v{U+1}
    v_add_u32 v15, {FL_QKV + 80}, v15
    v_lshlrev_b32 v15, 7, v15
    v_add_u32 v{U}, 12, v{U}
    v_and_b32 v{U}, 15, v{U}
    v_add_u32 v{U}, v{U}, v{U+4}
    v_add_u32 v{U}, {FL_QKV}, v{U}
    v_mov_b32 v{U+4}, v15
    s_mov_b64 exec, 0x00300030
    v_lshlrev_b32 v{U+4}, 7, v{U}
    s_mov_b64 exec, -1
    {lab}:""")
    k("v_mul_u32_u24 v5, 320, v4\nv_lshl_add_u32 v5, v3, 4, v5")
    k(f"""v_lshlrev_b32 v6, 12, v4
    v_lshl_add_u32 v6, v3, 3, v6
    v_add_u32 v7, 256, v6
    v_add_u32 v10, {VOFF}, v2
    s_lshl_b32 s37, s33, 3
    s_add_u32 s37, s37, s4
    s_lshl_b32 s38, s37, 5
    v_add_u32 v11, s38, v3
    v_lshlrev_b32 v11, 3, v11
    v_mov_b32 v12, v11
    v_lshl_add_u32 v11, v4, 15, v11
    s_mul_i32 s39, s32, 81920
    s_mov_b32 s68, 0x000fffff
    s_mov_b32 s69, 0x000fffff
    s_mov_b32 s70, -1
    s_mov_b32 s71, 0""")
    k.srd(8, P_WS, SZ, WS_QP)
    k.srd(12, P_WS, SZ, WS_KP)
    k.srd(16, P_WS, SZ, WS_VI)
    k.srd(20, P_WS, SZ, WS_OF)
    k(f"""s_lshr_b32 s40, s4, 1
    s_lshl_b32 s40, s40, 14
    s_and_b32 s44, s4, 1
    s_lshl_b32 s44, s44, 10
    s_add_u32 s40, s40, s44
    s_add_u32 s40, s40, s39
    s_lshl_b32 s45, s4, 8
    s_add_u32 s41, s45, s39
    s_add_u32 s41, s41, 65536
    s_add_u32 s45, s45, 8192
    s_mul_i32 s42, s4, 1280
    s_add_u32 s42, s42, s39
    s_lshl_b32 s44, s4, 10
    s_lshl_b32 s46, s4, 11
    s_add_u32 s46, s46, {VOFF}
    s_mov_b32 s24, s33
    s_mov_b32 s43, 0""")
    NEXT = "s_lshl_b32 s26, s24, 11\ns_add_u32 s25, s26, s40\ns_add_u32 s26, s26, s41\ns_mul_i32 s27, s24, 10240\ns_add_u32 s27, s27, s42\ns_add_u32 s24, s24, 1\ns_and_b32 s24, s24, 7"
    ADV = f"s_add_u32 s43, s43, {SLOT}\ns_cmp_eq_u32 s43, {3*SLOT}\ns_cselect_b32 s43, 0, s43"
    du = ["s_add_u32 m0, s43, s44\ns_nop 0\nbuffer_load_dwordx4 v2, s[12:15], s25 offen sc1 lds",
          "s_add_u32 m0, s43, s45\ns_mov_b64 exec, 0xffff\nbuffer_load_dwordx4 v2, s[12:15], s26 offen sc1 lds\ns_mov_b64 exec, -1",
          "s_add_u32 m0, s43, s46\ns_mov_b64 exec, s[68:69]\nbuffer_load_dwordx4 v5, s[16:19], s27 offen sc1 lds\ns_mov_b64 exec, -1",
          "s_add_u32 m0, m0, 384\ns_mov_b64 exec, s[68:69]\nbuffer_load_dwordx4 v5, s[16:19], s27 offen offset:640 sc1 lds\ns_mov_b64 exec, -1"]
    k(NEXT)
    k(f"""v_cmp_eq_u32 vcc, 20, v3
    v_cmp_eq_u32 s[34:35], 24, v3
    v_mov_b32 v13, 0x3f803f80
    s_or_b64 vcc, vcc, s[34:35]
    s_nop 1
    v_cndmask_b32 v{T}, 0, v13, vcc""")
    for e in range(1, 4): k(f"v_mov_b32 v{T+e}, v{T}")
    k("v_add_u32 v13, s46, v2\ns_not_b64 exec, s[68:69]")
    for slot in range(3):
        for i in range(2):
            k(f"ds_write_b128 v13, {vr(T,4)} offset:{slot*SLOT + i*1024}")
    k("s_mov_b64 exec, -1")
    for r in list(range(O, O+16)) + [Q2, Q2+1]: k(f"v_mov_b32 v{r}, 0")
    k("s_add_u32 s34, s39, 16384\ns_add_u32 s35, s39, 65536")
    k.stamp(3)
    k(f"s_cmp_lg_u32 s4, 4\ns_cbranch_scc1 {lab2}\ns_mov_b32 exec_lo, 0x003f003f\ns_mov_b32 exec_hi, 0x000f000f")
    poll(k, U+4, "0", U, sleep=1)
    k(f"{lab2}:\ns_barrier")
    k.stamp(4)
    k(f"buffer_load_dwordx2 {vr(Q1,2)}, v11, s[8:11], s39 offen sc1")
    k(f"buffer_load_dwordx2 {vr(Q1+2,2)}, v11, s[8:11], s34 offen sc1")
    k(f"s_mov_b64 exec, s[70:71]\nbuffer_load_dwordx2 {vr(Q2,2)}, v12, s[8:11], s35 offen sc1\ns_mov_b64 exec, -1")
    for u in du: k(u)
    k(NEXT); k(ADV)
    for u in du: k(u)
    if C("go_a2"):
        lab = k.newlabel("a2g")
        k(f"s_cmp_lg_u32 s4, 4\ns_cbranch_scc1 {lab}")
        set_flag(k, f"s_add_u32 s78, s5, {FL_GO}", U+6)
        k.label(lab)
    k("s_waitcnt vmcnt(4) lgkmcnt(0)\ns_barrier")
    def k1read(t):
        tt = t % 8; va = 6 + (tt & 1); a = tt >> 1
        return f"ds_read2st64_b64 {vr(K1,4)}, v{va} offset0:{a} offset1:{a+4}"
    def k2read(t):
        tt = t % 8; va = 6 + (tt & 1); a = tt >> 1
        return f"ds_read_b64 {vr(K2,2)}, v{va} offset:{8192 + a*512}"
    def vread(t, g):
        va = 10
        return f"ds_read_b128 {vr(V1 if g else V0,4)}, v{va} offset:{(t%8)*2048 + g*1024}"
    k(k1read(0)); k(k2read(0))
    k("s_waitcnt lgkmcnt(0)")
    k(mfma(S, K1, Q1, "0")); k(mfma8(S, K2, Q2))
    k(k1read(1)); k(k2read(1)); k(vread(0, 0)); k(vread(0, 1))
    k(f"s_mov_b32 s47, 0\ns_mov_b32 s76, {SLOT}\ns_mov_b32 s77, {(-2*SLOT) & 0xffffffff}\ns_nop 7")
    k(f"v_max3_f32 v{T}, v{S}, v{S+1}, v{S+2}\nv_max3_f32 v{T+1}, v{S+3}, v{S+4}, v{S+5}")
    k(f"v_max3_f32 v{T}, v{T}, v{S+6}, v{S+7}\nv_max3_f32 v{T+1}, v{T+1}, v{S+8}, v{S+9}")
    k(f"v_max3_f32 v{T}, v{T}, v{S+10}, v{S+11}\nv_max3_f32 v{T+1}, v{T+1}, v{S+12}, v{S+13}")
    k(f"v_max3_f32 v{T}, v{T}, v{S+14}, v{S+15}\nv_max_f32 v{T}, v{T}, v{T+1}")
    k(f"v_mov_b32 v{T+1}, v{T}\ns_nop 1\nv_permlane32_swap_b32 v{T}, v{T+1}\ns_nop 1\nv_max_f32 v{T}, v{T}, v{T+1}")
    for e in range(16): k(f"v_sub_f32 v{CC+e}, 0, v{T}")
    for e in range(16): k(f"v_sub_f32 v{S+e}, v{S+e}, v{T}")
    lab = k.newlabel("a2r")
    k(f"s_cmp_lg_u32 s4, 4\ns_cbranch_scc1 {lab}\nbuffer_load_dwordx2 {vr(U,2)}, v15, s[28:31], 0 offen sc1\n{lab}:")
    plo, pmid, phi = C("pp_lo", 0), C("pp_mid", 1), C("pp_hi", 3)
    k(f"s_setprio {plo}")
    k.stamp(5)
    if C("cyc") in (1, 2) and STAMP[0]: k("s_memtime s[82:83]\ns_waitcnt lgkmcnt(0)\ns_mov_b32 s98, 0\ns_mov_b32 s99, 0")
    TB = C("a2_tb", 4)
    LY = k.newlabel("atY"); Lout = k.newlabel("ato")
    nx = NEXT.split("\n"); adv = ADV.split("\n")
    def body(Y, top):
        k(".p2align 6")
        k.label(top)
        for t in range(8):
            for i in range(4):
                for e in range(4):
                    k(f"v_exp_f32 v{S+4*i+e}, v{S+4*i+e}")
                    if i == 0 and e == 0: k(f"s_setprio {pmid}")
                k(f"v_cvt_pk_bf16_f32 v{P+2*i}, v{S+4*i}, v{S+4*i+1}")
                k(f"v_cvt_pk_bf16_f32 v{P+2*i+1}, v{S+4*i+2}, v{S+4*i+3}")
            k(f"s_setprio {phi}")
            if t == TB and Y:
                k(f"s_waitcnt vmcnt(0)\ns_cmp_lg_u32 s3, 0\ns_cbranch_scc1 {Lchk}\n{Lchkr}:\ns_barrier")
            gaps = [[], [], [], []]
            if t == 0: gaps[0] = nx[:4]; gaps[2] = nx[4:]
            if t == 1:
                gaps[0] = adv
                gaps[2] = ["s_cmp_eq_u32 s47, 2", "s_cselect_b32 s36, s77, s76", "s_cmp_eq_u32 s47, 5", "s_cselect_b32 s36, s77, s36"]
            if t == 2 and C("a2_nod", 1):
                gaps[2] = ["s_cmp_ge_u32 s47, 6", f"s_cselect_b32 s25, {SZ}, s25", f"s_cselect_b32 s26, {SZ}, s26", f"s_cselect_b32 s27, {SZ}, s27"]
            if t == TB+1: gaps[0] = [du[0]]; gaps[2] = [du[1]]
            if t == TB+2: gaps[0] = [du[2]]; gaps[2] = [du[3]]
            if t == 5: gaps[3] = ["v_add_u32 v6, s36, v6", "v_add_u32 v7, s36, v7"]
            if t == 6: gaps[3] = ["v_add_u32 v10, s36, v10"]
            if t == 7: gaps[3 if TB == 5 else 2] = ["s_add_u32 s47, s47, 1", "s_cmp_lt_u32 s47, 8"]
            k("s_waitcnt lgkmcnt(0)")
            k(mfma(S, K1, Q1, vr(CC, 16))); k(k1read(t+2))
            for x in gaps[0]: k(x)
            k(mfma8(S, K2, Q2))
            mark = len(k.L)
            k(k2read(t+2))
            for x in gaps[1]: k(x)
            k(mfma(O, V0, P)); k(vread(t+1, 0))
            for x in gaps[2]: k(x)
            k(mfma(O, V1, P+4)); k(vread(t+1, 1))
            for x in gaps[3]: k(x)
            if t == TB and not Y: k("s_waitcnt vmcnt(0)\ns_barrier")
            pad = 12 - (sum(1 for x in k.L[mark:] if not x.endswith(":")) + 1)
            if pad > 0 and C("a2_pad", 1): k(f"s_nop {pad-1}")
            k(f"s_setprio {plo}")
        k(f"s_cbranch_scc1 {top}")
    k(f"s_cmp_ge_u32 s4, 4\ns_cbranch_scc1 {LY}")
    body(False, Lloop)
    k(f"s_branch {Lout}")
    body(True, LY)
    k.label(Lout)
    k.stamp(6)
    if C("cyc") in (1, 2) and STAMP[0]: k("s_memtime s[84:85]\ns_waitcnt lgkmcnt(0)\ns_sub_u32 s84, s84, s82\ns_mul_i32 s84, s84, 100\ns_lshr_b32 s84, s84, 10\ns_add_u32 s84, s84, s80\ns_mov_b32 s82, s80")
    if C("cyc") == 2 and STAMP[0]: k("s_mul_i32 s98, s98, 100\ns_lshr_b32 s98, s98, 10\ns_add_u32 s86, s98, s80\ns_mul_i32 s99, s99, 100\ns_lshr_b32 s99, s99, 10\ns_add_u32 s88, s99, s80")
    k(f"""s_setprio 3
    s_mul_i32 s72, s37, 40960
    s_lshl_b32 s73, s32, 10
    s_add_u32 s73, s73, s72
    s_lshr_b32 s74, s32, 2
    s_add_u32 s74, s74, 32
    s_lshl_b32 s74, s74, 10
    s_add_u32 s74, s74, s72
    s_and_b32 s75, s32, 1
    s_lshl_b32 s75, s75, 9
    s_add_u32 s74, s74, s75
    s_and_b32 s75, s32, 2
    s_lshl_b32 s75, s75, 2
    s_add_u32 s74, s74, s75
    s_waitcnt lgkmcnt(0)
    s_mov_b64 exec, s[70:71]
    v_mov_b32 v{T+2}, v{O+12}
    s_not_b64 exec, s[70:71]
    v_mov_b32 v{T+2}, v{O+8}
    s_mov_b64 exec, -1
    s_mov_b32 s72, {f32(2.0**60) if not force_fallback else f32(0.0)}
    v_cmp_ngt_f32 vcc, s72, v{T+2}
    s_nop 1
    s_cbranch_vccnz {Lslow}""")
    k.label(Lfin)
    k(f"v_rcp_f32 v{T}, v{T+2}\ns_nop 0")
    for e in range(12): k(f"v_mul_f32 v{O+e}, v{O+e}, v{T}")
    for e in range(6): k(f"v_cvt_pk_bf16_f32 v{P+e}, v{O+2*e}, v{O+2*e+1}")
    k(f"buffer_store_dwordx4 {vr(P,4)}, v2, s[20:23], s73 offen sc1")
    k(f"s_mov_b64 exec, s[70:71]\nbuffer_store_dwordx2 {vr(P+4,2)}, v2, s[20:23], s74 offen sc1\ns_mov_b64 exec, -1")
    k(f"s_waitcnt vmcnt(0)\ns_barrier\ns_cmp_lg_u32 s4, 4\ns_cbranch_scc1 {Lend}")
    set_flag(k, f"s_lshl_b32 s78, s33, 5\ns_add_u32 s78, s78, s32\ns_add_u32 s78, s78, {FL_O}", T)
    k.label(Lend)
    if C("cyc") == 3 and STAMP[0]: k("s_mul_i32 s96, s96, 100\ns_lshr_b32 s96, s96, 10\ns_add_u32 s86, s96, s80\ns_mul_i32 s98, s98, 100\ns_lshr_b32 s98, s98, 10\ns_add_u32 s88, s98, s80\ns_cmp_eq_u32 s82, 0\ns_cselect_b32 s86, 0, s86\ns_cselect_b32 s88, 0, s88")
    k.stamp(7); k.stamp_flush(0, "s5")
    k("s_endpgm")
    k.label(Lchk)
    k("s_mov_b32 s3, 0")
    poll(k, 15, "0", U, sleep=1, loaded=True)
    k(f"s_branch {Lchkr}")
    k.label(Lslow)
    M = CC
    k(f"""v_lshlrev_b32 v7, 3, v3
    v_lshl_add_u32 v6, v4, 15, v7
    v_mov_b32 v{M}, {f32(-3.0e38)}
    s_mov_b32 s40, s39
    s_mov_b32 s42, s39
    s_mov_b32 s47, 0""")
    for r in range(O, O+16): k(f"v_mov_b32 v{r}, 0")
    for r in range(V0, V0+8): k(f"v_mov_b32 v{r}, 0x3f803f80")
    k.label(Lsl)
    k(f"""s_add_u32 s41, s40, 16384
    s_add_u32 s43, s40, 65536
    buffer_load_dwordx2 {vr(K1,2)}, v6, s[12:15], s40 offen sc1
    buffer_load_dwordx2 {vr(K1+2,2)}, v6, s[12:15], s41 offen sc1
    buffer_load_dwordx2 {vr(K2,2)}, v7, s[12:15], s43 offen sc1
    s_mov_b64 exec, s[68:69]
    buffer_load_dwordx4 {vr(V0,4)}, v5, s[16:19], s42 offen sc1
    buffer_load_dwordx4 {vr(V1,4)}, v5, s[16:19], s42 offen offset:640 sc1
    s_mov_b64 exec, -1
    s_waitcnt vmcnt(0)""")
    k(mfma(S, K1, Q1, "0")); k(mfma8(S, K2, Q2))
    k("s_nop 15\ns_nop 3")
    k(f"v_max3_f32 v{T}, v{S}, v{S+1}, v{M}")
    for e in range(2, 16, 2): k(f"v_max3_f32 v{T}, v{T}, v{S+e}, v{S+e+1}")
    k(f"v_mov_b32 v{T+1}, v{T}\ns_nop 1\nv_permlane32_swap_b32 v{T}, v{T+1}\ns_nop 1\nv_max_f32 v{T}, v{T}, v{T+1}")
    k(f"v_sub_f32 v{T+1}, v{M}, v{T}\nv_exp_f32 v{T+1}, v{T+1}\nv_mov_b32 v{M}, v{T}")
    for e in range(16): k(f"v_mul_f32 v{O+e}, v{O+e}, v{T+1}")
    for e in range(16): k(f"v_sub_f32 v{S+e}, v{S+e}, v{T}")
    for e in range(16): k(f"v_exp_f32 v{S+e}, v{S+e}")
    k("s_nop 0")
    for e in range(8): k(f"v_cvt_pk_bf16_f32 v{P+e}, v{S+2*e}, v{S+2*e+1}")
    k("s_nop 1")
    k(mfma(O, V0, P)); k(mfma(O, V1, P+4))
    k(f"""s_nop 15
    s_nop 3
    s_add_u32 s40, s40, 256
    s_add_u32 s42, s42, 1280
    s_add_u32 s47, s47, 1
    s_cmp_lt_u32 s47, 64
    s_cbranch_scc1 {Lsl}
    v_mov_b32 v{T+2}, v{O+12}
    s_branch {Lfin}""")


DOC = """;
"""
def fused():
    k = Kern(NAME, 512, 512, 81920, sgpr=100 if STAMP[0] else 80)
    k("s_load_dwordx16 s[48:63], s[0:1], 0\ns_load_dwordx4 s[64:67], s[0:1], 64")
    k.stamp_init(); k.stamp(0, wait=False)
    k(f"""v_lshrrev_b32 v1, 6, v0
    s_and_b32 s5, s2, 255
    v_readfirstlane_b32 s4, v1
    v_and_b32 v1, 63, v0
    v_lshlrev_b32 v2, 4, v1
    s_mov_b32 s6, 0
    s_setprio 3""")
    if C("tag_early", 1):
        k.L.append("    ; workgroup 0 publishes this launch's hand-off tag through d_debug (zero at entry)")
        k(f"""s_or_b32 s7, s2, s4
        s_cmp_lg_u32 s7, 0
        s_cbranch_scc1 L_notag
        s_memrealtime s[76:77]
        v_mov_b32 v3, 0
        s_mov_b32 s74, 256
        s_mov_b32 s75, 0x00020000
        s_waitcnt lgkmcnt(0)
        s_mov_b32 s72, s{P_DBG}
        s_mov_b32 s73, s{P_DBG+1}
        s_or_b32 s76, s76, 1
        v_mov_b32 v4, s76
        v_mov_b32 v5, s77
        s_mov_b64 exec, 1
        buffer_store_dwordx2 v[4:5], v3, s[72:75], 0 offen sc1
        s_mov_b64 exec, -1
        L_notag:""")
    k(f"""
    s_cmp_ge_u32 s2, 512
    s_cbranch_scc1 L_end
    {"s_cmp_lt_u32 s2, 256" if C("ffirst", 1) else "s_cmp_ge_u32 s2, 256"}
    s_cbranch_scc1 L_roleF""")
    if C("noa1"): k("s_endpgm")
    k(A1_TILE.format(rb="s32", cb="s33"))
    k("s_cmp_ge_u32 s33, 15\ns_cbranch_scc1 L_skipA1\ns_cmp_lt_u32 s4, 4\ns_cbranch_scc1 L_a1c")
    a1_loader(k, "L_a2")
    k.label("L_roleF")
    k(f"s_setprio {C('prio_f0', 3)}")
    phase_f0(k)
    if C("f1_burst", 0) == 0: k(f"s_setprio {C('prio_f', 0)}")
    k.stamp(1)
    if C("nof1"): k("s_branch L_end")
    f2_pre(k)
    epi = phase_f1c(k)
    if C("nof2"):
        k.stamp(7); k.stamp_flush(1, "s5"); k("s_branch L_end")
    phase_f2(k, "L_end", epi)
    if STAMP[0]: k("s_waitcnt vmcnt(0)")
    k.stamp(7); k.stamp_flush(1, "s5")
    k.label("L_end"); k("s_endpgm")
    k.label("L_skipA1")
    after_kernarg(k); flags_srd(k)
    k("s_branch L_a2")
    k.label("L_a1c")
    a1_compute(k, "L_a2")
    k.label("L_a2")
    if C("noa2"): k("s_endpgm")
    k.mute = C("cyc") in (4, 5)
    phase_a2(k, C("ff"))
    k.label("L_code_end")
    t = build([k], single=True)
    return t.replace('.amdgcn_target', DOC + '.amdgcn_target', 1)

if __name__ == "__main__":
    STAMP[0] = 2 if "--dstamp" in sys.argv else ("--stamp" in sys.argv)
    HWID[0] = "--hwid" in sys.argv
    for a in sys.argv[2:]:
        if "=" in a:
            n, v = a.split("="); CFG[n] = int(v)
    open(sys.argv[1], "w").write(fused())
```
